```python
import torch

def _softmax(x, axis=-1):
    return torch.softmax(x, dim=axis)
def _gelu(x):
    return torch.nn.functional.gelu(x, approximate="tanh")
def _silu(x):
    return torch.nn.functional.silu(x)
def _sigmoid(x):
    return torch.sigmoid(x)
def _layernorm(x, axis=-1, eps=1e-5):
    m = x.mean(dim=axis, keepdim=True)
    v = x.var(dim=axis, keepdim=True, unbiased=False)
    return (x - m) / torch.sqrt(v + eps)
def _scatter_add(tgt, idx, src, axis=0):
    return tgt.clone().index_add_(axis, idx, src)
def _segment_sum(src, seg, n):
    out = torch.zeros((n,) + src.shape[1:], dtype=src.dtype)
    return out.index_add_(0, seg, src)
def _pad(x, pw):
    flat = tuple(v for pair in reversed(pw) for v in pair)
    return torch.nn.functional.pad(x, flat)

kernel_name = 'standalone__mha_block_cached__near_ridge'

def setup_inputs():

    _w = (lambda a: (lambda t: t.to(torch.bfloat16) if t.is_floating_point() else t)(torch.as_tensor(a)))
    B, Sq, D = 16, 128, 512
    H, Sk, Dh = 32, 1024, 128
    return {
        "x": _w((lambda *s: torch.randn(*s, dtype=torch.bfloat16) * 0.8)(B, Sq, D)),
        "k_cache": _w((lambda *s: torch.randn(*s, dtype=torch.bfloat16) * 0.8)(B, H, Sk, Dh)),
        "v_cache": _w((lambda *s: torch.randn(*s, dtype=torch.bfloat16) * 0.05)(B, H, Sk, Dh)),
        "wq": _w((lambda *s: torch.randn(*s, dtype=torch.bfloat16) * 0.8)(D, H * Dh) * (D ** -0.5)),
        "wo": _w((lambda *s: torch.randn(*s, dtype=torch.bfloat16) * 0.05)(H * Dh, D) * ((H * Dh) ** -0.5)),
    }

def reference(x, k_cache, v_cache, wq, wo):
    B, Sq, D = x.shape
    H, Dh = 32, 128
    q = (lambda x, *d: x.permute(*d))((x @ wq).reshape(B, Sq, H, Dh), 0, 2, 1, 3)
    scores = torch.einsum("bhqd,bhkd->bhqk", q, k_cache) * (Dh ** -0.5)
    p = _softmax(scores, axis=-1)
    o = torch.einsum("bhqk,bhkd->bhqd", p, v_cache)
    return (lambda x, *d: x.permute(*d))(o, 0, 2, 1, 3).reshape(B, Sq, H * Dh) @ wo
```

```python
import re

class Asm:
    def __init__(self):
        self.lines = []
        self.lds_q = []
        self.uid = 0
    def __call__(self, s):
        for ln in s.split("\n"):
            ln = ln.strip()
            if ln:
                self.lines.append(ln)
    def label(self, n): self.lines.append(n + ":")
    def newlabel(self, p="L"):
        self.uid += 1
        return f"{p}_{self.uid}"
    def lds_reset(self): self.lds_q = []
    def lds(self, text, tag=None):
        self(text)
        self.lds_q.append(tag)
        assert len(self.lds_q) <= 15, "too many LDS ops outstanding for exact counting"
    def lds_wait(self, *tags):
        idx = -1
        for t in tags:
            for i, q in enumerate(self.lds_q):
                if q == t: idx = max(idx, i)
        if idx < 0: return False
        n = len(self.lds_q) - 1 - idx
        self(f"s_waitcnt lgkmcnt({n})")
        self.lds_q = self.lds_q[idx + 1:]
        return True
    def lds_drain(self):
        if self.lds_q:
            self("s_waitcnt lgkmcnt(0)")
        self.lds_q = []
    def text(self): return "\n".join(self.lines) + "\n"

TRANS = ("v_exp_f32", "v_log_f32", "v_rcp_f32", "v_rsq_f32", "v_sqrt_f32", "v_sin_f32", "v_cos_f32")

def regs(tok):
    tok = tok.strip()
    tok = re.sub(r"^-", "", tok)
    m = re.match(r"^abs\((.*)\)$", tok)
    if m: tok = m.group(1)
    m = re.match(r"^\|(.*)\|$", tok)
    if m: tok = m.group(1)
    m = re.match(r"^([vas])(\d+)$", tok)
    if m:
        k, n = m.group(1), int(m.group(2))
        return {("v", n + 256)} if k == "a" else {(k, n)}
    m = re.match(r"^([vas])\[(\d+):(\d+)\]$", tok)
    if m:
        k, a, b = m.group(1), int(m.group(2)), int(m.group(3))
        off = 256 if k == "a" else 0
        kk = "v" if k == "a" else k
        return {(kk, i + off) for i in range(a, b + 1)}
    if tok in ("vcc", "vcc_lo", "vcc_hi"): return {("s", "vcc")}
    if tok in ("exec", "exec_lo", "exec_hi"): return {("s", "exec")}
    if tok == "m0": return {("s", "m0")}
    return set()

class Ins:
    pass

def parse(line):
    I = Ins()
    I.text = line
    line = line.split(";")[0].strip()
    parts = line.split(None, 1)
    I.op = parts[0]
    ops = []
    if len(parts) > 1:
        ops = [o.strip() for o in re.split(r",(?![^\[]*\])", parts[1])]
        if ops:
            last = ops[-1].split()
            I.mods = last[1:]
            ops[-1] = last[0] if last else ""
    if not hasattr(I, "mods"): I.mods = []
    I.ops = ops
    op = I.op
    I.kind = "other"; I.w = set(); I.r = set(); I.srcA = I.srcB = I.srcC = set(); I.data = set()
    I.ws = 1
    if op == "s_nop": I.ws = int(ops[0], 0) + 1; I.kind = "nop"
    elif op.startswith("v_mfma"):
        I.kind = "mfma"; I.w = regs(ops[0]); I.srcA = regs(ops[1]); I.srcB = regs(ops[2]); I.srcC = regs(ops[3])
        I.r = I.srcA | I.srcB | I.srcC
        I.passes = 8 if "32x32" in op else 4
    elif op.startswith("ds_read") or op.startswith("ds_bpermute") or op.startswith("ds_swizzle"):
        I.kind = "ds"; I.w = regs(ops[0]); I.r = set().union(*[regs(o) for o in ops[1:]])
    elif op.startswith("ds_"):
        I.kind = "ds"; I.r = set().union(*[regs(o) for o in ops])
    elif op.startswith("buffer_load") or op.startswith("global_load"):
        I.kind = "vmem"
        if "lds" in I.mods or "_lds_" in op:
            I.r = set().union(*[regs(o) for o in ops]) | {("s", "m0")}; I.dma = True
        else:
            I.w = regs(ops[0]); I.r = set().union(*[regs(o) for o in ops[1:]])
    elif op.startswith("buffer_store") or op.startswith("buffer_atomic") or op.startswith("global_store") or op.startswith("global_atomic"):
        I.kind = "vmem"; I.r = set().union(*[regs(o) for o in ops])
        if op.startswith("buffer_store_dwordx4") or op.startswith("buffer_store_dwordx3"):
            I.data = regs(ops[0])
        if op.startswith("global_store_dwordx4"): I.data = regs(ops[1])
        if "atomic" in op and "sc0" in I.mods: I.w = regs(ops[0])
    elif op.startswith("buffer_"):
        I.kind = "vmem"
    elif op.startswith("v_"):
        I.kind = "valu"
        I.trans = any(op.startswith(t) for t in TRANS)
        if op.startswith("v_permlane"):
            I.w = regs(ops[0]) | regs(ops[1]); I.r = set(I.w); I.perm = True
        elif op.startswith("v_cmp"):
            I.w = regs(ops[0]); I.r = set().union(*[regs(o) for o in ops[1:]])
        elif op.startswith("v_nop"):
            pass
        else:
            I.w = regs(ops[0]); I.r = set().union(set(), *[regs(o) for o in ops[1:]])
            if op.startswith("v_fmac") or op.startswith("v_writelane"): I.r |= I.w
            if op.startswith("v_add_co") or op.startswith("v_addc_co") or op.startswith("v_sub_co"):
                I.w |= regs(ops[1])
            if op.startswith("v_cndmask") and len(ops) == 3: I.r |= {("s", "vcc")}
        I.lane = op.startswith("v_readlane") or op.startswith("v_readfirstlane")
        I.dpp = "_dpp" in op or any(m.startswith("row_") or m.startswith("quad_perm") for m in I.mods)
    elif op.startswith("s_"):
        I.kind = "salu"
        if ops and not op.startswith("s_cmp") and not op.startswith("s_bitcmp") and not op.startswith("s_cbranch") and not op.startswith("s_waitcnt") and not op.startswith("s_branch") and not op.startswith("s_setpc"):
            I.w = regs(ops[0])
        I.r = set().union(set(), *[regs(o) for o in ops[1:]])
    return I

def check_hazards(lines, verbose=True):
    ins = []; labels = {}
    for ln in lines:
        s = ln.split(";")[0].strip()
        if not s or s.startswith("."): continue
        if s.endswith(":"):
            labels[s[:-1]] = len(ins); continue
        ins.append(parse(s))
    n = len(ins)
    preds = [[] for _ in range(n + 1)]
    calls = {}
    for i, I in enumerate(ins):
        if I.op == "s_call_b64":
            preds[labels[I.ops[1]]].append(i)
            calls.setdefault(I.ops[0], []).append(i + 1)
    for i, I in enumerate(ins):
        if I.op == "s_branch": preds[labels[I.ops[0]]].append(i)
        elif I.op.startswith("s_cbranch"):
            preds[labels[I.ops[0]]].append(i); preds[i + 1].append(i)
        elif I.op == "s_endpgm": pass
        elif I.op == "s_call_b64": pass
        elif I.op == "s_setpc_b64":
            for r in calls.get(I.ops[0], []): preds[r].append(i)
        else: preds[i + 1].append(i)
    vr = lambda s: {x for x in s if x[0] == "v"}
    sr = lambda s: {x for x in s if x[0] == "s"}
    def need(P, C):
        req = 0; why = ""
        def up(v, w):
            nonlocal req, why
            if v > req: req, why = v, w
        if P.kind == "valu":
            pw = vr(P.w)
            if C.kind == "mfma" and pw & C.r: up(2, "VALU->MFMA")
            if C.kind == "valu":
                if getattr(P, "trans", False) and not C.trans and pw & (C.r): up(1, "trans->VALU")
                if getattr(C, "perm", False) and pw & C.r: up(2, "VALU->permlane")
                if C.lane and pw & C.r: up(1, "VALU->readlane")
                if C.dpp and pw & C.r: up(2, "VALU->DPP")
                if sr(P.w) & sr(C.r): up(2, "VALU sgpr->VALU")
            if C.kind == "vmem" and sr(P.w) & sr(C.r): up(5, "VALU sgpr->VMEM")
        if P.kind == "mfma":
            big = {8: 12, 4: 8}[P.passes]; ov = {8: 10, 4: 6}[P.passes]; war = {8: 7, 4: 3}[P.passes]
            if C.kind == "mfma":
                if P.w & (C.srcA | C.srcB): up(big, "MFMA D->MFMA A/B")
                if P.w & C.srcC and P.w != C.srcC: up(ov, "MFMA D->MFMA C overlap")
                if P.w & C.w and not (P.w & C.srcC): up(big, "MFMA D->MFMA D WAW (conservative)")
            elif C.kind in ("valu", "vmem", "ds"):
                if P.w & (C.r | C.w): up(big, "MFMA D->VALU/MEM")
                if C.kind == "valu" and P.srcC & C.w: up(war, "MFMA C WAR")
        if P.kind == "salu" and ("s", "m0") in P.w and C.kind == "vmem" and getattr(C, "dma", False): up(1, "M0->DMA")
        if P.kind == "vmem" and P.data:
            if C.kind == "valu" and P.data & C.w: up(2, "store data WAR")
            elif P.data & C.w: up(1, "store data WAR")
        return req, why
    bad = 0
    MAXD = 13
    for ci, C in enumerate(ins):
        if C.kind in ("nop", "other"): continue
        stack = [(p, 0) for p in preds[ci]]
        seen = {}
        while stack:
            pi, d = stack.pop()
            if pi in seen and seen[pi] <= d: continue
            seen[pi] = d
            P = ins[pi]
            req, why = need(P, C)
            if req > d:
                bad += 1
                if verbose: print(f"HAZARD {why}: need {req} have {d}\n   P[{pi}]: {P.text}\n   C[{ci}]: {C.text}")
            nd = d + P.ws
            if nd < MAXD:
                for q in preds[pi]: stack.append((q, nd))
    return bad
```

```python
import sys, math, struct
sys.path.insert(0, "work")
from asmlib import Asm, check_hazards

KN = "standalone__mha_block_cached__near_ridge_kernel"
def f2u(x): return struct.unpack("<I", struct.pack("<f", x))[0]
CSC = math.log2(math.e) / math.sqrt(128.0)
THR = 8.0 / CSC
MINIT = -3.0e38

T = 16384
LK, LV, LX, LW = 0, 3 * T, 6 * T, 8 * T
WS_OT = 0
WS_WT = 16 << 20
WS_FLAG = 20 << 20
WS_STAMP = 21 << 20
WS_SIZE = 22 << 20
SK, SV, SX, SWQ, SWO, SWS, SOUT, SDBG = 4, 8, 12, 16, 20, 24, 28, 32
def srd(b): return f"s[{b}:{b+3}]"
sW, sW4K, sKoff, sVoff, sKcur, sVcur, sKd, sT, sC, sSw1, sBaseB, sSw2 = [f"s{i}" for i in range(36, 48)]
sXoff, sWoff, sEpar, sT0, sT1, sT2 = [f"s{i}" for i in range(48, 54)]
sLink = "s[54:55]"
sOT, sVd, sM32K, sAoff, sWToff, sB2, sT3 = [f"s{i}" for i in range(56, 63)]
vKa = [f"v{i}" for i in range(16, 24)]
vVa = [f"v{i}" for i in range(24, 28)]
vKd = [f"v{i}" for i in range(28, 32)]
vVd = "v32"; vXd = ["v33", "v34"]; vWd = "v35"
vXa = [f"v{i}" for i in range(36, 40)]
vWa = [f"v{i}" for i in range(40, 44)]
vL16 = "v44"; vM = "v45"; vNegM = "v46"; vThr = "v47"; vL0 = "v48"; vL1 = "v49"; vMx0 = "v50"; vMx1 = "v51"
vTa = [f"v{i}" for i in range(52, 56)]
vWoD = "v56"
O0, SA, SB, P0 = 64, 128, 160, 192
AQ, AACC, AKF, AVF = 0, 32, 96, 128
def vt(b, n): return f"v[{b}:{b+n-1}]"
def at(b, n): return f"a[{b}:{b+n-1}]"
MF = "v_mfma_f32_32x32x16_bf16"

QP_T0 = 4
WO_T = 2

class Gen:
    def __init__(self, stamps=False, nt=True):
        self.A = Asm()
        self.stamps = stamps
        self.nt = " nt" if nt else ""
        self.vm = []
        self.nstamp = 0
    def vm_issue(self, tag, n): self.vm += [tag] * n
    def vm_need(self, *tags):
        idx = -1
        for i, q in enumerate(self.vm):
            if q in tags: idx = i
        assert idx >= 0, tags
        return min(63, len(self.vm) - 1 - idx)
    def stamp(self, k):
        if self.stamps:
            self.A(f"s_memtime s[{80+2*k}:{81+2*k}]")
    def dma(self, voffs, srdb, soffs, flags):
        A = self.A
        for i in range(4):
            A(f"buffer_load_dwordx4 {voffs[i]}, {srd(srdb)}, {soffs[i]} offen offset:{i*1024}{flags} lds")
    def adv_kv(self, s):
        A = self.A
        A(f"s_add_u32 {s}, {s}, {T}")
        A(f"s_cmp_eq_u32 {s}, {sSw1}"); A(f"s_cselect_b32 {s}, {sBaseB}, {s}")
        A(f"s_cmp_eq_u32 {s}, {sSw2}"); A(f"s_cselect_b32 {s}, 0x40000000, {s}")
    def issue_K(self, slot=None):
        A = self.A
        if slot is None: A(f"s_add_u32 m0, {sKcur}, {sW4K}")
        else: A(f"s_add_u32 m0, {sW4K}, {LK + slot*T}")
        A("s_nop 0")
        self.dma(vKd, SK, [sKoff] * 4, self.nt)
        self.adv_kv(sKoff)
        if slot is None:
            A(f"s_cmp_eq_u32 {sKcur}, {LK + 2*T}"); A(f"s_cselect_b32 {sKd}, {sM32K}, {T}")
            A(f"s_add_u32 {sKcur}, {sKcur}, {sKd}")
    def issue_V(self, slot=None):
        A = self.A
        if slot is None: A(f"s_add_u32 m0, {sVcur}, {sW4K}")
        else: A(f"s_add_u32 m0, {sW4K}, {LV + slot*T}")
        A("s_nop 0")
        self.dma([vVd] * 4, SV, [sVoff] * 4, self.nt)
        self.adv_kv(sVoff)
        if slot is None:
            A(f"s_cmp_eq_u32 {sVcur}, {LV + 2*T}"); A(f"s_cselect_b32 {sVd}, {sM32K}, {T}")
            A(f"s_add_u32 {sVcur}, {sVcur}, {sVd}")
    def issue_strided(self, m0expr, voffs, srdb, soff, step, adv):
        A = self.A
        for s in m0expr: A(s)
        A(f"s_add_u32 {sT0}, {soff}, {step}")
        A(f"s_add_u32 {sT1}, {soff}, {2*step}")
        A(f"s_add_u32 {sT2}, {soff}, {3*step}")
        self.dma(voffs, srdb, [soff, sT0, sT1, sT2], "")
        if adv: A(f"s_add_u32 {soff}, {soff}, {adv}")
    def issue_X(self, base=None):
        m = [f"s_add_u32 m0, {sW4K}, {base}"] if base is not None else \
            [f"s_add_u32 {sT0}, {sEpar}, {LX}", f"s_add_u32 m0, {sT0}, {sW4K}"]
        self.issue_strided(m, [vXd[0], vXd[1], vXd[0], vXd[1]], SX, sXoff, 8192 - 1024, 128)
    def issue_Wq(self, base=None):
        m = [f"s_add_u32 m0, {sW4K}, {base}"] if base is not None else \
            [f"s_add_u32 {sT0}, {sEpar}, {LW}", f"s_add_u32 m0, {sT0}, {sW4K}"]
        self.issue_strided(m, [vWd] * 4, SWQ, sWoff, 32768 - 1024, 524288)

    def interleave(self, mfmas, reads, nahead, pre, gaps):
        A = self.A
        n = len(mfmas)
        for i in range(min(nahead, n)):
            for tx, tg in reads[i]: A.lds(tx, tg)
        if pre: pre()
        for i in range(n):
            A.lds_wait(*mfmas[i][1])
            A(mfmas[i][0])
            if i + nahead < n:
                for tx, tg in reads[i + nahead]: A.lds(tx, tg)
            for l in gaps[i]: A(l)
    @staticmethod
    def spread(fill, ngaps, first=0):
        cost = lambda l: 8 if l.startswith("v_exp") or l.startswith("v_rcp") else 4
        tot = sum(cost(l) for l in fill)
        gaps = [[] for _ in range(ngaps)]
        acc = 0; k = ngaps - first
        for l in fill:
            g = first + min(k - 1, int((acc + cost(l) / 2) * k / tot))
            gaps[g].append(l); acc += cost(l)
        return gaps
    def exp_ops(self, S, lo, hi):
        ops = []
        fma = lambda i: f"v_fma_f32 v{S+i}, v{S+i}, {sC}, {vNegM}"
        ex = lambda i: f"v_exp_f32 v{S+i}, v{S+i}"
        add = lambda i: f"v_add_f32 {vL0 if i % 2 == 0 else vL1}, {vL0 if i % 2 == 0 else vL1}, v{S+i}"
        cvt = lambda i: f"v_cvt_pk_bf16_f32 v{P0 + i//2}, v{S+i}, v{S+i+1}"
        prs = list(range(lo, hi, 2))
        for k, i in enumerate(prs):
            ops += [fma(i), fma(i + 1)]
            if k > 0: ops += [add(prs[k-1])]
            ops += [ex(i)]
            if k > 0: ops += [add(prs[k-1] + 1)]
            ops += [ex(i + 1)]
            if k > 0: ops += [cvt(prs[k-1])]
        ops += ["s_nop 0", add(prs[-1]), add(prs[-1] + 1), cvt(prs[-1])]
        return ops
    def max_ops(self, S):
        ops = []
        for b, mx in ((0, vMx0), (16, vMx1)):
            o = [f"v_max3_f32 {mx}, v{S+b}, v{S+b+1}, v{S+b+2}"]
            for i in range(3, 15, 2): o.append(f"v_max3_f32 {mx}, {mx}, v{S+b+i}, v{S+b+i+1}")
            ops.append(o)
        out = []
        for x, y in zip(*ops): out += [x, y]
        out.append(f"v_max3_f32 {vMx0}, {vMx0}, v{S+15}, v{S+31}")
        out.append(f"v_max_f32 {vMx0}, {vMx0}, {vMx1}")
        return out
    def qk_lists(self, Sn):
        mf, rd = [], []
        for i in range(16):
            kb, s = i // 8, i % 8
            fr = AKF + 4 * (i % 8)
            d = vt(Sn + 16 * kb, 16)
            mf.append((f"{MF} {d}, {at(fr,4)}, {at(AQ+4*s,4)}, {'0' if s == 0 else d}", [("k", i)]))
            rd.append([(f"ds_read_b128 {at(fr,4)}, {vKa[s]} offset:{kb*8192}", ("k", i))])
        return mf, rd
    def pv_lists(self):
        mf, rd = [], []
        for i in range(16):
            ks, blk = i // 4, i % 4
            fr = AVF + 4 * (i % 8)
            d = vt(O0 + 16 * blk, 16)
            mf.append((f"{MF} {d}, {at(fr,4)}, {vt(P0+4*ks,4)}, {d}", [("v", i)]))
            rd.append([(f"ds_read_b64_tr_b16 {at(fr,2)}, {vVa[blk]} offset:{ks*4096}", ("v", i)),
                       (f"ds_read_b64_tr_b16 {at(fr+2,2)}, {vVa[blk]} offset:{ks*4096+2048}", ("v", i))])
        return mf, rd
    def wait_ladder(self, need):
        A = self.A
        vals = sorted(set(need.values()), reverse=True)
        if len(vals) > 4:
            import itertools
            best = None
            for comb in itertools.combinations(vals, 4):
                if min(comb) != vals[-1]: continue
                loss = sum(v - max(c for c in comb if c <= v) for v in need.values())
                if best is None or loss < best[0]: best = (loss, comb)
            vals = sorted(best[1], reverse=True)
        lvl = {t: max(c for c in vals if c <= v) for t, v in need.items()}
        done = A.newlabel("Lw")
        A(f"s_waitcnt vmcnt({vals[0]})")
        for v in vals[1:]:
            mask = 0
            for t, l in lvl.items():
                if l <= v: mask |= 1 << t
            A(f"s_bitcmp1_b32 0x{mask:08x}, {sT}")
            A(f"s_cbranch_scc0 {done}")
            A(f"s_waitcnt vmcnt({v})")
        A.label(done)
        return lvl

    def simulate_loop(self):
        n1, n2 = {}, {}
        for t in range(32):
            n1[t] = self.vm_need(("K", t + 1)) if t < 31 else 63
            if QP_T0 <= t + 1 < QP_T0 + 8: self.vm_issue(("E", t + 1), 8)
            if t + 1 == WO_T: self.vm_issue(("E", t + 1), 4)
            self.vm_issue(("V", t + 2), 4)
            n2[t] = self.vm_need(("V", t), ("E", t))
            self.vm_issue(("K", t + 4), 4)
            if t == WO_T: self.vm_issue(("WT",), 4)
            if t == 15: self.vm_issue(("OA",), 8)
        return n1, n2

    def body(self, par, n1, n2):
        A = self.A
        S, Sn = (SA, SB) if par == 0 else (SB, SA)
        sel = lambda d: {t: v for t, v in d.items() if t % 2 == par}
        A.lds_reset()
        self.wait_ladder(sel(n1))
        A("s_barrier")
        mf, rd = self.qk_lists(Sn)
        def pre1():
            emask = sum(1 << t for t in range(32) if QP_T0 <= t + 1 < QP_T0 + 8)
            l1 = A.newlabel("Le");
            A(f"s_bitcmp1_b32 0x{emask:08x}, {sT}"); A(f"s_cbranch_scc0 {l1}")
            self.issue_X(); self.issue_Wq()
            A(f"s_xor_b32 {sEpar}, {sEpar}, {T}")
            A.label(l1)
            if (WO_T - 1) % 2 == par:
                l2 = A.newlabel("Le")
                A(f"s_cmp_eq_u32 {sT}, {WO_T-1}"); A(f"s_cbranch_scc0 {l2}")
                A(f"s_lshr_b32 {sT3}, s2, 2"); A(f"s_lshl_b32 {sT3}, {sT3}, 16")
                A(f"s_and_b32 {sT0}, s2, 3"); A(f"s_lshl_b32 {sT0}, {sT0}, 8"); A(f"s_add_u32 {sT3}, {sT3}, {sT0}")
                self.issue_strided([f"s_add_u32 m0, {sW4K}, {LW + (WO_T % 2) * T}"], [vWoD] * 4, SWO, sT3, 4096 - 1024, 0)
                A.label(l2)
            self.issue_V()
        fill = self.exp_ops(S, 0, 24)
        vupd = [f"v_add_u32 {r}, {sVd}, {r}" for r in vVa]
        head = fill[:10]; fill = fill[10:]
        def pre1b():
            pre1()
            for l in head: A(l)
        gaps = self.spread(fill + vupd, 16)
        self.interleave(mf, rd, 6, pre1b, gaps)
        self.wait_ladder(sel(n2))
        A("s_barrier")
        mf, rd = self.pv_lists()
        rest = self.exp_ops(S, 24, 32)
        def pre2():
            self.issue_K()
            for l in rest[:8]: A(l)
        g1 = self.spread(rest[8:], 9)
        kupd = [f"v_add_u32 {r}, {sKd}, {r}" for r in vKa]
        g2 = self.spread(self.max_ops(Sn) + kupd, 16, first=7)
        gaps = [(g1[i] if i < 9 else []) + g2[i] for i in range(16)]
        self.interleave(mf, rd, 6, pre2, gaps)

    def qpair_sub(self):
        A = self.A
        A.label("L_qpair")
        A.lds_reset()
        for s in range(4):
            A.lds(f"ds_read_b128 {at(AKF+4*s,4)}, {vXa[s]}", ("x", s))
        mf, rd = [], []
        for i in range(16):
            s, blk = i // 4, i % 4
            fr = AVF + 4 * (i % 8)
            d = at(AACC + 16 * blk, 16)
            mf.append((f"{MF} {d}, {at(fr,4)}, {at(AKF+4*s,4)}, {d}", [("w", i), ("x", s)]))
            rd.append([(f"ds_read_b64_tr_b16 {at(fr,2)}, {vWa[blk]} offset:{s*4096}", ("w", i)),
                       (f"ds_read_b64_tr_b16 {at(fr+2,2)}, {vWa[blk]} offset:{s*4096+1024}", ("w", i))])
        self.interleave(mf, rd, 5, None, [[] for _ in range(16)])
        A(f"s_setpc_b64 {sLink}")
    def qfin_sub(self):
        A = self.A
        A.label("L_qfin")
        A("s_nop 11")
        for s in range(8):
            b = AACC + 8 * s
            t = 208 + 8 * (s % 2)
            for j in range(8): A(f"v_accvgpr_read_b32 v{t+j}, a{b+j}")
            for j in range(4): A(f"v_cvt_pk_bf16_f32 v{t+2*j}, v{t+2*j}, v{t+2*j+1}")
            for j in range(4): A(f"v_accvgpr_write_b32 a{AQ+4*s+j}, v{t+2*j}")
        A("s_nop 1")
        A(f"s_setpc_b64 {sLink}")
    def zero_acc(self):
        for i in range(64): self.A(f"v_accvgpr_write_b32 a{AACC+i}, 0")
    def reset_state(self):
        A = self.A
        for i in range(64): A(f"v_mov_b32 v{O0+i}, 0")
        A(f"v_mov_b32 {vM}, 0x{f2u(MINIT):08x}"); A(f"v_mov_b32 {vThr}, 0x{f2u(MINIT):08x}")
        A(f"v_mov_b32 {vNegM}, 0x{f2u(-MINIT*CSC):08x}")
        A(f"v_mov_b32 {vL0}, 0"); A(f"v_mov_b32 {vL1}, 0")
    def epilogue_sub(self):
        A = self.A
        A.label("L_epi")
        A(f"v_add_f32 {vL0}, {vL0}, {vL1}")
        A(f"v_mov_b32 {vL1}, {vL0}")
        A("s_nop 1")
        A(f"v_permlane32_swap_b32 {vL0}, {vL1}")
        A(f"v_add_f32 {vL0}, {vL0}, {vL1}")
        A(f"v_rcp_f32 {vL0}, {vL0}")
        A("s_nop 7")
        for ks in range(8):
            b = O0 + 8 * ks
            for j in range(8): A(f"v_mul_f32 v{b+j}, {vL0}, v{b+j}")
            for j in range(4): A(f"v_cvt_pk_bf16_f32 v{b+j}, v{b+2*j}, v{b+2*j+1}")
            if ks % 2 == 0:
                A(f"buffer_store_dwordx4 {vt(b,4)}, {vL16}, {srd(SWS)}, {sOT} offen sc1")
            else:
                A(f"buffer_store_dwordx4 {vt(b,4)}, {vL16}, {srd(SWS)}, {sOT} offen offset:2048 sc1")
                A(f"s_add_u32 {sOT}, {sOT}, 4096")
        A(f"s_setpc_b64 {sLink}")

    def init_common(self):
        A = self.A
        A("s_cmp_ge_u32 s2, 256"); A("s_cbranch_scc1 L_end")
        self.stamp(0)
        A("s_load_dwordx16 s[64:79], s[0:1], 0")
        A("v_lshrrev_b32 v1, 6, v0")
        A("v_and_b32 v2, 63, v0")
        A(f"v_readfirstlane_b32 {sW}, v1")
        A(f"v_lshlrev_b32 {vL16}, 4, v2")
        A("s_nop 1")
        A(f"s_lshl_b32 {sW4K}, {sW}, 12")
    def make_srd(self, b, p, size):
        A = self.A
        A(f"s_mov_b32 s{b}, s{p}"); A(f"s_mov_b32 s{b+1}, s{p+1}")
        A(f"s_mov_b32 s{b+2}, 0x{size:x}"); A(f"s_mov_b32 s{b+3}, 0x20000")

    def kernelA(self):
        A = self.A
        self.init_common()
        A("v_lshrrev_b32 v3, 4, v2"); A("v_and_b32 v4, 15, v2")
        A("v_lshl_add_u32 v5, v1, 4, v3")
        A("v_lshrrev_b32 v6, 3, v2"); A("v_lshl_add_u32 v6, v1, 5, v6")
        A("v_and_b32 v7, 7, v2"); A("v_xor_b32 v7, v7, v3"); A("v_lshlrev_b32 v7, 4, v7")
        A(f"v_lshl_add_u32 {vXd[0]}, v6, 10, v7")
        A(f"v_xor_b32 {vXd[1]}, 64, {vXd[0]}")
        A("v_lshlrev_b32 v8, 2, v3"); A("v_xor_b32 v8, v8, v4"); A("v_lshlrev_b32 v8, 4, v8")
        A(f"v_lshl_add_u32 {vWd}, v5, 13, v8")
        A(f"v_lshl_add_u32 {vVd}, v5, 8, v8")
        A(f"v_lshl_add_u32 {vWoD}, v5, 10, v8")
        A("v_xor_b32 v9, v4, v3"); A("v_lshlrev_b32 v9, 4, v9")
        A(f"v_lshl_add_u32 {vKd[0]}, v5, 8, v9")
        for i in range(1, 4): A(f"v_xor_b32 {vKd[i]}, {64*i}, {vKd[0]}")
        A(f"s_and_b32 {sT0}, s2, 1"); A(f"s_lshl_b32 {sT0}, {sT0}, 3")
        A(f"s_bfe_u32 {sT1}, s2, 0x30003"); A(f"s_add_u32 {sT0}, {sT0}, {sT1}")
        A(f"s_bfe_u32 {sT1}, s2, 0x20001"); A(f"s_lshl_b32 {sT1}, {sT1}, 3")
        A(f"s_lshr_b32 {sT2}, s2, 6"); A(f"s_add_u32 {sT1}, {sT1}, {sT2}")
        A(f"s_lshl_b32 {sXoff}, {sT0}, 17")
        A(f"s_lshl_b32 {sWoff}, {sT1}, 8")
        A(f"s_lshl_b32 {sT2}, {sT0}, 5"); A(f"s_add_u32 {sT2}, {sT2}, {sT1}")
        A(f"s_lshl_b32 {sKoff}, {sT2}, 18"); A(f"s_mov_b32 {sVoff}, {sKoff}")
        A(f"s_add_u32 {sSw1}, {sKoff}, 0x40000"); A(f"s_add_u32 {sBaseB}, {sKoff}, 0x100000")
        A(f"s_add_u32 {sSw2}, {sKoff}, 0x140000")
        A(f"s_lshl_b32 {sT0}, {sT0}, 1"); A(f"s_lshr_b32 {sT2}, {sW}, 1"); A(f"s_add_u32 {sT0}, {sT0}, {sT2}")
        A(f"s_lshl_b32 {sT0}, {sT0}, 5"); A(f"s_add_u32 {sT0}, {sT0}, {sT1}"); A(f"s_lshl_b32 {sT0}, {sT0}, 14")
        A(f"s_and_b32 {sT2}, {sW}, 1"); A(f"s_lshl_b32 {sT2}, {sT2}, 10"); A(f"s_add_u32 {sOT}, {sT0}, {sT2}")
        A(f"s_mov_b32 {sC}, 0x{f2u(CSC):08x}"); A(f"s_mov_b32 {sM32K}, {-2*T}")
        A("s_waitcnt lgkmcnt(0)")
        self.make_srd(SX, 64, 2 << 20); self.make_srd(SWQ, 70, 4 << 20)
        XS = [LX, LX + T, LK + 2 * T]; WS_ = [LW, LW + T, LV + 2 * T]
        for i in range(3):
            self.issue_X(XS[i]); self.vm_issue(("P", i), 4)
            self.issue_Wq(WS_[i]); self.vm_issue(("P", i), 4)
            if i == 0:
                self.make_srd(SK, 66, 128 << 20); self.make_srd(SV, 68, 128 << 20)
        self.issue_K(0); self.vm_issue(("K", 0), 4)
        self.make_srd(SWO, 72, 4 << 20); self.make_srd(SWS, 78, WS_SIZE)
        self.stamp(1)
        A("v_and_b32 v6, 31, v2"); A("v_lshrrev_b32 v7, 5, v2")
        A("v_xor_b32 v8, v7, v4"); A("v_lshlrev_b32 v8, 4, v8")
        A(f"v_lshl_add_u32 {vKa[0]}, v6, 8, v8")
        for s in range(1, 8): A(f"v_xor_b32 {vKa[s]}, {32*s}, {vKa[0]}")
        A("v_bfe_u32 v8, v2, 1, 3"); A("v_xor_b32 v8, v8, v7"); A("v_lshlrev_b32 v8, 4, v8")
        A("v_lshl_add_u32 v9, v1, 5, v6"); A("v_lshl_add_u32 v8, v9, 7, v8")
        A(f"v_add_u32 {vXa[0]}, {LX}, v8")
        for s in range(1, 4): A(f"v_xor_b32 {vXa[s]}, {32*s}, {vXa[0]}")
        A("v_bfe_u32 v8, v2, 2, 2"); A("v_and_b32 v9, 3, v2"); A("v_and_b32 v10, 1, v3")
        A("v_lshlrev_b32 v11, 6, v8")
        A("v_lshl_add_u32 v11, v10, 5, v11")
        A("v_lshl_add_u32 v12, v7, 2, v8")
        A("v_lshl_add_u32 v12, v12, 8, v11")
        A("v_lshl_add_u32 v13, v9, 3, v12")
        A(f"v_add_u32 {vVa[0]}, {LV + 2*T}, v13")
        for b in range(1, 4): A(f"v_xor_b32 {vVa[b]}, {64*b}, {vVa[0]}")
        A("v_lshl_add_u32 v13, v7, 3, v8"); A("v_lshl_add_u32 v13, v13, 8, v11")
        A("v_and_b32 v14, 1, v9"); A("v_lshlrev_b32 v14, 1, v14"); A("v_lshrrev_b32 v15, 1, v9"); A("v_or_b32 v14, v14, v15")
        A("v_lshl_add_u32 v13, v14, 3, v13")
        A(f"v_add_u32 {vWa[0]}, {LW}, v13")
        for b in range(1, 4): A(f"v_xor_b32 {vWa[b]}, {64*b}, {vWa[0]}")
        A("v_lshl_add_u32 v13, v7, 2, v8"); A("v_lshl_add_u32 v13, v1, 4, v13"); A("v_lshlrev_b32 v13, 8, v13")
        A("v_lshl_add_u32 v13, v8, 6, v13")
        A("v_and_b32 v14, 1, v9"); A("v_lshlrev_b32 v14, 2, v14"); A("v_lshl_add_u32 v14, v10, 1, v14"); A("v_add_u32 v14, v14, v15")
        A("v_lshl_add_u32 v13, v14, 3, v13")
        A(f"v_add_u32 {vTa[0]}, {LW + (WO_T % 2) * T}, v13")
        for b in range(1, 4): A(f"v_xor_b32 {vTa[b]}, {64*b}, {vTa[0]}")
        self.zero_acc()
        self.reset_state()
        A(f"s_mov_b32 {sKcur}, {LK}"); A(f"s_mov_b32 {sVcur}, {LV + 2*T}"); A(f"s_mov_b32 {sEpar}, {(QP_T0 % 2) * T}")
        for i in range(8):
            A(f"s_waitcnt vmcnt({self.vm_need(('P', i))})")
            A("s_barrier")
            if i == 0: self.stamp(2)
            if 1 <= i <= 5:
                j = i + 2
                self.issue_X(XS[j % 3]); self.vm_issue(("P", j), 4)
                self.issue_Wq(WS_[j % 3]); self.vm_issue(("P", j), 4)
            if i == 1: self.issue_K(1); self.vm_issue(("K", 1), 4)
            if i == 2: self.issue_V(0); self.vm_issue(("V", 0), 4)
            if i == 3: self.issue_V(1); self.vm_issue(("V", 1), 4)
            if i == 6: self.issue_K(2); self.vm_issue(("K", 2), 4)
            A(f"s_call_b64 {sLink}, L_qpair")
            nx = XS[(i + 1) % 3] - XS[i % 3]; nw = WS_[(i + 1) % 3] - WS_[i % 3]
            if i == 7:
                nx = (LX + (QP_T0 % 2) * T) - XS[7 % 3]; nw = (LW + (QP_T0 % 2) * T) - WS_[7 % 3]
            if nx:
                for r in vXa: A(f"v_add_u32 {r}, {nx}, {r}")
            if nw:
                for r in vWa: A(f"v_add_u32 {r}, {nw}, {r}")
        A(f"s_sub_u32 {sXoff}, {sXoff}, 1024")
        A(f"s_sub_u32 {sWoff}, {sWoff}, {8*524288 - 1024}")
        A(f"s_call_b64 {sLink}, L_qfin")
        self.stamp(3)
        A.lds_reset()
        mf, rd = self.qk_lists(SA)
        zc = [f"v_accvgpr_write_b32 a{AACC+i}, 0" for i in range(64)]
        self.interleave(mf, rd, 6, None, self.spread(zc, 16))
        A("s_barrier")
        self.issue_K(); self.vm_issue(("K", 3), 4)
        for r in vKa: A(f"v_add_u32 {r}, {sKd}, {r}")
        for l in self.max_ops(SA): A(l)
        A(f"s_mov_b32 {sT}, -1")
        A("s_branch L_check")
        n1, n2 = self.simulate_loop()
        self.n1, self.n2 = n1, n2
        A(".p2align 6")
        A.label("L_even"); self.body(0, n1, n2); A("s_branch L_common")
        A(".p2align 6")
        A.label("L_odd"); self.body(1, n1, n2)
        A.label("L_common")
        xmask = sum(1 << t for t in list(range(QP_T0, QP_T0 + 8)) + [WO_T, 14, 15, 31])
        A(f"s_bitcmp1_b32 0x{xmask:08x}, {sT}"); A("s_cbranch_scc1 L_extras")
        A.label("L_check")
        A(f"s_add_u32 {sT}, {sT}, 1")
        A(f"v_cmp_gt_f32 vcc, {vMx0}, {vThr}")
        A("s_cbranch_vccnz L_rare")
        A.label("L_next")
        A(f"s_bitcmp1_b32 {sT}, 0"); A("s_cbranch_scc1 L_odd"); A("s_branch L_even")
        A.label("L_rare")
        A(f"v_mov_b32 {vMx1}, {vMx0}"); A("s_nop 1")
        A(f"v_permlane32_swap_b32 {vMx0}, {vMx1}")
        A(f"v_max3_f32 {vM}, {vM}, {vMx0}, {vMx1}")
        A(f"v_mul_f32 {vMx0}, -{vM}, {sC}")
        A(f"v_sub_f32 {vMx1}, {vMx0}, {vNegM}")
        A(f"v_exp_f32 {vMx1}, {vMx1}")
        A(f"v_mov_b32 {vNegM}, {vMx0}")
        A(f"v_add_f32 {vThr}, 0x{f2u(THR):08x}, {vM}")
        A(f"v_mul_f32 {vL0}, {vMx1}, {vL0}"); A(f"v_mul_f32 {vL1}, {vMx1}, {vL1}")
        A("s_nop 3")
        for i in range(64): A(f"v_mul_f32 v{O0+i}, {vMx1}, v{O0+i}")
        A("s_branch L_next")
        A.label("L_extras")
        A(f"s_cmp_eq_u32 {sT}, 31"); A("s_cbranch_scc1 L_tail")
        A(f"s_cmp_eq_u32 {sT}, 15"); A("s_cbranch_scc1 L_x15")
        A(f"s_cmp_eq_u32 {sT}, 14"); A("s_cbranch_scc1 L_x14")
        A(f"s_cmp_eq_u32 {sT}, {WO_T}"); A("s_cbranch_scc1 L_xwo")
        A(f"s_call_b64 {sLink}, L_qpair")
        for r in vXa + vWa: A(f"v_xor_b32 {r}, {T}, {r}")
        A("s_branch L_check")
        A.label("L_x14")
        A(f"s_call_b64 {sLink}, L_qfin")
        A("s_branch L_check")
        A.label("L_x15")
        A(f"s_call_b64 {sLink}, L_epi")
        A(f"s_add_u32 {sOT}, {sOT}, {4*16384 - 16384}")
        self.reset_state()
        self.stamp(4)
        A("s_branch L_check")
        A.label("L_xwo")
        A.lds_reset()
        for b in range(4):
            A.lds(f"ds_read_b64_tr_b16 {at(AVF+4*b,2)}, {vTa[b]}", b)
            A.lds(f"ds_read_b64_tr_b16 {at(AVF+4*b+2,2)}, {vTa[b]} offset:2048", b)
        A(f"s_and_b32 {sT0}, s2, 3"); A(f"s_lshl_b32 {sT0}, {sT0}, 20")
        A(f"s_lshr_b32 {sT1}, s2, 2"); A(f"s_lshl_b32 {sT1}, {sT1}, 2"); A(f"s_add_u32 {sT1}, {sT1}, {sW}")
        A(f"s_lshl_b32 {sT1}, {sT1}, 11"); A(f"s_add_u32 {sT0}, {sT0}, {sT1}")
        A(f"s_add_u32 {sT0}, {sT0}, {WS_WT}"); A(f"s_add_u32 {sT1}, {sT0}, 524288")
        for b in range(4):
            A.lds_wait(b)
            A(f"buffer_store_dwordx4 {at(AVF+4*b,4)}, {vL16}, {srd(SWS)}, {sT0 if b < 2 else sT1} offen offset:{(b%2)*1024} sc1")
        A("s_nop 1")
        A("s_branch L_check")
        A.label("L_tail")
        self.stamp(5)
        A(f"s_call_b64 {sLink}, L_epi")
        self.stamp(6)
        self.dump_stamps(7)
        A.label("L_end")
        A("s_endpgm")
        self.qpair_sub(); self.qfin_sub(); self.epilogue_sub()

    def dump_stamps(self, n):
        if not self.stamps: return
        A = self.A
        A("s_waitcnt vmcnt(0)")
        self.stamp(n)
        A("s_waitcnt lgkmcnt(0)")
        A(f"s_lshl_b32 {sT0}, s2, 2"); A(f"s_add_u32 {sT0}, {sT0}, {sW}"); A(f"s_lshl_b32 {sT0}, {sT0}, 6")
        A(f"s_add_u32 {sT0}, {sT0}, {WS_STAMP}")
        A("v_mov_b32 v1, 0")
        for k in range(n + 1):
            A(f"v_mov_b32 v2, s{80+2*k}")
            A(f"buffer_store_dword v2, v1, {srd(SWS)}, {sT0} offen offset:{4*k}")
        A("s_getreg_b32 s3, hwreg(HW_REG_XCC_ID)")
        A("v_mov_b32 v2, s3")
        A(f"buffer_store_dword v2, v1, {srd(SWS)}, {sT0} offen offset:60")

    def kernelB(self):
        A = self.A
        A("s_cmp_ge_u32 s2, 256"); A("s_cbranch_scc1 LB_end")
        A("s_load_dwordx16 s[64:79], s[0:1], 0")
        A("v_lshrrev_b32 v1, 6, v0"); A("v_and_b32 v2, 63, v0")
        A(f"v_readfirstlane_b32 {sW}, v1")
        A(f"v_lshlrev_b32 {vL16}, 4, v2")
        self.oproj_offsets()
        A("s_waitcnt lgkmcnt(0)")
        self.make_srd(SWS, 78, WS_SIZE); self.make_srd(SOUT, 74, 2 << 20)
        NS = 7
        sets = [64 + 32 * i for i in range(6)] + [None]
        def setregs(k):
            k %= NS
            if k < 6: return lambda j, n: vt(64 + 32 * k + j, n)
            return lambda j, n: at(96 + j, n)
        def load(p):
            R = setregs(p)
            for i in range(4): A(f"buffer_load_dwordx4 {R(4*i,4)}, {vL16}, {srd(SWS)}, {sAoff} offen offset:{i*1024}")
            for i in range(4): A(f"buffer_load_dwordx4 {R(16+4*i,4)}, {vL16}, {srd(SWS)}, {sWToff} offen offset:{i*1024}")
            A(f"s_add_u32 {sAoff}, {sAoff}, 4096"); A(f"s_add_u32 {sWToff}, {sWToff}, 4096")
        NP = 32
        for p in range(NS): load(p)
        self.zero_acc()
        for p in range(NP):
            left = min(NP - 1, p + NS - 1) - p
            A(f"s_waitcnt vmcnt({8*left})")
            R = setregs(p)
            for ks in range(2):
                for nb in range(2):
                    for qb in range(2):
                        d = at(AACC + 32 * nb + 16 * qb, 16)
                        A(f"{MF} {d}, {R(16+8*ks+4*nb,4)}, {R(8*ks+4*qb,4)}, {d}")
            if p + NS < NP: load(p + NS)
        self.reduce_store()
        A.label("LB_end")
        A("s_endpgm")
    def oproj_offsets(self):
        A = self.A
        A(f"s_and_b32 {sT0}, s2, 7"); A(f"s_lshl_b32 {sT0}, {sT0}, 2"); A(f"s_lshr_b32 {sT1}, s2, 6")
        A(f"s_add_u32 {sB2}, {sT0}, {sT1}")
        A(f"s_lshl_b32 {sT0}, {sB2}, 19"); A(f"s_lshl_b32 {sT1}, {sW}, 17"); A(f"s_add_u32 {sAoff}, {sT0}, {sT1}")
        A(f"s_bfe_u32 {sT0}, s2, 0x30003"); A(f"s_lshl_b32 {sT0}, {sT0}, 19")
        A(f"s_add_u32 {sT0}, {sT0}, {sT1}"); A(f"s_add_u32 {sWToff}, {sT0}, {WS_WT}")
    def reduce_store(self):
        A = self.A
        A("s_nop 11")
        A("s_barrier")
        A(f"v_lshl_add_u32 v3, v1, 14, {vL16}")
        for blk in range(4):
            for q in range(4):
                A(f"ds_write_b128 v3, {at(AACC+16*blk+4*q,4)} offset:{blk*4096+q*1024}")
                if (blk * 4 + q) % 8 == 7: A("s_waitcnt lgkmcnt(0)")
        A(f"v_lshl_add_u32 v4, v1, 12, {vL16}")
        A("s_barrier")
        for src in range(4):
            for q in range(4):
                A(f"ds_read_b128 {vt(64+16*src+4*q,4)}, v4 offset:{src*16384+q*1024}")
            if src % 2 == 1: A("s_waitcnt lgkmcnt(0)")
        for i in range(16): A(f"v_add_f32 v{64+i}, v{64+i}, v{80+i}")
        for i in range(16): A(f"v_add_f32 v{96+i}, v{96+i}, v{112+i}")
        for i in range(16): A(f"v_add_f32 v{64+i}, v{64+i}, v{96+i}")
        for j in range(8): A(f"v_cvt_pk_bf16_f32 v{80+j}, v{64+2*j}, v{64+2*j+1}")
        A("v_and_b32 v5, 31, v2"); A("v_lshrrev_b32 v6, 5, v2"); A("v_lshlrev_b32 v5, 10, v5"); A("v_lshl_add_u32 v5, v6, 5, v5")
        A(f"s_lshl_b32 {sT0}, {sB2}, 16"); A(f"s_and_b32 {sT1}, {sW}, 1"); A(f"s_lshl_b32 {sT1}, {sT1}, 15"); A(f"s_add_u32 {sT0}, {sT0}, {sT1}")
        A(f"s_bfe_u32 {sT1}, s2, 0x30003"); A(f"s_lshl_b32 {sT1}, {sT1}, 7"); A(f"s_add_u32 {sT0}, {sT0}, {sT1}")
        A(f"s_lshr_b32 {sT1}, {sW}, 1"); A(f"s_lshl_b32 {sT1}, {sT1}, 6"); A(f"s_add_u32 {sT0}, {sT0}, {sT1}")
        A(f"buffer_store_dwordx4 {vt(80,4)}, v5, {srd(SOUT)}, {sT0} offen")
        A(f"buffer_store_dwordx4 {vt(84,4)}, v5, {srd(SOUT)}, {sT0} offen offset:16")

HDR = open("standalone__mha_block_cached__near_ridge.s.ref").read().split("; Override")[0]
def desc(name):
    return f""".amdhsa_kernel {name}
  .amdhsa_next_free_vgpr 512
  .amdhsa_next_free_sgpr 102
  .amdhsa_accum_offset 256
  .amdhsa_group_segment_fixed_size 0
  .amdhsa_kernarg_size 64
  .amdhsa_user_sgpr_count 2
  .amdhsa_user_sgpr_kernarg_segment_ptr 1
  .amdhsa_system_sgpr_workgroup_id_x 1
.end_amdhsa_kernel
"""
def build(path, **kw):
    g = Gen(**kw); g.kernelA()
    bad = check_hazards(g.A.lines)
    gb = Gen(**kw); gb.kernelB()
    bad += check_hazards(gb.A.lines)
    print("hazards:", bad, " n1:", g.n1, " n2:", g.n2)
    s = HDR
    s += f"; @launch kernel={KN} grid=(256,1,1) block=(256,1,1) lds=163840\n"
    s += f"; @launch kernel=oproj_kernel grid=(256,1,1) block=(256,1,1) lds=65536\n"
    s += '.amdgcn_target "amdgcn-amd-amdhsa--gfx950"\n.text\n'
    s += f".globl {KN}\n.p2align 8\n.type {KN},@function\n{KN}:\n" + g.A.text()
    s += f".globl oproj_kernel\n.p2align 8\n.type oproj_kernel,@function\noproj_kernel:\n" + gb.A.text()
    s += '.section .rodata,"a"\n.p2align 6\n' + desc(KN) + ".p2align 6\n" + desc("oproj_kernel")
    open(path, "w").write(s)
if __name__ == "__main__":
    build("v1.s")
    build("v1_st.s", stamps=True)
```

```python
import re

class Asm:
    def __init__(self):
        self.lines = []
        self.lds_q = []
        self.uid = 0
    def __call__(self, s):
        for ln in s.split("\n"):
            ln = ln.strip()
            if ln:
                self.lines.append(ln)
    def label(self, n): self.lines.append(n + ":")
    def newlabel(self, p="L"):
        self.uid += 1
        return f"{p}_{self.uid}"
    def lds_reset(self): self.lds_q = []
    def lds(self, text, tag=None):
        self(text)
        self.lds_q.append(tag)
        assert len(self.lds_q) <= 15, "too many LDS ops outstanding for exact counting"
    def lds_wait(self, *tags):
        idx = -1
        for t in tags:
            for i, q in enumerate(self.lds_q):
                if q == t: idx = max(idx, i)
        if idx < 0: return False
        n = len(self.lds_q) - 1 - idx
        self(f"s_waitcnt lgkmcnt({n})")
        self.lds_q = self.lds_q[idx + 1:]
        return True
    def lds_drain(self):
        if self.lds_q:
            self("s_waitcnt lgkmcnt(0)")
        self.lds_q = []
    def text(self): return "\n".join(self.lines) + "\n"

TRANS = ("v_exp_f32", "v_log_f32", "v_rcp_f32", "v_rsq_f32", "v_sqrt_f32", "v_sin_f32", "v_cos_f32")

def regs(tok):
    tok = tok.strip()
    tok = re.sub(r"^-", "", tok)
    m = re.match(r"^abs\((.*)\)$", tok)
    if m: tok = m.group(1)
    m = re.match(r"^\|(.*)\|$", tok)
    if m: tok = m.group(1)
    m = re.match(r"^([vas])(\d+)$", tok)
    if m:
        k, n = m.group(1), int(m.group(2))
        return {("v", n + 256)} if k == "a" else {(k, n)}
    m = re.match(r"^([vas])\[(\d+):(\d+)\]$", tok)
    if m:
        k, a, b = m.group(1), int(m.group(2)), int(m.group(3))
        off = 256 if k == "a" else 0
        kk = "v" if k == "a" else k
        return {(kk, i + off) for i in range(a, b + 1)}
    if tok in ("vcc", "vcc_lo", "vcc_hi"): return {("s", "vcc")}
    if tok in ("exec", "exec_lo", "exec_hi"): return {("s", "exec")}
    if tok == "m0": return {("s", "m0")}
    return set()

class Ins:
    pass

def parse(line):
    I = Ins()
    I.text = line
    line = line.split(";")[0].strip()
    parts = line.split(None, 1)
    I.op = parts[0]
    ops = []
    if len(parts) > 1:
        ops = [o.strip() for o in re.split(r",(?![^\[]*\])", parts[1])]
        if ops:
            last = ops[-1].split()
            I.mods = last[1:]
            ops[-1] = last[0] if last else ""
    if not hasattr(I, "mods"): I.mods = []
    I.ops = ops
    op = I.op
    I.kind = "other"; I.w = set(); I.r = set(); I.srcA = I.srcB = I.srcC = set(); I.data = set()
    I.ws = 1
    if op == "s_nop": I.ws = int(ops[0], 0) + 1; I.kind = "nop"
    elif op.startswith("v_mfma"):
        I.kind = "mfma"; I.w = regs(ops[0]); I.srcA = regs(ops[1]); I.srcB = regs(ops[2]); I.srcC = regs(ops[3])
        I.r = I.srcA | I.srcB | I.srcC
        I.passes = 8 if "32x32" in op else 4
    elif op.startswith("ds_read") or op.startswith("ds_bpermute") or op.startswith("ds_swizzle"):
        I.kind = "ds"; I.w = regs(ops[0]); I.r = set().union(*[regs(o) for o in ops[1:]])
    elif op.startswith("ds_"):
        I.kind = "ds"; I.r = set().union(*[regs(o) for o in ops])
    elif op.startswith("buffer_load") or op.startswith("global_load"):
        I.kind = "vmem"
        if "lds" in I.mods or "_lds_" in op:
            I.r = set().union(*[regs(o) for o in ops]) | {("s", "m0")}; I.dma = True
        else:
            I.w = regs(ops[0]); I.r = set().union(*[regs(o) for o in ops[1:]])
    elif op.startswith("buffer_store") or op.startswith("buffer_atomic") or op.startswith("global_store") or op.startswith("global_atomic"):
        I.kind = "vmem"; I.r = set().union(*[regs(o) for o in ops])
        if op.startswith("buffer_store_dwordx4") or op.startswith("buffer_store_dwordx3"):
            I.data = regs(ops[0])
        if op.startswith("global_store_dwordx4"): I.data = regs(ops[1])
        if "atomic" in op and "sc0" in I.mods: I.w = regs(ops[0])
    elif op.startswith("buffer_"):
        I.kind = "vmem"
    elif op.startswith("v_"):
        I.kind = "valu"
        I.trans = any(op.startswith(t) for t in TRANS)
        if op.startswith("v_permlane"):
            I.w = regs(ops[0]) | regs(ops[1]); I.r = set(I.w); I.perm = True
        elif op.startswith("v_cmp"):
            I.w = regs(ops[0]); I.r = set().union(*[regs(o) for o in ops[1:]])
        elif op.startswith("v_nop"):
            pass
        else:
            I.w = regs(ops[0]); I.r = set().union(set(), *[regs(o) for o in ops[1:]])
            if op.startswith("v_fmac") or op.startswith("v_writelane"): I.r |= I.w
            if op.startswith("v_add_co") or op.startswith("v_addc_co") or op.startswith("v_sub_co"):
                I.w |= regs(ops[1])
            if op.startswith("v_cndmask") and len(ops) == 3: I.r |= {("s", "vcc")}
        I.lane = op.startswith("v_readlane") or op.startswith("v_readfirstlane")
        I.dpp = "_dpp" in op or any(m.startswith("row_") or m.startswith("quad_perm") for m in I.mods)
    elif op.startswith("s_"):
        I.kind = "salu"
        if ops and not op.startswith("s_cmp") and not op.startswith("s_bitcmp") and not op.startswith("s_cbranch") and not op.startswith("s_waitcnt") and not op.startswith("s_branch") and not op.startswith("s_setpc"):
            I.w = regs(ops[0])
        I.r = set().union(set(), *[regs(o) for o in ops[1:]])
    return I

def check_hazards(lines, verbose=True):
    ins = []; labels = {}
    for ln in lines:
        s = ln.split(";")[0].strip()
        if not s or s.startswith("."): continue
        if s.endswith(":"):
            labels[s[:-1]] = len(ins); continue
        ins.append(parse(s))
    n = len(ins)
    preds = [[] for _ in range(n + 1)]
    calls = {}
    for i, I in enumerate(ins):
        if I.op == "s_call_b64":
            preds[labels[I.ops[1]]].append(i)
            calls.setdefault(I.ops[0], []).append(i + 1)
    for i, I in enumerate(ins):
        if I.op == "s_branch": preds[labels[I.ops[0]]].append(i)
        elif I.op.startswith("s_cbranch"):
            preds[labels[I.ops[0]]].append(i); preds[i + 1].append(i)
        elif I.op == "s_endpgm": pass
        elif I.op == "s_call_b64": pass
        elif I.op == "s_setpc_b64":
            for r in calls.get(I.ops[0], []): preds[r].append(i)
        else: preds[i + 1].append(i)
    vr = lambda s: {x for x in s if x[0] == "v"}
    sr = lambda s: {x for x in s if x[0] == "s"}
    def need(P, C):
        req = 0; why = ""
        def up(v, w):
            nonlocal req, why
            if v > req: req, why = v, w
        if P.kind == "valu":
            pw = vr(P.w)
            if C.kind == "mfma" and pw & C.r: up(2, "VALU->MFMA")
            if C.kind == "valu":
                if getattr(P, "trans", False) and not C.trans and pw & (C.r): up(1, "trans->VALU")
                if getattr(C, "perm", False) and pw & C.r: up(2, "VALU->permlane")
                if C.lane and pw & C.r: up(1, "VALU->readlane")
                if C.dpp and pw & C.r: up(2, "VALU->DPP")
                if sr(P.w) & sr(C.r): up(2, "VALU sgpr->VALU")
            if C.kind == "vmem" and sr(P.w) & sr(C.r): up(5, "VALU sgpr->VMEM")
        if P.kind == "mfma":
            big = {8: 12, 4: 8}[P.passes]; ov = {8: 10, 4: 6}[P.passes]; war = {8: 7, 4: 3}[P.passes]
            if C.kind == "mfma":
                if P.w & (C.srcA | C.srcB): up(big, "MFMA D->MFMA A/B")
                if P.w & C.srcC and P.w != C.srcC: up(ov, "MFMA D->MFMA C overlap")
                if P.w & C.w and not (P.w & C.srcC): up(big, "MFMA D->MFMA D WAW (conservative)")
            elif C.kind in ("valu", "vmem", "ds"):
                if P.w & (C.r | C.w): up(big, "MFMA D->VALU/MEM")
                if C.kind == "valu" and P.srcC & C.w: up(war, "MFMA C WAR")
        if P.kind == "salu" and ("s", "m0") in P.w and C.kind == "vmem" and getattr(C, "dma", False): up(1, "M0->DMA")
        if P.kind == "vmem" and P.data:
            if C.kind == "valu" and P.data & C.w: up(2, "store data WAR")
            elif P.data & C.w: up(1, "store data WAR")
        return req, why
    bad = 0
    MAXD = 13
    for ci, C in enumerate(ins):
        if C.kind in ("nop", "other"): continue
        stack = [(p, 0) for p in preds[ci]]
        seen = {}
        while stack:
            pi, d = stack.pop()
            if pi in seen and seen[pi] <= d: continue
            seen[pi] = d
            P = ins[pi]
            req, why = need(P, C)
            if req > d:
                bad += 1
                if verbose: print(f"HAZARD {why}: need {req} have {d}\n   P[{pi}]: {P.text}\n   C[{ci}]: {C.text}")
            nd = d + P.ws
            if nd < MAXD:
                for q in preds[pi]: stack.append((q, nd))
    return bad

import subprocess, os, tempfile
def inst_sizes(lines):
    src = '.amdgcn_target "amdgcn-amd-amdhsa--gfx950"\n.text\n'
    body = []
    idx = []
    for i, ln in enumerate(lines):
        s = ln.split(";")[0].strip()
        if not s or s.startswith("."): continue
        body.append(s)
        if not s.endswith(":"): idx.append(i)
    d = tempfile.mkdtemp()
    open(d + "/a.s", "w").write(src + "\n".join(body) + "\n")
    r = subprocess.run(["clang", "-x", "assembler", "-target", "amdgcn-amd-amdhsa", "-mcpu=gfx950",
                        "-c", d + "/a.s", "-o", d + "/a.o"], capture_output=True, text=True)
    assert r.returncode == 0, r.stderr[:3000]
    out = subprocess.run(["llvm-objdump", "-d", "-z", "--mcpu=gfx950", d + "/a.o"], capture_output=True, text=True).stdout
    sz = []
    for l in out.splitlines():
        m = re.search(r"// ([0-9A-F]{12}): ((?:[0-9A-F]{8} ?)+)", l)
        if m: sz.append(4 * len(m.group(2).split()))
    assert len(sz) == len(idx), (len(sz), len(idx))
    res = [None] * len(lines)
    for i, s in zip(idx, sz): res[i] = s
    return res

PROMOTE = ("v_exp_f32", "v_add_f32", "v_mul_f32", "v_add_u32", "v_max_f32", "v_sub_f32", "v_mov_b32", "v_xor_b32", "v_rcp_f32",
           "v_and_b32", "v_or_b32", "v_lshlrev_b32", "v_lshrrev_b32")
def align8(lines):
    sz = inst_sizes(lines)
    out = []; pos = 0; cand = None
    for ln, s in zip(lines, sz):
        t = ln.split(";")[0].strip()
        if t.startswith(".p2align"):
            out.append(ln); pos = 0; cand = None; continue
        if s is None:
            out.append(ln); continue
        if s >= 8 and pos % 8 == 4:
            if cand is not None:
                op, rest = out[cand].split(None, 1)
                out[cand] = op + "_e64 " + rest
            else:
                out.append("s_nop 0")
            pos += 4
        out.append(ln)
        if s == 4:
            op = t.split()[0]
            if op in PROMOTE: cand = len(out) - 1
        else:
            cand = None
        pos += s
    return out
```

```python
import sys, math, struct, itertools
sys.path.insert(0, "work")
from asmlib import Asm, check_hazards, align8

KN = "standalone__mha_block_cached__near_ridge_kernel"
def f2u(x): return struct.unpack("<I", struct.pack("<f", x))[0]
CSC = math.log2(math.e) / math.sqrt(128.0)
THR = 8.0 / CSC
MINIT = -3.0e38
OOB = 0x40000000

T = 16384
LK, LV, LX, LW = 0, 3 * T, 6 * T, 8 * T
WS_OT = 0
WS_WT = 16 << 20
WS_FLAG = 20 << 20
WS_STAMP = 21 << 20
WS_SIZE = 22 << 20
SK, SV, SX, SWQ, SWO, SWS, SOUT, SDBG = 4, 8, 12, 16, 20, 24, 28, 32
def srd(b): return f"s[{b}:{b+3}]"
sW, sW4K, sKoff, sVoff, sKcur, sVcur, sKd, sT, sC, sSw1, sBaseB, sSw2 = [f"s{i}" for i in range(36, 48)]
sXoff, sWoff, sEpar, sT0, sT1, sT2 = [f"s{i}" for i in range(48, 54)]
sLink = "s[54:55]"
sRet = "s[92:93]"
sOT, sVd, sM32K, sAoff, sWToff, sB2, sT3, sAoff2 = [f"s{i}" for i in range(56, 64)]
sThr, sFloor = sKd, sVd
sTi, sXb, sWb, sAreal, sFlagP, sFlagC, sBat, sSpin = [f"s{i}" for i in range(80, 88)]
SCODE = 88
vKa = [f"v{i}" for i in range(16, 24)]
vVa = [f"v{i}" for i in range(24, 28)]
vKd = [f"v{i}" for i in range(28, 32)]
vVd = "v32"; vL16 = "v33"; vMx0 = "v34"; vMx1 = "v35"
vPoll = "v36"; vPoff = "v37"; vPexp = "v38"; vZero = "v39"; vOne = "v40"
VST = 41
ONES, LACC = 44, 48
vTa = [f"v{i}" for i in range(224, 228)]
vXa = [f"v{i}" for i in range(228, 232)]
vWa = [f"v{i}" for i in range(232, 236)]
vXd = ["v236", "v237"]; vWd = "v238"; vWoD = "v239"
O0, SA, SB, P0, NEG = 64, 128, 160, 192, 240
AQ, AACC, AKF, AVF = 0, 32, 96, 128
def vt(b, n): return f"v[{b}:{b+n-1}]"
def at(b, n): return f"a[{b}:{b+n-1}]"
GA = [lambda j, n: at(160 + j, n), lambda j, n: at(192 + j, n)]
GW = [lambda j, n: at(224 + j, n), lambda j, n: vt(208 + j, n)]
MF = "v_mfma_f32_32x32x16_bf16"

QP_T0 = 4
WO_T = QP_T0 - 1
PUB_T = 16
OP_T0 = 20

class Gen:
    def __init__(self, stamps=False, nt=True, fused=True, split=24, rot=True, pf=True, xwf='', wgrp=2, prokv=True):
        self.A = Asm()
        self.stamps = stamps; self.fused = fused; self.split = split; self.rot = rot; self.pf = pf; self.xwf = xwf; self.wgrp = wgrp; self.prokv = prokv
        self.nt = " nt" if nt else ""
        self.vm = []
    def vm_issue(self, tag, n): self.vm += [tag] * n
    def vm_need(self, *tags):
        idx = -1
        for i, q in enumerate(self.vm):
            if q in tags: idx = i
        assert idx >= 0, tags
        return min(63, len(self.vm) - 1 - idx)
    def stamp(self, k):
        if self.stamps:
            self.A("s_memtime s[96:97]"); self.A("s_waitcnt lgkmcnt(0)"); self.A(f"v_writelane_b32 v{VST}, s96, {k}")
    def istamp(self, v, hi):
        if not self.stamps: return
        A = self.A
        A("s_memtime s[96:97]")
        A(f"s_add_u32 m0, {sT}, {32 if hi else 0}")
        A("s_waitcnt lgkmcnt(0)")
        A(f"v_writelane_b32 v{v}, s96, m0")
    def dma_line(self, voff, srdb, soff, i, flags):
        return f"buffer_load_dwordx4 {voff}, {srd(srdb)}, {soff} offen offset:{i*1024}{flags} lds"
    def tile_KV(self, isK, slot):
        off, base, voffs, srdb = (sKoff, LK, vKd, SK) if isK else (sVoff, LV, [vVd] * 4, SV)
        g = [[self.dma_line(voffs[i], srdb, off, i, self.nt)] for i in range(4)]
        g[0] = [f"s_add_u32 m0, {sW4K}, {base + slot*T}", "@M0"] + g[0]
        g[3] = g[3] + [f"s_add_u32 {off}, {off}, {T}"]
        return g
    def tile_strided(self, m0lines, voffs, srdb, soff, step):
        g = [m0lines + ["s_nop 0", self.dma_line(voffs[0], srdb, soff, 0, self.xwf)]]
        for i in range(1, 4):
            g.append([f"s_add_u32 {soff}, {soff}, {step}", self.dma_line(voffs[i], srdb, soff, i, self.xwf)])
        return g
    def tile_XW(self, xbase=None, wbase=None):
        mx = [f"s_add_u32 m0, {sW4K}, {xbase}"] if xbase is not None else \
             [f"s_add_u32 {sT0}, {sEpar}, {LX}", f"s_add_u32 m0, {sT0}, {sW4K}"]
        mw = [f"s_add_u32 m0, {sW4K}, {wbase}"] if wbase is not None else \
             [f"s_add_u32 {sT0}, {sEpar}, {LW}", f"s_add_u32 m0, {sT0}, {sW4K}"]
        gx = self.tile_strided([f"s_lshl_b32 {sXoff}, {sTi}, 7", f"s_add_u32 {sXoff}, {sXoff}, {sXb}"] + mx,
                               [vXd[0], vXd[1], vXd[0], vXd[1]], SX, sXoff, 8192 - 1024)
        gw = self.tile_strided([f"s_lshl_b32 {sWoff}, {sTi}, 19", f"s_add_u32 {sWoff}, {sWoff}, {sWb}"] + mw,
                               [vWd] * 4, SWQ, sWoff, 32768 - 1024)
        gw[3] += [f"s_add_u32 {sTi}, {sTi}, 1", f"s_and_b32 {sTi}, {sTi}, 7"]
        return gx + gw
    def emit_groups(self, groups):
        for g in groups:
            for l in g: self.A("s_nop 0" if l == "@M0" else l)
    @staticmethod
    def place(gaps, groups, positions):
        for g, p in zip(groups, positions):
            if "@M0" in g:
                k = g.index("@M0")
                if gaps[p]:
                    gaps[p] = g[:k] + gaps[p][:1] + g[k+1:] + gaps[p][1:]
                else:
                    gaps[p] = g[:k] + ["s_nop 0"] + g[k+1:]
            else:
                gaps[p] = g + gaps[p]

    def interleave(self, mfmas, reads, nahead, pre, gaps):
        A = self.A
        n = len(mfmas); G = self.wgrp
        for i in range(min(nahead, n)):
            for tx, tg in reads[i]: A.lds(tx, tg)
        if pre: pre()
        for i in range(n):
            if i % G == 0:
                tags = []
                for j in range(i, min(n, i + G)): tags += mfmas[j][1]
                A.lds_wait(*tags)
            A(mfmas[i][0])
            if i + nahead < n:
                for tx, tg in reads[i + nahead]: A.lds(tx, tg)
            for l in gaps[i]: A(l)
    @staticmethod
    def spread(fill, ngaps, first=0):
        cost = lambda l: 8 if l.startswith("v_exp") or l.startswith("v_rcp") else 4
        tot = sum(cost(l) for l in fill)
        gaps = [[] for _ in range(ngaps)]
        acc = 0; k = ngaps - first
        for l in fill:
            g = first + min(k - 1, int((acc + cost(l) / 2) * k / tot))
            gaps[g].append(l); acc += cost(l)
        return gaps
    def exp_ops(self, S, lo, hi):
        ops = []
        ex = lambda i: f"v_exp_f32 v{S+i}, v{S+i}"
        cvt = lambda i: f"v_cvt_pk_bf16_f32 v{P0 + i//2}, v{S+i}, v{S+i+1}"
        prs = list(range(lo, hi, 2))
        for k, i in enumerate(prs):
            ops += [ex(i), ex(i + 1)]
            if k > 0: ops += [cvt(prs[k-1])]
        ops += ["s_nop 0", cvt(prs[-1])]
        return ops
    def max_ops(self, S):
        ops = []
        for b, mx in ((0, vMx0), (16, vMx1)):
            o = [f"v_max3_f32 {mx}, v{S+b}, v{S+b+1}, v{S+b+2}"]
            for i in range(3, 15, 2): o.append(f"v_max3_f32 {mx}, {mx}, v{S+b+i}, v{S+b+i+1}")
            ops.append(o)
        out = []
        for x, y in zip(*ops): out += [x, y]
        out.append(f"v_max3_f32 {vMx0}, {vMx0}, v{S+15}, v{S+31}")
        out.append(f"v_max_f32 {vMx0}, {vMx0}, {vMx1}")
        return out
    def qk_lists(self, Sn, slot):
        mf, rd = [], []
        for i in range(16):
            kb, s = i // 8, i % 8
            fr = AKF + 4 * (i % 8)
            d = vt(Sn + 16 * kb, 16)
            mf.append((f"{MF} {d}, {at(fr,4)}, {at(AQ+4*s,4)}, {vt(NEG,16) if s == 0 else d}", [("k", i)]))
            rd.append([(f"ds_read_b128 {at(fr,4)}, {vKa[s]} offset:{slot*T + kb*8192}", ("k", i))])
        return mf, rd
    def pv_lists(self, slot):
        mf, rd = [], []
        for i in range(16):
            ks, blk = i // 4, i % 4
            fr = AVF + 4 * (i % 8)
            d = vt(O0 + 16 * blk, 16)
            mf.append((f"{MF} {d}, {at(fr,4)}, {vt(P0+4*ks,4)}, {d}", [("v", i)]))
            rd.append([(f"ds_read_b64_tr_b16 {at(fr,2)}, {vVa[blk]} offset:{slot*T + ks*4096}", ("v", i)),
                       (f"ds_read_b64_tr_b16 {at(fr+2,2)}, {vVa[blk]} offset:{slot*T + ks*4096+2048}", ("v", i))])
        return mf, rd
    def wait_ladder(self, need, maxlev=3):
        A = self.A
        vals = sorted(set(need.values()), reverse=True)
        if len(vals) > maxlev:
            best = None
            for comb in itertools.combinations(vals, maxlev):
                if min(comb) != vals[-1]: continue
                loss = sum(min(v, 24) - min(24, max(c for c in comb if c <= v)) for v in need.values())
                if best is None or loss < best[0]: best = (loss, comb)
            vals = sorted(best[1], reverse=True)
        lvl = {t: max(c for c in vals if c <= v) for t, v in need.items()}
        done = A.newlabel("Lw")
        A(f"s_waitcnt vmcnt({vals[0]})")
        for v in vals[1:]:
            mask = sum(1 << t for t, l in lvl.items() if l <= v)
            A(f"s_bitcmp1_b32 0x{mask:08x}, {sT}")
            A(f"s_cbranch_scc0 {done}")
            A(f"s_waitcnt vmcnt({v})")
        A.label(done)

    def simulate_loop(self):
        n1, n2, n3 = {}, {}, {}
        F = self.fused
        for t in range(32):
            n1[t] = self.vm_need(("K", t + 1)) if t < 31 else 63
            self.vm_issue(("V", t + 2), 4)
            if F: self.vm_issue(("A", t + 1), 4)
            n2[t] = self.vm_need(("V", t))
            self.vm_issue(("K", t + 4), 4)
            if F: self.vm_issue(("A", t + 1), 4)
            if t == WO_T:
                n3[t] = self.vm_need(("WO",)); self.vm_issue(("WT",), 4); self.vm_issue(("E", t + 1), 8)
            if QP_T0 <= t < QP_T0 + 8:
                n3[t] = self.vm_need(("E", t)); self.vm_issue(("E", t + 1), 8)
            if t == 15: self.vm_issue(("OA",), 8)
            if F:
                if t == PUB_T: n3[t] = self.vm_need(("OA",))
                if t == OP_T0 - 2: self.vm_issue(("POLL",), 1)
                if t == OP_T0 - 1: n3[t] = self.vm_need(("POLL",))
                if OP_T0 <= t <= OP_T0 + 9:
                    n3[t] = self.vm_need(("A", t), ("W", t)); self.vm_issue(("W", t + 1), 8)
        return n1, n2, n3

    def aload(self, R, j, soff):
        return [f"buffer_load_dwordx4 {R(4*j,4)}, {vL16}, {srd(SWS)}, {soff} offen offset:{(j%4)*1024} sc1"]
    def body(self, c, n1, n2):
        A = self.A
        par = c % 2
        S, Sn = (SA, SB) if par == 0 else (SB, SA)
        sel = lambda d: min(v for t, v in d.items() if t % 6 == c)
        RA = GA[(par + 1) % 2]
        A.lds_reset()
        A(f"s_waitcnt vmcnt({sel(n1)})")
        A("s_barrier")
        self.istamp(VST+1, 0)
        mf, rd = self.qk_lists(Sn, (c + 1) % 3)
        fill = self.exp_ops(S, 0, self.split)
        head = fill[:5]; fill = fill[5:]
        gaps = self.spread(fill, 16)
        if self.fused:
            self.place(gaps, self.tile_KV(False, (c + 2) % 3), [0, 2, 4, 6])
            self.place(gaps, [self.aload(RA, j, sAoff) for j in range(4)], [8, 10, 12, 14])
            gaps[15] = gaps[15] + [f"s_add_u32 {sAoff2}, {sAoff}, 4096", f"s_add_u32 {sAoff}, {sAoff}, 8192"]
        else:
            self.place(gaps, self.tile_KV(False, (c + 2) % 3), [0, 3, 6, 9])
        self.interleave(mf, rd, 6, lambda: [A(l) for l in head], gaps)
        self.istamp(VST+2, 0)
        A(f"s_waitcnt vmcnt({sel(n2)})")
        A("s_barrier")
        self.istamp(VST+1, 1)
        mf, rd = self.pv_lists(c % 3)
        rest = self.exp_ops(S, self.split, 32)
        lim = 10 if self.split >= 24 else 6
        g1 = self.spread(rest[4:], lim)
        g2 = self.spread(self.max_ops(Sn), 16, first=lim - 3)
        gaps = [(g1[i] if i < lim else []) + g2[i] for i in range(16)]
        if self.fused:
            self.place(gaps, self.tile_KV(True, (c + 1) % 3), [0, 2, 4, 6])
            self.place(gaps, [self.aload(RA, j, sAoff2) for j in range(4, 8)], [8, 10, 12, 14])
        else:
            self.place(gaps, self.tile_KV(True, (c + 1) % 3), [0, 3, 6, 9])
        for ks in range(4):
            gaps[4 * ks + 3] = [f"{MF} {vt(LACC,16)}, {vt(ONES,4)}, {vt(P0+4*ks,4)}, {vt(LACC,16)}"] + gaps[4 * ks + 3]
        self.interleave(mf, rd, 6, lambda: [A(l) for l in rest[:4]], gaps)

    def qpair_code(self, gaps):
        A = self.A
        A.lds_reset()
        for s in range(4):
            A.lds(f"ds_read_b128 {at(AKF+4*s,4)}, {vXa[s]}", ("x", s))
        mf, rd = [], []
        for i in range(16):
            s, blk = i // 4, i % 4
            fr = AVF + 4 * (i % 8)
            d = at(AACC + 16 * blk, 16)
            mf.append((f"{MF} {d}, {at(fr,4)}, {at(AKF+4*s,4)}, {d}", [("w", i), ("x", s)]))
            rd.append([(f"ds_read_b64_tr_b16 {at(fr,2)}, {vWa[blk]} offset:{s*4096}", ("w", i)),
                       (f"ds_read_b64_tr_b16 {at(fr+2,2)}, {vWa[blk]} offset:{s*4096+1024}", ("w", i))])
        self.interleave(mf, rd, 5, None, gaps)
    def qfin_sub(self):
        A = self.A
        A.label("L_qfin")
        A("s_nop 11")
        for s in range(8):
            b = AACC + 8 * s
            t = 208 + 8 * (s % 2)
            for j in range(8): A(f"v_accvgpr_read_b32 v{t+j}, a{b+j}")
            for j in range(8): A(f"v_mul_f32 v{t+j}, {sC}, v{t+j}")
            for j in range(4): A(f"v_cvt_pk_bf16_f32 v{t+2*j}, v{t+2*j}, v{t+2*j+1}")
            for j in range(4): A(f"v_accvgpr_write_b32 a{AQ+4*s+j}, v{t+2*j}")
        A("s_nop 1")
        A(f"s_setpc_b64 {sLink}")
    def zero_acc(self): return [f"v_accvgpr_write_b32 a{AACC+i}, 0" for i in range(64)]
    def epilogue_sub(self):
        A = self.A
        A.label("L_epi")
        A("s_nop 9")
        A(f"v_rcp_f32 {vMx1}, v{LACC}")
        A("s_nop 0")
        for ks in range(8):
            b = O0 + 8 * ks
            for j in range(8): A(f"v_mul_f32 v{b+j}, {vMx1}, v{b+j}")
            for j in range(4): A(f"v_cvt_pk_bf16_f32 v{b+j}, v{b+2*j}, v{b+2*j+1}")
            if ks % 2 == 0:
                A(f"buffer_store_dwordx4 {vt(b,4)}, {vL16}, {srd(SWS)}, {sOT} offen sc1")
            else:
                A(f"buffer_store_dwordx4 {vt(b,4)}, {vL16}, {srd(SWS)}, {sOT} offen offset:2048 sc1")
                A(f"s_add_u32 {sOT}, {sOT}, 4096")
        A(f"s_setpc_b64 {sLink}")
    def make_srd(self, b, p, size):
        A = self.A
        A(f"s_mov_b32 s{b}, s{p}"); A(f"s_mov_b32 s{b+1}, s{p+1}")
        A(f"s_mov_b32 s{b+2}, 0x{size:x}"); A(f"s_mov_b32 s{b+3}, 0x20000")
    def one_lane(self, lines, wave0=False):
        A = self.A
        lab = A.newlabel("Lo")
        if wave0:
            A(f"s_cmp_eq_u32 {sW}, 0"); A(f"s_cbranch_scc0 {lab}")
        A("s_mov_b64 exec, 1")
        for l in lines: A(l)
        A("s_mov_b64 exec, -1")
        if wave0: A.label(lab)
    def opair_mfmas(self, RAf, RWf, p):
        out = []
        for ks in range(2):
            for nb in range(2):
                for qb in range(2):
                    d = at(AACC + 32 * nb + 16 * qb, 16)
                    out.append(f"{MF} {d}, {RWf(16*p+8*ks+4*nb,4)}, {RAf(16*p+8*ks+4*qb,4)}, {d}")
        return out

    def kernelA(self):
        A = self.A; F = self.fused
        A("s_cmp_ge_u32 s2, 256"); A("s_cbranch_scc1 L_end")
        if self.stamps: A("s_memrealtime s[98:99]")
        A("s_load_dwordx16 s[64:79], s[0:1], 0")
        self.stamp(0)
        A("v_lshrrev_b32 v1, 6, v0")
        A("v_and_b32 v2, 63, v0")
        A(f"v_readfirstlane_b32 {sW}, v1")
        A(f"v_lshlrev_b32 {vL16}, 4, v2")
        if self.pf:
            A(f"s_getpc_b64 s[{SCODE}:{SCODE+1}]")
            A.label("L_pc")
            A(f"s_mov_b32 s{SCODE+2}, L_codeend-L_pc"); A(f"s_mov_b32 s{SCODE+3}, 0x20000")
            A(f"s_lshr_b32 {sT0}, s2, 3"); A(f"s_lshl_b32 {sT0}, {sT0}, 2"); A(f"s_add_u32 {sT0}, {sT0}, {sW}")
            A(f"s_and_b32 {sT0}, {sT0}, 31"); A(f"s_lshl_b32 {sT0}, {sT0}, 10")
            A(f"buffer_load_dwordx4 v[192:195], {vL16}, {srd(SCODE)}, {sT0} offen")
            self.vm_issue(("CODE",), 1)
        else:
            A("s_nop 1")
        A(f"s_lshl_b32 {sW4K}, {sW}, 12")
        A("v_lshrrev_b32 v3, 4, v2"); A("v_and_b32 v4, 15, v2")
        A("v_lshl_add_u32 v5, v1, 4, v3")
        A("v_lshrrev_b32 v6, 3, v2"); A("v_lshl_add_u32 v6, v1, 5, v6")
        A("v_and_b32 v7, 7, v2"); A("v_xor_b32 v7, v7, v3"); A("v_lshlrev_b32 v7, 4, v7")
        A(f"v_lshl_add_u32 {vXd[0]}, v6, 10, v7")
        A(f"v_xor_b32 {vXd[1]}, 64, {vXd[0]}")
        A("v_lshlrev_b32 v8, 2, v3"); A("v_xor_b32 v8, v8, v4"); A("v_lshlrev_b32 v8, 4, v8")
        A(f"v_lshl_add_u32 {vWd}, v5, 13, v8")
        A(f"s_and_b32 {sBat}, s2, 1"); A(f"s_lshl_b32 {sBat}, {sBat}, 3")
        A(f"s_bfe_u32 {sT1}, s2, 0x30003"); A(f"s_add_u32 {sBat}, {sBat}, {sT1}")
        A(f"s_lshr_b32 {sT2}, s2, 6")
        if self.rot:
            A(f"s_lshl_b32 {sTi}, {sT2}, 1"); A(f"s_add_u32 {sTi}, {sTi}, {sT1}"); A(f"s_and_b32 {sTi}, {sTi}, 7")
        else:
            A(f"s_mov_b32 {sTi}, 0")
        A(f"s_bfe_u32 {sT1}, s2, 0x20001"); A(f"s_lshl_b32 {sT1}, {sT1}, 3")
        A(f"s_add_u32 {sT1}, {sT1}, {sT2}")
        A(f"s_lshl_b32 {sXb}, {sBat}, 17")
        A(f"s_lshl_b32 {sWb}, {sT1}, 8")
        A("s_waitcnt lgkmcnt(0)")
        self.make_srd(SX, 64, 2 << 20); self.make_srd(SWQ, 70, 4 << 20)
        XS = [LX, LX + T, LK + 2 * T]; WS_ = [LW, LW + T, LV + 2 * T]
        self.emit_groups(self.tile_XW(XS[0], WS_[0])); self.vm_issue(("P", 0), 8)
        self.stamp(1)
        A(f"s_lshl_b32 {sT2}, {sBat}, 5"); A(f"s_add_u32 {sT2}, {sT2}, {sT1}")
        A(f"s_lshl_b32 {sKoff}, {sT2}, 18"); A(f"s_mov_b32 {sVoff}, {sKoff}")
        A(f"s_lshl_b32 {sT0}, {sBat}, 1"); A(f"s_lshr_b32 {sT2}, {sW}, 1"); A(f"s_add_u32 {sT0}, {sT0}, {sT2}")
        A(f"s_lshl_b32 {sFlagP}, {sT0}, 2"); A(f"s_lshr_b32 {sT2}, {sT1}, 3"); A(f"s_add_u32 {sFlagP}, {sFlagP}, {sT2}")
        A(f"s_lshl_b32 {sFlagP}, {sFlagP}, 7"); A(f"s_and_b32 {sT2}, {sT1}, 3"); A(f"s_lshl_b32 {sT2}, {sT2}, 3")
        A(f"s_add_u32 {sFlagP}, {sFlagP}, {sT2}"); A(f"s_and_b32 {sT2}, {sW}, 1"); A(f"s_lshl_b32 {sT3}, {sT2}, 2")
        A(f"s_add_u32 {sFlagP}, {sFlagP}, {sT3}"); A(f"s_add_u32 {sFlagP}, {sFlagP}, {WS_FLAG}")
        A(f"s_lshl_b32 {sT0}, {sT0}, 5"); A(f"s_add_u32 {sT0}, {sT0}, {sT1}"); A(f"s_lshl_b32 {sT0}, {sT0}, 14")
        A(f"s_lshl_b32 {sT2}, {sT2}, 10"); A(f"s_add_u32 {sOT}, {sT0}, {sT2}")
        self.emit_groups(self.tile_XW(XS[1], WS_[1])); self.vm_issue(("P", 1), 8)
        A(f"s_mov_b32 {sC}, 0x{f2u(CSC):08x}")
        self.make_srd(SK, 66, 128 << 20); self.make_srd(SV, 68, 128 << 20)
        self.make_srd(SWO, 72, 4 << 20); self.make_srd(SWS, 78, WS_SIZE)
        self.make_srd(SOUT, 74, 2 << 20); self.make_srd(SDBG, 76, 256)
        A(f"v_lshl_add_u32 {vVd}, v5, 8, v8")
        A(f"v_lshl_add_u32 {vWoD}, v5, 10, v8")
        A("v_xor_b32 v9, v4, v3"); A("v_lshlrev_b32 v9, 4, v9")
        A(f"v_lshl_add_u32 {vKd[0]}, v5, 8, v9")
        for i in range(1, 4): A(f"v_xor_b32 {vKd[i]}, {64*i}, {vKd[0]}")
        A("v_and_b32 v6, 31, v2"); A("v_lshrrev_b32 v7, 5, v2")
        A("v_xor_b32 v8, v7, v4"); A("v_lshlrev_b32 v8, 4, v8")
        A(f"v_lshl_add_u32 {vKa[0]}, v6, 8, v8")
        for s in range(1, 8): A(f"v_xor_b32 {vKa[s]}, {32*s}, {vKa[0]}")
        A("v_bfe_u32 v8, v2, 1, 3"); A("v_xor_b32 v8, v8, v7"); A("v_lshlrev_b32 v8, 4, v8")
        A("v_lshl_add_u32 v9, v1, 5, v6"); A("v_lshl_add_u32 v8, v9, 7, v8")
        A(f"v_add_u32 {vXa[0]}, {LX}, v8")
        for s in range(1, 4): A(f"v_xor_b32 {vXa[s]}, {32*s}, {vXa[0]}")
        A("v_bfe_u32 v8, v2, 2, 2"); A("v_and_b32 v9, 3, v2"); A("v_and_b32 v10, 1, v3")
        A("v_lshlrev_b32 v11, 6, v8")
        A("v_lshl_add_u32 v11, v10, 5, v11")
        A("v_lshl_add_u32 v12, v7, 2, v8")
        A("v_lshl_add_u32 v12, v12, 8, v11")
        A("v_lshl_add_u32 v13, v9, 3, v12")
        A(f"v_add_u32 {vVa[0]}, {LV}, v13")
        for b in range(1, 4): A(f"v_xor_b32 {vVa[b]}, {64*b}, {vVa[0]}")
        A("v_lshl_add_u32 v13, v7, 3, v8"); A("v_lshl_add_u32 v13, v13, 8, v11")
        A("v_and_b32 v14, 1, v9"); A("v_lshlrev_b32 v14, 1, v14"); A("v_lshrrev_b32 v15, 1, v9"); A("v_or_b32 v14, v14, v15")
        A("v_lshl_add_u32 v13, v14, 3, v13")
        A(f"v_add_u32 {vWa[0]}, {LW}, v13")
        for b in range(1, 4): A(f"v_xor_b32 {vWa[b]}, {64*b}, {vWa[0]}")
        WOSLOT = LW + ((QP_T0 + 1) % 2) * T
        A("v_lshl_add_u32 v13, v7, 2, v8"); A("v_lshl_add_u32 v13, v1, 4, v13"); A("v_lshlrev_b32 v13, 8, v13")
        A("v_lshl_add_u32 v13, v8, 6, v13")
        A("v_and_b32 v14, 1, v9"); A("v_lshlrev_b32 v14, 2, v14"); A("v_lshl_add_u32 v14, v10, 1, v14"); A("v_add_u32 v14, v14, v15")
        A("v_lshl_add_u32 v13, v14, 3, v13")
        A(f"v_add_u32 {vTa[0]}, {WOSLOT}, v13")
        for b in range(1, 4): A(f"v_xor_b32 {vTa[b]}, {64*b}, {vTa[0]}")
        for l in self.zero_acc(): A(l)
        A(f"s_mov_b32 {sEpar}, {(QP_T0 % 2) * T}")
        A(f"s_mov_b32 {sThr}, 0x{f2u(8.0):08x}")
        for k in range(4): A(f"v_mov_b32 v{ONES+k}, 0x3f803f80")
        for k in range(16): A(f"v_mov_b32 v{NEG+k}, 0")
        for k in range(16): A(f"v_mov_b32 v{LACC+k}, 0")
        if F:
            self.oproj_offsets(sAreal)
            A(f"s_mov_b32 {sAoff}, 0x{OOB:x}")
            A(f"v_mov_b32 {vZero}, 0"); A(f"v_mov_b32 {vOne}, 1")
            A(f"s_lshl_b32 {sFlagC}, {sB2}, 2"); A(f"s_add_u32 {sFlagC}, {sFlagC}, {sW}"); A(f"s_lshl_b32 {sFlagC}, {sFlagC}, 7")
            A(f"s_add_u32 {sFlagC}, {sFlagC}, {WS_FLAG}")
            A(f"s_lshr_b32 {sT0}, {sB2}, 1"); A(f"s_lshl_b32 {sT0}, {sT0}, 2")
            A("v_and_b32 v8, 1, v2"); A("v_cmp_eq_u32 vcc, 1, v8")
            A(f"v_mov_b32 v9, {sT0}"); A(f"v_mov_b32 v10, 128"); A(f"v_cndmask_b32 {vPoff}, v9, v10, vcc")
            A(f"v_mov_b32 v9, 16"); A(f"v_mov_b32 v10, 256"); A(f"v_cndmask_b32 {vPexp}, v9, v10, vcc")
            self.one_lane([f"buffer_store_dword {vZero}, {vZero}, {srd(SWS)}, {sFlagP} offen sc1"])
            self.vm_issue(("FZ",), 1)
        for i in range(8):
            A(f"s_waitcnt vmcnt({self.vm_need(('P', i))})")
            A("s_barrier")
            self.stamp(2 + i)
            groups = []; kv = None
            if i <= 5: groups += self.tile_XW(XS[(i + 2) % 3], WS_[(i + 2) % 3]); self.vm_issue(("P", i + 2), 8)
            kv = {0: (True, 0), 1: (True, 1), 2: (False, 0), 3: (False, 1), 6: (True, 2)}.get(i)
            if not self.prokv: kv = None
            if not self.prokv and i == 7:
                for isk, sl in ((True, 0), (True, 1), (False, 0), (False, 1), (True, 2)):
                    self.emit_groups(self.tile_KV(isk, sl)); self.vm_issue(("K" if isk else "V", sl), 4)
            if kv: groups += self.tile_KV(kv[0], kv[1]); self.vm_issue(("K" if kv[0] else "V", kv[1]), 4)
            gaps = [[] for _ in range(16)]
            n = len(groups)
            if n: self.place(gaps, groups, [k * 16 // n for k in range(n)] if n > 8 else [2 * k for k in range(n)])
            nx = XS[(i + 1) % 3] - XS[i % 3]; nw = WS_[(i + 1) % 3] - WS_[i % 3]
            if i == 7:
                nx = (LX + (QP_T0 % 2) * T) - XS[7 % 3]; nw = (LW + (QP_T0 % 2) * T) - WS_[7 % 3]
            upd = []
            if nx: upd += [f"v_add_u32 {r}, {nx}, {r}" for r in vXa]
            for k, l in enumerate(upd): gaps[4 + k].append(l)
            if nw:
                for k, r in enumerate(vWa): gaps[12 + k].append(f"v_add_u32 {r}, {nw}, {r}")
            if i == 7:
                ini = [f"v_mov_b32 v{O0+k}, 0" for k in range(64)]
                g2 = self.spread(ini, 16)
                gaps = [a + b for a, b in zip(gaps, g2)]
            self.qpair_code(gaps)
        A(f"s_add_u32 {sWb}, {sWb}, 1024")
        A(f"s_call_b64 {sLink}, L_qfin")
        self.stamp(10)
        if not self.prokv:
            A(f"s_waitcnt vmcnt({self.vm_need(('K', 0))})"); A("s_barrier")
        A.lds_reset()
        mf, rd = self.qk_lists(SA, 0)
        self.interleave(mf, rd, 6, None, self.spread(self.zero_acc(), 16))
        A("s_barrier")
        self.emit_groups(self.tile_KV(True, 0)); self.vm_issue(("K", 3), 4)
        A(f"s_lshr_b32 {sT3}, s2, 2"); A(f"s_lshl_b32 {sT3}, {sT3}, 16")
        A(f"s_and_b32 {sT0}, s2, 3"); A(f"s_lshl_b32 {sT0}, {sT0}, 8"); A(f"s_add_u32 {sT3}, {sT3}, {sT0}")
        g = self.tile_strided([f"s_add_u32 m0, {sW4K}, {WOSLOT}"], [vWoD] * 4, SWO, sT3, 4096 - 1024)
        mx = self.max_ops(SA)
        for k in range(4):
            for l in g[k] + mx[4*k:4*k+4]: A(l)
        self.vm_issue(("WO",), 4)
        A(f"s_mov_b32 {sT}, -1")
        A(f"s_call_b64 {sRet}, L_init")
        n1, n2, n3 = self.simulate_loop()
        self.n = (n1, n2, n3)
        A.label("L_loop")
        for c in range(6):
            self.body(c, n1, n2)
            A(f"s_call_b64 {sRet}, L_common")
        A("s_branch L_loop")
        A(".p2align 3")
        A.label("L_common")
        self.istamp(VST+2, 1)
        A(f"v_cmp_lt_f32 vcc, {sThr}, {vMx0}")
        A("s_cbranch_vccnz L_rare")
        A.label("L_chk_done")
        xs = list(range(QP_T0, QP_T0 + 8)) + [WO_T, 13, 14, 15, 27, 29, 30, 31]
        if F: xs += [PUB_T] + list(range(OP_T0 - 2, OP_T0 + 10))
        A(f"s_bitcmp1_b32 0x{sum(1 << t for t in set(xs)):08x}, {sT}"); A("s_cbranch_scc1 L_extras")
        A.label("L_check")
        A(f"s_add_u32 {sT}, {sT}, 1")
        A(f"s_setpc_b64 {sRet}")
        A.label("L_init")
        A(f"s_mov_b32 {sFloor}, 0x{f2u(-1e30):08x}")
        A("s_branch L_rare2")
        A.label("L_rare")
        A(f"s_mov_b32 {sFloor}, 0")
        A.label("L_rare2")
        A(f"v_mov_b32 {vMx1}, {vMx0}"); A("s_nop 1")
        A(f"v_permlane32_swap_b32 {vMx0}, {vMx1}")
        A(f"v_max3_f32 {vMx0}, {vMx0}, {vMx1}, {sFloor}")
        A(f"v_max_f32 {vMx1}, 0, {vMx0}")
        A(f"v_exp_f32 {vMx1}, -{vMx1}")
        for i in range(16): A(f"v_sub_f32 v{NEG+i}, v{NEG+i}, {vMx0}")
        A(f"v_mul_f32 v{LACC}, {vMx1}, v{LACC}")
        for i in range(64): A(f"v_mul_f32 v{O0+i}, {vMx1}, v{O0+i}")
        A(f"s_bitcmp1_b32 {sT}, 0"); A("s_cbranch_scc1 L_rare_a")
        for i in range(32): A(f"v_sub_f32 v{SB+i}, v{SB+i}, {vMx0}")
        A("s_branch L_rare_e")
        A.label("L_rare_a")
        for i in range(32): A(f"v_sub_f32 v{SA+i}, v{SA+i}, {vMx0}")
        A.label("L_rare_e")
        A(f"s_cmp_eq_u32 {sFloor}, 0"); A("s_cbranch_scc1 L_chk_done")
        A("s_branch L_check")
        A.label("L_extras")
        A(f"s_cmp_eq_u32 {sT}, 11"); A(f"s_cselect_b32 {sT0}, 0xc0000, 0"); A(f"s_add_u32 {sKoff}, {sKoff}, {sT0}")
        A(f"s_cmp_eq_u32 {sT}, 13"); A(f"s_cselect_b32 {sT0}, 0xc0000, 0"); A(f"s_add_u32 {sVoff}, {sVoff}, {sT0}")
        A(f"s_cmp_eq_u32 {sT}, 27"); A(f"s_cselect_b32 {sKoff}, 0x{OOB:x}, {sKoff}")
        A(f"s_cmp_eq_u32 {sT}, 29"); A(f"s_cselect_b32 {sVoff}, 0x{OOB:x}, {sVoff}")
        A(f"s_cmp_eq_u32 {sT}, 30"); A(f"s_cselect_b32 {sThr}, 0x7f800000, {sThr}")
        if F:
            om = sum(1 << t for t in range(OP_T0, OP_T0 + 10))
            A(f"s_bitcmp1_b32 0x{om:08x}, {sT}"); A("s_cbranch_scc1 L_xo")
        qm = sum(1 << t for t in range(QP_T0, QP_T0 + 8))
        A(f"s_bitcmp1_b32 0x{qm:08x}, {sT}"); A("s_cbranch_scc1 L_xq")
        A(f"s_cmp_eq_u32 {sT}, 31"); A("s_cbranch_scc1 L_tail")
        A(f"s_cmp_eq_u32 {sT}, 15"); A("s_cbranch_scc1 L_x15")
        A(f"s_cmp_eq_u32 {sT}, 14"); A("s_cbranch_scc1 L_x14")
        if F:
            A(f"s_cmp_eq_u32 {sT}, {PUB_T}"); A("s_cbranch_scc1 L_xpub")
            A(f"s_cmp_eq_u32 {sT}, {OP_T0-2}"); A("s_cbranch_scc1 L_xpoll")
            A(f"s_cmp_eq_u32 {sT}, {OP_T0-1}"); A("s_cbranch_scc1 L_xchk")
        A(f"s_cmp_eq_u32 {sT}, {WO_T}"); A("s_cbranch_scc0 L_check")
        A.lds_reset()
        A(f"s_waitcnt vmcnt({n3[WO_T]})")
        for b in range(4):
            A.lds(f"ds_read_b64_tr_b16 {at(AVF+4*b,2)}, {vTa[b]}", b)
            A.lds(f"ds_read_b64_tr_b16 {at(AVF+4*b+2,2)}, {vTa[b]} offset:2048", b)
        A(f"s_and_b32 {sT0}, s2, 3"); A(f"s_lshl_b32 {sT0}, {sT0}, 20")
        A(f"s_lshr_b32 {sT1}, s2, 2"); A(f"s_lshl_b32 {sT1}, {sT1}, 2"); A(f"s_add_u32 {sT1}, {sT1}, {sW}")
        A(f"s_lshl_b32 {sT1}, {sT1}, 11"); A(f"s_add_u32 {sT0}, {sT0}, {sT1}")
        A(f"s_add_u32 {sT0}, {sT0}, {WS_WT}"); A(f"s_add_u32 {sT1}, {sT0}, 524288")
        for b in range(4):
            A.lds_wait(b)
            A(f"buffer_store_dwordx4 {at(AVF+4*b,4)}, {vL16}, {srd(SWS)}, {sT0 if b < 2 else sT1} offen offset:{(b%2)*1024} sc1")
        self.emit_groups(self.tile_XW())
        A(f"s_xor_b32 {sEpar}, {sEpar}, {T}")
        A("s_branch L_check")
        A.label("L_xq")
        nq = min(n3[t] for t in range(QP_T0, QP_T0 + 8))
        A(f"s_waitcnt vmcnt({nq})")
        A("s_barrier")
        if F:
            lab = A.newlabel("Lq")
            A(f"s_cmp_eq_u32 {sT}, {QP_T0}"); A(f"s_cbranch_scc0 {lab}")
            self.one_lane([f"buffer_atomic_add {vOne}, {vZero}, {srd(SDBG)}, 0 offen offset:128 sc1"], wave0=True)
            A.label(lab)
        A(f"s_cmp_eq_u32 {sT}, {QP_T0+7}"); A(f"s_cselect_b32 {sXb}, 0x{OOB:x}, {sXb}"); A(f"s_cselect_b32 {sWb}, 0x{OOB:x}, {sWb}")
        gaps = [[] for _ in range(16)]
        self.place(gaps, self.tile_XW(), [2 * k for k in range(8)])
        for k, r in enumerate(vXa): gaps[4 + k].append(f"v_xor_b32 {r}, {T}, {r}")
        for k, r in enumerate(vWa): gaps[12 + k].append(f"v_xor_b32 {r}, {T}, {r}")
        gaps[15].append(f"s_xor_b32 {sEpar}, {sEpar}, {T}")
        self.qpair_code(gaps)
        A("s_branch L_check")
        A.label("L_x14")
        A(f"s_call_b64 {sLink}, L_qfin")
        for k in range(16): A(f"v_mov_b32 v{NEG+k}, 0")
        A(f"s_mov_b32 {sThr}, 0x7f800000")
        if F:
            for l in self.zero_acc(): A(l)
            g0 = OP_T0 % 2
            for j in range(32):
                A(f"v_accvgpr_write_b32 a{224+j}, 0" if g0 == 0 else f"v_mov_b32 v{208+j}, 0")
        A("s_branch L_check")
        A.label("L_x15")
        A(f"s_call_b64 {sLink}, L_epi")
        A(f"s_add_u32 {sOT}, {sOT}, {4*16384 - 16384}")
        for i in range(64): A(f"v_mov_b32 v{O0+i}, 0")
        A(f"v_mov_b32 v{LACC}, 0")
        A(f"s_mov_b32 {sThr}, 0x{f2u(8.0):08x}")
        self.stamp(11)
        A("s_branch L_init")
        if F:
            A.label("L_xpub")
            A(f"s_waitcnt vmcnt({n3[PUB_T]})")
            A("s_barrier")
            A(f"s_lshl_b32 {sT0}, {sBat}, 2")
            self.one_lane([f"buffer_atomic_add {vOne}, {vZero}, {srd(SDBG)}, {sT0} offen sc1"], wave0=True)
            A("s_branch L_check")
            A.label("L_xpoll")
            A(f"buffer_load_dword {vPoll}, {vPoff}, {srd(SDBG)}, 0 offen sc1")
            A("s_branch L_check")
            A.label("L_xchk")
            A(f"s_waitcnt vmcnt({n3[OP_T0-1]})")
            A(f"s_mov_b32 {sSpin}, 0x40000")
            A.label("L_xchk_loop")
            A(f"v_cmp_ne_u32 vcc, {vPoll}, {vPexp}")
            A("s_cbranch_vccz L_xchk_ok")
            A(f"s_sub_u32 {sSpin}, {sSpin}, 1"); A("s_cbranch_scc1 L_xchk_ok")
            A("s_sleep 4")
            A(f"buffer_load_dword {vPoll}, {vPoff}, {srd(SDBG)}, 0 offen sc1")
            A("s_waitcnt vmcnt(0)")
            A("s_branch L_xchk_loop")
            A.label("L_xchk_ok")
            A(f"s_mov_b32 {sAoff}, {sAreal}")
            A("s_branch L_check")
            A.label("L_xo")
            no = min(n3[t] for t in range(OP_T0, OP_T0 + 10))
            A(f"s_waitcnt vmcnt({no})")
            A(f"s_add_u32 {sT0}, {sWToff}, 4096")
            A(f"s_bitcmp1_b32 {sT}, 0"); A("s_cbranch_scc1 L_xo1")
            for g in range(2):
                if g == 1: A.label("L_xo1")
                ms = self.opair_mfmas(GA[g], GW[g], 0) + self.opair_mfmas(GA[g], GW[g], 1)
                for k, m in enumerate(ms):
                    A(m)
                    if k % 2 == 0:
                        j = k // 2
                        for l in self.aload(GW[1 - g], j, sWToff if j < 4 else sT0): A(l)
                if g == 0: A("s_branch L_xo2")
            A.label("L_xo2")
            A(f"s_add_u32 {sWToff}, {sWToff}, 8192")
            A(f"s_cmp_eq_u32 {sT}, {OP_T0+7}"); A(f"s_cselect_b32 {sAoff}, 0x{OOB:x}, {sAoff}")
            A(f"s_cmp_eq_u32 {sT}, {OP_T0+9}"); A(f"s_cselect_b32 {sAoff}, {sWToff}, {sAoff}")
            A("s_branch L_check")
        A.label("L_tail")
        self.stamp(12)
        A(f"s_call_b64 {sLink}, L_epi")
        self.stamp(13)
        if F: self.tail()
        self.dump_stamps()
        A.label("L_end")
        A("s_endpgm")
        self.qfin_sub(); self.epilogue_sub()
        A.label("L_codeend")

    def tail(self):
        A = self.A
        assert OP_T0 + 9 == 29
        g = (OP_T0 + 8) % 2
        WR = [GW[1 - g], GW[g], GA[1], GA[0],
              lambda j, n: at(AQ + j, n), lambda j, n: at(AKF + j, n), lambda j, n: at(AVF + j, n), lambda j, n: vt(SA + j, n)]
        for k in range(4, 8):
            A(f"s_add_u32 {sT0}, {sAoff}, 4096")
            for j in range(8):
                for l in self.aload(WR[k], j, sAoff if j < 4 else sT0): A(l)
            A(f"s_add_u32 {sAoff}, {sAoff}, 8192")
            if k == 4:
                A("s_waitcnt vmcnt(8)")
                self.one_lane([f"buffer_store_dword {vOne}, {vZero}, {srd(SWS)}, {sFlagP} offen sc1"])
                self.stamp(14)
        A("v_and_b32 v8, 7, v2"); A("v_lshlrev_b32 v8, 2, v8")
        A(f"s_mov_b32 {sSpin}, 0x40000")
        A.label("L_tp")
        A(f"buffer_load_dword {vPoll}, v8, {srd(SWS)}, {sFlagC} offen sc1")
        A("s_waitcnt vmcnt(0)")
        A(f"v_cmp_ne_u32 vcc, 1, {vPoll}")
        A("s_cbranch_vccz L_tp_ok")
        A(f"s_sub_u32 {sSpin}, {sSpin}, 1"); A("s_cbranch_scc0 L_tp")
        A.label("L_tp_ok")
        self.stamp(15)
        A(f"s_add_u32 {sAoff}, {sAreal}, {4*16384}")
        RAs = [lambda j, n, b=b: vt(O0 + 16 * b + j, n) for b in range(4)]
        def loads(p):
            ls = [self.aload(RAs[p % 4], j, sAoff) for j in range(4)]
            ls[3] = ls[3] + [f"s_add_u32 {sAoff}, {sAoff}, 4096"]
            return ls
        AH = 3
        for p in range(AH): self.emit_groups(loads(p))
        for p in range(16):
            left = min(15, p + AH - 1) - p
            A(f"s_waitcnt vmcnt({4*left})")
            RW = WR[p // 2]
            ms = self.opair_mfmas(RAs[p % 4], lambda j, n: RW(16 * (p % 2) + j, n), 0)
            ls = loads(p + AH) if p + AH < 16 else [[]] * 4
            for k, m in enumerate(ms):
                A(m)
                if k % 2 == 0:
                    for l in ls[k // 2]: A(l)
        self.stamp(16)
        self.reduce_store()

    def dump_stamps(self):
        if not self.stamps: return
        A = self.A
        A("s_waitcnt vmcnt(0)")
        self.stamp(17)
        A("s_memrealtime s[100:101]")
        A("s_getreg_b32 s3, hwreg(HW_REG_XCC_ID)")
        A("s_waitcnt lgkmcnt(0)")
        A(f"v_writelane_b32 v{VST}, s98, 61"); A(f"v_writelane_b32 v{VST}, s100, 62"); A(f"v_writelane_b32 v{VST}, s3, 63")
        A(f"s_lshl_b32 {sT1}, s2, 2"); A(f"s_add_u32 {sT1}, {sT1}, {sW}"); A(f"s_mul_i32 {sT1}, {sT1}, 768")
        A(f"s_add_u32 {sT1}, {sT1}, {WS_STAMP}")
        A(f"v_lshrrev_b32 v3, 2, {vL16}")
        A(f"buffer_store_dword v{VST}, v3, {srd(SWS)}, {sT1} offen")
        A(f"buffer_store_dword v{VST+1}, v3, {srd(SWS)}, {sT1} offen offset:256")
        A(f"buffer_store_dword v{VST+2}, v3, {srd(SWS)}, {sT1} offen offset:512")

    def kernelB(self):
        A = self.A
        A("s_cmp_ge_u32 s2, 256"); A("s_cbranch_scc1 LB_end")
        A("s_load_dwordx16 s[64:79], s[0:1], 0")
        A("v_lshrrev_b32 v1, 6, v0"); A("v_and_b32 v2, 63, v0")
        A(f"v_readfirstlane_b32 {sW}, v1")
        A(f"v_lshlrev_b32 {vL16}, 4, v2")
        A("s_nop 1")
        self.oproj_offsets(sAoff)
        A("s_waitcnt lgkmcnt(0)")
        self.make_srd(SWS, 78, WS_SIZE); self.make_srd(SOUT, 74, 2 << 20)
        NS = 4
        def setregs(k):
            k %= NS
            return lambda j, n: vt(64 + 32 * k + j, n)
        def load(p):
            R = setregs(p)
            ls = [[f"buffer_load_dwordx4 {R(4*i,4)}, {vL16}, {srd(SWS)}, {sAoff} offen offset:{i*1024}"] for i in range(4)]
            ls += [[f"buffer_load_dwordx4 {R(16+4*i,4)}, {vL16}, {srd(SWS)}, {sWToff} offen offset:{i*1024}"] for i in range(4)]
            ls[7] += [f"s_add_u32 {sAoff}, {sAoff}, 4096", f"s_add_u32 {sWToff}, {sWToff}, 4096"]
            return ls
        NP = 32
        for p in range(NS - 1): self.emit_groups(load(p))
        for l in self.zero_acc(): A(l)
        for p in range(NP):
            left = min(NP - 1, p + NS - 2) - p
            A(f"s_waitcnt vmcnt({8*left})")
            R = setregs(p)
            ls = load(p + NS - 1) if p + NS - 1 < NP else [[]] * 8
            for k, m in enumerate(self.opair_mfmas(R, lambda j, n: R(16 + j, n), 0)):
                A(m)
                for l in ls[k]: A(l)
        self.reduce_store()
        A.label("LB_end")
        A("s_endpgm")
    def oproj_offsets(self, sA):
        A = self.A
        A(f"s_and_b32 {sT0}, s2, 7"); A(f"s_lshl_b32 {sT0}, {sT0}, 2"); A(f"s_lshr_b32 {sT1}, s2, 6")
        A(f"s_add_u32 {sB2}, {sT0}, {sT1}")
        A(f"s_lshl_b32 {sT0}, {sB2}, 19"); A(f"s_lshl_b32 {sT1}, {sW}, 17"); A(f"s_add_u32 {sA}, {sT0}, {sT1}")
        A(f"s_bfe_u32 {sT0}, s2, 0x30003"); A(f"s_lshl_b32 {sT0}, {sT0}, 19")
        A(f"s_add_u32 {sT0}, {sT0}, {sT1}"); A(f"s_add_u32 {sWToff}, {sT0}, {WS_WT}")
    def reduce_store(self):
        A = self.A
        A(f"v_lshl_add_u32 v3, v1, 14, {vL16}")
        A(f"v_lshl_add_u32 v4, v1, 12, {vL16}")
        A("v_and_b32 v5, 31, v2"); A("v_lshrrev_b32 v6, 5, v2"); A("v_lshlrev_b32 v5, 10, v5"); A("v_lshl_add_u32 v5, v6, 5, v5")
        A(f"s_lshl_b32 {sT0}, {sB2}, 16"); A(f"s_and_b32 {sT1}, {sW}, 1"); A(f"s_lshl_b32 {sT1}, {sT1}, 15"); A(f"s_add_u32 {sT0}, {sT0}, {sT1}")
        A(f"s_bfe_u32 {sT1}, s2, 0x30003"); A(f"s_lshl_b32 {sT1}, {sT1}, 7"); A(f"s_add_u32 {sT0}, {sT0}, {sT1}")
        A(f"s_lshr_b32 {sT1}, {sW}, 1"); A(f"s_lshl_b32 {sT1}, {sT1}, 6"); A(f"s_add_u32 {sT0}, {sT0}, {sT1}")
        A("s_barrier")
        for blk in range(4):
            for q in range(4):
                A(f"ds_write_b128 v3, {at(AACC+16*blk+4*q,4)} offset:{blk*4096+q*1024}")
                if (blk * 4 + q) % 8 == 7: A("s_waitcnt lgkmcnt(0)")
        A("s_barrier")
        for src in range(4):
            for q in range(4):
                A(f"ds_read_b128 {vt(64+16*src+4*q,4)}, v4 offset:{src*16384+q*1024}")
            if src % 2 == 1: A("s_waitcnt lgkmcnt(0)")
        for i in range(16): A(f"v_add_f32 v{64+i}, v{64+i}, v{80+i}")
        for i in range(16): A(f"v_add_f32 v{96+i}, v{96+i}, v{112+i}")
        for i in range(16): A(f"v_add_f32 v{64+i}, v{64+i}, v{96+i}")
        for j in range(8): A(f"v_cvt_pk_bf16_f32 v{80+j}, v{64+2*j}, v{64+2*j+1}")
        A(f"buffer_store_dwordx4 {vt(80,4)}, v5, {srd(SOUT)}, {sT0} offen")
        A(f"buffer_store_dwordx4 {vt(84,4)}, v5, {srd(SOUT)}, {sT0} offen offset:16")

HDR = open("standalone__mha_block_cached__near_ridge.s.ref").read().split("; Override")[0]
def desc(name):
    return f""".amdhsa_kernel {name}
  .amdhsa_next_free_vgpr 512
  .amdhsa_next_free_sgpr 102
  .amdhsa_accum_offset 256
  .amdhsa_group_segment_fixed_size 0
  .amdhsa_kernarg_size 64
  .amdhsa_user_sgpr_count 2
  .amdhsa_user_sgpr_kernarg_segment_ptr 1
  .amdhsa_system_sgpr_workgroup_id_x 1
.end_amdhsa_kernel
"""
def build(path, align=True, verbose=False, **kw):
    g = Gen(**kw); g.kernelA()
    la = align8(g.A.lines) if align else g.A.lines
    bad = check_hazards(la)
    s = HDR
    if g.fused:
        s += f"; @launch grid=(256,1,1) block=(256,1,1) lds=163840\n"
    else:
        gb = Gen(**kw); gb.kernelB()
        lb = align8(gb.A.lines) if align else gb.A.lines
        bad += check_hazards(lb)
        s += f"; @launch kernel={KN} grid=(256,1,1) block=(256,1,1) lds=163840\n"
        s += f"; @launch kernel=oproj_kernel grid=(256,1,1) block=(256,1,1) lds=65536\n"
    print(path, "hazards:", bad)
    if verbose: print(g.n)
    s += '.amdgcn_target "amdgcn-amd-amdhsa--gfx950"\n.text\n'
    s += f".globl {KN}\n.p2align 8\n.type {KN},@function\n{KN}:\n" + "\n".join(la) + "\n"
    if not g.fused:
        s += f".globl oproj_kernel\n.p2align 8\n.type oproj_kernel,@function\noproj_kernel:\n" + "\n".join(lb) + "\n"
    s += '.section .rodata,"a"\n.p2align 6\n' + desc(KN)
    if not g.fused: s += ".p2align 6\n" + desc("oproj_kernel")
    open(path, "w").write(s)
if __name__ == "__main__":
    build("v3f.s", fused=True, verbose=True)
    build("v3f_st.s", fused=True, stamps=True)
    build("v3f_nt_st.s", fused=True, stamps=True, xwf=" nt")
    build("v3f_nokv_st.s", fused=True, stamps=True, prokv=False)
    build("v3u.s", fused=False)
```

```python
import sys, math, struct, itertools
sys.path.insert(0, "work")
from asmlib import Asm, check_hazards, align8

KN = "standalone__mha_block_cached__near_ridge_kernel"
def f2u(x): return struct.unpack("<I", struct.pack("<f", x))[0]
CSC = math.log2(math.e) / math.sqrt(128.0)
THR = 8.0 / CSC
MINIT = -3.0e38
OOB = 0x40000000

T = 16384
LK, LV, LX, LW = 0, 3 * T, 6 * T, 8 * T
WS_OT = 0
WS_WT = 16 << 20
WS_FLAG = 20 << 20
WS_STAMP = 21 << 20
WS_SIZE = 22 << 20
SK, SV, SX, SWQ, SWO, SWS, SOUT, SDBG = 4, 8, 12, 16, 20, 24, 28, 32
def srd(b): return f"s[{b}:{b+3}]"
sW, sW4K, sKoff, sVoff, sKcur, sVcur, sKd, sT, sC, sSw1, sBaseB, sSw2 = [f"s{i}" for i in range(36, 48)]
sXoff, sWoff, sEpar, sT0, sT1, sT2 = [f"s{i}" for i in range(48, 54)]
sLink = "s[54:55]"
sRet = "s[92:93]"
sOT, sVd, sM32K, sAoff, sWToff, sB2, sT3, sAoff2 = [f"s{i}" for i in range(56, 64)]
sThr, sFloor, sTO = sKd, sVd, sSw1
sTi, sXb, sWb, sAreal, sFlagP, sFlagC, sBat, sSpin = [f"s{i}" for i in range(80, 88)]
SCODE = 88
vKa = [f"v{i}" for i in range(16, 24)]
vVa = [f"v{i}" for i in range(24, 28)]
vKd = [f"v{i}" for i in range(28, 32)]
vVd = "v32"; vL16 = "v33"; vMx0 = "v34"; vMx1 = "v35"
vPoll = "v36"; vPoff = "v37"; vPexp = "v38"; vZero = "v39"; vOne = "v40"
VST = 41
ONES, LACC = 44, 48
vWa = [f"v{i}" for i in range(4, 8)]; vWd = "v8"
vTa = [f"v{i}" for i in range(9, 13)]
vXa = [f"v{i}" for i in range(160, 164)]
vXd = ["v164", "v165"]; vWoD = "v166"
O0, SA, SB, P0, NEG = 64, 128, 160, 192, 240
AQ, AACC, AKF, AVF, AXF = 0, 32, 96, 128, 224
def vt(b, n): return f"v[{b}:{b+n-1}]"
def at(b, n): return f"a[{b}:{b+n-1}]"
def SET(k):
    return (lambda j, n: at(160 + 32 * k + j, n)) if k < 3 else (lambda j, n: vt(208 + j, n))
def XR(i, s): return SET(i // 2)(16 * (i % 2) + 4 * s, 4)
MF = "v_mfma_f32_32x32x16_bf16"

QP_T0 = 4
WO_T = QP_T0 - 2
PUB_T = 16
OP_T0 = 19

class Gen:
    def __init__(self, stamps=False, nt=True, fused=True, split=24, rot=False, pf=True, xwf='', wgrp=2, prokv=True, nahead=6, latepos=(10, 12, 14, 15), e3=True, dbg=(), stf=' sc1', wsbase=0, wof=None):
        self.A = Asm()
        self.stamps = stamps; self.fused = fused; self.split = split; self.rot = rot; self.pf = pf; self.xwf = xwf; self.wgrp = wgrp; self.prokv = prokv; self.nahead = nahead; self.latepos = list(latepos); self.e3 = e3; self.dbg = dbg; self.stf = stf; self.wsbase = wsbase
        self.nt = " nt" if nt else ""
        self.vm = []
    def vm_issue(self, tag, n): self.vm += [tag] * n
    def vm_need(self, *tags):
        idx = -1
        for i, q in enumerate(self.vm):
            if q in tags: idx = i
        assert idx >= 0, tags
        return min(63, len(self.vm) - 1 - idx)
    def stamp(self, k):
        if self.stamps:
            self.A("s_memtime s[96:97]"); self.A("s_waitcnt lgkmcnt(0)"); self.A(f"v_writelane_b32 v{VST}, s96, {k}")
    def istamp(self, v, hi):
        if not self.stamps: return
        A = self.A
        A("s_memtime s[96:97]")
        A(f"s_add_u32 m0, {sT}, {32 if hi else 0}")
        A("s_waitcnt lgkmcnt(0)")
        A(f"v_writelane_b32 v{v}, s96, m0")
    def dma_line(self, voff, srdb, soff, i, flags):
        return f"buffer_load_dwordx4 {voff}, {srd(srdb)}, {soff} offen offset:{i*1024}{flags} lds"
    def tile_KV(self, isK, slot):
        off, base, voffs, srdb = (sKoff, LK, vKd, SK) if isK else (sVoff, LV, [vVd] * 4, SV)
        g = [[self.dma_line(voffs[i], srdb, off, i, self.nt)] for i in range(4)]
        g[0] = [f"s_add_u32 m0, {sW4K}, {base + slot*T}", "@M0"] + g[0]
        g[3] = g[3] + [f"s_add_u32 {off}, {off}, {T}"]
        return g
    def tile_strided(self, m0lines, voffs, srdb, soff, step):
        g = [m0lines + ["s_nop 0", self.dma_line(voffs[0], srdb, soff, 0, self.xwf)]]
        for i in range(1, 4):
            g.append([f"s_add_u32 {soff}, {soff}, {step}", self.dma_line(voffs[i], srdb, soff, i, self.xwf)])
        return g
    def tile_XW(self, xbase=None, wbase=None):
        mx = [f"s_add_u32 m0, {sW4K}, {xbase}"] if xbase is not None else \
             [f"s_add_u32 {sT0}, {sEpar}, {LX}", f"s_add_u32 m0, {sT0}, {sW4K}"]
        mw = [f"s_add_u32 m0, {sW4K}, {wbase}"] if wbase is not None else \
             [f"s_add_u32 {sT0}, {sEpar}, {LW}", f"s_add_u32 m0, {sT0}, {sW4K}"]
        gx = self.tile_strided([f"s_lshl_b32 {sXoff}, {sTi}, 7", f"s_add_u32 {sXoff}, {sXoff}, {sXb}"] + mx,
                               [vXd[0], vXd[1], vXd[0], vXd[1]], SX, sXoff, 8192 - 1024)
        gw = self.tile_strided([f"s_lshl_b32 {sWoff}, {sTi}, 19", f"s_add_u32 {sWoff}, {sWoff}, {sWb}"] + mw,
                               [vWd] * 4, SWQ, sWoff, 32768 - 1024)
        gw[3] += [f"s_add_u32 {sTi}, {sTi}, 1", f"s_and_b32 {sTi}, {sTi}, 7"]
        return gx + gw
    def tile_W(self, base, i):
        return self.tile_strided([f"s_add_u32 {sWoff}, {sWb}, {i * 524288}", f"s_add_u32 m0, {sW4K}, {base}"],
                                 [vWd] * 4, SWQ, sWoff, 32768 - 1024)
    def emit_groups(self, groups):
        for g in groups:
            for l in g: self.A("s_nop 0" if l == "@M0" else l)
    @staticmethod
    def place(gaps, groups, positions):
        for g, p in zip(groups, positions):
            if "@M0" in g:
                k = g.index("@M0")
                if gaps[p]:
                    gaps[p] = g[:k] + gaps[p][:1] + g[k+1:] + gaps[p][1:]
                else:
                    gaps[p] = g[:k] + ["s_nop 0"] + g[k+1:]
            else:
                gaps[p] = g + gaps[p]

    def interleave(self, mfmas, reads, nahead, pre, gaps):
        A = self.A
        n = len(mfmas); G = self.wgrp
        for i in range(min(nahead, n)):
            for tx, tg in reads[i]: A.lds(tx, tg)
        if pre: pre()
        for i in range(n):
            if i % G == 0:
                tags = []
                for j in range(i, min(n, i + G)): tags += mfmas[j][1]
                A.lds_wait(*tags)
            A(mfmas[i][0])
            if i + nahead < n:
                for tx, tg in reads[i + nahead]: A.lds(tx, tg)
            for l in gaps[i]: A(l)
    @staticmethod
    def spread(fill, ngaps, first=0):
        cost = lambda l: 8 if l.startswith("v_exp") or l.startswith("v_rcp") else 4
        tot = sum(cost(l) for l in fill)
        gaps = [[] for _ in range(ngaps)]
        acc = 0; k = ngaps - first
        for l in fill:
            g = first + min(k - 1, int((acc + cost(l) / 2) * k / tot))
            gaps[g].append(l); acc += cost(l)
        return gaps
    def exp_ops(self, S, lo, hi):
        ops = []
        ex = lambda i: f"v_exp_f32 v{S+i}, v{S+i}"
        cvt = lambda i: f"v_cvt_pk_bf16_f32 v{P0 + i//2}, v{S+i}, v{S+i+1}"
        prs = list(range(lo, hi, 2))
        for k, i in enumerate(prs):
            ops += [ex(i), ex(i + 1)]
            if k > 0: ops += [cvt(prs[k-1])]
        ops += ["s_nop 0", cvt(prs[-1])]
        return ops
    def max_ops(self, S):
        ops = []
        for b, mx in ((0, vMx0), (16, vMx1)):
            o = [f"v_max3_f32 {mx}, v{S+b}, v{S+b+1}, v{S+b+2}"]
            for i in range(3, 15, 2): o.append(f"v_max3_f32 {mx}, {mx}, v{S+b+i}, v{S+b+i+1}")
            ops.append(o)
        out = []
        for x, y in zip(*ops): out += [x, y]
        out.append(f"v_max3_f32 {vMx0}, {vMx0}, v{S+15}, v{S+31}")
        out.append(f"v_max_f32 {vMx0}, {vMx0}, {vMx1}")
        return out
    def qk_lists(self, Sn, slot):
        mf, rd = [], []
        for i in range(16):
            kb, s = i // 8, i % 8
            fr = AKF + 4 * (i % 8)
            d = vt(Sn + 16 * kb, 16)
            mf.append((f"{MF} {d}, {at(fr,4)}, {at(AQ+4*s,4)}, {vt(NEG,16) if s == 0 else d}", [("k", i)]))
            rd.append([(f"ds_read_b128 {at(fr,4)}, {vKa[s]} offset:{slot*T + kb*8192}", ("k", i))])
        return mf, rd
    def pv_lists(self, slot):
        mf, rd = [], []
        for i in range(16):
            ks, blk = i // 4, i % 4
            fr = AVF + 4 * (i % 8)
            d = vt(O0 + 16 * blk, 16)
            mf.append((f"{MF} {d}, {at(fr,4)}, {vt(P0+4*ks,4)}, {d}", [("v", i)]))
            rd.append([(f"ds_read_b64_tr_b16 {at(fr,2)}, {vVa[blk]} offset:{slot*T + ks*4096}", ("v", i)),
                       (f"ds_read_b64_tr_b16 {at(fr+2,2)}, {vVa[blk]} offset:{slot*T + ks*4096+2048}", ("v", i))])
        return mf, rd
    def wait_ladder(self, need, maxlev=3):
        A = self.A
        vals = sorted(set(need.values()), reverse=True)
        if len(vals) > maxlev:
            best = None
            for comb in itertools.combinations(vals, maxlev):
                if min(comb) != vals[-1]: continue
                loss = sum(min(v, 24) - min(24, max(c for c in comb if c <= v)) for v in need.values())
                if best is None or loss < best[0]: best = (loss, comb)
            vals = sorted(best[1], reverse=True)
        lvl = {t: max(c for c in vals if c <= v) for t, v in need.items()}
        done = A.newlabel("Lw")
        A(f"s_waitcnt vmcnt({vals[0]})")
        for v in vals[1:]:
            mask = sum(1 << t for t, l in lvl.items() if l <= v)
            A(f"s_bitcmp1_b32 0x{mask:08x}, {sT}")
            A(f"s_cbranch_scc0 {done}")
            A(f"s_waitcnt vmcnt({v})")
        A.label(done)

    def simulate_loop(self):
        n1, n2, n3 = {}, {}, {}
        F = self.fused
        for t in range(32):
            n1[t] = self.vm_need(("V", t))
            self.vm_issue(("V", t + 2), 4)
            n2[t] = self.vm_need(("K", t + 2)) if t < 30 else 63
            if QP_T0 <= t < QP_T0 + 8: n2[t] = min(n2[t], self.vm_need(("E", t - QP_T0)))
            self.vm_issue(("K", t + 4), 4)
            if t == WO_T:
                n3[t] = self.vm_need(("WO",)); self.vm_issue(("WT",), 4); self.vm_issue(("E", 0), 4); self.vm_issue(("E", 1), 4)
            if QP_T0 <= t < QP_T0 + 6: self.vm_issue(("E", t - QP_T0 + 2), 4)
            if t == QP_T0 + 1: n3[t] = self.vm_need(("WT",))
            if t == 15: self.vm_issue(("OA",), 8)
            if F and t == PUB_T: n3[t] = self.vm_need(("OA",))
        return n1, n2, n3

    def aload(self, R, j, soff):
        return [f"buffer_load_dwordx4 {R(4*j,4)}, {vL16}, {srd(SWS)}, {soff} offen offset:{(j%4)*1024} sc1"]
    def body(self, c, n1, n2):
        A = self.A
        par = c % 2; NA = self.nahead; G = self.wgrp
        S, Sn = (SA, SB) if par == 0 else (SB, SA)
        sel = lambda d: min(v for t, v in d.items() if t % 6 == c)
        mf1, rd1 = self.qk_lists(Sn, (c + 1) % 3)
        mf2, rd2 = self.pv_lists(c % 3)
        _, rdn = self.qk_lists(S, (c + 2) % 3)
        rdn = [[(tx, ("kn", i)) for tx, tg in r] for i, r in enumerate(rdn)]
        mf = mf1 + mf2; rd = rd1 + rd2 + rdn[:NA]
        bp = 16 - NA - 1
        gaps1 = self.spread(self.exp_ops(S, 0, self.split), 16)
        rest = self.exp_ops(S, self.split, 32)
        lim = 10 if self.split >= 24 else 6
        g1 = self.spread(rest, lim)
        g2 = self.spread(self.max_ops(Sn), 16, first=lim - 3)
        gaps2 = [(g1[i] if i < lim else []) + g2[i] for i in range(16)]
        early = [0, 2, 4, 6]; late = [bp + 1, bp + 2 + (15 - bp - 2) // 3, bp + 2 + 2 * (15 - bp - 2) // 3, 15]
        late = self.latepos
        self.place(gaps1, self.tile_KV(False, (c + 2) % 3), late)
        self.place(gaps2, self.tile_KV(True, (c + 1) % 3), late)
        lmf = {16 + 4 * ks + 3: f"{MF} {vt(LACC,16)}, {vt(ONES,4)}, {vt(P0+4*ks,4)}, {vt(LACC,16)}" for ks in range(4)}
        gaps = gaps1 + gaps2
        A.lds_q = [("k", i) for i in range(NA)]
        for i in range(32):
            if i % G == 0:
                tags = []
                for j in range(i, i + G): tags += mf[j][1]
                A.lds_wait(*tags)
            A(mf[i][0])
            if i % 16 == bp:
                if i < 16: self.istamp(VST+2, 0)
                A(f"s_waitcnt vmcnt({sel(n1) if i < 16 else sel(n2)})")
                A("s_barrier")
                self.istamp(VST+1, 0 if i < 16 else 1)
            for tx, tg in rd[i + NA]: A.lds(tx, tg)
            if i in lmf: A(lmf[i])
            for l in gaps[i]: A(l)

    def qpair_code(self, gaps, pi, readx, woff):
        A = self.A
        A.lds_reset()
        if readx:
            for s in range(4): A.lds(f"ds_read_b128 {XR(pi, s)}, {vXa[s]}", ("x", s))
        mf, rd = [], []
        for i in range(16):
            s, blk = i // 4, i % 4
            fr = AVF + 4 * (i % 8)
            d = at(AACC + 16 * blk, 16)
            mf.append((f"{MF} {d}, {at(fr,4)}, {XR(pi, s)}, {d}", [("w", i), ("x", s)]))
            rd.append([(f"ds_read_b64_tr_b16 {at(fr,2)}, {vWa[blk]} offset:{woff + s*4096}", ("w", i)),
                       (f"ds_read_b64_tr_b16 {at(fr+2,2)}, {vWa[blk]} offset:{woff + s*4096+1024}", ("w", i))])
        self.interleave(mf, rd, 5 if readx else 6, None, gaps)
    def qfin_sub(self):
        A = self.A
        A.label("L_qfin")
        A("s_nop 11")
        for s in range(8):
            b = AACC + 8 * s
            t = P0 + 8 * (s % 2)
            for j in range(8): A(f"v_accvgpr_read_b32 v{t+j}, a{b+j}")
            for j in range(8): A(f"v_mul_f32 v{t+j}, {sC}, v{t+j}")
            for j in range(4): A(f"v_cvt_pk_bf16_f32 v{t+2*j}, v{t+2*j}, v{t+2*j+1}")
            for j in range(4): A(f"v_accvgpr_write_b32 a{AQ+4*s+j}, v{t+2*j}")
        A("s_nop 1")
        A(f"s_setpc_b64 {sLink}")
    def zero_acc(self): return [f"v_accvgpr_write_b32 a{AACC+i}, 0" for i in range(64)]
    def epilogue_sub(self):
        A = self.A
        A.label("L_epi")
        A("s_nop 9")
        A(f"v_rcp_f32 {vMx1}, v{LACC}")
        A("s_nop 0")
        for ks in range(8):
            b = O0 + 8 * ks
            for j in range(8): A(f"v_mul_f32 v{b+j}, {vMx1}, v{b+j}")
            for j in range(4): A(f"v_cvt_pk_bf16_f32 v{b+j}, v{b+2*j}, v{b+2*j+1}")
            if ks % 2 == 0:
                A(f"buffer_store_dwordx4 {vt(b,4)}, {vL16}, {srd(SWS)}, {sOT} offen{self.stf}")
            else:
                A(f"buffer_store_dwordx4 {vt(b,4)}, {vL16}, {srd(SWS)}, {sOT} offen offset:2048{self.stf}")
                A(f"s_add_u32 {sOT}, {sOT}, 4096")
        A(f"s_setpc_b64 {sLink}")
    def make_srd(self, b, p, size):
        A = self.A
        A(f"s_mov_b32 s{b}, s{p}"); A(f"s_mov_b32 s{b+1}, s{p+1}")
        A(f"s_mov_b32 s{b+2}, 0x{size:x}"); A(f"s_mov_b32 s{b+3}, 0x20000")
    def one_lane(self, lines, wave0=False):
        A = self.A
        lab = A.newlabel("Lo")
        if wave0:
            A(f"s_cmp_eq_u32 {sW}, 0"); A(f"s_cbranch_scc0 {lab}")
        A("s_mov_b64 exec, 1")
        for l in lines: A(l)
        A("s_mov_b64 exec, -1")
        if wave0: A.label(lab)
    def opair_mfmas(self, RAf, RWf, p):
        out = []
        for ks in range(2):
            for nb in range(2):
                for qb in range(2):
                    d = at(AACC + 32 * nb + 16 * qb, 16)
                    out.append(f"{MF} {d}, {RWf(16*p+8*ks+4*nb,4)}, {RAf(16*p+8*ks+4*qb,4)}, {d}")
        return out

    def kernelA(self):
        A = self.A; F = self.fused
        A("s_cmp_ge_u32 s2, 256"); A("s_cbranch_scc1 L_end")
        if self.stamps: A("s_memrealtime s[98:99]")
        A("s_load_dwordx16 s[64:79], s[0:1], 0")
        self.stamp(0)
        A("v_lshrrev_b32 v1, 6, v0")
        A("v_and_b32 v2, 63, v0")
        A(f"v_readfirstlane_b32 {sW}, v1")
        A(f"v_lshlrev_b32 {vL16}, 4, v2")
        if self.pf:
            A(f"s_getpc_b64 s[{SCODE}:{SCODE+1}]")
            A.label("L_pc")
            A(f"s_mov_b32 s{SCODE+2}, L_codeend-L_pc"); A(f"s_mov_b32 s{SCODE+3}, 0x20000")
            A(f"s_lshr_b32 {sT0}, s2, 3"); A(f"s_lshl_b32 {sT0}, {sT0}, 2"); A(f"s_add_u32 {sT0}, {sT0}, {sW}")
            A(f"s_and_b32 {sT0}, {sT0}, 31"); A(f"s_lshl_b32 {sT0}, {sT0}, 10")
            A(f"buffer_load_dwordx4 v[128:131], {vL16}, {srd(SCODE)}, {sT0} offen")
            self.vm_issue(("CODE",), 1)
        else:
            A("s_nop 1")
        A(f"s_lshl_b32 {sW4K}, {sW}, 12")
        A("v_lshrrev_b32 v170, 4, v2"); A("v_and_b32 v171, 15, v2")
        A("v_lshl_add_u32 v172, v1, 4, v170")
        A("v_lshrrev_b32 v173, 3, v2"); A("v_lshl_add_u32 v173, v1, 5, v173")
        A("v_and_b32 v174, 7, v2"); A("v_xor_b32 v174, v174, v170"); A("v_lshlrev_b32 v174, 4, v174")
        A(f"v_lshl_add_u32 {vXd[0]}, v173, 10, v174")
        A(f"v_xor_b32 {vXd[1]}, 64, {vXd[0]}")
        A("v_lshlrev_b32 v175, 2, v170"); A("v_xor_b32 v175, v175, v171"); A("v_lshlrev_b32 v175, 4, v175")
        A(f"v_lshl_add_u32 {vWd}, v172, 13, v175")
        A(f"s_and_b32 {sBat}, s2, 1"); A(f"s_lshl_b32 {sBat}, {sBat}, 3")
        A(f"s_bfe_u32 {sT1}, s2, 0x30003"); A(f"s_add_u32 {sBat}, {sBat}, {sT1}")
        A(f"s_lshr_b32 {sT2}, s2, 6")
        if self.rot:
            A(f"s_lshl_b32 {sTi}, {sT2}, 1"); A(f"s_add_u32 {sTi}, {sTi}, {sT1}"); A(f"s_and_b32 {sTi}, {sTi}, 7")
        else:
            A(f"s_mov_b32 {sTi}, 0")
        A(f"s_bfe_u32 {sT1}, s2, 0x20001"); A(f"s_lshl_b32 {sT1}, {sT1}, 3")
        A(f"s_add_u32 {sT1}, {sT1}, {sT2}")
        A(f"s_lshl_b32 {sXb}, {sBat}, 17")
        A(f"s_lshl_b32 {sWb}, {sT1}, 8")
        A("s_waitcnt lgkmcnt(0)")
        self.make_srd(SX, 64, 2 << 20); self.make_srd(SWQ, 70, 4 << 20)
        XS = [LX, LX + T, LK + 2 * T]; WS_ = [LW, LW + T, LV + 2 * T]
        self.emit_groups(self.tile_XW(XS[0], WS_[0])); self.vm_issue(("P", 0), 8)
        self.stamp(1)
        A(f"s_lshl_b32 {sT2}, {sBat}, 5"); A(f"s_add_u32 {sT2}, {sT2}, {sT1}")
        A(f"s_lshl_b32 {sKoff}, {sT2}, 18"); A(f"s_mov_b32 {sVoff}, {sKoff}")
        A(f"s_lshl_b32 {sT0}, {sBat}, 1"); A(f"s_lshr_b32 {sT2}, {sW}, 1"); A(f"s_add_u32 {sT0}, {sT0}, {sT2}")
        A(f"s_lshl_b32 {sFlagP}, {sT0}, 2"); A(f"s_lshr_b32 {sT2}, {sT1}, 3"); A(f"s_add_u32 {sFlagP}, {sFlagP}, {sT2}")
        A(f"s_lshl_b32 {sFlagP}, {sFlagP}, 7"); A(f"s_and_b32 {sT2}, {sT1}, 3"); A(f"s_lshl_b32 {sT2}, {sT2}, 3")
        A(f"s_add_u32 {sFlagP}, {sFlagP}, {sT2}"); A(f"s_and_b32 {sT2}, {sW}, 1"); A(f"s_lshl_b32 {sT3}, {sT2}, 2")
        A(f"s_add_u32 {sFlagP}, {sFlagP}, {sT3}"); A(f"s_add_u32 {sFlagP}, {sFlagP}, {WS_FLAG}")
        A(f"s_lshl_b32 {sT0}, {sT0}, 5"); A(f"s_add_u32 {sT0}, {sT0}, {sT1}"); A(f"s_lshl_b32 {sT0}, {sT0}, 14")
        A(f"s_lshl_b32 {sT2}, {sT2}, 10"); A(f"s_add_u32 {sOT}, {sT0}, {sT2}")
        self.emit_groups(self.tile_XW(XS[1], WS_[1])); self.vm_issue(("P", 1), 8)
        A(f"s_mov_b32 {sC}, 0x{f2u(CSC):08x}")
        self.make_srd(SK, 66, 128 << 20); self.make_srd(SV, 68, 128 << 20)
        self.make_srd(SWO, 72, 4 << 20); self.make_srd(SWS, 78, WS_SIZE)
        if self.wsbase:
            A(f"s_add_u32 s{SWS}, s{SWS}, 0x{self.wsbase:x}"); A(f"s_addc_u32 s{SWS+1}, s{SWS+1}, 0")
        self.make_srd(SOUT, 74, 2 << 20); self.make_srd(SDBG, 76, 256)
        A(f"v_lshl_add_u32 {vVd}, v172, 8, v175")
        A(f"v_lshl_add_u32 {vWoD}, v172, 10, v175")
        A("v_xor_b32 v176, v171, v170"); A("v_lshlrev_b32 v176, 4, v176")
        A(f"v_lshl_add_u32 {vKd[0]}, v172, 8, v176")
        for i in range(1, 4): A(f"v_xor_b32 {vKd[i]}, {64*i}, {vKd[0]}")
        A("v_and_b32 v173, 31, v2"); A("v_lshrrev_b32 v174, 5, v2")
        A("v_xor_b32 v175, v174, v171"); A("v_lshlrev_b32 v175, 4, v175")
        A(f"v_lshl_add_u32 {vKa[0]}, v173, 8, v175")
        for s in range(1, 8): A(f"v_xor_b32 {vKa[s]}, {32*s}, {vKa[0]}")
        A("v_bfe_u32 v175, v2, 1, 3"); A("v_xor_b32 v175, v175, v174"); A("v_lshlrev_b32 v175, 4, v175")
        A("v_lshl_add_u32 v176, v1, 5, v173"); A("v_lshl_add_u32 v175, v176, 7, v175")
        A(f"v_add_u32 {vXa[0]}, {LX}, v175")
        for s in range(1, 4): A(f"v_xor_b32 {vXa[s]}, {32*s}, {vXa[0]}")
        A("v_bfe_u32 v175, v2, 2, 2"); A("v_and_b32 v176, 3, v2"); A("v_and_b32 v177, 1, v170")
        A("v_lshlrev_b32 v178, 6, v175")
        A("v_lshl_add_u32 v178, v177, 5, v178")
        A("v_lshl_add_u32 v179, v174, 2, v175")
        A("v_lshl_add_u32 v179, v179, 8, v178")
        A("v_lshl_add_u32 v180, v176, 3, v179")
        A(f"v_add_u32 {vVa[0]}, {LV}, v180")
        for b in range(1, 4): A(f"v_xor_b32 {vVa[b]}, {64*b}, {vVa[0]}")
        A("v_lshl_add_u32 v180, v174, 3, v175"); A("v_lshl_add_u32 v180, v180, 8, v178")
        A("v_and_b32 v181, 1, v176"); A("v_lshlrev_b32 v181, 1, v181"); A("v_lshrrev_b32 v182, 1, v176"); A("v_or_b32 v181, v181, v182")
        A("v_lshl_add_u32 v180, v181, 3, v180")
        A(f"v_add_u32 {vWa[0]}, {LW}, v180")
        for b in range(1, 4): A(f"v_xor_b32 {vWa[b]}, {64*b}, {vWa[0]}")
        WOSLOT = LX + 3 * T
        A("v_lshl_add_u32 v180, v174, 2, v175"); A("v_lshl_add_u32 v180, v1, 4, v180"); A("v_lshlrev_b32 v180, 8, v180")
        A("v_lshl_add_u32 v180, v175, 6, v180")
        A("v_and_b32 v181, 1, v176"); A("v_lshlrev_b32 v181, 2, v181"); A("v_lshl_add_u32 v181, v177, 1, v181"); A("v_add_u32 v181, v181, v182")
        A("v_lshl_add_u32 v180, v181, 3, v180")
        A(f"v_add_u32 {vTa[0]}, {WOSLOT}, v180")
        for b in range(1, 4): A(f"v_xor_b32 {vTa[b]}, {64*b}, {vTa[0]}")
        for l in self.zero_acc(): A(l)
        A(f"s_mov_b32 {sThr}, 0x{f2u(8.0):08x}")
        for k in range(4): A(f"v_mov_b32 v{ONES+k}, 0x3f803f80")
        for k in range(16): A(f"v_mov_b32 v{NEG+k}, 0")
        for k in range(16): A(f"v_mov_b32 v{LACC+k}, 0")
        if F:
            self.oproj_offsets(sAreal)
            A(f"s_bfe_u32 {sT0}, s2, 0x30003"); A(f"s_bfe_u32 {sT1}, s2, 0x10006"); A(f"s_add_u32 {sTO}, {sT0}, {sT1}")
            A(f"s_add_u32 {sTO}, {sTO}, {OP_T0 if 'noo1' not in self.dbg else 100}")
            A(f"v_mov_b32 {vZero}, 0"); A(f"v_mov_b32 {vOne}, 1")
            A(f"s_lshl_b32 {sFlagC}, {sB2}, 2"); A(f"s_add_u32 {sFlagC}, {sFlagC}, {sW}"); A(f"s_lshl_b32 {sFlagC}, {sFlagC}, 7")
            A(f"s_add_u32 {sFlagC}, {sFlagC}, {WS_FLAG}")
            A(f"s_lshr_b32 {sT0}, {sB2}, 1"); A(f"s_lshl_b32 {sT0}, {sT0}, 2")
            A("v_and_b32 v175, 1, v2"); A("v_cmp_eq_u32 vcc, 1, v175")
            A(f"v_mov_b32 v176, {sT0}"); A(f"v_mov_b32 v177, 128"); A(f"v_cndmask_b32 {vPoff}, v176, v177, vcc")
            A(f"v_mov_b32 v176, 16"); A(f"v_mov_b32 v177, 256"); A(f"v_cndmask_b32 {vPexp}, v176, v177, vcc")
            self.one_lane([f"buffer_store_dword {vZero}, {vZero}, {srd(SWS)}, {sFlagP} offen sc1"])
            self.vm_issue(("FZ",), 1)
        if "nost" in self.dbg: A(f"s_mov_b32 {sOT}, 0x{OOB:x}")
        for i in range(8):
            A(f"s_waitcnt vmcnt({self.vm_need(('P', i))})")
            A("s_barrier")
            self.stamp(2 + i)
            groups = []; kv = None
            if i <= 5: groups += self.tile_XW(XS[(i + 2) % 3], WS_[(i + 2) % 3]); self.vm_issue(("P", i + 2), 8)
            kv = {0: (True, 0), 1: (True, 1), 2: (False, 0), 3: (False, 1), 6: (True, 2)}.get(i)
            if not self.prokv: kv = None
            if not self.prokv and i == 7:
                for isk, sl in ((True, 0), (True, 1), (False, 0), (False, 1), (True, 2)):
                    self.emit_groups(self.tile_KV(isk, sl)); self.vm_issue(("K" if isk else "V", sl), 4)
            if kv: groups += self.tile_KV(kv[0], kv[1]); self.vm_issue(("K" if kv[0] else "V", kv[1]), 4)
            gaps = [[] for _ in range(16)]
            n = len(groups)
            if n: self.place(gaps, groups, [k * 16 // n for k in range(n)] if n > 8 else [2 * k for k in range(n)])
            nx = XS[(i + 1) % 3] - XS[i % 3]; nw = WS_[(i + 1) % 3] - WS_[i % 3]
            if i == 7:
                nx = 0; nw = LX - WS_[7 % 3]
            upd = []
            if nx: upd += [f"v_add_u32 {r}, {nx}, {r}" for r in vXa]
            for k, l in enumerate(upd): gaps[4 + k].append(l)
            if nw:
                for k, r in enumerate(vWa): gaps[12 + k].append(f"v_add_u32 {r}, {nw}, {r}")
            if i == 7:
                ini = [f"v_mov_b32 v{O0+k}, 0" for k in range(64)]
                g2 = self.spread(ini, 16)
                gaps = [a + b for a, b in zip(gaps, g2)]
            self.qpair_code(gaps, i, True, 0)
        A(f"s_add_u32 {sWb}, {sWb}, {1024 if 'noqb' not in self.dbg else OOB}")
        A(f"s_call_b64 {sLink}, L_qfin")
        self.stamp(10)
        if not self.prokv:
            A(f"s_waitcnt vmcnt({self.vm_need(('K', 0))})"); A("s_barrier")
        A.lds_reset()
        mf, rd = self.qk_lists(SA, 0)
        self.interleave(mf, rd, 6, None, self.spread(self.zero_acc(), 16))
        A(f"s_waitcnt vmcnt({self.vm_need(('K', 1))})")
        A("s_barrier")
        _, rdn = self.qk_lists(SB, 1)
        for i in range(self.nahead): A(rdn[i][0][0])
        self.emit_groups(self.tile_KV(True, 0)); self.vm_issue(("K", 3), 4)
        A(f"s_lshr_b32 {sT3}, s2, 2"); A(f"s_lshl_b32 {sT3}, {sT3}, 16")
        A(f"s_and_b32 {sT0}, s2, 3"); A(f"s_lshl_b32 {sT0}, {sT0}, 8"); A(f"s_add_u32 {sT3}, {sT3}, {sT0}")
        g = self.tile_strided([f"s_add_u32 m0, {sW4K}, {WOSLOT}"], [vWoD] * 4, SWO, sT3, 4096 - 1024)
        mx = self.max_ops(SA)
        for k in range(4):
            for l in g[k] + mx[4*k:4*k+4]: A(l)
        self.vm_issue(("WO",), 4)
        A(f"s_mov_b32 {sT}, -1")
        A(f"s_call_b64 {sRet}, L_init")
        n1, n2, n3 = self.simulate_loop()
        self.n = (n1, n2, n3)
        A.label("L_loop")
        for c in range(6):
            self.body(c, n1, n2)
            A(f"s_call_b64 {sRet}, L_common")
        A("s_branch L_loop")
        A(".p2align 3")
        A.label("L_common")
        self.istamp(VST+2, 1)
        A(f"v_cmp_lt_f32 vcc, {sThr}, {vMx0}")
        A("s_cbranch_vccnz L_rare")
        A.label("L_chk_done")
        xs = list(range(QP_T0, QP_T0 + 8)) + [WO_T, 13, 14, 15, 27, 29, 30, 31]
        if F: xs += [PUB_T] + list(range(OP_T0 - 1, OP_T0 + 9))
        A(f"s_bitcmp1_b32 0x{sum(1 << t for t in set(xs)):08x}, {sT}"); A("s_cbranch_scc1 L_extras")
        A.label("L_check")
        A(f"s_add_u32 {sT}, {sT}, 1")
        A(f"s_setpc_b64 {sRet}")
        A.label("L_init")
        A(f"s_mov_b32 {sFloor}, 0x{f2u(-1e30):08x}")
        A("s_branch L_rare2")
        A.label("L_rare")
        A(f"s_mov_b32 {sFloor}, 0")
        A.label("L_rare2")
        A(f"v_mov_b32 {vMx1}, {vMx0}"); A("s_nop 1")
        A(f"v_permlane32_swap_b32 {vMx0}, {vMx1}")
        A(f"v_max3_f32 {vMx0}, {vMx0}, {vMx1}, {sFloor}")
        A(f"v_max_f32 {vMx1}, 0, {vMx0}")
        A(f"v_exp_f32 {vMx1}, -{vMx1}")
        for i in range(16): A(f"v_sub_f32 v{NEG+i}, v{NEG+i}, {vMx0}")
        A(f"v_mul_f32 v{LACC}, {vMx1}, v{LACC}")
        for i in range(64): A(f"v_mul_f32 v{O0+i}, {vMx1}, v{O0+i}")
        A(f"s_bitcmp1_b32 {sT}, 0"); A("s_cbranch_scc1 L_rare_a")
        for i in range(32): A(f"v_sub_f32 v{SB+i}, v{SB+i}, {vMx0}")
        A("s_branch L_rare_e")
        A.label("L_rare_a")
        for i in range(32): A(f"v_sub_f32 v{SA+i}, v{SA+i}, {vMx0}")
        A.label("L_rare_e")
        A(f"s_cmp_eq_u32 {sFloor}, 0"); A("s_cbranch_scc1 L_chk_done")
        A("s_branch L_check")
        A.label("L_extras")
        A("s_waitcnt lgkmcnt(0)")
        A(f"s_cmp_eq_u32 {sT}, 11"); A(f"s_cselect_b32 {sT0}, 0xc0000, 0"); A(f"s_add_u32 {sKoff}, {sKoff}, {sT0}")
        A(f"s_cmp_eq_u32 {sT}, 13"); A(f"s_cselect_b32 {sT0}, 0xc0000, 0"); A(f"s_add_u32 {sVoff}, {sVoff}, {sT0}")
        A(f"s_cmp_eq_u32 {sT}, 27"); A(f"s_cselect_b32 {sKoff}, 0x{OOB:x}, {sKoff}")
        A(f"s_cmp_eq_u32 {sT}, 29"); A(f"s_cselect_b32 {sVoff}, 0x{OOB:x}, {sVoff}")
        A(f"s_cmp_eq_u32 {sT}, 30"); A(f"s_cselect_b32 {sThr}, 0x7f800000, {sThr}")
        qm = sum(1 << t for t in range(QP_T0, QP_T0 + 8))
        A(f"s_bitcmp1_b32 0x{qm:08x}, {sT}"); A("s_cbranch_scc1 L_xq")
        if F:
            A(f"s_cmp_eq_u32 {sT}, {sTO}"); A("s_cbranch_scc1 L_xo")
            A(f"s_add_u32 {sT0}, {sT}, 1"); A(f"s_cmp_eq_u32 {sT0}, {sTO}"); A("s_cbranch_scc1 L_xpoll")
            A(f"s_cmp_eq_u32 {sT}, {PUB_T}"); A("s_cbranch_scc1 L_xpub")
        A(f"s_cmp_eq_u32 {sT}, 31"); A("s_cbranch_scc1 L_tail")
        A(f"s_cmp_eq_u32 {sT}, 15"); A("s_cbranch_scc1 L_x15")
        A(f"s_cmp_eq_u32 {sT}, 14"); A("s_cbranch_scc1 L_x14")
        A(f"s_cmp_eq_u32 {sT}, {WO_T}"); A("s_cbranch_scc0 L_check")
        A.lds_reset()
        A(f"s_waitcnt vmcnt({n3[WO_T]})")
        for b in range(4):
            A.lds(f"ds_read_b64_tr_b16 {at(AVF+4*b,2)}, {vTa[b]}", b)
            A.lds(f"ds_read_b64_tr_b16 {at(AVF+4*b+2,2)}, {vTa[b]} offset:2048", b)
        A(f"s_and_b32 {sT0}, s2, 3"); A(f"s_lshl_b32 {sT0}, {sT0}, 20")
        A(f"s_lshr_b32 {sT1}, s2, 2"); A(f"s_lshl_b32 {sT1}, {sT1}, 2"); A(f"s_add_u32 {sT1}, {sT1}, {sW}")
        A(f"s_lshl_b32 {sT1}, {sT1}, 11"); A(f"s_add_u32 {sT0}, {sT0}, {sT1}")
        A(f"s_add_u32 {sT0}, {sT0}, {WS_WT if 'nost' not in self.dbg else OOB}"); A(f"s_add_u32 {sT1}, {sT0}, 524288")
        for b in range(4):
            A.lds_wait(b)
            A(f"buffer_store_dwordx4 {at(AVF+4*b,4)}, {vL16}, {srd(SWS)}, {sT0 if b < 2 else sT1} offen offset:{(b%2)*1024}{self.stf}")
        self.emit_groups(self.tile_W(LX, 0) + self.tile_W(LX + T, 1))
        A("s_branch L_check")
        A.label("L_xq")
        for i in range(1, 8):
            A(f"s_cmp_eq_u32 {sT}, {QP_T0 + i}"); A(f"s_cbranch_scc1 L_xq{i}")
        for i in range(8):
            A.label(f"L_xq{i}")
            if F and i == 1:
                A(f"s_waitcnt vmcnt({n3[QP_T0 + 1]})"); A("s_barrier")
                self.one_lane([f"buffer_atomic_add {vOne}, {vZero}, {srd(SDBG)}, 0 offen offset:128 sc1"], wave0=True)
            gaps = [[] for _ in range(16)]
            if i < 6: self.place(gaps, self.tile_W(LX + ((i + 2) % 4) * T, i + 2), [1, 5, 9, 13])
            self.qpair_code(gaps, i, False, (i % 4) * T)
            A("s_branch L_check")
        A.label("L_x14")
        A(f"s_call_b64 {sLink}, L_qfin")
        for k in range(16): A(f"v_mov_b32 v{NEG+k}, 0")
        A(f"s_mov_b32 {sThr}, 0x7f800000")
        if F:
            for l in self.zero_acc(): A(l)
        A("s_branch L_check")
        A.label("L_x15")
        A(f"s_call_b64 {sLink}, L_epi")
        A(f"s_add_u32 {sOT}, {sOT}, {4*16384 - 16384}")
        for i in range(64): A(f"v_mov_b32 v{O0+i}, 0")
        A(f"v_mov_b32 v{LACC}, 0")
        A(f"s_mov_b32 {sThr}, 0x{f2u(8.0):08x}")
        self.stamp(11)
        A("s_branch L_init")
        if F:
            A.label("L_xpub")
            A(f"s_waitcnt vmcnt({n3[PUB_T]})")
            A("s_barrier")
            A(f"s_lshl_b32 {sT0}, {sBat}, 2")
            self.one_lane([f"buffer_atomic_add {vOne}, {vZero}, {srd(SDBG)}, {sT0} offen sc1"], wave0=True)
            A("s_branch L_check")
            A.label("L_xpoll")
            A(f"buffer_load_dword {vPoll}, {vPoff}, {srd(SDBG)}, 0 offen sc1")
            A("s_branch L_check")
            A.label("L_xo")
            self.stamp(18)
            A("s_waitcnt vmcnt(8)")
            A(f"s_mov_b32 {sSpin}, 0x40000")
            A.label("L_xchk_loop")
            A(f"v_cmp_lt_u32 vcc, {vPoll}, {vPexp}")
            A("s_cbranch_vccz L_xchk_ok")
            A(f"s_sub_u32 {sSpin}, {sSpin}, 1"); A("s_cbranch_scc1 L_xchk_ok")
            A("s_sleep 4")
            A(f"buffer_load_dword {vPoll}, {vPoff}, {srd(SDBG)}, 0 offen sc1")
            A("s_waitcnt vmcnt(0)")
            A("s_branch L_xchk_loop")
            A.label("L_xchk_ok")
            self.stamp(19)
            A(f"s_mov_b32 {sAoff}, {sAreal}")
            def loads(p):
                R = SET(p % 4)
                if p < 16:
                    ls = [self.aload(R, j, sAoff) for j in range(4)] + [self.aload(R, j, sWToff) for j in range(4, 8)]
                    ls[7] = ls[7] + [f"s_add_u32 {sAoff}, {sAoff}, 4096", f"s_add_u32 {sWToff}, {sWToff}, 4096"]
                else:
                    ls = [self.aload(R, j, sWToff) for j in range(8)]
                    ls[3] = ls[3] + [f"s_add_u32 {sWToff}, {sWToff}, 4096"]
                    ls[7] = ls[7] + [f"s_add_u32 {sWToff}, {sWToff}, 4096"]
                return ls
            for p in range(3): self.emit_groups(loads(p))
            for p in range(16):
                A("s_waitcnt vmcnt(16)")
                R = SET(p % 4)
                ls = loads(p + 3)
                for k, m in enumerate(self.opair_mfmas(R, lambda j, n: R(16 + j, n), 0)):
                    A(m)
                    for l in ls[k]: A(l)
            self.emit_groups(loads(19))
            self.stamp(20)
            A("s_branch L_check")
        A.label("L_tail")
        self.stamp(12)
        A(f"s_call_b64 {sLink}, L_epi")
        self.stamp(13)
        if F: self.tail()
        self.dump_stamps()
        A.label("L_end")
        A("s_endpgm")
        self.qfin_sub(); self.epilogue_sub()
        A.label("L_codeend")

    def tail(self):
        A = self.A
        WR = [SET(0), SET(1), SET(2), SET(3),
              lambda j, n: at(AQ + j, n), lambda j, n: at(AKF + j, n), lambda j, n: at(AVF + j, n), lambda j, n: vt(SA + j, n)]
        A(f"s_mov_b32 {sAoff}, {sWToff}")
        for k in range(4, 8):
            A(f"s_add_u32 {sT0}, {sAoff}, 4096")
            for j in range(8):
                for l in self.aload(WR[k], j, sAoff if j < 4 else sT0): A(l)
            A(f"s_add_u32 {sAoff}, {sAoff}, 8192")
            if k == 4:
                A("s_waitcnt vmcnt(8)")
                self.one_lane([f"buffer_store_dword {vOne}, {vZero}, {srd(SWS)}, {sFlagP} offen sc1"])
                self.stamp(14)
        A("v_and_b32 v8, 7, v2"); A("v_lshlrev_b32 v8, 2, v8")
        A(f"s_mov_b32 {sSpin}, 0x40000")
        A.label("L_tp")
        A(f"buffer_load_dword {vPoll}, v8, {srd(SWS)}, {sFlagC} offen sc1")
        A("s_waitcnt vmcnt(0)")
        A(f"v_cmp_ne_u32 vcc, 1, {vPoll}")
        A("s_cbranch_vccz L_tp_ok")
        A(f"s_sub_u32 {sSpin}, {sSpin}, 1"); A("s_cbranch_scc0 L_tp")
        A.label("L_tp_ok")
        self.stamp(15)
        A(f"s_add_u32 {sAoff}, {sAreal}, {4*16384}")
        RAs = [lambda j, n, b=b: vt(O0 + 16 * b + j, n) for b in range(4)]
        def loads(p):
            ls = [self.aload(RAs[p % 4], j, sAoff) for j in range(4)]
            ls[3] = ls[3] + [f"s_add_u32 {sAoff}, {sAoff}, 4096"]
            return ls
        AH = 3
        for p in range(AH): self.emit_groups(loads(p))
        for p in range(16):
            left = min(15, p + AH - 1) - p
            A(f"s_waitcnt vmcnt({4*left})")
            RW = WR[p // 2]
            ms = self.opair_mfmas(RAs[p % 4], lambda j, n: RW(16 * (p % 2) + j, n), 0)
            ls = loads(p + AH) if p + AH < 16 else [[]] * 4
            for k, m in enumerate(ms):
                A(m)
                if k % 2 == 0:
                    for l in ls[k // 2]: A(l)
        self.stamp(16)
        self.reduce_store()

    def dump_stamps(self):
        if not self.stamps: return
        A = self.A
        A("s_waitcnt vmcnt(0)")
        self.stamp(17)
        A("s_memrealtime s[100:101]")
        A("s_getreg_b32 s3, hwreg(HW_REG_XCC_ID)")
        A("s_waitcnt lgkmcnt(0)")
        A(f"v_writelane_b32 v{VST}, s98, 61"); A(f"v_writelane_b32 v{VST}, s100, 62"); A(f"v_writelane_b32 v{VST}, s3, 63")
        A(f"s_lshl_b32 {sT1}, s2, 2"); A(f"s_add_u32 {sT1}, {sT1}, {sW}"); A(f"s_mul_i32 {sT1}, {sT1}, 768")
        A(f"s_add_u32 {sT1}, {sT1}, {WS_STAMP}")
        A(f"v_lshrrev_b32 v3, 2, {vL16}")
        A(f"buffer_store_dword v{VST}, v3, {srd(SWS)}, {sT1} offen")
        A(f"buffer_store_dword v{VST+1}, v3, {srd(SWS)}, {sT1} offen offset:256")
        A(f"buffer_store_dword v{VST+2}, v3, {srd(SWS)}, {sT1} offen offset:512")

    def kernelB(self):
        A = self.A
        A("s_cmp_ge_u32 s2, 256"); A("s_cbranch_scc1 LB_end")
        A("s_load_dwordx16 s[64:79], s[0:1], 0")
        A("v_lshrrev_b32 v1, 6, v0"); A("v_and_b32 v2, 63, v0")
        A(f"v_readfirstlane_b32 {sW}, v1")
        A(f"v_lshlrev_b32 {vL16}, 4, v2")
        A("s_nop 1")
        self.oproj_offsets(sAoff)
        A("s_waitcnt lgkmcnt(0)")
        self.make_srd(SWS, 78, WS_SIZE); self.make_srd(SOUT, 74, 2 << 20)
        NS = 4
        def setregs(k):
            k %= NS
            return lambda j, n: vt(64 + 32 * k + j, n)
        def load(p):
            R = setregs(p)
            ls = [[f"buffer_load_dwordx4 {R(4*i,4)}, {vL16}, {srd(SWS)}, {sAoff} offen offset:{i*1024}"] for i in range(4)]
            ls += [[f"buffer_load_dwordx4 {R(16+4*i,4)}, {vL16}, {srd(SWS)}, {sWToff} offen offset:{i*1024}"] for i in range(4)]
            ls[7] += [f"s_add_u32 {sAoff}, {sAoff}, 4096", f"s_add_u32 {sWToff}, {sWToff}, 4096"]
            return ls
        NP = 32
        for p in range(NS - 1): self.emit_groups(load(p))
        for l in self.zero_acc(): A(l)
        for p in range(NP):
            left = min(NP - 1, p + NS - 2) - p
            A(f"s_waitcnt vmcnt({8*left})")
            R = setregs(p)
            ls = load(p + NS - 1) if p + NS - 1 < NP else [[]] * 8
            for k, m in enumerate(self.opair_mfmas(R, lambda j, n: R(16 + j, n), 0)):
                A(m)
                for l in ls[k]: A(l)
        self.reduce_store()
        A.label("LB_end")
        A("s_endpgm")
    def oproj_offsets(self, sA):
        A = self.A
        A(f"s_and_b32 {sT0}, s2, 7"); A(f"s_lshl_b32 {sT0}, {sT0}, 2"); A(f"s_lshr_b32 {sT1}, s2, 6")
        A(f"s_add_u32 {sB2}, {sT0}, {sT1}")
        A(f"s_lshl_b32 {sT0}, {sB2}, 19"); A(f"s_lshl_b32 {sT1}, {sW}, 17"); A(f"s_add_u32 {sA}, {sT0}, {sT1}")
        A(f"s_bfe_u32 {sT0}, s2, 0x30003"); A(f"s_lshl_b32 {sT0}, {sT0}, 19")
        A(f"s_add_u32 {sT0}, {sT0}, {sT1}"); A(f"s_add_u32 {sWToff}, {sT0}, {WS_WT}")
    def reduce_store(self):
        A = self.A
        A(f"v_lshl_add_u32 v3, v1, 14, {vL16}")
        A(f"v_lshl_add_u32 v4, v1, 12, {vL16}")
        A("v_and_b32 v5, 31, v2"); A("v_lshrrev_b32 v6, 5, v2"); A("v_lshlrev_b32 v5, 10, v5"); A("v_lshl_add_u32 v5, v6, 5, v5")
        A(f"s_lshl_b32 {sT0}, {sB2}, 16"); A(f"s_and_b32 {sT1}, {sW}, 1"); A(f"s_lshl_b32 {sT1}, {sT1}, 15"); A(f"s_add_u32 {sT0}, {sT0}, {sT1}")
        A(f"s_bfe_u32 {sT1}, s2, 0x30003"); A(f"s_lshl_b32 {sT1}, {sT1}, 7"); A(f"s_add_u32 {sT0}, {sT0}, {sT1}")
        A(f"s_lshr_b32 {sT1}, {sW}, 1"); A(f"s_lshl_b32 {sT1}, {sT1}, 6"); A(f"s_add_u32 {sT0}, {sT0}, {sT1}")
        A("s_barrier")
        for blk in range(4):
            for q in range(4):
                A(f"ds_write_b128 v3, {at(AACC+16*blk+4*q,4)} offset:{blk*4096+q*1024}")
                if (blk * 4 + q) % 8 == 7: A("s_waitcnt lgkmcnt(0)")
        A("s_barrier")
        for src in range(4):
            for q in range(4):
                A(f"ds_read_b128 {vt(64+16*src+4*q,4)}, v4 offset:{src*16384+q*1024}")
            if src % 2 == 1: A("s_waitcnt lgkmcnt(0)")
        for i in range(16): A(f"v_add_f32 v{64+i}, v{64+i}, v{80+i}")
        for i in range(16): A(f"v_add_f32 v{96+i}, v{96+i}, v{112+i}")
        for i in range(16): A(f"v_add_f32 v{64+i}, v{64+i}, v{96+i}")
        for j in range(8): A(f"v_cvt_pk_bf16_f32 v{80+j}, v{64+2*j}, v{64+2*j+1}")
        A(f"buffer_store_dwordx4 {vt(80,4)}, v5, {srd(SOUT)}, {sT0} offen")
        A(f"buffer_store_dwordx4 {vt(84,4)}, v5, {srd(SOUT)}, {sT0} offen offset:16")

HDR = open("standalone__mha_block_cached__near_ridge.s.ref").read().split("; Override")[0]
def desc(name):
    return f""".amdhsa_kernel {name}
  .amdhsa_next_free_vgpr 512
  .amdhsa_next_free_sgpr 102
  .amdhsa_accum_offset 256
  .amdhsa_group_segment_fixed_size 0
  .amdhsa_kernarg_size 64
  .amdhsa_user_sgpr_count 2
  .amdhsa_user_sgpr_kernarg_segment_ptr 1
  .amdhsa_system_sgpr_workgroup_id_x 1
.end_amdhsa_kernel
"""
def build(path, align=True, verbose=False, **kw):
    g = Gen(**kw); g.kernelA()
    la = align8(g.A.lines) if align else g.A.lines
    bad = check_hazards(la)
    s = HDR
    if g.fused:
        s += f"; @launch grid=(256,1,1) block=(256,1,1) lds=163840\n"
    else:
        gb = Gen(**kw); gb.kernelB()
        lb = align8(gb.A.lines) if align else gb.A.lines
        bad += check_hazards(lb)
        s += f"; @launch kernel={KN} grid=(256,1,1) block=(256,1,1) lds=163840\n"
        s += f"; @launch kernel=oproj_kernel grid=(256,1,1) block=(256,1,1) lds=65536\n"
    print(path, "hazards:", bad)
    if verbose: print(g.n)
    s += '.amdgcn_target "amdgcn-amd-amdhsa--gfx950"\n.text\n'
    s += f".globl {KN}\n.p2align 8\n.type {KN},@function\n{KN}:\n" + "\n".join(la) + "\n"
    if not g.fused:
        s += f".globl oproj_kernel\n.p2align 8\n.type oproj_kernel,@function\noproj_kernel:\n" + "\n".join(lb) + "\n"
    s += '.section .rodata,"a"\n.p2align 6\n' + desc(KN)
    if not g.fused: s += ".p2align 6\n" + desc("oproj_kernel")
    open(path, "w").write(s)
if __name__ == "__main__":
    END = (512 << 20) - WS_SIZE
    build("e_end.s", fused=True, stamps=True, wsbase=END)
    build("e_end_xwnt.s", fused=True, stamps=True, wsbase=END, xwf=" nt")
    build("e_mid_xwnt.s", fused=True, stamps=True, wsbase=384 << 20, xwf=" nt")
    build("e_0_xwnt.s", fused=True, stamps=True, xwf=" nt")
    build("v5_end_xwnt.s", fused=True, wsbase=END, xwf=" nt")
    build("v5_end.s", fused=True, wsbase=END)
    build("v5_0_xwnt.s", fused=True, xwf=" nt")
    build("v5_mid_xwnt.s", fused=True, wsbase=384 << 20, xwf=" nt")
    print(END + WS_STAMP, (384 << 20) + WS_STAMP)
```

```python
import sys, math, struct, itertools
sys.path.insert(0, "work")
from asmlib import Asm, check_hazards, align8

KN = "standalone__mha_block_cached__near_ridge_kernel"
def f2u(x): return struct.unpack("<I", struct.pack("<f", x))[0]
CSC = math.log2(math.e) / math.sqrt(128.0)
THR = 8.0 / CSC
MINIT = -3.0e38
OOB = 0x40000000

T = 16384
LK, LV, LX, LW = 0, 3 * T, 6 * T, 8 * T
WS_OT = 0
WS_WT = 16 << 20
WS_FLAG = 20 << 20
WS_STAMP = 21 << 20
WS_SIZE = 22 << 20
SK, SV, SX, SWQ, SWO, SWS, SOUT, SDBG = 4, 8, 12, 16, 20, 24, 28, 32
def srd(b): return f"s[{b}:{b+3}]"
sW, sW4K, sKoff, sVoff, sKcur, sVcur, sKd, sT, sC, sSw1, sBaseB, sSw2 = [f"s{i}" for i in range(36, 48)]
sXoff, sWoff, sEpar, sT0, sT1, sT2 = [f"s{i}" for i in range(48, 54)]
sLink = "s[54:55]"
sRet = "s[92:93]"
sLink2 = "s[94:95]"
sOT, sVd, sM32K, sAoff, sWToff, sB2, sT3, sAoff2 = [f"s{i}" for i in range(56, 64)]
sThr, sFloor, sTO = sKd, sVd, sSw1
sTi, sXb, sWb, sAreal, sFlagP, sFlagC, sBat, sSpin = [f"s{i}" for i in range(80, 88)]
SCODE = 88
vKa = [f"v{i}" for i in range(16, 24)]
vVa = [f"v{i}" for i in range(24, 28)]
vKd = [f"v{i}" for i in range(28, 32)]
vVd = "v32"; vZero = "v33"; vMx0 = "v34"; vMx1 = "v35"
vL16 = "v39"; vPollx = "v36"; vPoff = "v37"; vPexp = "v38"; vOne = "v40"; vPoll = "v13"; vInv = 14
VST = 41
ONES, LACC = 44, 48
vWa = [f"v{i}" for i in range(4, 8)]; vWd = "v8"
vTa = [f"v{i}" for i in range(9, 13)]
vXa = [f"v{i}" for i in range(160, 164)]
vXd = ["v164", "v165"]; vWoD = "v166"
O0, SA, SB, P0, NEG = 64, 128, 160, 192, 240
AQ, AACC, AKF, AVF, AXF = 0, 32, 96, 128, 224
def vt(b, n): return f"v[{b}:{b+n-1}]"
def at(b, n): return f"a[{b}:{b+n-1}]"
def SET(k):
    return (lambda j, n: at(160 + 32 * k + j, n)) if k < 3 else (lambda j, n: vt(208 + j, n))
def XR(i, s): return SET(i // 2)(16 * (i % 2) + 4 * s, 4)
MF = "v_mfma_f32_32x32x16_bf16"

QP_T0 = 4
WO_T = QP_T0 - 2
PUB_T = 18
OP_T0 = 19

class Gen:
    def __init__(self, stamps=False, nt=True, fused=True, split=24, rot=True, pf=True, xwf='', wgrp=2, prokv=True, nahead=6, latepos=(10, 12, 14, 15), e3=True, dbg=(), stf=' sc1', wsbase=0, kvplan=None, fine=True, ldf=' sc1', outf=''):
        self.A = Asm()
        self.stamps = stamps; self.fused = fused; self.split = split; self.rot = rot; self.pf = pf; self.xwf = xwf; self.wgrp = wgrp; self.prokv = prokv; self.nahead = nahead; self.latepos = list(latepos); self.e3 = e3; self.dbg = dbg; self.stf = stf; self.wsbase = wsbase; self.fine = fine; self.ldf = ldf; self.outf = outf; self.kvplan = kvplan or {0: [('K', 0)], 1: [('K', 1)], 2: [('V', 0)], 3: [('V', 1)], 6: [('K', 2)]}
        self.nt = " nt" if nt else ""
        self.vm = []
    def vm_issue(self, tag, n): self.vm += [tag] * n
    def vm_need(self, *tags):
        idx = -1
        for i, q in enumerate(self.vm):
            if q in tags: idx = i
        assert idx >= 0, tags
        return min(63, len(self.vm) - 1 - idx)
    def stamp(self, k):
        if self.stamps:
            self.A("s_memtime s[96:97]"); self.A("s_waitcnt lgkmcnt(0)"); self.A(f"v_writelane_b32 v{VST}, s96, {k}")
    def istamp(self, v, hi):
        if not self.stamps: return
        if not self.fine and (v, hi) != (VST+2, 1): return
        A = self.A
        A("s_memtime s[96:97]")
        A(f"s_add_u32 m0, {sT}, {32 if hi else 0}")
        A("s_waitcnt lgkmcnt(0)")
        A(f"v_writelane_b32 v{v}, s96, m0")
    def dma_line(self, voff, srdb, soff, i, flags):
        return f"buffer_load_dwordx4 {voff}, {srd(srdb)}, {soff} offen offset:{i*1024}{flags} lds"
    def tile_KV(self, isK, slot):
        off, base, voffs, srdb = (sKoff, LK, vKd, SK) if isK else (sVoff, LV, [vVd] * 4, SV)
        g = [[self.dma_line(voffs[i], srdb, off, i, self.nt)] for i in range(4)]
        g[0] = [f"s_add_u32 m0, {sW4K}, {base + slot*T}", "@M0"] + g[0]
        g[3] = g[3] + [f"s_add_u32 {off}, {off}, {T}"]
        return g
    def tile_strided(self, m0lines, voffs, srdb, soff, step):
        g = [m0lines + ["s_nop 0", self.dma_line(voffs[0], srdb, soff, 0, self.xwf)]]
        for i in range(1, 4):
            g.append([f"s_add_u32 {soff}, {soff}, {step}", self.dma_line(voffs[i], srdb, soff, i, self.xwf)])
        return g
    def tile_XW(self, xbase=None, wbase=None):
        mx = [f"s_add_u32 m0, {sW4K}, {xbase}"] if xbase is not None else \
             [f"s_add_u32 {sT0}, {sEpar}, {LX}", f"s_add_u32 m0, {sT0}, {sW4K}"]
        mw = [f"s_add_u32 m0, {sW4K}, {wbase}"] if wbase is not None else \
             [f"s_add_u32 {sT0}, {sEpar}, {LW}", f"s_add_u32 m0, {sT0}, {sW4K}"]
        gx = self.tile_strided([f"s_lshl_b32 {sXoff}, {sTi}, 7", f"s_add_u32 {sXoff}, {sXoff}, {sXb}"] + mx,
                               [vXd[0], vXd[1], vXd[0], vXd[1]], SX, sXoff, 8192 - 1024)
        gw = self.tile_strided([f"s_lshl_b32 {sWoff}, {sTi}, 19", f"s_add_u32 {sWoff}, {sWoff}, {sWb}"] + mw,
                               [vWd] * 4, SWQ, sWoff, 32768 - 1024)
        gw[3] += [f"s_add_u32 {sTi}, {sTi}, 1", f"s_and_b32 {sTi}, {sTi}, 7"]
        return gx + gw
    def tile_W(self, base, i):
        g = self.tile_strided([f"s_lshl_b32 {sWoff}, {sTi}, 19", f"s_add_u32 {sWoff}, {sWoff}, {sWb}", f"s_add_u32 m0, {sW4K}, {base}"],
                              [vWd] * 4, SWQ, sWoff, 32768 - 1024)
        g[3] += [f"s_add_u32 {sTi}, {sTi}, 1", f"s_and_b32 {sTi}, {sTi}, 7"]
        return g
    def emit_groups(self, groups):
        for g in groups:
            for l in g: self.A("s_nop 0" if l == "@M0" else l)
    @staticmethod
    def place(gaps, groups, positions):
        for g, p in zip(groups, positions):
            if "@M0" in g:
                k = g.index("@M0")
                if gaps[p]:
                    gaps[p] = g[:k] + gaps[p][:1] + g[k+1:] + gaps[p][1:]
                else:
                    gaps[p] = g[:k] + ["s_nop 0"] + g[k+1:]
            else:
                gaps[p] = g + gaps[p]

    def interleave(self, mfmas, reads, nahead, pre, gaps):
        A = self.A
        n = len(mfmas); G = self.wgrp
        for i in range(min(nahead, n)):
            for tx, tg in reads[i]: A.lds(tx, tg)
        if pre: pre()
        for i in range(n):
            if i % G == 0:
                tags = []
                for j in range(i, min(n, i + G)): tags += mfmas[j][1]
                A.lds_wait(*tags)
            A(mfmas[i][0])
            if i + nahead < n:
                for tx, tg in reads[i + nahead]: A.lds(tx, tg)
            for l in gaps[i]: A(l)
    @staticmethod
    def spread(fill, ngaps, first=0):
        cost = lambda l: 8 if l.startswith("v_exp") or l.startswith("v_rcp") else 4
        tot = sum(cost(l) for l in fill)
        gaps = [[] for _ in range(ngaps)]
        acc = 0; k = ngaps - first
        for l in fill:
            g = first + min(k - 1, int((acc + cost(l) / 2) * k / tot))
            gaps[g].append(l); acc += cost(l)
        return gaps
    def exp_ops(self, S, lo, hi):
        ops = []
        ex = lambda i: f"v_exp_f32 v{S+i}, v{S+i}"
        cvt = lambda i: f"v_cvt_pk_bf16_f32 v{P0 + i//2}, v{S+i}, v{S+i+1}"
        prs = list(range(lo, hi, 2))
        for k, i in enumerate(prs):
            ops += [ex(i), ex(i + 1)]
            if k > 0: ops += [cvt(prs[k-1])]
        ops += ["s_nop 0", cvt(prs[-1])]
        return ops
    def max_ops(self, S):
        ops = []
        for b, mx in ((0, vMx0), (16, vMx1)):
            o = [f"v_max3_f32 {mx}, v{S+b}, v{S+b+1}, v{S+b+2}"]
            for i in range(3, 15, 2): o.append(f"v_max3_f32 {mx}, {mx}, v{S+b+i}, v{S+b+i+1}")
            ops.append(o)
        out = []
        for x, y in zip(*ops): out += [x, y]
        out.append(f"v_max3_f32 {vMx0}, {vMx0}, v{S+15}, v{S+31}")
        out.append(f"v_max_f32 {vMx0}, {vMx0}, {vMx1}")
        return out
    def qk_lists(self, Sn, slot):
        mf, rd = [], []
        for i in range(16):
            kb, s = i // 8, i % 8
            fr = AKF + 4 * (i % 8)
            d = vt(Sn + 16 * kb, 16)
            mf.append((f"{MF} {d}, {at(fr,4)}, {at(AQ+4*s,4)}, {vt(NEG,16) if s == 0 else d}", [("k", i)]))
            rd.append([(f"ds_read_b128 {at(fr,4)}, {vKa[s]} offset:{slot*T + kb*8192}", ("k", i))])
        return mf, rd
    def pv_lists(self, slot):
        mf, rd = [], []
        for i in range(16):
            ks, blk = i // 4, i % 4
            fr = AVF + 4 * (i % 8)
            d = vt(O0 + 16 * blk, 16)
            mf.append((f"{MF} {d}, {at(fr,4)}, {vt(P0+4*ks,4)}, {d}", [("v", i)]))
            rd.append([(f"ds_read_b64_tr_b16 {at(fr,2)}, {vVa[blk]} offset:{slot*T + ks*4096}", ("v", i)),
                       (f"ds_read_b64_tr_b16 {at(fr+2,2)}, {vVa[blk]} offset:{slot*T + ks*4096+2048}", ("v", i))])
        return mf, rd
    def wait_ladder(self, need, maxlev=3):
        A = self.A
        vals = sorted(set(need.values()), reverse=True)
        if len(vals) > maxlev:
            best = None
            for comb in itertools.combinations(vals, maxlev):
                if min(comb) != vals[-1]: continue
                loss = sum(min(v, 24) - min(24, max(c for c in comb if c <= v)) for v in need.values())
                if best is None or loss < best[0]: best = (loss, comb)
            vals = sorted(best[1], reverse=True)
        lvl = {t: max(c for c in vals if c <= v) for t, v in need.items()}
        done = A.newlabel("Lw")
        A(f"s_waitcnt vmcnt({vals[0]})")
        for v in vals[1:]:
            mask = sum(1 << t for t, l in lvl.items() if l <= v)
            A(f"s_bitcmp1_b32 0x{mask:08x}, {sT}")
            A(f"s_cbranch_scc0 {done}")
            A(f"s_waitcnt vmcnt({v})")
        A.label(done)

    def simulate_loop(self):
        n1, n2, n3 = {}, {}, {}
        F = self.fused
        for t in range(32):
            n1[t] = self.vm_need(("V", t))
            self.vm_issue(("V", t + 2), 4)
            n2[t] = self.vm_need(("K", t + 2)) if t < 30 else 63
            if QP_T0 <= t < QP_T0 + 8: n2[t] = min(n2[t], self.vm_need(("E", t - QP_T0)))
            self.vm_issue(("K", t + 4), 4)
            if t == WO_T:
                n3[t] = self.vm_need(("WO",)); self.vm_issue(("WT",), 4); self.vm_issue(("E", 0), 4); self.vm_issue(("E", 1), 4)
            if QP_T0 <= t < QP_T0 + 6: self.vm_issue(("E", t - QP_T0 + 2), 4)
            if t == QP_T0 + 1: n3[t] = self.vm_need(("WT",))
            if t == 15: self.vm_issue(("OA",), 8)
            if F and t == PUB_T: n3[t] = self.vm_need(("OA",))
        return n1, n2, n3

    def aload(self, R, j, soff):
        return [f"buffer_load_dwordx4 {R(4*j,4)}, {vL16}, {srd(SWS)}, {soff} offen offset:{(j%4)*1024}{self.ldf}"]
    def body(self, c, n1, n2):
        A = self.A
        par = c % 2; NA = self.nahead; G = self.wgrp
        S, Sn = (SA, SB) if par == 0 else (SB, SA)
        sel = lambda d: min(v for t, v in d.items() if t % 6 == c)
        mf1, rd1 = self.qk_lists(Sn, (c + 1) % 3)
        mf2, rd2 = self.pv_lists(c % 3)
        _, rdn = self.qk_lists(S, (c + 2) % 3)
        rdn = [[(tx, ("kn", i)) for tx, tg in r] for i, r in enumerate(rdn)]
        mf = mf1 + mf2; rd = rd1 + rd2 + rdn[:NA]
        bp = 16 - NA - 1
        gaps1 = self.spread(self.exp_ops(S, 0, self.split), 16)
        rest = self.exp_ops(S, self.split, 32)
        lim = 10 if self.split >= 24 else 6
        g1 = self.spread(rest, lim)
        g2 = self.spread(self.max_ops(Sn), 16, first=lim - 3)
        gaps2 = [(g1[i] if i < lim else []) + g2[i] for i in range(16)]
        early = [0, 2, 4, 6]; late = [bp + 1, bp + 2 + (15 - bp - 2) // 3, bp + 2 + 2 * (15 - bp - 2) // 3, 15]
        late = self.latepos
        self.place(gaps1, self.tile_KV(False, (c + 2) % 3), late)
        self.place(gaps2, self.tile_KV(True, (c + 1) % 3), late)
        lmf = {16 + 4 * ks + 3: f"{MF} {vt(LACC,16)}, {vt(ONES,4)}, {vt(P0+4*ks,4)}, {vt(LACC,16)}" for ks in range(4)}
        gaps = gaps1 + gaps2
        A.lds_q = [("k", i) for i in range(NA)]
        for i in range(32):
            if i % G == 0:
                tags = []
                for j in range(i, i + G): tags += mf[j][1]
                A.lds_wait(*tags)
            A(mf[i][0])
            if i % 16 == bp:
                if i < 16: self.istamp(VST+2, 0)
                A(f"s_waitcnt vmcnt({sel(n1) if i < 16 else sel(n2)})")
                A("s_barrier")
                self.istamp(VST+1, 0 if i < 16 else 1)
            for tx, tg in rd[i + NA]: A.lds(tx, tg)
            if i in lmf: A(lmf[i])
            for l in gaps[i]: A(l)

    def qpair_code(self, gaps, pi, readx, woff, first=False):
        A = self.A
        A.lds_reset()
        if readx:
            for s in range(4): A.lds(f"ds_read_b128 {XR(pi, s)}, {vXa[s]}", ("x", s))
        mf, rd = [], []
        for i in range(16):
            s, blk = i // 4, i % 4
            fr = AVF + 4 * (i % 8)
            d = vt(O0 + 16 * blk, 16) if readx else at(AACC + 16 * blk, 16)
            mf.append((f"{MF} {d}, {at(fr,4)}, {XR(pi, s)}, {'0' if first and s == 0 else d}", [("w", i), ("x", s)]))
            rd.append([(f"ds_read_b64_tr_b16 {at(fr,2)}, {vWa[blk]} offset:{woff + s*4096}", ("w", i)),
                       (f"ds_read_b64_tr_b16 {at(fr+2,2)}, {vWa[blk]} offset:{woff + s*4096+1024}", ("w", i))])
        self.interleave(mf, rd, 5 if readx else 6, None, gaps)
    def qfin(self, from_acc):
        A = self.A
        A(f"v_mov_b32 {vMx0}, {sC}"); A(f"v_mov_b32 {vMx1}, {sC}")
        A("s_nop 9")
        pair = f"v[{vMx0[1:]}:{vMx1[1:]}]"
        for s in range(8):
            t = P0 + 8 * (s % 2) if from_acc else O0 + 8 * s
            if from_acc:
                for j in range(8): A(f"v_accvgpr_read_b32 v{t+j}, a{AACC+8*s+j}")
            for j in range(4): A(f"v_pk_mul_f32 {vt(t+2*j,2)}, {vt(t+2*j,2)}, {pair}")
            for j in range(4): A(f"v_cvt_pk_bf16_f32 v{t+2*j}, v{t+2*j}, v{t+2*j+1}")
            for j in range(4): A(f"v_accvgpr_write_b32 a{AQ+4*s+j}, v{t+2*j}")
    def zero_acc(self): return [f"v_accvgpr_write_b32 a{AACC+i}, 0" for i in range(64)]
    def epilogue_sub(self):
        A = self.A
        A.label("L_epi")
        A("s_nop 9")
        A(f"v_rcp_f32 v{vInv}, v{LACC}")
        A(f"v_rcp_f32 v{vInv+1}, v{LACC}")
        A("s_nop 0")
        for ks in range(8):
            b = O0 + 8 * ks
            for j in range(4): A(f"v_pk_mul_f32 {vt(b+2*j,2)}, {vt(b+2*j,2)}, {vt(vInv,2)}")
            for j in range(4): A(f"v_cvt_pk_bf16_f32 v{b+j}, v{b+2*j}, v{b+2*j+1}")
            if ks % 2 == 0:
                A(f"buffer_store_dwordx4 {vt(b,4)}, {vL16}, {srd(SWS)}, {sOT} offen{self.stf}")
            else:
                A(f"buffer_store_dwordx4 {vt(b,4)}, {vL16}, {srd(SWS)}, {sOT} offen offset:2048{self.stf}")
                A(f"s_add_u32 {sOT}, {sOT}, 4096")
        A(f"s_setpc_b64 {sLink}")
    def make_srd(self, b, p, size):
        A = self.A
        A(f"s_mov_b32 s{b}, s{p}"); A(f"s_mov_b32 s{b+1}, s{p+1}")
        A(f"s_mov_b32 s{b+2}, 0x{size:x}"); A(f"s_mov_b32 s{b+3}, 0x20000")
    def one_lane(self, lines, wave0=False):
        A = self.A
        lab = A.newlabel("Lo")
        if wave0:
            A(f"s_cmp_eq_u32 {sW}, 0"); A(f"s_cbranch_scc0 {lab}")
        A("s_mov_b64 exec, 1")
        for l in lines: A(l)
        A("s_mov_b64 exec, -1")
        if wave0: A.label(lab)
    def opair_mfmas(self, RAf, RWf, p):
        out = []
        for ks in range(2):
            for nb in range(2):
                for qb in range(2):
                    d = at(AACC + 32 * nb + 16 * qb, 16)
                    out.append(f"{MF} {d}, {RWf(16*p+8*ks+4*nb,4)}, {RAf(16*p+8*ks+4*qb,4)}, {d}")
        return out

    def kernelA(self):
        A = self.A; F = self.fused
        A("s_cmp_ge_u32 s2, 256"); A("s_cbranch_scc1 L_end")
        if self.stamps: A("s_memrealtime s[98:99]")
        A("s_load_dwordx16 s[64:79], s[0:1], 0")
        self.stamp(0)
        A("v_lshrrev_b32 v1, 6, v0")
        A("v_and_b32 v2, 63, v0")
        A(f"v_readfirstlane_b32 {sW}, v1")
        A(f"v_lshlrev_b32 {vL16}, 4, v2")
        if self.pf:
            A(f"s_getpc_b64 s[{SCODE}:{SCODE+1}]")
            A.label("L_pc")
            A(f"s_mov_b32 s{SCODE+2}, L_codeend-L_pc"); A(f"s_mov_b32 s{SCODE+3}, 0x20000")
            A(f"s_lshr_b32 {sT0}, s2, 3"); A(f"s_lshl_b32 {sT0}, {sT0}, 2"); A(f"s_add_u32 {sT0}, {sT0}, {sW}")
            A(f"s_and_b32 {sT0}, {sT0}, 31"); A(f"s_lshl_b32 {sT0}, {sT0}, 10")
            A(f"buffer_load_dwordx4 v[128:131], {vL16}, {srd(SCODE)}, {sT0} offen")
            self.vm_issue(("CODE",), 1)
        else:
            A("s_nop 1")
        A(f"s_lshl_b32 {sW4K}, {sW}, 12")
        A("v_lshrrev_b32 v170, 4, v2"); A("v_and_b32 v171, 15, v2")
        A("v_lshl_add_u32 v172, v1, 4, v170")
        A("v_lshrrev_b32 v173, 3, v2"); A("v_lshl_add_u32 v173, v1, 5, v173")
        A("v_and_b32 v174, 7, v2"); A("v_xor_b32 v174, v174, v170"); A("v_lshlrev_b32 v174, 4, v174")
        A(f"v_lshl_add_u32 {vXd[0]}, v173, 10, v174")
        A(f"v_xor_b32 {vXd[1]}, 64, {vXd[0]}")
        A("v_lshlrev_b32 v175, 2, v170"); A("v_xor_b32 v175, v175, v171"); A("v_lshlrev_b32 v175, 4, v175")
        A(f"v_lshl_add_u32 {vWd}, v172, 13, v175")
        A(f"s_and_b32 {sBat}, s2, 1"); A(f"s_lshl_b32 {sBat}, {sBat}, 3")
        A(f"s_bfe_u32 {sT1}, s2, 0x30003"); A(f"s_add_u32 {sBat}, {sBat}, {sT1}")
        A(f"s_lshr_b32 {sT2}, s2, 6")
        if self.rot:
            A(f"s_lshl_b32 {sTi}, {sT2}, 1"); A(f"s_add_u32 {sTi}, {sTi}, {sT1}"); A(f"s_and_b32 {sTi}, {sTi}, 7")
        else:
            A(f"s_mov_b32 {sTi}, 0")
        A(f"s_bfe_u32 {sT1}, s2, 0x20001"); A(f"s_lshl_b32 {sT1}, {sT1}, 3")
        A(f"s_lshl_b32 {sT3}, {sT2}, 1"); A(f"s_add_u32 {sT3}, {sT3}, {sT1}")
        A(f"s_add_u32 {sT1}, {sT1}, {sT2}")
        A(f"s_lshl_b32 {sXb}, {sBat}, 17")
        A(f"s_lshl_b32 {sWb}, {sT3}, 8")
        A("s_waitcnt lgkmcnt(0)")
        self.make_srd(SX, 64, 2 << 20); self.make_srd(SWQ, 70, 4 << 20)
        XS = [LX, LX + T, LK + 2 * T]; WS_ = [LW, LW + T, LV + 2 * T]
        self.emit_groups(self.tile_XW(XS[0], WS_[0])); self.vm_issue(("P", 0), 8)
        self.stamp(1)
        A(f"s_lshl_b32 {sT2}, {sBat}, 5"); A(f"s_add_u32 {sT2}, {sT2}, {sT3}")
        A(f"s_lshl_b32 {sT2}, {sT2}, 18")
        A(f"s_add_u32 s66, s66, {sT2}"); A("s_addc_u32 s67, s67, 0"); A(f"s_add_u32 s68, s68, {sT2}"); A("s_addc_u32 s69, s69, 0")
        A(f"s_mov_b32 {sKoff}, 0"); A(f"s_mov_b32 {sVoff}, 0")
        A(f"s_lshl_b32 {sT0}, {sBat}, 1"); A(f"s_lshr_b32 {sT2}, {sW}, 1"); A(f"s_add_u32 {sT0}, {sT0}, {sT2}")
        A(f"s_lshl_b32 {sFlagP}, {sT0}, 2"); A(f"s_lshr_b32 {sT2}, {sT1}, 3"); A(f"s_add_u32 {sFlagP}, {sFlagP}, {sT2}")
        A(f"s_lshl_b32 {sFlagP}, {sFlagP}, 7"); A(f"s_and_b32 {sT2}, {sT1}, 3"); A(f"s_lshl_b32 {sT2}, {sT2}, 3")
        A(f"s_add_u32 {sFlagP}, {sFlagP}, {sT2}"); A(f"s_and_b32 {sT2}, {sW}, 1"); A(f"s_lshl_b32 {sT3}, {sT2}, 2")
        A(f"s_add_u32 {sFlagP}, {sFlagP}, {sT3}"); A(f"s_add_u32 {sFlagP}, {sFlagP}, {WS_FLAG}")
        A(f"s_lshl_b32 {sT0}, {sT0}, 5"); A(f"s_add_u32 {sT0}, {sT0}, {sT1}"); A(f"s_lshl_b32 {sT0}, {sT0}, 14")
        A(f"s_lshl_b32 {sT2}, {sT2}, 10"); A(f"s_add_u32 {sOT}, {sT0}, {sT2}")
        self.emit_groups(self.tile_XW(XS[1], WS_[1])); self.vm_issue(("P", 1), 8)
        A(f"s_mov_b32 {sC}, 0x{f2u(CSC):08x}")
        self.make_srd(SK, 66, 512 << 10); self.make_srd(SV, 68, 512 << 10)
        self.make_srd(SWO, 72, 4 << 20); self.make_srd(SWS, 78, WS_SIZE)
        if self.wsbase:
            A(f"s_add_u32 s{SWS}, s{SWS}, 0x{self.wsbase:x}"); A(f"s_addc_u32 s{SWS+1}, s{SWS+1}, 0")
        self.make_srd(SOUT, 74, 2 << 20); self.make_srd(SDBG, 76, 256)
        A(f"v_lshl_add_u32 {vVd}, v172, 8, v175")
        A(f"v_lshl_add_u32 {vWoD}, v172, 10, v175")
        A("v_xor_b32 v176, v171, v170"); A("v_lshlrev_b32 v176, 4, v176")
        A(f"v_lshl_add_u32 {vKd[0]}, v172, 8, v176")
        for i in range(1, 4): A(f"v_xor_b32 {vKd[i]}, {64*i}, {vKd[0]}")
        A("v_and_b32 v173, 31, v2"); A("v_lshrrev_b32 v174, 5, v2")
        A("v_xor_b32 v175, v174, v171"); A("v_lshlrev_b32 v175, 4, v175")
        A(f"v_lshl_add_u32 {vKa[0]}, v173, 8, v175")
        for s in range(1, 8): A(f"v_xor_b32 {vKa[s]}, {32*s}, {vKa[0]}")
        A("v_bfe_u32 v175, v2, 1, 3"); A("v_xor_b32 v175, v175, v174"); A("v_lshlrev_b32 v175, 4, v175")
        A("v_lshl_add_u32 v176, v1, 5, v173"); A("v_lshl_add_u32 v175, v176, 7, v175")
        A(f"v_add_u32 {vXa[0]}, {LX}, v175")
        for s in range(1, 4): A(f"v_xor_b32 {vXa[s]}, {32*s}, {vXa[0]}")
        A("v_bfe_u32 v175, v2, 2, 2"); A("v_and_b32 v176, 3, v2"); A("v_and_b32 v177, 1, v170")
        A("v_lshlrev_b32 v178, 6, v175")
        A("v_lshl_add_u32 v178, v177, 5, v178")
        A("v_lshl_add_u32 v179, v174, 2, v175")
        A("v_lshl_add_u32 v179, v179, 8, v178")
        A("v_lshl_add_u32 v180, v176, 3, v179")
        A(f"v_add_u32 {vVa[0]}, {LV}, v180")
        for b in range(1, 4): A(f"v_xor_b32 {vVa[b]}, {64*b}, {vVa[0]}")
        A("v_lshl_add_u32 v180, v174, 3, v175"); A("v_lshl_add_u32 v180, v180, 8, v178")
        A("v_and_b32 v181, 1, v176"); A("v_lshlrev_b32 v181, 1, v181"); A("v_lshrrev_b32 v182, 1, v176"); A("v_or_b32 v181, v181, v182")
        A("v_lshl_add_u32 v180, v181, 3, v180")
        A(f"v_add_u32 {vWa[0]}, {LW}, v180")
        for b in range(1, 4): A(f"v_xor_b32 {vWa[b]}, {64*b}, {vWa[0]}")
        WOSLOT = LX + 3 * T
        A("v_lshl_add_u32 v180, v174, 2, v175"); A("v_lshl_add_u32 v180, v1, 4, v180"); A("v_lshlrev_b32 v180, 8, v180")
        A("v_lshl_add_u32 v180, v175, 6, v180")
        A("v_and_b32 v181, 1, v176"); A("v_lshlrev_b32 v181, 2, v181"); A("v_lshl_add_u32 v181, v177, 1, v181"); A("v_add_u32 v181, v181, v182")
        A("v_lshl_add_u32 v180, v181, 3, v180")
        A(f"v_add_u32 {vTa[0]}, {WOSLOT}, v180")
        for b in range(1, 4): A(f"v_xor_b32 {vTa[b]}, {64*b}, {vTa[0]}")
        A(f"s_mov_b32 {sThr}, 0x{f2u(8.0):08x}")
        for k in range(4): A(f"v_mov_b32 v{ONES+k}, 0x3f803f80")
        for k in range(16): A(f"v_mov_b32 v{NEG+k}, 0")
        for k in range(16): A(f"v_mov_b32 v{LACC+k}, 0")
        if F:
            self.oproj_offsets(sAreal)
            A(f"v_mov_b32 {vZero}, 0"); A(f"v_mov_b32 {vOne}, 1")
            A(f"s_lshl_b32 {sFlagC}, {sB2}, 2"); A(f"s_add_u32 {sFlagC}, {sFlagC}, {sW}"); A(f"s_lshl_b32 {sFlagC}, {sFlagC}, 7")
            A(f"s_add_u32 {sFlagC}, {sFlagC}, {WS_FLAG}")
            A(f"s_lshr_b32 {sT0}, {sB2}, 1"); A(f"s_lshl_b32 {sT0}, {sT0}, 2")
            A("v_and_b32 v175, 1, v2"); A("v_cmp_eq_u32 vcc, 1, v175")
            A(f"v_mov_b32 v176, {sT0}"); A(f"v_mov_b32 v177, 128"); A(f"v_cndmask_b32 {vPoff}, v176, v177, vcc")
            A(f"v_mov_b32 v176, 16"); A(f"v_mov_b32 v177, 256"); A(f"v_cndmask_b32 {vPexp}, v176, v177, vcc")
            self.one_lane([f"buffer_store_dword {vZero}, {vZero}, {srd(SWS)}, {sFlagP} offen sc1"])
            self.vm_issue(("FZ",), 1)
        if "nost" in self.dbg: A(f"s_mov_b32 {sOT}, 0x{OOB:x}")
        k0i = [i for i, l in self.kvplan.items() if ("K", 0) in l][0]
        self.k0bar = k0i >= 5
        for i in range(8):
            A(f"s_waitcnt vmcnt({self.vm_need(('P', i))})")
            A("s_barrier")
            self.stamp(2 + i)
            groups = []
            if i <= 5: groups += self.tile_XW(XS[(i + 2) % 3], WS_[(i + 2) % 3]); self.vm_issue(("P", i + 2), 8)
            for kind, sl in self.kvplan.get(i, []):
                groups += self.tile_KV(kind == "K", sl); self.vm_issue((kind, sl), 4)
            gaps = [[] for _ in range(16)]
            n = len(groups)
            if n: self.place(gaps, groups, [k * 16 // n for k in range(n)] if n > 8 else [2 * k for k in range(n)])
            nx = XS[(i + 1) % 3] - XS[i % 3]; nw = WS_[(i + 1) % 3] - WS_[i % 3]
            if i == 7:
                nx = 0; nw = LX - WS_[7 % 3]
            upd = []
            if nx: upd += [f"v_add_u32 {r}, {nx}, {r}" for r in vXa]
            for k, l in enumerate(upd): gaps[4 + k].append(l)
            if nw:
                for k, r in enumerate(vWa): gaps[12 + k].append(f"v_add_u32 {r}, {nw}, {r}")
            if i == 7:
                g2 = self.spread(self.zero_acc(), 16)
                gaps = [a + b for a, b in zip(gaps, g2)]
            self.qpair_code(gaps, i, True, 0, first=(i == 0))
        A(f"s_add_u32 {sWb}, {sWb}, {256 if 'noqb' not in self.dbg else OOB}")
        self.qfin(False)
        self.stamp(10)
        if self.k0bar:
            A(f"s_waitcnt vmcnt({self.vm_need(('K', 0))})"); A("s_barrier")
        A.lds_reset()
        mf, rd = self.qk_lists(SA, 0)
        self.interleave(mf, rd, 6, None, self.spread([f"v_mov_b32 v{O0+k}, 0" for k in range(64)], 16))
        A(f"s_waitcnt vmcnt({self.vm_need(('K', 1))})")
        A("s_barrier")
        _, rdn = self.qk_lists(SB, 1)
        for i in range(self.nahead): A(rdn[i][0][0])
        self.emit_groups(self.tile_KV(True, 0)); self.vm_issue(("K", 3), 4)
        A(f"s_lshr_b32 {sT3}, s2, 2"); A(f"s_lshl_b32 {sT3}, {sT3}, 16")
        A(f"s_and_b32 {sT0}, s2, 3"); A(f"s_lshl_b32 {sT0}, {sT0}, 8"); A(f"s_add_u32 {sT3}, {sT3}, {sT0}")
        g = self.tile_strided([f"s_add_u32 m0, {sW4K}, {WOSLOT}"], [vWoD] * 4, SWO, sT3, 4096 - 1024)
        mx = self.max_ops(SA)
        for k in range(4):
            for l in g[k] + mx[4*k:4*k+4]: A(l)
        self.vm_issue(("WO",), 4)
        A(f"s_mov_b32 {sT}, -1")
        A(f"s_call_b64 {sRet}, L_init")
        n1, n2, n3 = self.simulate_loop()
        self.n = (n1, n2, n3)
        A.label("L_loop")
        for c in range(6):
            self.body(c, n1, n2)
            A(f"s_call_b64 {sRet}, L_common")
        A("s_branch L_loop")
        A(".p2align 3")
        A.label("L_common")
        self.istamp(VST+2, 1)
        xs = list(range(QP_T0, QP_T0 + 8)) + [WO_T, 14, 15, 31]
        if F: xs += [PUB_T]
        A(f"s_bitcmp1_b32 0x{sum(1 << t for t in set(xs)):08x}, {sT}"); A("s_cbranch_scc1 L_extras")
        A.label("L_check")
        A(f"v_cmp_lt_f32 vcc, {sThr}, {vMx0}")
        A("s_cbranch_vccz L_next")
        A(f"s_call_b64 {sLink2}, L_rare")
        A.label("L_next")
        A(f"s_add_u32 {sT}, {sT}, 1")
        A(f"s_setpc_b64 {sRet}")
        A.label("L_init")
        A(f"v_mov_b32 {vMx1}, {vMx0}"); A(f"s_mov_b32 {sFloor}, 0x{f2u(-1e30):08x}"); A("s_nop 0")
        A(f"v_permlane32_swap_b32 {vMx0}, {vMx1}")
        A(f"v_max3_f32 {vMx0}, {vMx0}, {vMx1}, {sFloor}")
        for i in range(16): A(f"v_sub_f32 v{NEG+i}, 0, {vMx0}")
        for i in range(32): A(f"v_sub_f32 v{SA+i}, v{SA+i}, {vMx0}")
        A("s_branch L_next")
        A.label("L_rare")
        A(f"v_mov_b32 {vMx1}, {vMx0}"); A("s_nop 1")
        A(f"v_permlane32_swap_b32 {vMx0}, {vMx1}")
        A(f"v_max3_f32 {vMx0}, {vMx0}, {vMx1}, 0")
        A(f"v_exp_f32 {vMx1}, -{vMx0}")
        for i in range(16): A(f"v_sub_f32 v{NEG+i}, v{NEG+i}, {vMx0}")
        A(f"v_mul_f32 v{LACC}, {vMx1}, v{LACC}")
        for i in range(64): A(f"v_mul_f32 v{O0+i}, {vMx1}, v{O0+i}")
        A(f"s_bitcmp1_b32 {sT}, 0"); A("s_cbranch_scc1 L_rare_a")
        for i in range(32): A(f"v_sub_f32 v{SB+i}, v{SB+i}, {vMx0}")
        A(f"s_setpc_b64 {sLink2}")
        A.label("L_rare_a")
        for i in range(32): A(f"v_sub_f32 v{SA+i}, v{SA+i}, {vMx0}")
        A(f"s_setpc_b64 {sLink2}")
        A.label("L_extras")
        A(f"s_cmp_lt_u32 {sT}, {QP_T0 + 8}"); A("s_cbranch_scc1 L_xlow")
        A(f"s_cmp_eq_u32 {sT}, 31"); A("s_cbranch_scc1 L_tail")
        A(f"s_cmp_eq_u32 {sT}, 15"); A("s_cbranch_scc1 L_x15")
        A(f"s_cmp_eq_u32 {sT}, 14"); A("s_cbranch_scc1 L_x14")
        if F:
            A(f"s_waitcnt vmcnt({n3[PUB_T]})")
            A("s_barrier")
            A(f"s_lshl_b32 {sT0}, {sBat}, 2")
            self.one_lane([f"buffer_atomic_add {vOne}, {vZero}, {srd(SDBG)}, {sT0} offen sc1"], wave0=True)
        A("s_branch L_check")
        A.label("L_xlow")
        A(f"s_cmp_ge_u32 {sT}, {QP_T0 + 4}"); A("s_cbranch_scc1 L_xqhi")
        for i in range(4):
            A(f"s_cmp_eq_u32 {sT}, {QP_T0 + i}"); A(f"s_cbranch_scc1 L_xq{i}")
        A.lds_reset()
        A("s_waitcnt lgkmcnt(0)")
        A(f"s_waitcnt vmcnt({n3[WO_T]})")
        for b in range(4):
            A.lds(f"ds_read_b64_tr_b16 {at(AVF+4*b,2)}, {vTa[b]}", b)
            A.lds(f"ds_read_b64_tr_b16 {at(AVF+4*b+2,2)}, {vTa[b]} offset:2048", b)
        A(f"s_and_b32 {sT0}, s2, 3"); A(f"s_lshl_b32 {sT0}, {sT0}, 20")
        A(f"s_lshr_b32 {sT1}, s2, 6"); A(f"s_lshl_b32 {sT1}, {sT1}, 3"); A(f"s_bfe_u32 {sT2}, s2, 0x10003"); A(f"s_lshl_b32 {sT2}, {sT2}, 2")
        A(f"s_add_u32 {sT1}, {sT1}, {sT2}"); A(f"s_bfe_u32 {sT2}, s2, 0x20004"); A(f"s_add_u32 {sT1}, {sT1}, {sT2}")
        A(f"s_lshl_b32 {sT1}, {sT1}, 3"); A(f"s_and_b32 {sT2}, s2, 4"); A(f"s_add_u32 {sT1}, {sT1}, {sT2}"); A(f"s_add_u32 {sT1}, {sT1}, {sW}")
        A(f"s_lshl_b32 {sT1}, {sT1}, 11"); A(f"s_add_u32 {sT0}, {sT0}, {sT1}")
        A(f"s_add_u32 {sT0}, {sT0}, {WS_WT if 'nost' not in self.dbg else OOB}"); A(f"s_add_u32 {sT1}, {sT0}, 524288")
        for b in range(4):
            A.lds_wait(b)
            A(f"buffer_store_dwordx4 {at(AVF+4*b,4)}, {vL16}, {srd(SWS)}, {sT0 if b < 2 else sT1} offen offset:{(b%2)*1024}{self.stf}")
        self.emit_groups(self.tile_W(LX, 0) + self.tile_W(LX + T, 1))
        A("s_branch L_check")
        for i in (0, 1, 2, 3, 7, 6, 5, 4):
            if i == 7:
                A.label("L_xqhi")
                for k in (4, 5, 6):
                    A(f"s_cmp_eq_u32 {sT}, {QP_T0 + k}"); A(f"s_cbranch_scc1 L_xq{k}")
            A.label(f"L_xq{i}")
            A("s_waitcnt lgkmcnt(0)")
            if F and i == 1:
                A(f"s_waitcnt vmcnt({n3[QP_T0 + 1]})"); A("s_barrier")
                self.one_lane([f"buffer_atomic_add {vOne}, {vZero}, {srd(SDBG)}, 0 offen offset:128 sc1"], wave0=True)
            gaps = [[] for _ in range(16)]
            if i < 6: self.place(gaps, self.tile_W(LX + ((i + 2) % 4) * T, i + 2), [1, 5, 9, 13])
            self.qpair_code(gaps, i, False, (i % 4) * T)
            A("s_branch L_check")
        A.label("L_x14")
        A(f"v_cmp_lt_f32 vcc, {sThr}, {vMx0}")
        A("s_cbranch_vccz L_x14b")
        A(f"s_call_b64 {sLink2}, L_rare")
        A.label("L_x14b")
        self.qfin(True)
        for k in range(16): A(f"v_mov_b32 v{NEG+k}, 0")
        if F:
            for l in self.zero_acc(): A(l)
        A("s_branch L_next")
        A.label("L_x15")
        A(f"s_call_b64 {sLink}, L_epi")
        A(f"s_add_u32 {sOT}, {sOT}, {4*16384 - 16384}")
        for i in range(64): A(f"v_mov_b32 v{O0+i}, 0")
        A(f"v_mov_b32 v{LACC}, 0")
        self.stamp(11)
        A("s_branch L_init")
        A.label("L_tail")
        A("s_waitcnt lgkmcnt(0)")
        self.stamp(12)
        if F: A(f"buffer_load_dword {vPoll}, {vPoff}, {srd(SDBG)}, 0 offen sc1")
        A(f"s_call_b64 {sLink}, L_epi")
        self.stamp(13)
        if F: self.tail()
        self.dump_stamps()
        A.label("L_end")
        A("s_endpgm")
        self.epilogue_sub()
        A.label("L_codeend")

    def spin(self, name, cmp_line, load_line, sleep):
        A = self.A
        A(f"s_mov_b32 {sSpin}, 0x40000")
        A.label(name)
        A(cmp_line)
        A(f"s_cbranch_vccz {name}_ok")
        A(f"s_sub_u32 {sSpin}, {sSpin}, 1"); A(f"s_cbranch_scc1 {name}_ok")
        if sleep: A(f"s_sleep {sleep}")
        A(load_line)
        A("s_waitcnt vmcnt(0)")
        A(f"s_branch {name}")
        A.label(name + "_ok")
    def tail(self):
        A = self.A
        A("s_waitcnt vmcnt(8)")
        self.spin("L_c1", f"v_cmp_lt_u32 vcc, {vPoll}, {vPexp}", f"buffer_load_dword {vPoll}, {vPoff}, {srd(SDBG)}, 0 offen sc1", 2)
        A(f"s_mov_b32 {sAoff}, {sAreal}")
        A("v_and_b32 v8, 7, v2"); A("v_lshlrev_b32 v8, 2, v8")
        pollB = f"buffer_load_dword {vPoll}, v8, {srd(SWS)}, {sFlagC} offen sc1"
        def loads(p):
            if p >= 32: return [[]] * 8
            R = SET(p % 4)
            ls = [self.aload(R, j, sAoff) for j in range(4)] + [self.aload(R, j, sWToff) for j in range(4, 8)]
            ls[7] = ls[7] + [f"s_add_u32 {sAoff}, {sAoff}, 4096", f"s_add_u32 {sWToff}, {sWToff}, 4096"]
            return ls
        self.emit_groups(loads(0))
        A("s_waitcnt vmcnt(8)")
        self.one_lane([f"buffer_store_dword {vOne}, {vZero}, {srd(SWS)}, {sFlagP} offen sc1"])
        self.stamp(14)
        for p in range(1, 3): self.emit_groups(loads(p))
        for p in range(32):
            left = min(31, p + 2) - p
            extra = 1 if p == 12 else 0
            A(f"s_waitcnt vmcnt({8*left + extra})")
            if p == 13:
                self.stamp(15)
                A("s_waitcnt vmcnt(8)")
                self.spin("L_c2", f"v_cmp_ne_u32 vcc, 1, {vPoll}", pollB, 0)
                self.stamp(18)
            R = SET(p % 4)
            ls = loads(p + 3)
            for k, m in enumerate(self.opair_mfmas(R, lambda j, n: R(16 + j, n), 0)):
                A(m)
                for l in ls[k]: A(l)
            if p == 11: A(pollB)
        self.stamp(16)
        self.reduce_store()

    def dump_stamps(self):
        if not self.stamps: return
        A = self.A
        A("s_waitcnt vmcnt(0)")
        self.stamp(17)
        A("s_memrealtime s[100:101]")
        A("s_getreg_b32 s3, hwreg(HW_REG_XCC_ID)")
        A("s_waitcnt lgkmcnt(0)")
        A(f"v_writelane_b32 v{VST}, s98, 61"); A(f"v_writelane_b32 v{VST}, s100, 62"); A(f"v_writelane_b32 v{VST}, s3, 63")
        A(f"s_lshl_b32 {sT1}, s2, 2"); A(f"s_add_u32 {sT1}, {sT1}, {sW}"); A(f"s_mul_i32 {sT1}, {sT1}, 768")
        A(f"s_add_u32 {sT1}, {sT1}, {WS_STAMP}")
        A(f"v_lshrrev_b32 v3, 2, {vL16}")
        A(f"buffer_store_dword v{VST}, v3, {srd(SWS)}, {sT1} offen")
        A(f"buffer_store_dword v{VST+1}, v3, {srd(SWS)}, {sT1} offen offset:256")
        A(f"buffer_store_dword v{VST+2}, v3, {srd(SWS)}, {sT1} offen offset:512")

    def kernelB(self):
        A = self.A
        A("s_cmp_ge_u32 s2, 256"); A("s_cbranch_scc1 LB_end")
        A("s_load_dwordx16 s[64:79], s[0:1], 0")
        A("v_lshrrev_b32 v1, 6, v0"); A("v_and_b32 v2, 63, v0")
        A(f"v_readfirstlane_b32 {sW}, v1")
        A(f"v_lshlrev_b32 {vL16}, 4, v2")
        A("s_nop 1")
        self.oproj_offsets(sAoff)
        A("s_waitcnt lgkmcnt(0)")
        self.make_srd(SWS, 78, WS_SIZE); self.make_srd(SOUT, 74, 2 << 20)
        NS = 4
        def setregs(k):
            k %= NS
            return lambda j, n: vt(64 + 32 * k + j, n)
        def load(p):
            R = setregs(p)
            ls = [[f"buffer_load_dwordx4 {R(4*i,4)}, {vL16}, {srd(SWS)}, {sAoff} offen offset:{i*1024}"] for i in range(4)]
            ls += [[f"buffer_load_dwordx4 {R(16+4*i,4)}, {vL16}, {srd(SWS)}, {sWToff} offen offset:{i*1024}"] for i in range(4)]
            ls[7] += [f"s_add_u32 {sAoff}, {sAoff}, 4096", f"s_add_u32 {sWToff}, {sWToff}, 4096"]
            return ls
        NP = 32
        for p in range(NS - 1): self.emit_groups(load(p))
        for l in self.zero_acc(): A(l)
        for p in range(NP):
            left = min(NP - 1, p + NS - 2) - p
            A(f"s_waitcnt vmcnt({8*left})")
            R = setregs(p)
            ls = load(p + NS - 1) if p + NS - 1 < NP else [[]] * 8
            for k, m in enumerate(self.opair_mfmas(R, lambda j, n: R(16 + j, n), 0)):
                A(m)
                for l in ls[k]: A(l)
        self.reduce_store()
        A.label("LB_end")
        A("s_endpgm")
    def oproj_offsets(self, sA):
        A = self.A
        A(f"s_and_b32 {sT0}, s2, 7"); A(f"s_lshl_b32 {sT0}, {sT0}, 2"); A(f"s_lshr_b32 {sT1}, s2, 6")
        A(f"s_add_u32 {sB2}, {sT0}, {sT1}")
        A(f"s_lshl_b32 {sT0}, {sB2}, 19"); A(f"s_lshl_b32 {sT1}, {sW}, 17"); A(f"s_add_u32 {sA}, {sT0}, {sT1}")
        A(f"s_bfe_u32 {sT0}, s2, 0x30003"); A(f"s_lshl_b32 {sT0}, {sT0}, 19")
        A(f"s_add_u32 {sT0}, {sT0}, {sT1}"); A(f"s_add_u32 {sWToff}, {sT0}, {WS_WT}")
    def reduce_store(self):
        A = self.A
        A(f"v_lshl_add_u32 v3, v1, 14, {vL16}")
        A(f"v_lshl_add_u32 v4, v1, 12, {vL16}")
        A("v_and_b32 v5, 31, v2"); A("v_lshrrev_b32 v6, 5, v2"); A("v_lshlrev_b32 v5, 10, v5"); A("v_lshl_add_u32 v5, v6, 5, v5")
        A(f"s_lshl_b32 {sT0}, {sB2}, 16"); A(f"s_and_b32 {sT1}, {sW}, 1"); A(f"s_lshl_b32 {sT1}, {sT1}, 15"); A(f"s_add_u32 {sT0}, {sT0}, {sT1}")
        A(f"s_bfe_u32 {sT1}, s2, 0x30003"); A(f"s_lshl_b32 {sT1}, {sT1}, 7"); A(f"s_add_u32 {sT0}, {sT0}, {sT1}")
        A(f"s_lshr_b32 {sT1}, {sW}, 1"); A(f"s_lshl_b32 {sT1}, {sT1}, 6"); A(f"s_add_u32 {sT0}, {sT0}, {sT1}")
        A("s_barrier")
        for blk in range(4):
            for q in range(4):
                A(f"ds_write_b128 v3, {at(AACC+16*blk+4*q,4)} offset:{blk*4096+q*1024}")
                if (blk * 4 + q) % 8 == 7: A("s_waitcnt lgkmcnt(0)")
        A("s_barrier")
        for src in range(4):
            for q in range(4):
                A(f"ds_read_b128 {vt(64+16*src+4*q,4)}, v4 offset:{src*16384+q*1024}")
            if src % 2 == 1: A("s_waitcnt lgkmcnt(0)")
        for i in range(16): A(f"v_add_f32 v{64+i}, v{64+i}, v{80+i}")
        for i in range(16): A(f"v_add_f32 v{96+i}, v{96+i}, v{112+i}")
        for i in range(16): A(f"v_add_f32 v{64+i}, v{64+i}, v{96+i}")
        for j in range(8): A(f"v_cvt_pk_bf16_f32 v{80+j}, v{64+2*j}, v{64+2*j+1}")
        A(f"buffer_store_dwordx4 {vt(80,4)}, v5, {srd(SOUT)}, {sT0} offen{self.outf}")
        A(f"buffer_store_dwordx4 {vt(84,4)}, v5, {srd(SOUT)}, {sT0} offen offset:16{self.outf}")

HDR = open("standalone__mha_block_cached__near_ridge.s.ref").read().split("; Override")[0]
def desc(name):
    return f""".amdhsa_kernel {name}
  .amdhsa_next_free_vgpr 512
  .amdhsa_next_free_sgpr 102
  .amdhsa_accum_offset 256
  .amdhsa_group_segment_fixed_size 0
  .amdhsa_kernarg_size 64
  .amdhsa_user_sgpr_count 2
  .amdhsa_user_sgpr_kernarg_segment_ptr 1
  .amdhsa_system_sgpr_workgroup_id_x 1
.end_amdhsa_kernel
"""
def build(path, align=True, verbose=False, **kw):
    g = Gen(**kw); g.kernelA()
    la = align8(g.A.lines) if align else g.A.lines
    bad = check_hazards(la)
    s = HDR
    if g.fused:
        s += f"; @launch grid=(256,1,1) block=(256,1,1) lds=163840\n"
    else:
        gb = Gen(**kw); gb.kernelB()
        lb = align8(gb.A.lines) if align else gb.A.lines
        bad += check_hazards(lb)
        s += f"; @launch kernel={KN} grid=(256,1,1) block=(256,1,1) lds=163840\n"
        s += f"; @launch kernel=oproj_kernel grid=(256,1,1) block=(256,1,1) lds=65536\n"
    print(path, "hazards:", bad)
    if verbose: print(g.n)
    s += '.amdgcn_target "amdgcn-amd-amdhsa--gfx950"\n.text\n'
    s += f".globl {KN}\n.p2align 8\n.type {KN},@function\n{KN}:\n" + "\n".join(la) + "\n"
    if not g.fused:
        s += f".globl oproj_kernel\n.p2align 8\n.type oproj_kernel,@function\noproj_kernel:\n" + "\n".join(lb) + "\n"
    s += '.section .rodata,"a"\n.p2align 6\n' + desc(KN)
    if not g.fused: s += ".p2align 6\n" + desc("oproj_kernel")
    open(path, "w").write(s)
if __name__ == "__main__":
    build("v6.s")
    build("v6_A.s", stf=" sc1 nt", xwf=" nt", ldf=" sc1 nt")
    build("v6_B.s", stf=" sc1 nt", xwf="", ldf=" sc1 nt")
    build("v6_C.s", stf=" sc1 nt", xwf=" nt", ldf=" sc1")
    build("v6_A_c.s", stamps=True, fine=False, stf=" sc1 nt", xwf=" nt", ldf=" sc1 nt")
    build("v6_B_c.s", stamps=True, fine=False, stf=" sc1 nt", xwf="", ldf=" sc1 nt")
```

```python
import sys, math, struct, itertools
sys.path.insert(0, "work")
from asmlib import Asm, check_hazards, align8

KN = "standalone__mha_block_cached__near_ridge_kernel"
def f2u(x): return struct.unpack("<I", struct.pack("<f", x))[0]
CSC = math.log2(math.e) / math.sqrt(128.0)
THR = 8.0 / CSC
MINIT = -3.0e38
OOB = 0x40000000

T = 16384
LK, LV, LX, LW = 0, 3 * T, 6 * T, 8 * T
WS_OT = 0
WS_WT = 16 << 20
WS_FLAG = 20 << 20
WS_STAMP = 21 << 20
WS_SIZE = 22 << 20
SK, SV, SX, SWQ, SWO, SWS, SOUT, SDBG = 4, 8, 12, 16, 20, 24, 28, 32
def srd(b): return f"s[{b}:{b+3}]"
sW, sW4K, sKoff, sVoff, sKcur, sVcur, sKd, sT, sC, sSw1, sBaseB, sSw2 = [f"s{i}" for i in range(36, 48)]
sXoff, sWoff, sEpar, sT0, sT1, sT2 = [f"s{i}" for i in range(48, 54)]
sLink = "s[54:55]"
sRet = "s[92:93]"
sLink2 = "s[94:95]"
sOT, sVd, sM32K, sAoff, sWToff, sB2, sT3, sAoff2 = [f"s{i}" for i in range(56, 64)]
sThr, sFloor, sTO = sKd, sVd, sSw1
sTi, sXb, sWb, sAreal, sFlagP, sFlagC, sBat, sSpin = [f"s{i}" for i in range(80, 88)]
SCODE = 88
vKa = [f"v{i}" for i in range(16, 24)]
vVa = [f"v{i}" for i in range(24, 28)]
vKd = [f"v{i}" for i in range(28, 32)]
vVd = "v32"; vZero = "v33"; vMx0 = "v34"; vMx1 = "v35"
vL16 = "v39"; vPollx = "v36"; vPoff = "v37"; vPexp = "v38"; vOne = "v40"; vPoll = "v13"; vInv = 14
VST = 41
ONES, LACC = 44, 48
vWa = [f"v{i}" for i in range(4, 8)]; vWd = "v8"
vTa = [f"v{i}" for i in range(9, 13)]
vXa = [f"v{i}" for i in range(160, 164)]
vXd = ["v164", "v165"]; vWoD = "v166"
O0, SA, SB, P0, NEG = 64, 128, 160, 192, 240
AQ, AACC, AKF, AVF, AXF = 0, 32, 96, 128, 224
def vt(b, n): return f"v[{b}:{b+n-1}]"
def at(b, n): return f"a[{b}:{b+n-1}]"
def SET(k):
    return (lambda j, n: at(160 + 32 * k + j, n)) if k < 3 else (lambda j, n: vt(208 + j, n))
def XR(i, s): return SET(i // 2)(16 * (i % 2) + 4 * s, 4)
MF = "v_mfma_f32_32x32x16_bf16"

QP_T0 = 4
QT = [1, 3, 5, 7, 9, 11, 12, 13]
WO_T = 2
WRDY_T = 4
PUB_T = 18
OP_T0 = 19

class Gen:
    def __init__(self, stamps=False, nt=True, fused=True, split=24, rot=True, pf=True, xwf='', wgrp=2, prokv=True, nahead=6, latepos=(10, 12, 14, 15), e3=True, dbg=(), stf=' sc1', wsbase=0, kvplan=None, fine=True, ldf=' sc1', outf='', sel=True, qt=None):
        self.A = Asm()
        self.stamps = stamps; self.fused = fused; self.split = split; self.rot = rot; self.pf = pf; self.xwf = xwf; self.wgrp = wgrp; self.prokv = prokv; self.nahead = nahead; self.latepos = list(latepos); self.e3 = e3; self.dbg = dbg; self.stf = stf; self.wsbase = wsbase; self.fine = fine; self.ldf = ldf; self.sel = sel; self.QT = qt or QT; self.outf = outf; self.kvplan = kvplan or {0: [('K', 0)], 1: [('K', 1)], 2: [('V', 0)], 3: [('V', 1)], 6: [('K', 2)]}
        self.nt = " nt" if nt else ""
        self.vm = []
    def vm_issue(self, tag, n): self.vm += [tag] * n
    def vm_need(self, *tags):
        idx = -1
        for i, q in enumerate(self.vm):
            if q in tags: idx = i
        assert idx >= 0, tags
        return min(63, len(self.vm) - 1 - idx)
    def stamp(self, k):
        if self.stamps:
            self.A("s_memtime s[96:97]"); self.A("s_waitcnt lgkmcnt(0)"); self.A(f"v_writelane_b32 v{VST}, s96, {k}")
    def istamp(self, v, hi):
        if not self.stamps: return
        if not self.fine and (v, hi) != (VST+2, 1): return
        A = self.A
        A("s_memtime s[96:97]")
        if not self.fine: A("s_memrealtime s[100:101]")
        A(f"s_add_u32 m0, {sT}, {32 if hi else 0}")
        A("s_waitcnt lgkmcnt(0)")
        A(f"v_writelane_b32 v{v}, s96, m0")
        if not self.fine: A(f"v_writelane_b32 v{VST+1}, s100, m0")
    def dma_line(self, voff, srdb, soff, i, flags):
        return f"buffer_load_dwordx4 {voff}, {srd(srdb)}, {soff} offen offset:{i*1024}{flags} lds"
    def tile_KV(self, isK, slot):
        off, base, voffs, srdb = (sKoff, LK, vKd, SK) if isK else (sVoff, LV, [vVd] * 4, SV)
        g = [[self.dma_line(voffs[i], srdb, off, i, self.nt)] for i in range(4)]
        g[0] = [f"s_add_u32 m0, {sW4K}, {base + slot*T}", "@M0"] + g[0]
        g[3] = g[3] + [f"s_add_u32 {off}, {off}, {T}"]
        return g
    def tile_strided(self, m0lines, voffs, srdb, soff, step):
        g = [m0lines + ["s_nop 0", self.dma_line(voffs[0], srdb, soff, 0, self.xwf)]]
        for i in range(1, 4):
            g.append([f"s_add_u32 {soff}, {soff}, {step}", self.dma_line(voffs[i], srdb, soff, i, self.xwf)])
        return g
    def tile_XW(self, xbase=None, wbase=None):
        mx = [f"s_add_u32 m0, {sW4K}, {xbase}"] if xbase is not None else \
             [f"s_add_u32 {sT0}, {sEpar}, {LX}", f"s_add_u32 m0, {sT0}, {sW4K}"]
        mw = [f"s_add_u32 m0, {sW4K}, {wbase}"] if wbase is not None else \
             [f"s_add_u32 {sT0}, {sEpar}, {LW}", f"s_add_u32 m0, {sT0}, {sW4K}"]
        gx = self.tile_strided([f"s_lshl_b32 {sXoff}, {sTi}, 7", f"s_add_u32 {sXoff}, {sXoff}, {sXb}"] + mx,
                               [vXd[0], vXd[1], vXd[0], vXd[1]], SX, sXoff, 8192 - 1024)
        gw = self.tile_strided([f"s_lshl_b32 {sWoff}, {sTi}, 19", f"s_add_u32 {sWoff}, {sWoff}, {sWb}"] + mw,
                               [vWd] * 4, SWQ, sWoff, 32768 - 1024)
        gw[3] += [f"s_add_u32 {sTi}, {sTi}, 1", f"s_and_b32 {sTi}, {sTi}, 7"]
        return gx + gw
    def tile_W(self, base, i):
        g = self.tile_strided([f"s_lshl_b32 {sWoff}, {sTi}, 19", f"s_add_u32 {sWoff}, {sWoff}, {sWb}", f"s_add_u32 m0, {sW4K}, {base}"],
                              [vWd] * 4, SWQ, sWoff, 32768 - 1024)
        g[3] += [f"s_add_u32 {sTi}, {sTi}, 1", f"s_and_b32 {sTi}, {sTi}, 7"]
        return g
    def emit_groups(self, groups):
        for g in groups:
            for l in g: self.A("s_nop 0" if l == "@M0" else l)
    @staticmethod
    def place(gaps, groups, positions):
        for g, p in zip(groups, positions):
            if "@M0" in g:
                k = g.index("@M0")
                if gaps[p]:
                    gaps[p] = g[:k] + gaps[p][:1] + g[k+1:] + gaps[p][1:]
                else:
                    gaps[p] = g[:k] + ["s_nop 0"] + g[k+1:]
            else:
                gaps[p] = g + gaps[p]

    def interleave(self, mfmas, reads, nahead, pre, gaps):
        A = self.A
        n = len(mfmas); G = self.wgrp
        for i in range(min(nahead, n)):
            for tx, tg in reads[i]: A.lds(tx, tg)
        if pre: pre()
        for i in range(n):
            if i % G == 0:
                tags = []
                for j in range(i, min(n, i + G)): tags += mfmas[j][1]
                A.lds_wait(*tags)
            A(mfmas[i][0])
            if i + nahead < n:
                for tx, tg in reads[i + nahead]: A.lds(tx, tg)
            for l in gaps[i]: A(l)
    @staticmethod
    def spread(fill, ngaps, first=0):
        cost = lambda l: 8 if l.startswith("v_exp") or l.startswith("v_rcp") else 4
        tot = sum(cost(l) for l in fill)
        gaps = [[] for _ in range(ngaps)]
        acc = 0; k = ngaps - first
        for l in fill:
            g = first + min(k - 1, int((acc + cost(l) / 2) * k / tot))
            gaps[g].append(l); acc += cost(l)
        return gaps
    def exp_ops(self, S, lo, hi):
        ops = []
        ex = lambda i: f"v_exp_f32 v{S+i}, v{S+i}"
        cvt = lambda i: f"v_cvt_pk_bf16_f32 v{P0 + i//2}, v{S+i}, v{S+i+1}"
        prs = list(range(lo, hi, 2))
        for k, i in enumerate(prs):
            ops += [ex(i), ex(i + 1)]
            if k > 0: ops += [cvt(prs[k-1])]
        ops += ["s_nop 0", cvt(prs[-1])]
        return ops
    def max_ops(self, S):
        ops = []
        for b, mx in ((0, vMx0), (16, vMx1)):
            o = [f"v_max3_f32 {mx}, v{S+b}, v{S+b+1}, v{S+b+2}"]
            for i in range(3, 15, 2): o.append(f"v_max3_f32 {mx}, {mx}, v{S+b+i}, v{S+b+i+1}")
            ops.append(o)
        out = []
        for x, y in zip(*ops): out += [x, y]
        out.append(f"v_max3_f32 {vMx0}, {vMx0}, v{S+15}, v{S+31}")
        out.append(f"v_max_f32 {vMx0}, {vMx0}, {vMx1}")
        return out
    def qk_lists(self, Sn, slot):
        mf, rd = [], []
        for i in range(16):
            kb, s = i // 8, i % 8
            fr = AKF + 4 * (i % 8)
            d = vt(Sn + 16 * kb, 16)
            mf.append((f"{MF} {d}, {at(fr,4)}, {at(AQ+4*s,4)}, {vt(NEG,16) if s == 0 else d}", [("k", i)]))
            rd.append([(f"ds_read_b128 {at(fr,4)}, {vKa[s]} offset:{slot*T + kb*8192}", ("k", i))])
        return mf, rd
    def pv_lists(self, slot):
        mf, rd = [], []
        for i in range(16):
            ks, blk = i // 4, i % 4
            fr = AVF + 4 * (i % 8)
            d = vt(O0 + 16 * blk, 16)
            mf.append((f"{MF} {d}, {at(fr,4)}, {vt(P0+4*ks,4)}, {d}", [("v", i)]))
            rd.append([(f"ds_read_b64_tr_b16 {at(fr,2)}, {vVa[blk]} offset:{slot*T + ks*4096}", ("v", i)),
                       (f"ds_read_b64_tr_b16 {at(fr+2,2)}, {vVa[blk]} offset:{slot*T + ks*4096+2048}", ("v", i))])
        return mf, rd
    def wait_ladder(self, need, maxlev=3):
        A = self.A
        vals = sorted(set(need.values()), reverse=True)
        if len(vals) > maxlev:
            best = None
            for comb in itertools.combinations(vals, maxlev):
                if min(comb) != vals[-1]: continue
                loss = sum(min(v, 24) - min(24, max(c for c in comb if c <= v)) for v in need.values())
                if best is None or loss < best[0]: best = (loss, comb)
            vals = sorted(best[1], reverse=True)
        lvl = {t: max(c for c in vals if c <= v) for t, v in need.items()}
        done = A.newlabel("Lw")
        A(f"s_waitcnt vmcnt({vals[0]})")
        for v in vals[1:]:
            mask = sum(1 << t for t, l in lvl.items() if l <= v)
            A(f"s_bitcmp1_b32 0x{mask:08x}, {sT}")
            A(f"s_cbranch_scc0 {done}")
            A(f"s_waitcnt vmcnt({v})")
        A.label(done)

    def simulate_loop(self):
        n1, n2, n3 = {}, {}, {}
        F = self.fused
        for t in range(32):
            n1[t] = self.vm_need(("V", t))
            self.vm_issue(("V", t + 2), 4)
            n2[t] = self.vm_need(("K", t + 2)) if t < 30 else 63
            if t in self.QT: n2[t] = min(n2[t], self.vm_need(("E", self.QT.index(t))))
            self.vm_issue(("K", t + 4), 4)
            if t == WO_T:
                n3[t] = self.vm_need(("WO",)); self.vm_issue(("WT",), 4)
            if t in self.QT[:6]: self.vm_issue(("E", self.QT.index(t) + 2), 4)
            if t == WRDY_T: n3[t] = self.vm_need(("WT",))
            if t == 15: self.vm_issue(("OA",), 8)
            if F and t == PUB_T: n3[t] = self.vm_need(("OA",))
        return n1, n2, n3

    def aload(self, R, j, soff):
        return [f"buffer_load_dwordx4 {R(4*j,4)}, {vL16}, {srd(SWS)}, {soff} offen offset:{(j%4)*1024}{self.ldf}"]
    def body(self, c, n1, n2):
        A = self.A
        par = c % 2; NA = self.nahead; G = self.wgrp
        S, Sn = (SA, SB) if par == 0 else (SB, SA)
        sel = lambda d: min(v for t, v in d.items() if t % 6 == c)
        mf1, rd1 = self.qk_lists(Sn, (c + 1) % 3)
        mf2, rd2 = self.pv_lists(c % 3)
        _, rdn = self.qk_lists(S, (c + 2) % 3)
        rdn = [[(tx, ("kn", i)) for tx, tg in r] for i, r in enumerate(rdn)]
        mf = mf1 + mf2; rd = rd1 + rd2 + rdn[:NA]
        bp = 16 - NA - 1
        gaps1 = self.spread(self.exp_ops(S, 0, self.split), 16)
        rest = self.exp_ops(S, self.split, 32)
        lim = 10 if self.split >= 24 else 6
        g1 = self.spread(rest, lim)
        g2 = self.spread(self.max_ops(Sn), 16, first=lim - 3)
        gaps2 = [(g1[i] if i < lim else []) + g2[i] for i in range(16)]
        early = [0, 2, 4, 6]; late = [bp + 1, bp + 2 + (15 - bp - 2) // 3, bp + 2 + 2 * (15 - bp - 2) // 3, 15]
        late = self.latepos
        self.place(gaps1, self.tile_KV(False, (c + 2) % 3), late)
        self.place(gaps2, self.tile_KV(True, (c + 1) % 3), late)
        lmf = {16 + 4 * ks + 3: f"{MF} {vt(LACC,16)}, {vt(ONES,4)}, {vt(P0+4*ks,4)}, {vt(LACC,16)}" for ks in range(4)}
        gaps = gaps1 + gaps2
        A.lds_q = [("k", i) for i in range(NA)]
        for i in range(32):
            if i % G == 0:
                tags = []
                for j in range(i, i + G): tags += mf[j][1]
                A.lds_wait(*tags)
            A(mf[i][0])
            if i % 16 == bp:
                if i < 16: self.istamp(VST+2, 0)
                A(f"s_waitcnt vmcnt({sel(n1) if i < 16 else sel(n2)})")
                A("s_barrier")
                self.istamp(VST+1, 0 if i < 16 else 1)
            for tx, tg in rd[i + NA]: A.lds(tx, tg)
            if i in lmf: A(lmf[i])
            for l in gaps[i]: A(l)

    def qpair_code(self, gaps, pi, readx, woff, first=False):
        A = self.A
        A.lds_reset()
        if readx:
            for s in range(4): A.lds(f"ds_read_b128 {XR(pi, s)}, {vXa[s]}", ("x", s))
        mf, rd = [], []
        for i in range(16):
            s, blk = i // 4, i % 4
            fr = AVF + 4 * (i % 8)
            d = vt(O0 + 16 * blk, 16) if readx else at(AACC + 16 * blk, 16)
            mf.append((f"{MF} {d}, {at(fr,4)}, {XR(pi, s)}, {'0' if first and s == 0 else d}", [("w", i), ("x", s)]))
            rd.append([(f"ds_read_b64_tr_b16 {at(fr,2)}, {vWa[blk]} offset:{woff + s*4096}", ("w", i)),
                       (f"ds_read_b64_tr_b16 {at(fr+2,2)}, {vWa[blk]} offset:{woff + s*4096+1024}", ("w", i))])
        self.interleave(mf, rd, 5 if readx else 6, None, gaps)
    def qfin(self, from_acc):
        A = self.A
        A(f"v_mov_b32 {vMx0}, {sC}"); A(f"v_mov_b32 {vMx1}, {sC}")
        A("s_nop 9")
        pair = f"v[{vMx0[1:]}:{vMx1[1:]}]"
        for s in range(8):
            t = P0 + 8 * (s % 2) if from_acc else O0 + 8 * s
            if from_acc:
                for j in range(8): A(f"v_accvgpr_read_b32 v{t+j}, a{AACC+8*s+j}")
            for j in range(4): A(f"v_pk_mul_f32 {vt(t+2*j,2)}, {vt(t+2*j,2)}, {pair}")
            for j in range(4): A(f"v_cvt_pk_bf16_f32 v{t+2*j}, v{t+2*j}, v{t+2*j+1}")
            for j in range(4): A(f"v_accvgpr_write_b32 a{AQ+4*s+j}, v{t+2*j}")
    def zero_acc(self): return [f"v_accvgpr_write_b32 a{AACC+i}, 0" for i in range(64)]
    def epilogue_sub(self):
        A = self.A
        A.label("L_epi")
        A("s_nop 9")
        A(f"v_rcp_f32 v{vInv}, v{LACC}")
        A(f"v_rcp_f32 v{vInv+1}, v{LACC}")
        A("s_nop 0")
        for ks in range(8):
            b = O0 + 8 * ks
            for j in range(4): A(f"v_pk_mul_f32 {vt(b+2*j,2)}, {vt(b+2*j,2)}, {vt(vInv,2)}")
            for j in range(4): A(f"v_cvt_pk_bf16_f32 v{b+j}, v{b+2*j}, v{b+2*j+1}")
            if ks % 2 == 0:
                A(f"buffer_store_dwordx4 {vt(b,4)}, {vL16}, {srd(SWS)}, {sOT} offen{self.stf}")
            else:
                A(f"buffer_store_dwordx4 {vt(b,4)}, {vL16}, {srd(SWS)}, {sOT} offen offset:2048{self.stf}")
                A(f"s_add_u32 {sOT}, {sOT}, 4096")
        A(f"s_setpc_b64 {sLink}")
    def make_srd(self, b, p, size):
        A = self.A
        A(f"s_mov_b32 s{b}, s{p}"); A(f"s_mov_b32 s{b+1}, s{p+1}")
        A(f"s_mov_b32 s{b+2}, 0x{size:x}"); A(f"s_mov_b32 s{b+3}, 0x20000")
    def one_lane(self, lines, wave0=False):
        A = self.A
        lab = A.newlabel("Lo")
        if wave0:
            A(f"s_cmp_eq_u32 {sW}, 0"); A(f"s_cbranch_scc0 {lab}")
        A("s_mov_b64 exec, 1")
        for l in lines: A(l)
        A("s_mov_b64 exec, -1")
        if wave0: A.label(lab)
    def opair_mfmas(self, RAf, RWf, p):
        out = []
        for ks in range(2):
            for nb in range(2):
                for qb in range(2):
                    d = at(AACC + 32 * nb + 16 * qb, 16)
                    out.append(f"{MF} {d}, {RWf(16*p+8*ks+4*nb,4)}, {RAf(16*p+8*ks+4*qb,4)}, {d}")
        return out

    def kernelA(self):
        A = self.A; F = self.fused
        A("s_cmp_ge_u32 s2, 256"); A("s_cbranch_scc1 L_end")
        if self.stamps: A("s_memrealtime s[98:99]")
        A("s_load_dwordx16 s[64:79], s[0:1], 0")
        self.stamp(0)
        A("v_lshrrev_b32 v1, 6, v0")
        A("v_and_b32 v2, 63, v0")
        A(f"v_readfirstlane_b32 {sW}, v1")
        A(f"v_lshlrev_b32 {vL16}, 4, v2")
        if self.pf:
            A(f"s_getpc_b64 s[{SCODE}:{SCODE+1}]")
            A.label("L_pc")
            A(f"s_mov_b32 s{SCODE+2}, L_codeend-L_pc"); A(f"s_mov_b32 s{SCODE+3}, 0x20000")
            A(f"s_lshr_b32 {sT0}, s2, 3"); A(f"s_lshl_b32 {sT0}, {sT0}, 2"); A(f"s_add_u32 {sT0}, {sT0}, {sW}")
            A(f"s_and_b32 {sT0}, {sT0}, 31"); A(f"s_lshl_b32 {sT0}, {sT0}, 10")
            A(f"buffer_load_dwordx4 v[128:131], {vL16}, {srd(SCODE)}, {sT0} offen")
            self.vm_issue(("CODE",), 1)
        else:
            A("s_nop 1")
        A(f"s_lshl_b32 {sW4K}, {sW}, 12")
        A("v_lshrrev_b32 v170, 4, v2"); A("v_and_b32 v171, 15, v2")
        A("v_lshl_add_u32 v172, v1, 4, v170")
        A("v_lshrrev_b32 v173, 3, v2"); A("v_lshl_add_u32 v173, v1, 5, v173")
        A("v_and_b32 v174, 7, v2"); A("v_xor_b32 v174, v174, v170"); A("v_lshlrev_b32 v174, 4, v174")
        A(f"v_lshl_add_u32 {vXd[0]}, v173, 10, v174")
        A(f"v_xor_b32 {vXd[1]}, 64, {vXd[0]}")
        A("v_lshlrev_b32 v175, 2, v170"); A("v_xor_b32 v175, v175, v171"); A("v_lshlrev_b32 v175, 4, v175")
        A(f"v_lshl_add_u32 {vWd}, v172, 13, v175")
        A(f"s_and_b32 {sBat}, s2, 1"); A(f"s_lshl_b32 {sBat}, {sBat}, 3")
        A(f"s_bfe_u32 {sT1}, s2, 0x30003"); A(f"s_add_u32 {sBat}, {sBat}, {sT1}")
        A(f"s_lshr_b32 {sT2}, s2, 6")
        if self.rot:
            A(f"s_lshl_b32 {sTi}, {sT2}, 1"); A(f"s_add_u32 {sTi}, {sTi}, {sT1}"); A(f"s_and_b32 {sTi}, {sTi}, 7")
        else:
            A(f"s_mov_b32 {sTi}, 0")
        A(f"s_bfe_u32 {sT1}, s2, 0x20001"); A(f"s_lshl_b32 {sT1}, {sT1}, 3")
        A(f"s_lshl_b32 {sT3}, {sT2}, 1"); A(f"s_add_u32 {sT3}, {sT3}, {sT1}")
        A(f"s_add_u32 {sT1}, {sT1}, {sT2}")
        A(f"s_lshl_b32 {sXb}, {sBat}, 17")
        A(f"s_lshl_b32 {sWb}, {sT3}, 8")
        A("s_waitcnt lgkmcnt(0)")
        self.make_srd(SX, 64, 2 << 20); self.make_srd(SWQ, 70, 4 << 20)
        XS = [LX, LX + T, LK + 2 * T]; WS_ = [LW, LW + T, LV + 2 * T]
        self.emit_groups(self.tile_XW(XS[0], WS_[0])); self.vm_issue(("P", 0), 8)
        self.stamp(1)
        A(f"s_lshl_b32 {sT2}, {sBat}, 5"); A(f"s_add_u32 {sT2}, {sT2}, {sT3}")
        A(f"s_lshl_b32 {sT2}, {sT2}, 18")
        A(f"s_add_u32 s66, s66, {sT2}"); A("s_addc_u32 s67, s67, 0"); A(f"s_add_u32 s68, s68, {sT2}"); A("s_addc_u32 s69, s69, 0")
        A(f"s_mov_b32 {sKoff}, 0"); A(f"s_mov_b32 {sVoff}, 0")
        A(f"s_lshl_b32 {sT0}, {sBat}, 1"); A(f"s_lshr_b32 {sT2}, {sW}, 1"); A(f"s_add_u32 {sT0}, {sT0}, {sT2}")
        A(f"s_lshl_b32 {sFlagP}, {sT0}, 2"); A(f"s_lshr_b32 {sT2}, {sT1}, 3"); A(f"s_add_u32 {sFlagP}, {sFlagP}, {sT2}")
        A(f"s_lshl_b32 {sFlagP}, {sFlagP}, 7"); A(f"s_and_b32 {sT2}, {sT1}, 3"); A(f"s_lshl_b32 {sT2}, {sT2}, 3")
        A(f"s_add_u32 {sFlagP}, {sFlagP}, {sT2}"); A(f"s_and_b32 {sT2}, {sW}, 1"); A(f"s_lshl_b32 {sT3}, {sT2}, 2")
        A(f"s_add_u32 {sFlagP}, {sFlagP}, {sT3}"); A(f"s_add_u32 {sFlagP}, {sFlagP}, {WS_FLAG}")
        A(f"s_lshl_b32 {sT0}, {sT0}, 5"); A(f"s_add_u32 {sT0}, {sT0}, {sT1}"); A(f"s_lshl_b32 {sT0}, {sT0}, 14")
        A(f"s_lshl_b32 {sT2}, {sT2}, 10"); A(f"s_add_u32 {sOT}, {sT0}, {sT2}")
        self.emit_groups(self.tile_XW(XS[1], WS_[1])); self.vm_issue(("P", 1), 8)
        A(f"s_mov_b32 {sC}, 0x{f2u(CSC):08x}")
        self.make_srd(SK, 66, 512 << 10); self.make_srd(SV, 68, 512 << 10)
        self.make_srd(SWO, 72, 4 << 20); self.make_srd(SWS, 78, WS_SIZE)
        if self.wsbase:
            A(f"s_add_u32 s{SWS}, s{SWS}, 0x{self.wsbase:x}"); A(f"s_addc_u32 s{SWS+1}, s{SWS+1}, 0")
        self.make_srd(SOUT, 74, 2 << 20); self.make_srd(SDBG, 76, 256)
        A(f"v_lshl_add_u32 {vVd}, v172, 8, v175")
        A(f"v_lshl_add_u32 {vWoD}, v172, 10, v175")
        A("v_xor_b32 v176, v171, v170"); A("v_lshlrev_b32 v176, 4, v176")
        A(f"v_lshl_add_u32 {vKd[0]}, v172, 8, v176")
        for i in range(1, 4): A(f"v_xor_b32 {vKd[i]}, {64*i}, {vKd[0]}")
        A("v_and_b32 v173, 31, v2"); A("v_lshrrev_b32 v174, 5, v2")
        A("v_xor_b32 v175, v174, v171"); A("v_lshlrev_b32 v175, 4, v175")
        A(f"v_lshl_add_u32 {vKa[0]}, v173, 8, v175")
        for s in range(1, 8): A(f"v_xor_b32 {vKa[s]}, {32*s}, {vKa[0]}")
        A("v_bfe_u32 v175, v2, 1, 3"); A("v_xor_b32 v175, v175, v174"); A("v_lshlrev_b32 v175, 4, v175")
        A("v_lshl_add_u32 v176, v1, 5, v173"); A("v_lshl_add_u32 v175, v176, 7, v175")
        A(f"v_add_u32 {vXa[0]}, {LX}, v175")
        for s in range(1, 4): A(f"v_xor_b32 {vXa[s]}, {32*s}, {vXa[0]}")
        A("v_bfe_u32 v175, v2, 2, 2"); A("v_and_b32 v176, 3, v2"); A("v_and_b32 v177, 1, v170")
        A("v_lshlrev_b32 v178, 6, v175")
        A("v_lshl_add_u32 v178, v177, 5, v178")
        A("v_lshl_add_u32 v179, v174, 2, v175")
        A("v_lshl_add_u32 v179, v179, 8, v178")
        A("v_lshl_add_u32 v180, v176, 3, v179")
        A(f"v_add_u32 {vVa[0]}, {LV}, v180")
        for b in range(1, 4): A(f"v_xor_b32 {vVa[b]}, {64*b}, {vVa[0]}")
        A("v_lshl_add_u32 v180, v174, 3, v175"); A("v_lshl_add_u32 v180, v180, 8, v178")
        A("v_and_b32 v181, 1, v176"); A("v_lshlrev_b32 v181, 1, v181"); A("v_lshrrev_b32 v182, 1, v176"); A("v_or_b32 v181, v181, v182")
        A("v_lshl_add_u32 v180, v181, 3, v180")
        A(f"v_add_u32 {vWa[0]}, {LW}, v180")
        for b in range(1, 4): A(f"v_xor_b32 {vWa[b]}, {64*b}, {vWa[0]}")
        WOSLOT = LX + 3 * T
        A("v_lshl_add_u32 v180, v174, 2, v175"); A("v_lshl_add_u32 v180, v1, 4, v180"); A("v_lshlrev_b32 v180, 8, v180")
        A("v_lshl_add_u32 v180, v175, 6, v180")
        A("v_and_b32 v181, 1, v176"); A("v_lshlrev_b32 v181, 2, v181"); A("v_lshl_add_u32 v181, v177, 1, v181"); A("v_add_u32 v181, v181, v182")
        A("v_lshl_add_u32 v180, v181, 3, v180")
        A(f"v_add_u32 {vTa[0]}, {WOSLOT}, v180")
        for b in range(1, 4): A(f"v_xor_b32 {vTa[b]}, {64*b}, {vTa[0]}")
        A(f"s_mov_b32 {sThr}, 0x{f2u(8.0):08x}")
        if self.sel:
            A("v_and_b32 v180, 27, v2"); A("v_cmp_eq_u32 vcc, 0, v180"); A("v_mov_b32 v180, 0x3f803f80"); A("s_nop 0")
            for k in range(4): A(f"v_cndmask_b32 v{ONES+k}, 0, v180, vcc")
        else:
            for k in range(4): A(f"v_mov_b32 v{ONES+k}, 0x3f803f80")
        for k in range(16): A(f"v_mov_b32 v{NEG+k}, 0")
        for k in range(16): A(f"v_mov_b32 v{LACC+k}, 0")
        if F:
            self.oproj_offsets(sAreal)
            A(f"v_mov_b32 {vZero}, 0"); A(f"v_mov_b32 {vOne}, 1")
            A(f"s_lshl_b32 {sFlagC}, {sB2}, 2"); A(f"s_add_u32 {sFlagC}, {sFlagC}, {sW}"); A(f"s_lshl_b32 {sFlagC}, {sFlagC}, 7")
            A(f"s_add_u32 {sFlagC}, {sFlagC}, {WS_FLAG}")
            A(f"s_lshr_b32 {sT0}, {sB2}, 1"); A(f"s_lshl_b32 {sT0}, {sT0}, 2")
            A("v_and_b32 v175, 1, v2"); A("v_cmp_eq_u32 vcc, 1, v175")
            A(f"v_mov_b32 v176, {sT0}"); A(f"v_mov_b32 v177, 128"); A(f"v_cndmask_b32 {vPoff}, v176, v177, vcc")
            A(f"v_mov_b32 v176, 16"); A(f"v_mov_b32 v177, 256"); A(f"v_cndmask_b32 {vPexp}, v176, v177, vcc")
            self.one_lane([f"buffer_store_dword {vZero}, {vZero}, {srd(SWS)}, {sFlagP} offen sc1"])
            self.vm_issue(("FZ",), 1)
        if "nost" in self.dbg: A(f"s_mov_b32 {sOT}, 0x{OOB:x}")
        k0i = [i for i, l in self.kvplan.items() if ("K", 0) in l][0]
        self.k0bar = k0i >= 5
        for i in range(8):
            A(f"s_waitcnt vmcnt({self.vm_need(('P', i))})")
            A("s_barrier")
            self.stamp(2 + i)
            groups = []
            if i <= 5: groups += self.tile_XW(XS[(i + 2) % 3], WS_[(i + 2) % 3]); self.vm_issue(("P", i + 2), 8)
            for kind, sl in self.kvplan.get(i, []):
                groups += self.tile_KV(kind == "K", sl); self.vm_issue((kind, sl), 4)
            gaps = [[] for _ in range(16)]
            n = len(groups)
            if n: self.place(gaps, groups, [k * 16 // n for k in range(n)] if n > 8 else [2 * k for k in range(n)])
            nx = XS[(i + 1) % 3] - XS[i % 3]; nw = WS_[(i + 1) % 3] - WS_[i % 3]
            if i == 7:
                nx = 0; nw = LX - WS_[7 % 3]
            upd = []
            if nx: upd += [f"v_add_u32 {r}, {nx}, {r}" for r in vXa]
            for k, l in enumerate(upd): gaps[4 + k].append(l)
            if nw:
                for k, r in enumerate(vWa): gaps[12 + k].append(f"v_add_u32 {r}, {nw}, {r}")
            if i == 7:
                g2 = self.spread(self.zero_acc(), 16)
                gaps = [a + b for a, b in zip(gaps, g2)]
            self.qpair_code(gaps, i, True, 0, first=(i == 0))
        A(f"s_add_u32 {sWb}, {sWb}, {256 if 'noqb' not in self.dbg else OOB}")
        self.qfin(False)
        self.stamp(10)
        if self.k0bar:
            A(f"s_waitcnt vmcnt({self.vm_need(('K', 0))})"); A("s_barrier")
        A.lds_reset()
        mf, rd = self.qk_lists(SA, 0)
        self.interleave(mf, rd, 6, None, self.spread([f"v_mov_b32 v{O0+k}, 0" for k in range(64)], 16))
        A(f"s_waitcnt vmcnt({self.vm_need(('K', 1))})")
        A("s_barrier")
        _, rdn = self.qk_lists(SB, 1)
        for i in range(self.nahead): A(rdn[i][0][0])
        self.emit_groups(self.tile_KV(True, 0)); self.vm_issue(("K", 3), 4)
        A(f"s_lshr_b32 {sT3}, s2, 2"); A(f"s_lshl_b32 {sT3}, {sT3}, 16")
        A(f"s_and_b32 {sT0}, s2, 3"); A(f"s_lshl_b32 {sT0}, {sT0}, 8"); A(f"s_add_u32 {sT3}, {sT3}, {sT0}")
        g = self.tile_strided([f"s_add_u32 m0, {sW4K}, {WOSLOT}"], [vWoD] * 4, SWO, sT3, 4096 - 1024)
        mx = self.max_ops(SA)
        for k in range(4):
            for l in g[k] + mx[4*k:4*k+4]: A(l)
        self.vm_issue(("WO",), 4)
        self.emit_groups(self.tile_W(LX, 0) + self.tile_W(LX + T, 1)); self.vm_issue(("E", 0), 4); self.vm_issue(("E", 1), 4)
        A(f"s_mov_b32 {sT}, -1")
        A(f"s_call_b64 {sRet}, L_init")
        n1, n2, n3 = self.simulate_loop()
        self.n = (n1, n2, n3)
        A.label("L_loop")
        for c in range(6):
            k0 = len(A.lines)
            self.body(c, n1, n2)
            keep = []
            for l in A.lines[k0:]:
                op = l.split()[0]
                if "xmf" in self.dbg and op.startswith("v_mfma"): continue
                if "xds" in self.dbg and (op.startswith("ds_") or l.startswith("s_waitcnt lgkm")): continue
                if "xva" in self.dbg and op.startswith("v_") and not op.startswith("v_mfma"): l = "s_nop 0" if keep and keep[-1].startswith("s_add_u32 m0") else None
                if l: keep.append(l)
            A.lines[k0:] = keep
            A(f"s_call_b64 {sRet}, L_common")
        A("s_branch L_loop")
        A(".p2align 3")
        A.label("L_common")
        self.istamp(VST+2, 1)
        xs = self.QT + [WO_T, 14, 15, 31]
        if F: xs += [PUB_T, WRDY_T]
        A(f"s_bitcmp1_b32 0x{sum(1 << t for t in set(xs)):08x}, {sT}"); A("s_cbranch_scc1 L_extras")
        A.label("L_check")
        A(f"v_cmp_lt_f32 vcc, {sThr}, {vMx0}")
        A("s_cbranch_vccz L_next")
        A(f"s_call_b64 {sLink2}, L_rare")
        A.label("L_next")
        A(f"s_add_u32 {sT}, {sT}, 1")
        A(f"s_setpc_b64 {sRet}")
        A.label("L_init")
        A(f"v_mov_b32 {vMx1}, {vMx0}"); A(f"s_mov_b32 {sFloor}, 0x{f2u(-1e30):08x}"); A("s_nop 0")
        A(f"v_permlane32_swap_b32 {vMx0}, {vMx1}")
        A(f"v_max3_f32 {vMx0}, {vMx0}, {vMx1}, {sFloor}")
        for i in range(16): A(f"v_sub_f32 v{NEG+i}, 0, {vMx0}")
        for i in range(32): A(f"v_sub_f32 v{SA+i}, v{SA+i}, {vMx0}")
        A("s_branch L_next")
        A.label("L_rare")
        A(f"v_mov_b32 {vMx1}, {vMx0}"); A("s_nop 1")
        A(f"v_permlane32_swap_b32 {vMx0}, {vMx1}")
        A(f"v_max3_f32 {vMx0}, {vMx0}, {vMx1}, 0")
        A(f"v_exp_f32 {vMx1}, -{vMx0}")
        for i in range(16): A(f"v_sub_f32 v{NEG+i}, v{NEG+i}, {vMx0}")
        A(f"v_mul_f32 v{LACC}, {vMx1}, v{LACC}")
        for i in range(64): A(f"v_mul_f32 v{O0+i}, {vMx1}, v{O0+i}")
        A(f"s_bitcmp1_b32 {sT}, 0"); A("s_cbranch_scc1 L_rare_a")
        for i in range(32): A(f"v_sub_f32 v{SB+i}, v{SB+i}, {vMx0}")
        A(f"s_setpc_b64 {sLink2}")
        A.label("L_rare_a")
        for i in range(32): A(f"v_sub_f32 v{SA+i}, v{SA+i}, {vMx0}")
        A(f"s_setpc_b64 {sLink2}")
        A.label("L_extras")
        A(f"s_cmp_lt_u32 {sT}, 14"); A("s_cbranch_scc1 L_xlow")
        A(f"s_cmp_eq_u32 {sT}, 31"); A("s_cbranch_scc1 L_tail")
        A(f"s_cmp_eq_u32 {sT}, 15"); A("s_cbranch_scc1 L_x15")
        A(f"s_cmp_eq_u32 {sT}, 14"); A("s_cbranch_scc1 L_x14")
        if F:
            A(f"s_waitcnt vmcnt({n3[PUB_T]})")
            A("s_barrier")
            A(f"s_lshl_b32 {sT0}, {sBat}, 2")
            self.one_lane([f"buffer_atomic_add {vOne}, {vZero}, {srd(SDBG)}, {sT0} offen sc1"], wave0=True)
        A("s_branch L_check")
        if F:
            A.label("L_xwrdy")
            A(f"s_waitcnt vmcnt({n3[WRDY_T]})"); A("s_barrier")
            self.one_lane([f"buffer_atomic_add {vOne}, {vZero}, {srd(SDBG)}, 0 offen offset:128 sc1"], wave0=True)
            A("s_branch L_check")
        A.label("L_xlow")
        A(f"s_cmp_gt_u32 {sT}, {self.QT[3]}"); A("s_cbranch_scc1 L_xqhi")
        for i in range(4):
            A(f"s_cmp_eq_u32 {sT}, {self.QT[i]}"); A(f"s_cbranch_scc1 L_xq{i}")
        if F: A(f"s_cmp_eq_u32 {sT}, {WRDY_T}"); A("s_cbranch_scc1 L_xwrdy")
        A.lds_reset()
        A("s_waitcnt lgkmcnt(0)")
        A(f"s_waitcnt vmcnt({n3[WO_T]})")
        for b in range(4):
            A.lds(f"ds_read_b64_tr_b16 {at(AVF+4*b,2)}, {vTa[b]}", b)
            A.lds(f"ds_read_b64_tr_b16 {at(AVF+4*b+2,2)}, {vTa[b]} offset:2048", b)
        A(f"s_and_b32 {sT0}, s2, 3"); A(f"s_lshl_b32 {sT0}, {sT0}, 20")
        A(f"s_lshr_b32 {sT1}, s2, 6"); A(f"s_lshl_b32 {sT1}, {sT1}, 3"); A(f"s_bfe_u32 {sT2}, s2, 0x10003"); A(f"s_lshl_b32 {sT2}, {sT2}, 2")
        A(f"s_add_u32 {sT1}, {sT1}, {sT2}"); A(f"s_bfe_u32 {sT2}, s2, 0x20004"); A(f"s_add_u32 {sT1}, {sT1}, {sT2}")
        A(f"s_lshl_b32 {sT1}, {sT1}, 3"); A(f"s_and_b32 {sT2}, s2, 4"); A(f"s_add_u32 {sT1}, {sT1}, {sT2}"); A(f"s_add_u32 {sT1}, {sT1}, {sW}")
        A(f"s_lshl_b32 {sT1}, {sT1}, 11"); A(f"s_add_u32 {sT0}, {sT0}, {sT1}")
        A(f"s_add_u32 {sT0}, {sT0}, {WS_WT if 'nost' not in self.dbg else OOB}"); A(f"s_add_u32 {sT1}, {sT0}, 524288")
        for b in range(4):
            A.lds_wait(b)
            A(f"buffer_store_dwordx4 {at(AVF+4*b,4)}, {vL16}, {srd(SWS)}, {sT0 if b < 2 else sT1} offen offset:{(b%2)*1024}{self.stf}")
        A("s_nop 1")
        A("s_branch L_check")
        for i in (0, 1, 2, 3, 7, 6, 5, 4):
            if i == 7:
                A.label("L_xqhi")
                for k in (4, 5, 6):
                    A(f"s_cmp_eq_u32 {sT}, {self.QT[k]}"); A(f"s_cbranch_scc1 L_xq{k}")
            A.label(f"L_xq{i}")
            A("s_waitcnt lgkmcnt(0)")
            gaps = [[] for _ in range(16)]
            if i < 6: self.place(gaps, self.tile_W(LX + ((i + 2) % 4) * T, i + 2), [1, 5, 9, 13])
            self.qpair_code(gaps, i, False, (i % 4) * T)
            A("s_branch L_check")
        A.label("L_x14")
        A(f"v_cmp_lt_f32 vcc, {sThr}, {vMx0}")
        A("s_cbranch_vccz L_x14b")
        A(f"s_call_b64 {sLink2}, L_rare")
        A.label("L_x14b")
        self.qfin(True)
        for k in range(16): A(f"v_mov_b32 v{NEG+k}, 0")
        if F:
            for l in self.zero_acc(): A(l)
        A("s_branch L_next")
        A.label("L_x15")
        A(f"s_call_b64 {sLink}, L_epi")
        A(f"s_add_u32 {sOT}, {sOT}, {4*16384 - 16384}")
        for i in range(64): A(f"v_mov_b32 v{O0+i}, 0")
        A(f"v_mov_b32 v{LACC}, 0")
        self.stamp(11)
        A("s_branch L_init")
        A.label("L_tail")
        A("s_waitcnt lgkmcnt(0)")
        self.stamp(12)
        if F: A(f"buffer_load_dword {vPoll}, {vPoff}, {srd(SDBG)}, 0 offen sc1")
        A(f"s_call_b64 {sLink}, L_epi")
        self.stamp(13)
        if F: self.tail()
        self.dump_stamps()
        A.label("L_end")
        A("s_endpgm")
        self.epilogue_sub()
        A.label("L_codeend")

    def spin(self, name, cmp_line, load_line, sleep):
        A = self.A
        A(f"s_mov_b32 {sSpin}, 0x40000")
        A.label(name)
        A(cmp_line)
        A(f"s_cbranch_vccz {name}_ok")
        A(f"s_sub_u32 {sSpin}, {sSpin}, 1"); A(f"s_cbranch_scc1 {name}_ok")
        if sleep: A(f"s_sleep {sleep}")
        A(load_line)
        A("s_waitcnt vmcnt(0)")
        A(f"s_branch {name}")
        A.label(name + "_ok")
    def tail(self):
        A = self.A
        A("s_waitcnt vmcnt(8)")
        self.spin("L_c1", f"v_cmp_lt_u32 vcc, {vPoll}, {vPexp}", f"buffer_load_dword {vPoll}, {vPoff}, {srd(SDBG)}, 0 offen sc1", 2)
        A(f"s_mov_b32 {sAoff}, {sAreal}")
        A("v_and_b32 v8, 7, v2"); A("v_lshlrev_b32 v8, 2, v8")
        pollB = f"buffer_load_dword {vPoll}, v8, {srd(SWS)}, {sFlagC} offen sc1"
        def loads(p):
            if p >= 32: return [[]] * 8
            R = SET(p % 4)
            ls = [self.aload(R, j, sAoff) for j in range(4)] + [self.aload(R, j, sWToff) for j in range(4, 8)]
            ls[7] = ls[7] + [f"s_add_u32 {sAoff}, {sAoff}, 4096", f"s_add_u32 {sWToff}, {sWToff}, 4096"]
            return ls
        self.emit_groups(loads(0))
        A("s_waitcnt vmcnt(8)")
        self.one_lane([f"buffer_store_dword {vOne}, {vZero}, {srd(SWS)}, {sFlagP} offen sc1"])
        self.stamp(14)
        for p in range(1, 3): self.emit_groups(loads(p))
        for p in range(32):
            left = min(31, p + 2) - p
            extra = 1 if p == 12 else 0
            A(f"s_waitcnt vmcnt({8*left + extra})")
            if p == 13:
                self.stamp(15)
                A("s_waitcnt vmcnt(8)")
                self.spin("L_c2", f"v_cmp_ne_u32 vcc, 1, {vPoll}", pollB, 0)
                self.stamp(18)
            R = SET(p % 4)
            ls = loads(p + 3)
            for k, m in enumerate(self.opair_mfmas(R, lambda j, n: R(16 + j, n), 0)):
                A(m)
                for l in ls[k]: A(l)
            if p == 11: A(pollB)
        self.stamp(16)
        self.reduce_store()

    def dump_stamps(self):
        if not self.stamps: return
        A = self.A
        A("s_waitcnt vmcnt(0)")
        self.stamp(17)
        A("s_memrealtime s[100:101]")
        A("s_getreg_b32 s3, hwreg(HW_REG_XCC_ID)")
        A("s_waitcnt lgkmcnt(0)")
        A(f"v_writelane_b32 v{VST}, s98, 61"); A(f"v_writelane_b32 v{VST}, s100, 62"); A(f"v_writelane_b32 v{VST}, s3, 63")
        A(f"s_lshl_b32 {sT1}, s2, 2"); A(f"s_add_u32 {sT1}, {sT1}, {sW}"); A(f"s_mul_i32 {sT1}, {sT1}, 768")
        A(f"s_add_u32 {sT1}, {sT1}, {WS_STAMP}")
        A(f"v_lshrrev_b32 v3, 2, {vL16}")
        A(f"buffer_store_dword v{VST}, v3, {srd(SWS)}, {sT1} offen")
        A(f"buffer_store_dword v{VST+1}, v3, {srd(SWS)}, {sT1} offen offset:256")
        A(f"buffer_store_dword v{VST+2}, v3, {srd(SWS)}, {sT1} offen offset:512")

    def kernelB(self):
        A = self.A
        A("s_cmp_ge_u32 s2, 256"); A("s_cbranch_scc1 LB_end")
        A("s_load_dwordx16 s[64:79], s[0:1], 0")
        A("v_lshrrev_b32 v1, 6, v0"); A("v_and_b32 v2, 63, v0")
        A(f"v_readfirstlane_b32 {sW}, v1")
        A(f"v_lshlrev_b32 {vL16}, 4, v2")
        A("s_nop 1")
        self.oproj_offsets(sAoff)
        A("s_waitcnt lgkmcnt(0)")
        self.make_srd(SWS, 78, WS_SIZE); self.make_srd(SOUT, 74, 2 << 20)
        NS = 4
        def setregs(k):
            k %= NS
            return lambda j, n: vt(64 + 32 * k + j, n)
        def load(p):
            R = setregs(p)
            ls = [[f"buffer_load_dwordx4 {R(4*i,4)}, {vL16}, {srd(SWS)}, {sAoff} offen offset:{i*1024}"] for i in range(4)]
            ls += [[f"buffer_load_dwordx4 {R(16+4*i,4)}, {vL16}, {srd(SWS)}, {sWToff} offen offset:{i*1024}"] for i in range(4)]
            ls[7] += [f"s_add_u32 {sAoff}, {sAoff}, 4096", f"s_add_u32 {sWToff}, {sWToff}, 4096"]
            return ls
        NP = 32
        for p in range(NS - 1): self.emit_groups(load(p))
        for l in self.zero_acc(): A(l)
        for p in range(NP):
            left = min(NP - 1, p + NS - 2) - p
            A(f"s_waitcnt vmcnt({8*left})")
            R = setregs(p)
            ls = load(p + NS - 1) if p + NS - 1 < NP else [[]] * 8
            for k, m in enumerate(self.opair_mfmas(R, lambda j, n: R(16 + j, n), 0)):
                A(m)
                for l in ls[k]: A(l)
        self.reduce_store()
        A.label("LB_end")
        A("s_endpgm")
    def oproj_offsets(self, sA):
        A = self.A
        A(f"s_and_b32 {sT0}, s2, 7"); A(f"s_lshl_b32 {sT0}, {sT0}, 2"); A(f"s_lshr_b32 {sT1}, s2, 6")
        A(f"s_add_u32 {sB2}, {sT0}, {sT1}")
        A(f"s_lshl_b32 {sT0}, {sB2}, 19"); A(f"s_lshl_b32 {sT1}, {sW}, 17"); A(f"s_add_u32 {sA}, {sT0}, {sT1}")
        A(f"s_bfe_u32 {sT0}, s2, 0x30003"); A(f"s_lshl_b32 {sT0}, {sT0}, 19")
        A(f"s_add_u32 {sT0}, {sT0}, {sT1}"); A(f"s_add_u32 {sWToff}, {sT0}, {WS_WT}")
    def reduce_store(self):
        A = self.A
        A(f"v_lshl_add_u32 v3, v1, 14, {vL16}")
        A(f"v_lshl_add_u32 v4, v1, 12, {vL16}")
        A("v_and_b32 v5, 31, v2"); A("v_lshrrev_b32 v6, 5, v2"); A("v_lshlrev_b32 v5, 10, v5"); A("v_lshl_add_u32 v5, v6, 5, v5")
        A(f"s_lshl_b32 {sT0}, {sB2}, 16"); A(f"s_and_b32 {sT1}, {sW}, 1"); A(f"s_lshl_b32 {sT1}, {sT1}, 15"); A(f"s_add_u32 {sT0}, {sT0}, {sT1}")
        A(f"s_bfe_u32 {sT1}, s2, 0x30003"); A(f"s_lshl_b32 {sT1}, {sT1}, 7"); A(f"s_add_u32 {sT0}, {sT0}, {sT1}")
        A(f"s_lshr_b32 {sT1}, {sW}, 1"); A(f"s_lshl_b32 {sT1}, {sT1}, 6"); A(f"s_add_u32 {sT0}, {sT0}, {sT1}")
        A("s_barrier")
        for blk in range(4):
            for q in range(4):
                A(f"ds_write_b128 v3, {at(AACC+16*blk+4*q,4)} offset:{blk*4096+q*1024}")
                if (blk * 4 + q) % 8 == 7: A("s_waitcnt lgkmcnt(0)")
        A("s_barrier")
        for src in range(4):
            for q in range(4):
                A(f"ds_read_b128 {vt(64+16*src+4*q,4)}, v4 offset:{src*16384+q*1024}")
            if src % 2 == 1: A("s_waitcnt lgkmcnt(0)")
        for i in range(16): A(f"v_add_f32 v{64+i}, v{64+i}, v{80+i}")
        for i in range(16): A(f"v_add_f32 v{96+i}, v{96+i}, v{112+i}")
        for i in range(16): A(f"v_add_f32 v{64+i}, v{64+i}, v{96+i}")
        for j in range(8): A(f"v_cvt_pk_bf16_f32 v{80+j}, v{64+2*j}, v{64+2*j+1}")
        A(f"buffer_store_dwordx4 {vt(80,4)}, v5, {srd(SOUT)}, {sT0} offen{self.outf}")
        A(f"buffer_store_dwordx4 {vt(84,4)}, v5, {srd(SOUT)}, {sT0} offen offset:16{self.outf}")

HDR = open("standalone__mha_block_cached__near_ridge.s.ref").read().split("; Override")[0]
def desc(name):
    return f""".amdhsa_kernel {name}
  .amdhsa_next_free_vgpr 512
  .amdhsa_next_free_sgpr 102
  .amdhsa_accum_offset 256
  .amdhsa_group_segment_fixed_size 0
  .amdhsa_kernarg_size 64
  .amdhsa_user_sgpr_count 2
  .amdhsa_user_sgpr_kernarg_segment_ptr 1
  .amdhsa_system_sgpr_workgroup_id_x 1
.end_amdhsa_kernel
"""
def build(path, align=True, verbose=False, **kw):
    g = Gen(**kw); g.kernelA()
    la = align8(g.A.lines) if align else g.A.lines
    bad = check_hazards(la)
    s = HDR
    if g.fused:
        s += f"; @launch grid=(256,1,1) block=(256,1,1) lds=163840\n"
    else:
        gb = Gen(**kw); gb.kernelB()
        lb = align8(gb.A.lines) if align else gb.A.lines
        bad += check_hazards(lb)
        s += f"; @launch kernel={KN} grid=(256,1,1) block=(256,1,1) lds=163840\n"
        s += f"; @launch kernel=oproj_kernel grid=(256,1,1) block=(256,1,1) lds=65536\n"
    print(path, "hazards:", bad)
    if verbose: print(g.n)
    s += '.amdgcn_target "amdgcn-amd-amdhsa--gfx950"\n.text\n'
    s += f".globl {KN}\n.p2align 8\n.type {KN},@function\n{KN}:\n" + "\n".join(la) + "\n"
    if not g.fused:
        s += f".globl oproj_kernel\n.p2align 8\n.type oproj_kernel,@function\noproj_kernel:\n" + "\n".join(lb) + "\n"
    s += '.section .rodata,"a"\n.p2align 6\n' + desc(KN)
    if not g.fused: s += ".p2align 6\n" + desc("oproj_kernel")
    open(path, "w").write(s)
if __name__ == "__main__":
    build("v7.s", verbose=True)
    build("v7_c.s", stamps=True, fine=False)
    build("v7_nosel_c.s", stamps=True, fine=False, sel=False)
    build("v7_q2_c.s", stamps=True, fine=False, qt=[1, 3, 6, 7, 9, 10, 12, 13])
```

```python
import sys, math, struct, itertools
sys.path.insert(0, "work")
from asmlib import Asm, check_hazards, align8

KN = "standalone__mha_block_cached__near_ridge_kernel"
def f2u(x): return struct.unpack("<I", struct.pack("<f", x))[0]
CSC = math.log2(math.e) / math.sqrt(128.0)
T = 16384
LK, LV = 0, 3 * T
WS_FLAG = 16 << 20
WS_STAMP = 21 << 20
WS_SIZE = 22 << 20
SK, SV, SX, SWQ, SWO, SWS, SOUT, SDBG = 4, 8, 12, 16, 20, 24, 28, 32
def srd(b): return f"s[{b}:{b+3}]"
sW, sW4K, sKoff, sVoff, sW2K, sWP, sThr, sT, sC, sQw, sFloor, sQa = [f"s{i}" for i in range(36, 48)]
sXoff, sWoff, sOT, sT0, sT1, sT2 = [f"s{i}" for i in range(48, 54)]
sLink = "s[54:55]"; sRet = "s[92:93]"; sLink2 = "s[94:95]"
sAoff, sWToff, sB2, sT3 = [f"s{i}" for i in range(56, 60)]
sTi, sXb, sWb, sAreal, sFlagP, sFlagC, sBat, sSpin = [f"s{i}" for i in range(80, 88)]
SCODE = 88
vWs = ["v3", "v4", "v5", "v6"]; vWr = "v7"
vInv = 8
vPoll = "v12"; vPoff = "v13"; vZero = "v14"; vOne = "v15"
vKa = [f"v{i}" for i in range(16, 20)]
vVa = [f"v{i}" for i in range(20, 28)]
vKd = [f"v{i}" for i in range(28, 32)]
vVd = ["v32", "v33"]; vMx = ["v34", "v35"]; vMc = "v36"; vTm = "v37"; vF = ["v38", "v39"]; vL16 = "v40"
VST = 41
ONES, LACC, NEG = 44, 48, 56
O0, SA, SB, P0, HELD = 64, 128, 160, 192, 208
vWa = [f"v{i}" for i in range(160, 168)]; vXa = "v168"; vXd = ["v169", "v170"]; vWd = [f"v{i}" for i in range(171, 175)]
def tmp(i): return f"v{176 + i}"
AQ, AACC, AKF, AVF, AFREE = 0, 32, 96, 128, 160
def vt(b, n): return f"v[{b}:{b+n-1}]"
def at(b, n): return f"a[{b}:{b+n-1}]"
MF = "v_mfma_f32_16x16x32_bf16"
PUB_T = 2

class Gen:
    def __init__(self, stamps=False, nt=" nt", split=24, wgrp=2, nahead=6, latepos=(20, 24, 28, 31), stf=" sc1", ldf=" sc1",
                 kvpos=(0, 2, 5, 8), dbg=(), rotO=False, rot=2, aahead=4, wof="", oa_t=29, warm=True, epark=True, lpark=True, nreg=7, lim=12):
        self.A = Asm(); self.vm = []
        self.__dict__.update({k: v for k, v in locals().items() if k != "self"})
        self.latepos = list(latepos)
    def vm_issue(self, tag, n): self.vm += [tag] * n
    def vm_need(self, *tags):
        idx = max(i for i, q in enumerate(self.vm) if q in tags)
        return min(63, len(self.vm) - 1 - idx)
    def stamp(self, k):
        if self.stamps:
            self.A("s_memtime s[96:97]"); self.A("s_waitcnt lgkmcnt(0)"); self.A(f"v_writelane_b32 v{VST}, s96, {k}")
    def istamp(self):
        if not self.stamps: return
        A = self.A
        A("s_memtime s[96:97]"); A("s_memrealtime s[100:101]"); A(f"s_add_u32 m0, {sT}, 32"); A("s_waitcnt lgkmcnt(0)")
        A(f"v_writelane_b32 v{VST+2}, s96, m0"); A(f"v_writelane_b32 v{VST+1}, s100, m0")
    def dma(self, voff, srdb, soff, imm, flags=""):
        return f"buffer_load_dwordx4 {voff}, {srd(srdb)}, {soff} offen offset:{imm}{flags} lds"
    def tile_KV(self, isK, slot):
        off, base, voffs, srdb = (sKoff, LK, vKd, SK) if isK else (sVoff, LV, vVd * 2, SV)
        g = [[self.dma(voffs[i], srdb, off, i * 1024, self.nt)] for i in range(4)]
        g[0] = [f"s_add_u32 m0, {sW4K}, {base + slot*T}", "@M0"] + g[0]
        g[3] = g[3] + [f"s_add_u32 {off}, {off}, {T}"]
        return g
    def tile_XW(self, xbase, wbase):
        return [[f"s_lshl_b32 {sXoff}, {sTi}, 6", f"s_add_u32 m0, {sW2K}, {xbase}", f"s_add_u32 {sXoff}, {sXoff}, {sXb}", self.dma(vXd[0], SX, sXoff, 0)],
                [f"s_lshl_b32 {sWoff}, {sTi}, 18", self.dma(vXd[1], SX, sXoff, 1024)],
                [f"s_add_u32 m0, {sW4K}, {wbase}", f"s_add_u32 {sWoff}, {sWoff}, {sWb}", self.dma(vWd[0], SWQ, sWoff, 0)],
                [f"s_add_u32 {sTi}, {sTi}, 1", self.dma(vWd[1], SWQ, sWoff, 1024)],
                [f"s_and_b32 {sTi}, {sTi}, 15", self.dma(vWd[2], SWQ, sWoff, 2048)],
                [self.dma(vWd[3], SWQ, sWoff, 3072)]]
    def tile_Wo(self, slot):
        g = [[self.dma(vWs[i], SWO, sWToff, i * 1024, self.wof)] for i in range(4)]
        g[0] = [f"s_lshl_b32 {sWToff}, {sQw}, 15", f"s_add_u32 m0, {sW4K}, {slot * T}", f"s_add_u32 {sWToff}, {sWToff}, {sWP}"] + g[0]
        g[1] = [f"s_add_u32 {sQw}, {sQw}, 1"] + g[1]
        g[2] = [f"s_and_b32 {sQw}, {sQw}, 31"] + g[2]
        return g
    def emit_groups(self, groups):
        for g in groups:
            for l in g: self.A("s_nop 0" if l == "@M0" else l)
    @staticmethod
    def cost(l):
        if l.startswith("v_exp"): return 8
        if l.startswith("buffer_"): return 16
        return 4
    def spread(self, fill, gaps, lo, hi, base):
        tot = sum(self.cost(l) for l in fill) + sum(base[lo:hi])
        per = tot / (hi - lo); g = lo; acc = 0.0
        k = 0
        for g in range(lo, hi):
            acc += base[g]; tgt = per * (g - lo + 1)
            while k < len(fill) and (acc + self.cost(fill[k]) / 2 <= tgt or g == hi - 1):
                gaps[g].append(fill[k]); acc += self.cost(fill[k]); base[g] += self.cost(fill[k]); k += 1
    def exp_ops(self, S, lo, hi):
        ops = []
        ex = lambda i: f"v_exp_f32 v{S+i}, v{S+i}"
        def cvt(i):
            kb, qb, r = i // 8, (i // 4) % 2, i % 4
            return f"v_cvt_pk_bf16_f32 v{P0 + 8*(kb//2) + 4*qb + 2*(kb%2) + r//2}, v{S+i}, v{S+i+1}"
        prs = list(range(lo, hi, 2))
        for k, i in enumerate(prs):
            ops += [ex(i), ex(i + 1)]
            if k > 0: ops += [cvt(prs[k-1])]
        ops += ["s_nop 0", cvt(prs[-1])]
        return ops
    def max_ops(self, S):
        ops = []
        for qb in range(2):
            r = [S + 8 * kb + 4 * qb + j for kb in range(4) for j in range(4)]
            o = [f"v_max3_f32 {vMx[qb]}, v{r[0]}, v{r[1]}, v{r[2]}"]
            for i in range(3, 15, 2): o.append(f"v_max3_f32 {vMx[qb]}, {vMx[qb]}, v{r[i]}, v{r[i+1]}")
            o.append(f"v_max_f32 {vMx[qb]}, {vMx[qb]}, v{r[15]}")
            ops.append(o)
        out = [x for pr in zip(*ops) for x in pr]
        out.append(f"v_max_f32 {vMc}, {vMx[0]}, {vMx[1]}")
        return out
    def qk_units(self, Sn, slot, tag="k"):
        un = []
        for i in range(16):
            kb, s = i // 4, i % 4
            fr = AKF + 4 * (i % 8)
            ms = [f"{MF} {vt(Sn+8*kb+4*qb,4)}, {at(fr,4)}, {at(AQ+16*qb+4*s,4)}, {vt(NEG+4*qb,4) if s == 0 else vt(Sn+8*kb+4*qb,4)}" for qb in range(2)]
            un.append((ms, [(tag, i)], [(f"ds_read_b128 {at(fr,4)}, {vKa[s]} offset:{slot*T + kb*4096}", (tag, i))]))
        return un
    def pv_units(self, slot):
        un = []
        for i in range(16):
            u, db = i // 8, i % 8
            fr = AVF + 4 * (i % 8)
            ms = [f"{MF} {vt(O0+8*db+4*qb,4)}, {at(fr,4)}, {vt(P0+8*u+4*qb,4)}, {vt(O0+8*db+4*qb,4)}" for qb in range(2)]
            un.append((ms, [("v", i)], [(f"ds_read_b64_tr_b16 {at(fr,2)}, {vVa[db]} offset:{slot*T + u*8192}", ("v", i)),
                                          (f"ds_read_b64_tr_b16 {at(fr+2,2)}, {vVa[db]} offset:{slot*T + u*8192 + 4096}", ("v", i))]))
        return un
    def stream(self, units, nun, NA, G, gaps, mid, extra=None):
        A = self.A
        for i in range(nun):
            if i % G == 0: A.lds_wait(*sum((units[j][1] for j in range(i, min(nun, i + G))), []))
            rds = units[i + NA][2] if i + NA < len(units) else []
            A(units[i][0][0])
            mid(i)
            if rds: A.lds(*rds[0])
            for l in gaps[2 * i]: A(l)
            A(units[i][0][1])
            for r in rds[1:]: A.lds(*r)
            for l in gaps[2 * i + 1]: A(l)
            if extra and i in extra: A(extra[i])
    def place(self, gaps, base, groups, positions):
        for g, p in zip(groups, positions):
            if "@M0" in g:
                k = g.index("@M0"); gaps[p - 1] = gaps[p - 1] + g[:k]; base[p - 1] += 4 * k; g = g[k + 1:]
            gaps[p] = gaps[p] + g; base[p] += sum(self.cost(l) for l in g)
    def simulate_loop(self):
        n1, n2, n3 = {}, {}, {}
        for t in range(32):
            n1[t] = self.vm_need(("V", t))
            self.vm_issue(("V", t + 2), 4)
            n2[t] = self.vm_need(("K", t + 2)) if t < 30 else 63
            self.vm_issue(("K", t + 4), 4)
            if t == PUB_T: n3[t] = self.vm_need(("FZ",))
        return n1, n2, n3
    def aload(self, R, j, soff):
        return [f"buffer_load_dwordx4 {R(4*j,4)}, {vL16}, {srd(SWS)}, {soff} offen offset:{(j%4)*1024}{self.ldf}"]
    def body(self, c, n1, n2):
        A = self.A
        par = c % 2; NA = self.nahead; G = self.wgrp
        S, Sn = (SA, SB) if par == 0 else (SB, SA)
        sel = lambda d: min(v for t, v in d.items() if t % 6 == c)
        units = self.qk_units(Sn, (c + 1) % 3) + self.pv_units(c % 3) + self.qk_units(S, (c + 2) % 3, "kn")[:NA]
        bp = 16 - NA
        gaps = [[] for _ in range(64)]; base = [0] * 64
        for i in range(32):
            nr = len(units[i + NA][2])
            base[2 * i] += 4; base[2 * i + 1] += 4 * (nr - 1)
            if (i + 1) % G == 0: base[2 * i + 1] += 4
            if i % 16 == bp: base[2 * i] += 12
        self.place(gaps, base, self.tile_KV(False, (c + 2) % 3), [p + 1 for p in self.latepos[:3]] + [31])
        self.place(gaps, base, self.tile_KV(True, (c + 1) % 3), [32 + p + 1 for p in self.latepos[:3]] + [63])
        self.spread(self.exp_ops(S, 0, self.split), gaps, 0, 32, base)
        self.spread(self.exp_ops(S, self.split, 32), gaps, 32, 32 + self.lim, base)
        self.spread(self.max_ops(Sn), gaps, 32 + self.lim, 64, base)
        lm = lambda u, qb: f"{MF} {vt(LACC+4*qb,4)}, {vt(ONES,4)}, {vt(P0+8*u+4*qb,4)}, {vt(LACC+4*qb,4)}"
        extra = {16 + 3: lm(0, 0), 16 + 7: lm(0, 1), 16 + 11: lm(1, 0), 16 + 15: lm(1, 1)}
        def mid(i):
            if i % 16 == bp:
                A(f"s_waitcnt vmcnt({sel(n1) if i < 16 else sel(n2)})"); A("s_barrier")
        A.lds_q = [("k", i) for i in range(NA)]
        self.stream(units, 32, NA, G, gaps, mid, extra)
    def widen(self, a, b):
        return [[f"v_permlane32_swap_b32 v{a}, v{b}", f"v_permlane32_swap_b32 v{a+1}, v{b+1}"],
                [f"v_permlane16_swap_b32 v{a}, v{b}", f"v_permlane16_swap_b32 v{a+1}, v{b+1}"]]
    def qfin_ops(self, from_acc):
        pair = vt(int(vF[0][1:]), 2); out = []
        for s in range(4):
            t = P0 if from_acc else O0 + 16 * s
            if from_acc: out += [f"v_accvgpr_read_b32 v{t+j}, a{AACC+16*s+j}" for j in range(16)]
            out += [f"v_pk_mul_f32 {vt(t+2*j,2)}, {vt(t+2*j,2)}, {pair}" for j in range(8)]
            for q4 in range(4): out += [f"v_cvt_pk_bf16_f32 v{t+4*q4+j}, v{t+4*q4+2*j}, v{t+4*q4+2*j+1}" for j in range(2)]
            w0, w1 = self.widen(t, t + 8), self.widen(t + 4, t + 12)
            out += ["s_nop 0"] + w0[0] + w1[0] + w0[1] + w1[1]
            for qb in range(2):
                for j, r in enumerate((t + 4*qb, t + 4*qb + 1, t + 8 + 4*qb, t + 8 + 4*qb + 1)):
                    out.append(f"v_accvgpr_write_b32 a{AQ+16*qb+4*s+j}, v{r}")
        return out
    def zero_acc(self): return [f"v_accvgpr_write_b32 a{AACC+i}, 0" for i in range(64)]
    def epilogue(self, hold):
        A = self.A
        A("s_nop 4")
        for qb in range(2):
            A(f"v_rcp_f32 v{vInv+2*qb}, v{LACC+4*qb}"); A(f"v_rcp_f32 v{vInv+2*qb+1}, v{LACC+4*qb}")
        A("s_nop 0")
        for v in range(4):
            for qb in range(2):
                src = [O0 + 16*v + 4*qb, O0 + 16*v + 8 + 4*qb]
                dst = HELD + 8*v + 4*qb if hold else SA + 8*v + 4*qb
                for b in src:
                    for j in range(2): A(f"v_pk_mul_f32 {vt(b+2*j,2)}, {vt(b+2*j,2)}, {vt(vInv+2*qb,2)}")
                for k, b in enumerate(src):
                    for j in range(2): A(f"v_cvt_pk_bf16_f32 v{dst+2*k+j}, v{b+2*j}, v{b+2*j+1}")
                if not hold: A(self.ostore(dst, v, qb))
            if not hold: A(f"s_add_u32 {sOT}, {sOT}, 4096")
    def ostore(self, reg, v, qb):
        return f"buffer_store_dwordx4 {vt(reg,4)}, {vL16}, {srd(SWS)}, {sOT} offen offset:{qb*1024}{self.stf}"
    def store_held(self):
        for v in range(4):
            for qb in range(2): self.A(self.ostore(HELD + 8*v + 4*qb, v, qb))
            self.A(f"s_add_u32 {sOT}, {sOT}, 4096")
    def make_srd(self, b, p, size):
        A = self.A
        A(f"s_mov_b32 s{b}, s{p}"); A(f"s_mov_b32 s{b+1}, s{p+1}")
        A(f"s_mov_b32 s{b+2}, 0x{size:x}"); A(f"s_mov_b32 s{b+3}, 0x20000")
    def one_lane(self, lines, wave0=False):
        A = self.A
        lab = A.newlabel("Lo")
        if wave0: A(f"s_cmp_eq_u32 {sW}, 0"); A(f"s_cbranch_scc0 {lab}")
        A("s_mov_b64 exec, 1")
        for l in lines: A(l)
        A("s_mov_b64 exec, -1")
        if wave0: A.label(lab)
    def spin(self, name, cmp_line, load_line, sleep):
        A = self.A
        A(f"s_mov_b32 {sSpin}, 0x40000")
        A.label(name)
        A(cmp_line)
        A(f"s_cbranch_vccz {name}_ok")
        A(f"s_sub_u32 {sSpin}, {sSpin}, 1"); A(f"s_cbranch_scc1 {name}_ok")
        if sleep: A(f"s_sleep {sleep}")
        A(load_line)
        A("s_waitcnt vmcnt(0)")
        A(f"s_branch {name}")
        A.label(name + "_ok")
    def rowmax(self, floor):
        A = self.A
        for qb, tm in ((0, vTm), (1, vMc)): A(f"v_mov_b32 {tm}, {vMx[qb]}")
        A("s_nop 0")
        for qb, tm in ((0, vTm), (1, vMc)): A(f"v_permlane32_swap_b32 {vMx[qb]}, {tm}")
        for qb, tm in ((0, vTm), (1, vMc)): A(f"v_max_f32 {vMx[qb]}, {vMx[qb]}, {tm}")
        for qb, tm in ((0, vTm), (1, vMc)): A(f"v_mov_b32 {tm}, {vMx[qb]}")
        A("s_nop 0")
        for qb, tm in ((0, vTm), (1, vMc)): A(f"v_permlane16_swap_b32 {vMx[qb]}, {tm}")
        for qb, tm in ((0, vTm), (1, vMc)): A(f"v_max3_f32 {vMx[qb]}, {vMx[qb]}, {tm}, {floor}")

    def kernel(self):
        A = self.A
        tg, tl15, tr, tc, ta, tb, td, te = [tmp(i) for i in range(8)]
        A("s_cmp_ge_u32 s2, 256"); A("s_cbranch_scc1 L_end")
        if self.stamps: A("s_memrealtime s[98:99]")
        A("s_load_dwordx16 s[64:79], s[0:1], 0")
        self.stamp(0)
        A("v_lshrrev_b32 v1, 6, v0"); A("v_and_b32 v2, 63, v0")
        A(f"v_readfirstlane_b32 {sW}, v1")
        A(f"v_lshlrev_b32 {vL16}, 4, v2")
        A(f"s_getpc_b64 s[{SCODE}:{SCODE+1}]")
        A.label("L_pc")
        A(f"s_mov_b32 s{SCODE+2}, L_codeend-L_pc"); A(f"s_mov_b32 s{SCODE+3}, 0x20000")
        A(f"s_lshr_b32 {sT0}, s2, 3"); A(f"s_lshl_b32 {sT0}, {sT0}, 2"); A(f"s_add_u32 {sT0}, {sT0}, {sW}")
        A(f"s_and_b32 {sT0}, {sT0}, 63"); A(f"s_lshl_b32 {sT0}, {sT0}, 10")
        A(f"buffer_load_dwordx4 v[128:131], {vL16}, {srd(SCODE)}, {sT0} offen"); self.vm_issue(("CODE",), 1)
        A(f"s_lshl_b32 {sW4K}, {sW}, 12"); A(f"s_lshl_b32 {sW2K}, {sW}, 11")
        A(f"v_lshrrev_b32 {tg}, 4, v2"); A(f"v_and_b32 {tc}, 3, v2")
        A(f"v_lshrrev_b32 {ta}, 2, v2"); A(f"v_lshl_add_u32 {ta}, v1, 5, {ta}")
        A(f"v_sub_u32 {tb}, 0, {tg}"); A(f"v_and_b32 {tb}, 3, {tb}"); A(f"v_xor_b32 {tb}, {tb}, {tc}"); A(f"v_lshlrev_b32 {tb}, 4, {tb}")
        A(f"v_lshl_add_u32 {vXd[0]}, {ta}, 10, {tb}"); A(f"v_add_u32 {vXd[1]}, {16384 - 1024}, {vXd[0]}")
        A(f"v_lshrrev_b32 {ta}, 5, v2"); A(f"v_and_b32 {tb}, 1, v1"); A(f"v_lshl_add_u32 {tb}, {tb}, 2, {ta}"); A(f"v_lshlrev_b32 {tb}, 1, {tb}")
        A(f"v_and_b32 {td}, 31, v2"); A(f"v_xor_b32 {tb}, {tb}, {td}"); A(f"v_lshlrev_b32 {tb}, 4, {tb}")
        A(f"v_lshl_add_u32 {ta}, v1, 3, {ta}"); A(f"v_lshl_add_u32 {vWd[0]}, {ta}, 13, {tb}"); A(f"v_xor_b32 {tb}, 64, {vWd[0]}")
        A(f"v_add_u32 {vWd[1]}, 15360, {tb}"); A(f"v_add_u32 {vWd[2]}, {2*15360}, {vWd[0]}"); A(f"v_add_u32 {vWd[3]}, {3*15360}, {tb}")
        A(f"s_and_b32 {sBat}, s2, 1"); A(f"s_lshl_b32 {sBat}, {sBat}, 3")
        A(f"s_bfe_u32 {sT1}, s2, 0x30003"); A(f"s_add_u32 {sBat}, {sBat}, {sT1}")
        A(f"s_lshr_b32 {sT2}, s2, 6")
        if self.rot == 2:
            A(f"s_lshl_b32 {sTi}, {sT2}, 1"); A(f"s_add_u32 {sTi}, {sTi}, {sT1}"); A(f"s_lshl_b32 {sTi}, {sTi}, 1"); A(f"s_and_b32 {sTi}, {sTi}, 15")
        elif self.rot == 1:
            A(f"s_add_u32 {sTi}, {sT2}, {sT1}"); A(f"s_and_b32 {sTi}, {sTi}, 1"); A(f"s_lshl_b32 {sTi}, {sTi}, 3")
        elif self.rot == 3:
            A(f"s_add_u32 {sTi}, {sT2}, {sT1}"); A(f"s_and_b32 {sTi}, {sTi}, 3"); A(f"s_lshl_b32 {sTi}, {sTi}, 2")
        else: A(f"s_mov_b32 {sTi}, 0")
        A(f"s_bfe_u32 {sT1}, s2, 0x20001"); A(f"s_lshl_b32 {sT1}, {sT1}, 3")
        A(f"s_lshl_b32 {sT3}, {sT2}, 1"); A(f"s_add_u32 {sT3}, {sT3}, {sT1}")
        A(f"s_add_u32 {sT1}, {sT1}, {sT2}")
        A(f"s_lshl_b32 {sXb}, {sBat}, 17"); A(f"s_lshl_b32 {sWb}, {sT3}, 8")
        A("s_waitcnt lgkmcnt(0)")
        self.make_srd(SX, 64, 2 << 20); self.make_srd(SWQ, 70, 4 << 20)
        XS = [9 * T, 9 * T + 8192, 2 * T, 2 * T + 8192]; WS_ = [6 * T, 7 * T, 8 * T, 5 * T]
        self.emit_groups(self.tile_XW(XS[0], WS_[0])); self.vm_issue(("P", 0), 6)
        self.stamp(1)
        A(f"s_lshl_b32 {sT2}, {sBat}, 5"); A(f"s_add_u32 {sT2}, {sT2}, {sT3}"); A(f"s_lshl_b32 {sT2}, {sT2}, 18")
        A(f"s_add_u32 s66, s66, {sT2}"); A("s_addc_u32 s67, s67, 0"); A(f"s_add_u32 s68, s68, {sT2}"); A("s_addc_u32 s69, s69, 0")
        A(f"s_mov_b32 {sKoff}, 0"); A(f"s_mov_b32 {sVoff}, 0")
        A(f"s_lshl_b32 {sT0}, {sBat}, 1"); A(f"s_lshr_b32 {sT2}, {sW}, 1"); A(f"s_add_u32 {sT0}, {sT0}, {sT2}")
        A(f"s_lshl_b32 {sFlagP}, {sT0}, 2"); A(f"s_lshr_b32 {sT2}, {sT1}, 3"); A(f"s_add_u32 {sFlagP}, {sFlagP}, {sT2}")
        A(f"s_lshl_b32 {sFlagP}, {sFlagP}, 7"); A(f"s_and_b32 {sT2}, {sT1}, 3"); A(f"s_lshl_b32 {sT2}, {sT2}, 3")
        A(f"s_add_u32 {sFlagP}, {sFlagP}, {sT2}"); A(f"s_and_b32 {sT2}, {sW}, 1"); A(f"s_lshl_b32 {sT1}, {sT2}, 2")
        A(f"s_add_u32 {sFlagP}, {sFlagP}, {sT1}"); A(f"s_add_u32 {sFlagP}, {sFlagP}, {WS_FLAG}")
        A(f"s_lshl_b32 {sT0}, {sT0}, 5"); A(f"s_add_u32 {sT0}, {sT0}, {sT3}"); A(f"s_lshl_b32 {sT0}, {sT0}, 14")
        A(f"s_lshl_b32 {sT2}, {sT2}, 11"); A(f"s_add_u32 {sOT}, {sT0}, {sT2}")
        self.emit_groups(self.tile_XW(XS[1], WS_[1])); self.vm_issue(("P", 1), 6)
        A(f"s_mov_b32 {sC}, 0x{f2u(CSC):08x}"); A(f"s_mov_b32 {sThr}, 0x{f2u(8.0):08x}")
        self.make_srd(SK, 66, 512 << 10); self.make_srd(SV, 68, 512 << 10)
        self.make_srd(SWO, 72, 4 << 20); self.make_srd(SWS, 78, WS_SIZE)
        self.make_srd(SOUT, 74, 2 << 20); self.make_srd(SDBG, 76, 256)
        A(f"v_and_b32 {tl15}, 15, v2"); A(f"v_lshl_add_u32 {ta}, v1, 4, {tg}")
        A(f"v_lshlrev_b32 {tb}, 1, {tg}"); A(f"v_xor_b32 {tb}, {tb}, {tl15}"); A(f"v_lshlrev_b32 {tb}, 4, {tb}")
        A(f"v_lshl_add_u32 {vVd[0]}, {ta}, 8, {tb}"); A(f"v_xor_b32 {vVd[1]}, 128, {vVd[0]}")
        A(f"v_xor_b32 {tb}, {tl15}, {tg}"); A(f"v_lshlrev_b32 {tb}, 4, {tb}")
        A(f"v_lshl_add_u32 {vKd[0]}, {ta}, 8, {tb}")
        for i in range(1, 4): A(f"v_xor_b32 {vKd[i]}, {64*i}, {vKd[0]}")
        self.emit_groups(self.tile_XW(XS[2], WS_[2])); self.vm_issue(("P", 2), 6)
        A(f"v_lshl_add_u32 {vKa[0]}, {tl15}, 8, {tb}")
        for s in range(1, 4): A(f"v_xor_b32 {vKa[s]}, {64*s}, {vKa[0]}")
        A(f"v_bfe_u32 {tr}, v2, 2, 2")
        A(f"v_sub_u32 {ta}, 0, {tr}"); A(f"v_and_b32 {ta}, 3, {ta}"); A(f"v_xor_b32 {ta}, {ta}, {tg}"); A(f"v_lshlrev_b32 {ta}, 4, {ta}")
        A(f"v_lshl_add_u32 {tb}, v1, 5, {tl15}"); A(f"v_lshl_add_u32 {ta}, {tb}, 6, {ta}")
        A(f"v_add_u32 {vXa}, {XS[0]}, {ta}")
        A(f"v_and_b32 {ta}, 1, {tg}"); A(f"v_lshl_add_u32 {ta}, {ta}, 2, {tr}")
        A(f"v_lshlrev_b32 {ta}, 5, {ta}"); A(f"v_lshl_add_u32 {ta}, {tc}, 3, {ta}")
        A(f"v_lshl_add_u32 {td}, {tg}, 2, {tr}")
        A(f"v_lshl_add_u32 {tb}, {td}, 8, {ta}"); A(f"v_add_u32 {vVa[0]}, {LV}, {tb}")
        for b in range(1, 8): A(f"v_xor_b32 {vVa[b]}, {32*b}, {vVa[0]}")
        A(f"v_lshl_add_u32 {tb}, {tg}, 3, {tr}"); A(f"v_lshl_add_u32 {tb}, {tb}, 9, {ta}"); A(f"v_add_u32 {vWa[0]}, {5*T}, {tb}")
        for b in range(1, 8): A(f"v_xor_b32 {vWa[b]}, {32*b}, {vWa[0]}")
        A(f"v_lshrrev_b32 {ta}, 3, v2"); A(f"v_and_b32 {tb}, 7, v2"); A(f"v_lshlrev_b32 {te}, 1, {tg}"); A(f"v_xor_b32 {tb}, {tb}, {te}")
        A(f"v_lshlrev_b32 {tb}, 4, {tb}"); A(f"v_lshl_add_u32 {vWs[0]}, {ta}, 10, {tb}")
        for i in range(1, 4): A(f"v_add_u32 {vWs[i]}, {i * 7168}, {vWs[0]}")
        A(f"v_bfe_u32 {ta}, {td}, 1, 2"); A(f"v_lshlrev_b32 {ta}, 5, {ta}"); A(f"v_lshl_add_u32 {ta}, {tc}, 3, {ta}")
        A(f"v_lshl_add_u32 {ta}, {td}, 7, {ta}"); A(f"v_add_u32 {vWr}, {sW4K}, {ta}")
        A(f"v_cmp_eq_u32 vcc, 0, {tc}"); A(f"v_mov_b32 {ta}, 0x3f803f80"); A(f"v_mov_b32 {vZero}, 0"); A(f"v_mov_b32 {vOne}, 1")
        for k in range(4): A(f"v_cndmask_b32 v{ONES+k}, 0, {ta}, vcc")
        for k in range(16): A(f"v_mov_b32 v{LACC+k}, 0")
        A(f"s_and_b32 {sT0}, s2, 7"); A(f"s_lshl_b32 {sT0}, {sT0}, 2"); A(f"s_lshr_b32 {sT1}, s2, 6")
        A(f"s_add_u32 {sB2}, {sT0}, {sT1}")
        A(f"s_lshl_b32 {sT0}, {sB2}, 19"); A(f"s_lshl_b32 {sT1}, {sW}, 17"); A(f"s_add_u32 {sAreal}, {sT0}, {sT1}")
        A(f"s_bfe_u32 {sT0}, s2, 0x30003"); A(f"s_lshl_b32 {sT0}, {sT0}, 7")
        A(f"s_lshl_b32 {sT1}, {sW}, 20"); A(f"s_add_u32 {sWP}, {sT0}, {sT1}")
        A(f"s_lshr_b32 {sT0}, {sB2}, 1"); A(f"s_lshl_b32 {sT0}, {sT0}, 2"); A(f"v_mov_b32 {vPoff}, {sT0}")
        if self.rotO:
            A(f"s_bfe_u32 {sT0}, s2, 0x30003"); A(f"s_lshr_b32 {sT1}, s2, 6"); A(f"s_lshl_b32 {sT1}, {sT1}, 1"); A(f"s_add_u32 {sT0}, {sT0}, {sT1}")
            A(f"s_lshl_b32 {sT0}, {sT0}, 2"); A(f"s_and_b32 {sQw}, {sT0}, 31")
        else: A(f"s_mov_b32 {sQw}, 0")
        A(f"s_mov_b32 {sQa}, {sQw}")
        A(f"s_lshl_b32 {sFlagC}, {sB2}, 2"); A(f"s_add_u32 {sFlagC}, {sFlagC}, {sW}"); A(f"s_lshl_b32 {sFlagC}, {sFlagC}, 7")
        A(f"s_add_u32 {sFlagC}, {sFlagC}, {WS_FLAG}")
        self.one_lane([f"buffer_store_dword {vZero}, {vZero}, {srd(SWS)}, {sFlagP} offen sc1"]); self.vm_issue(("FZ",), 1)
        NA = 5; BP = 16 - NA; NU = 256
        XF = lambda pi, qb: at(AKF + 8 * (pi % 2) + 4 * qb, 4)
        units = []
        for pi in range(16):
            for t in range(16):
                m = 16 * pi + t; fr = AVF + 4 * (m % 8)
                D = lambda qb: vt(O0 + 8*t + 4*qb, 4) if t < 8 else at(AACC + 8*(t-8) + 4*qb, 4)
                wo_ = WS_[pi % 4] - 5 * T + (t // 8) * 256
                units.append(([f"{MF} {D(qb)}, {at(fr,4)}, {XF(pi, qb)}, {'0' if pi == 0 else D(qb)}" for qb in range(2)],
                              [("w", m), ("x", pi)],
                              [(f"ds_read_b64_tr_b16 {at(fr,2)}, {vWa[t % 8]} offset:{wo_}", ("w", m)),
                               (f"ds_read_b64_tr_b16 {at(fr+2,2)}, {vWa[t % 8]} offset:{wo_ + 2048}", ("w", m))]))
        sched = []
        early = [("K", 0), ("K", 1), ("V", 0), ("V", 1)]
        for j in range(3, 16):
            first = 0 if j == 3 else 16 * (j - 3) + BP
            sched.append((first, ("P", j), self.tile_XW(XS[j % 4], WS_[j % 4])))
            for (kind, sl), at_ in zip(early, self.kvpos):
                if at_ == j - 3: sched.append((first, (kind, sl), self.tile_KV(kind == "K", sl)))
        gaps = [[] for _ in range(2 * NU)]; vmat = {}
        pos = 0
        for first, tag, groups in sched:
            for g in groups:
                pos = max(pos, first)
                g = [("s_nop 0" if l == "@M0" else l) for l in g]
                k = max(i for i, l in enumerate(g) if l.startswith("buffer_"))
                gaps[2 * pos] += g[:k]; gaps[2 * pos + 1] += g[k:]; vmat[pos] = tag
                pos += 1
        xrd = lambda pi, qb: (f"ds_read_b128 {XF(pi, qb)}, {vXa} offset:{qb * 1024}", ("x", pi))
        def mid(m):
            pi, k = m // 16, m % 16
            if m - 1 in vmat: self.vm_issue(vmat[m - 1], 1)
            if pi < 15:
                if k == 2: A(f"v_add_u32 {vXa}, {XS[(pi + 1) % 4] - XS[pi % 4]}, {vXa}")
                if k == BP:
                    A(f"s_waitcnt vmcnt({self.vm_need(('P', pi + 1))})"); A("s_barrier")
                    if pi % 2 == 1: self.stamp(3 + pi // 2)
                if BP < k <= BP + 2: A.lds(*xrd(pi + 1, k - BP - 1))
        A(f"s_waitcnt vmcnt({self.vm_need(('P', 0))})")
        A("s_barrier")
        self.stamp(2)
        A.lds_reset()
        for qb in range(2): A.lds(*xrd(0, qb))
        for m in range(NA):
            for r in units[m][2]: A.lds(*r)
        self.stream(units, NU, NA, 2, gaps, mid)
        assert NU - 1 not in vmat
        A(f"v_mov_b32 {vF[0]}, {sC}"); A(f"v_mov_b32 {vF[1]}, {sC}")
        for k in range(8): A(f"v_mov_b32 v{NEG+k}, 0")
        A(f"s_waitcnt vmcnt({self.vm_need(('K', 0))})")
        A("s_barrier")
        units = self.qk_units(SA, 0) + self.qk_units(SB, 1, "kn")[:6]
        for i in range(6): A.lds(*units[i][2][0])
        g = self.tile_KV(True, 2); self.vm_issue(("K", 2), 4)
        qa = self.qfin_ops(False); n4 = len(qa) // 4
        for i in range(4):
            self.emit_groups(g[i:i+1])
            for l in qa[n4*i:n4*i+n4]: A(l)
        self.stamp(10)
        gaps = [[] for _ in range(32)]; base = [4, 0] * 16
        if self.epark:
            grp = [x for k in range(4) for x in self.tile_Wo(6 + k)]
            for i, gq in enumerate(grp):
                gaps[2 * i] += gq[:-1]; gaps[2 * i + 1] += gq[-1:]; base[2 * i] += 4 * (len(gq) - 1); base[2 * i + 1] += 16
        self.spread([f"v_mov_b32 v{O0+k}, 0" for k in range(64)], gaps, 0, 32, base)
        def mid0(i):
            if self.epark and i > 0: self.vm_issue(("EP",), 1)
            if i == 10: A(f"s_waitcnt vmcnt({self.vm_need(('K', 1))})"); A("s_barrier")
        self.stream(units, 16, 6, 2, gaps, mid0)
        if self.epark: self.vm_issue(("EP",), 1)
        A("s_barrier")
        g = self.tile_KV(True, 0); self.vm_issue(("K", 3), 4)
        self.emit_groups(g[:2])
        for l in self.max_ops(SA): A(l)
        self.emit_groups(g[2:])
        if self.warm:
            A(f"s_lshl_b32 {sT0}, s2, 14"); A(f"s_add_u32 {sT0}, {sT0}, {sW4K}")
            for i in range(4): A(f"buffer_load_dwordx4 {at(240 + 4*i, 4)}, {vL16}, {srd(SWO)}, {sT0} offen offset:{i*1024}")
            self.vm_issue(("WARM",), 4)
        A(f"s_mov_b32 {sT}, 0")
        A(f"s_call_b64 {sRet}, L_init")
        n1, n2, n3 = self.simulate_loop()
        self.n = (n1, n2, n3)
        xs = {PUB_T, 14, 15, 31, self.oa_t}
        if self.lpark: xs |= {28, 29, 30}
        xmask = sum(1 << t for t in xs)
        A.label("L_loop")
        for c in range(6):
            self.body(c, n1, n2)
            self.istamp()
            A(f"s_bitcmp1_b32 0x{xmask:08x}, {sT}"); A(f"s_cbranch_scc1 L_x_{c}")
            A.label(f"L_c_{c}")
            A(f"v_cmp_lt_f32 vcc, {sThr}, {vMc}")
            A(f"s_cbranch_vccnz L_r_{c}")
            A.label(f"L_n_{c}")
            A(f"s_add_u32 {sT}, {sT}, 1")
        A("s_branch L_loop")
        for c in range(6):
            A.label(f"L_x_{c}"); A(f"s_call_b64 {sRet}, L_extras"); A(f"s_branch L_c_{c}")
            A.label(f"L_r_{c}"); A(f"s_call_b64 {sLink2}, L_rare"); A(f"s_branch L_n_{c}")
        A(".p2align 3")
        ssub = lambda S: [f"v_sub_f32 v{S+i}, v{S+i}, {vMx[(i//4)%2]}" for i in range(32)]
        A.label("L_init")
        A(f"s_mov_b32 {sFloor}, 0x{f2u(-1e30):08x}")
        self.rowmax(sFloor)
        for i in range(8): A(f"v_sub_f32 v{NEG+i}, 0, {vMx[i//4]}")
        for l in ssub(SA): A(l)
        A(f"v_mov_b32 {vMc}, 0")
        A(f"s_setpc_b64 {sRet}")
        A.label("L_rare")
        self.rowmax("0")
        for qb in range(2): A(f"v_exp_f32 {vF[qb]}, -{vMx[qb]}")
        for i in range(8): A(f"v_sub_f32 v{NEG+i}, v{NEG+i}, {vMx[i//4]}")
        for qb in range(2): A(f"v_mul_f32 v{LACC+4*qb}, {vF[qb]}, v{LACC+4*qb}")
        for i in range(64): A(f"v_mul_f32 v{O0+i}, {vF[(i//4)%2]}, v{O0+i}")
        A(f"s_bitcmp1_b32 {sT}, 0"); A("s_cbranch_scc1 L_rare_a")
        for l in ssub(SB): A(l)
        A(f"s_setpc_b64 {sLink2}")
        A.label("L_rare_a")
        for l in ssub(SA): A(l)
        A(f"s_setpc_b64 {sLink2}")
        def tree(ts):
            if len(ts) == 1:
                A(f"s_branch L_t{ts[0]}"); return
            if len(ts) == 2:
                A(f"s_cmp_eq_u32 {sT}, {ts[0]}"); A(f"s_cbranch_scc1 L_t{ts[0]}"); A(f"s_branch L_t{ts[1]}"); return
            h = len(ts) // 2; lab = A.newlabel("Ld")
            A(f"s_cmp_ge_u32 {sT}, {ts[h]}"); A(f"s_cbranch_scc1 {lab}")
            tree(ts[:h]); A.label(lab); tree(ts[h:])
        A.label("L_extras")
        tree(sorted(xs))
        for t in sorted(xs):
            if t == 31: continue
            A.label(f"L_t{t}")
            if t == 14:
                A(f"v_cmp_lt_f32 vcc, {sThr}, {vMc}")
                A("s_cbranch_vccz L_x14b")
                A(f"s_call_b64 {sLink2}, L_rare")
                A.label("L_x14b")
                A(f"v_mov_b32 {vF[0]}, {sC}"); A(f"v_mov_b32 {vF[1]}, {sC}")
                for l in self.qfin_ops(True): A(l)
                for k in range(8): A(f"v_mov_b32 v{NEG+k}, 0")
                for l in self.zero_acc(): A(l)
                A(f"v_mov_b32 {vMc}, 0")
            if t == 15:
                self.epilogue(True)
                for i in range(64): A(f"v_mov_b32 v{O0+i}, 0")
                A(f"v_mov_b32 v{LACC}, 0"); A(f"v_mov_b32 v{LACC+4}, 0")
                self.stamp(11)
                A("s_branch L_init")
                continue
            if t == PUB_T:
                A(f"s_waitcnt vmcnt({n3[t]})"); A("s_barrier")
                A(f"s_lshl_b32 {sT0}, {sBat}, 2")
                self.one_lane([f"buffer_atomic_add {vOne}, {vZero}, {srd(SDBG)}, {sT0} offen sc1"], wave0=True)
            if self.lpark and t in (28, 29, 30):
                if t == 28:
                    for k in range(3): A(f"s_mov_b32 s{SK+k}, s{SWO+k}")
                    for i in range(4): A(f"v_mov_b32 {vKd[i]}, {vWs[i]}")
                A(f"s_lshl_b32 {sKoff}, {sQw}, 15"); A(f"s_add_u32 {sKoff}, {sKoff}, {sWP}")
                A(f"s_add_u32 {sQw}, {sQw}, 1"); A(f"s_and_b32 {sQw}, {sQw}, 31")
            if t == self.oa_t: self.store_held()
            A(f"s_setpc_b64 {sRet}")
        A.label("L_t31")
        A("s_waitcnt lgkmcnt(0)")
        self.stamp(12)
        self.tail()
        self.dump_stamps()
        A.label("L_end")
        A("s_endpgm")
        A.label("L_codeend")

    def tail(self):
        A = self.A
        vm = []
        def need(tag): return min(63, len(vm) - 1 - max(i for i, q in enumerate(vm) if q == tag)) if tag in vm else 63
        pollW = f"buffer_load_dword {vPoll}, {vPoff}, {srd(SDBG)}, 0 offen sc1"
        vRd = [[f"v{16 + 4*k + nb}" for nb in range(4)] for k in range(3)]
        vFl, vLin = "v28", "v29"
        order = ([6, 7, 8, 9] if self.epark else []) + ([0, 1, 2] if self.lpark else [])
        npark = len(order)
        order += [k for k in (3, 4, 5, 0, 1, 2, 6, 7, 8, 9) if k not in order]
        SLOT = lambda p: order[p % 10]
        NR = min(self.nreg, npark)
        A(pollW); vm.append("poll")
        if self.oa_t == 31: self.store_held(); vm += ["OB"] * 8
        self.epilogue(False); vm += ["OB"] * 8
        self.stamp(13)
        for k in range(3):
            A(f"v_add_u32 {vRd[k][0]}, {k * 65536}, {vWr}")
            for nb in range(1, 4): A(f"v_xor_b32 {vRd[k][nb]}, {32*nb}, {vRd[k][0]}")
        A(f"v_and_b32 {vFl}, 7, v2"); A(f"v_lshlrev_b32 {vFl}, 2, {vFl}")
        A(f"v_add_u32 {vLin}, {sW4K}, {vL16}")
        A("s_barrier")
        NS = 5
        ASET = lambda p: (lambda j, n: at(AQ + 16 * (p % NS) + j, n) if p % NS < 2 else at(AKF + 16 * (p % NS - 2) + j, n))
        def WSET(p):
            if p < min(NR, 6): return lambda j, n: at(AFREE + 16 * p + j, n)
            if p < NR: return lambda j, n: vt(P0 + 16 * (p - 6) + j, n)
            return lambda j, n: vt(O0 + 16 * (p % 3) + j, n)
        def wgroups(p): return [(x, ("W", p)) for x in self.tile_Wo(SLOT(p))]
        def agroups(p):
            g = [self.aload(ASET(p), j, sAoff) for j in range(4)]
            g[0] = [f"s_lshl_b32 {sAoff}, {sQa}, 12", f"s_add_u32 {sQa}, {sQa}, 1", f"s_add_u32 {sAoff}, {sAoff}, {sAreal}"] + g[0]
            g[1] = [f"s_and_b32 {sQa}, {sQa}, 31"] + g[1]
            return [(x, ("A", p)) for x in g]
        def wreads(p):
            base = SLOT(p) * T
            return [f"ds_read_b64_tr_b16 {WSET(p)(4*nb + 2*hf, 2)}, {vRd[base // 65536][nb]} offset:{base % 65536 + hf*2048}"
                    for nb in range(4) for hf in range(2)]
        def emit(g):
            for l in g[0]: A(l)
            vm.append(g[1])
        pollB = f"buffer_load_dword {vPoll}, {vFl}, {srd(SWS)}, {sFlagC} offen sc1"
        wn = npark; an = 0
        while wn < min(10, npark + 3):
            for g in wgroups(wn): emit(g)
            wn += 1
        A(f"s_waitcnt vmcnt({need('poll')})")
        A.lds_reset()
        for p in range(NR):
            for l in wreads(p): A(l)
            if p % 2 == 1 or p == NR - 1: A("s_waitcnt lgkmcnt(0)")
        self.spin("L_c1", f"v_cmp_gt_u32 vcc, 16, {vPoll}", pollW, 2)
        A(f"s_waitcnt vmcnt({need('OB')})")
        self.one_lane([f"buffer_store_dword {vOne}, {vZero}, {srd(SWS)}, {sFlagP} offen sc1"]); vm.append("fl")
        self.stamp(14)
        while wn < 10 + NR:
            for g in wgroups(wn): emit(g)
            wn += 1
        A(pollB); vm.append("pb")
        self.stamp(15)
        A(f"s_waitcnt vmcnt({need('pb')})")
        self.spin("L_c2", f"v_cmp_ne_u32 vcc, 1, {vPoll}", pollB, 0)
        self.stamp(18)
        while an < self.aahead:
            for g in agroups(an): emit(g)
            an += 1
        if NR == 0:
            for l in wreads(0): A.lds(l, ("w", 0))
        for p in range(32):
            tags = [("A", p)] + ([("W", p + 1)] if p < 31 else [])
            A(f"s_waitcnt vmcnt({min(need(tg) for tg in tags)})")
            A.lds_wait(("w", p))
            gs = []
            if an < 32: gs += agroups(an); an += 1
            if wn < 32 and wn - 10 <= p: gs = [x for pr in itertools.zip_longest(gs, wgroups(wn)) for x in pr if x]; wn += 1
            rds = wreads(p + 1) if NR <= p + 1 < 32 else []
            step = 2 if len(gs) > 4 else 4
            k = 0
            for nb in range(4):
                for q in range(4):
                    d = at(AACC + 16 * q + 4 * nb, 4)
                    A(f"{MF} {d}, {WSET(p)(4*nb, 4)}, {ASET(p)(4*q, 4)}, {d}")
                    if k % 2 == 1 and k // 2 < len(rds): A.lds(rds[k // 2], ("w", p + 1))
                    if k % step == 0 and k // step < len(gs): emit(gs[k // step])
                    k += 1
        self.stamp(16)
        A(f"v_lshl_add_u32 v3, v1, 14, {vL16}")
        A("v_and_b32 v5, 15, v2"); A("v_lshrrev_b32 v6, 4, v2"); A("v_lshlrev_b32 v5, 10, v5"); A("v_lshl_add_u32 v5, v6, 4, v5")
        A(f"s_lshl_b32 {sT0}, {sB2}, 16"); A(f"s_lshl_b32 {sT1}, {sW}, 14"); A(f"s_add_u32 {sT0}, {sT0}, {sT1}")
        A(f"s_bfe_u32 {sT1}, s2, 0x30003"); A(f"s_lshl_b32 {sT1}, {sT1}, 7"); A(f"s_add_u32 {sT0}, {sT0}, {sT1}")
        A("s_barrier")
        for blk in range(4):
            for q in range(4):
                A(f"ds_write_b128 v3, {at(AACC+16*blk+4*q,4)} offset:{blk*4096+q*1024}")
                if (blk * 4 + q) % 8 == 7: A("s_waitcnt lgkmcnt(0)")
        A("s_barrier")
        for src in range(4):
            for q in range(4):
                A(f"ds_read_b128 {vt(64+16*src+4*q,4)}, {vLin} offset:{src*16384+q*1024}")
            if src % 2 == 1: A("s_waitcnt lgkmcnt(0)")
        for i in range(16): A(f"v_add_f32 v{64+i}, v{64+i}, v{80+i}")
        for i in range(16): A(f"v_add_f32 v{96+i}, v{96+i}, v{112+i}")
        for i in range(16): A(f"v_add_f32 v{64+i}, v{64+i}, v{96+i}")
        for j in range(8): A(f"v_cvt_pk_bf16_f32 v{80+j}, v{64+2*j}, v{64+2*j+1}")
        w0, w1 = self.widen(80, 82), self.widen(84, 86)
        A("s_nop 0")
        for l in w0[0] + w1[0] + w0[1] + w1[1]: A(l)
        A(f"buffer_store_dwordx4 {vt(80,4)}, v5, {srd(SOUT)}, {sT0} offen")
        A(f"buffer_store_dwordx4 {vt(84,4)}, v5, {srd(SOUT)}, {sT0} offen offset:64")

    def dump_stamps(self):
        if not self.stamps: return
        A = self.A
        A("s_waitcnt vmcnt(0)")
        self.stamp(17)
        A("s_memrealtime s[100:101]")
        A("s_getreg_b32 s3, hwreg(HW_REG_XCC_ID)")
        A("s_waitcnt lgkmcnt(0)")
        A(f"v_writelane_b32 v{VST}, s98, 61"); A(f"v_writelane_b32 v{VST}, s100, 62"); A(f"v_writelane_b32 v{VST}, s3, 63")
        A(f"s_lshl_b32 {sT1}, s2, 2"); A(f"s_add_u32 {sT1}, {sT1}, {sW}"); A(f"s_mul_i32 {sT1}, {sT1}, 768")
        A(f"s_add_u32 {sT1}, {sT1}, {WS_STAMP}")
        A(f"v_lshrrev_b32 v3, 2, {vL16}")
        for k in range(3): A(f"buffer_store_dword v{VST+k}, v3, {srd(SWS)}, {sT1} offen offset:{256*k}")

HDR = open("standalone__mha_block_cached__near_ridge.s.ref").read().split("; Override")[0]
def desc(name):
    return f""".amdhsa_kernel {name}
  .amdhsa_next_free_vgpr 512
  .amdhsa_next_free_sgpr 102
  .amdhsa_accum_offset 256
  .amdhsa_group_segment_fixed_size 0
  .amdhsa_kernarg_size 64
  .amdhsa_user_sgpr_count 2
  .amdhsa_user_sgpr_kernarg_segment_ptr 1
  .amdhsa_system_sgpr_workgroup_id_x 1
.end_amdhsa_kernel
"""
def build(path, verbose=False, cls=None, **kw):
    g = (cls or Gen)(**kw); g.kernel()
    la = align8(g.A.lines)
    bad = check_hazards(la)
    print(path, "hazards:", bad, "lines", len(la))
    if verbose: print(g.n)
    s = HDR + "; @launch grid=(256,1,1) block=(256,1,1) lds=163840\n"
    s += '.amdgcn_target "amdgcn-amd-amdhsa--gfx950"\n.text\n'
    s += f".globl {KN}\n.p2align 8\n.type {KN},@function\n{KN}:\n" + "\n".join(la) + "\n"
    s += '.section .rodata,"a"\n.p2align 6\n' + desc(KN)
    open(path, "w").write(s)
if __name__ == "__main__":
    build("v12.s", verbose=True)
    build("v12_c.s", stamps=True)
```

```python
import sys, math, struct, itertools
sys.path.insert(0, "work")
from asmlib import Asm, check_hazards, align8

KN = "standalone__mha_block_cached__near_ridge_kernel"
def f2u(x): return struct.unpack("<I", struct.pack("<f", x))[0]
CSC = math.log2(math.e) / math.sqrt(128.0)
T = 16384
LK, LV = 0, 3 * T
WS_FLAG = 16 << 20
WS_STAMP = 21 << 20
WS_SIZE = 22 << 20
SK, SV, SX, SWQ, SWO, SWS, SOUT, SDBG = 4, 8, 12, 16, 20, 24, 28, 32
def srd(b): return f"s[{b}:{b+3}]"
sW, sW4K, sKoff, sVoff, sW2K, sWP, sThr, sT, sC, sQw, sFloor, sQa = [f"s{i}" for i in range(36, 48)]
sXoff, sWoff, sOT, sT0, sT1, sT2 = [f"s{i}" for i in range(48, 54)]
sLink = "s[54:55]"; sRet = "s[92:93]"; sLink2 = "s[94:95]"
sAoff, sWToff, sB2, sT3 = [f"s{i}" for i in range(56, 60)]
sTi, sXb, sWb, sAreal, sFlagP, sFlagC, sBat, sSpin = [f"s{i}" for i in range(80, 88)]
SCODE = 88
vWs = ["v3", "v4", "v5", "v6"]; vWr = "v7"
vInv = 8
vPoll = "v12"; vPoff = "v13"; vZero = "v14"; vOne = "v15"
vKa = [f"v{i}" for i in range(16, 20)]
vVa = [f"v{i}" for i in range(20, 28)]
vKd = [f"v{i}" for i in range(28, 32)]
vVd = ["v32", "v33"]; vMx = ["v34", "v35"]; vMc = "v36"; vTm = "v37"; vF = ["v38", "v39"]; vL16 = "v40"
VST = 41
ONES, LACC, NEG = 44, 48, 56
O0, SA, SB, P0, HELD = 64, 128, 160, 192, 208
vWa = [f"v{i}" for i in range(160, 168)]; vXa = "v168"; vXd = ["v169", "v170"]; vWd = [f"v{i}" for i in range(171, 175)]
def tmp(i): return f"v{176 + i}"
AQ, AACC, AKF, AVF, AFREE = 0, 32, 96, 128, 160
def vt(b, n): return f"v[{b}:{b+n-1}]"
def at(b, n): return f"a[{b}:{b+n-1}]"
MF = "v_mfma_f32_16x16x32_bf16"
PUB_T = 2

class Gen:
    def __init__(self, stamps=False, nt=" nt", split=24, wgrp=2, nahead=6, latepos=(20, 24, 28, 31), stf=" sc1", ldf=" sc1",
                 kvpos=(0, 2, 5, 8), dbg=(), rotO=False, rot=2, aahead=4, wof="", oa_t=29, warm=True, epark=True, lpark=True, nreg=7, lim=12, hdbg=False):
        self.A = Asm(); self.vm = []
        self.__dict__.update({k: v for k, v in locals().items() if k != "self"})
        self.latepos = list(latepos)
    def vm_issue(self, tag, n): self.vm += [tag] * n
    def vm_need(self, *tags):
        idx = max(i for i, q in enumerate(self.vm) if q in tags)
        return min(63, len(self.vm) - 1 - idx)
    def stamp(self, k):
        if self.stamps:
            self.A("s_memtime s[96:97]"); self.A("s_waitcnt lgkmcnt(0)"); self.A(f"v_writelane_b32 v{VST}, s96, {k}")
    def hstamp(self, k):
        if not self.hdbg: return
        A = self.A
        A("s_memrealtime s[100:101]"); A("s_waitcnt lgkmcnt(0)"); A(f"v_mov_b32 v{VST}, s100")
        self.one_lane([f"buffer_atomic_umax v{VST}, {vZero}, {srd(SDBG)}, 0 offen offset:{4*k} sc1"], wave0=True)
    def istamp(self):
        if self.hdbg:
            A = self.A; lab = A.newlabel("Lh")
            A(f"s_and_b32 s96, {sT}, 3"); A("s_cmp_eq_u32 s96, 3"); A(f"s_cbranch_scc0 {lab}")
            A("s_memrealtime s[100:101]"); A(f"s_add_u32 s96, {sT}, 9"); A("s_waitcnt lgkmcnt(0)"); A(f"v_mov_b32 v{VST}, s100")
            self.one_lane([f"buffer_atomic_umax v{VST}, {vZero}, {srd(SDBG)}, s96 offen sc1"], wave0=True)
            A.label(lab)
        if not self.stamps: return
        A = self.A
        A("s_memtime s[96:97]"); A("s_memrealtime s[100:101]"); A(f"s_add_u32 m0, {sT}, 32"); A("s_waitcnt lgkmcnt(0)")
        A(f"v_writelane_b32 v{VST+2}, s96, m0"); A(f"v_writelane_b32 v{VST+1}, s100, m0")
    def dma(self, voff, srdb, soff, imm, flags=""):
        return f"buffer_load_dwordx4 {voff}, {srd(srdb)}, {soff} offen offset:{imm}{flags} lds"
    def tile_KV(self, isK, slot):
        off, base, voffs, srdb = (sKoff, LK, vKd, SK) if isK else (sVoff, LV, vVd * 2, SV)
        g = [[self.dma(voffs[i], srdb, off, i * 1024, self.nt)] for i in range(4)]
        g[0] = [f"s_add_u32 m0, {sW4K}, {base + slot*T}", "@M0"] + g[0]
        g[3] = g[3] + [f"s_add_u32 {off}, {off}, {T}"]
        return g
    def tile_XW(self, xbase, wbase):
        return [[f"s_lshl_b32 {sXoff}, {sTi}, 6", f"s_add_u32 m0, {sW2K}, {xbase}", f"s_add_u32 {sXoff}, {sXoff}, {sXb}", self.dma(vXd[0], SX, sXoff, 0)],
                [f"s_lshl_b32 {sWoff}, {sTi}, 18", self.dma(vXd[1], SX, sXoff, 1024)],
                [f"s_add_u32 m0, {sW4K}, {wbase}", f"s_add_u32 {sWoff}, {sWoff}, {sWb}", self.dma(vWd[0], SWQ, sWoff, 0)],
                [f"s_add_u32 {sTi}, {sTi}, 1", self.dma(vWd[1], SWQ, sWoff, 1024)],
                [f"s_and_b32 {sTi}, {sTi}, 15", self.dma(vWd[2], SWQ, sWoff, 2048)],
                [self.dma(vWd[3], SWQ, sWoff, 3072)]]
    def tile_Wo(self, slot):
        g = [[self.dma(vWs[i], SWO, sWToff, i * 1024, self.wof)] for i in range(4)]
        g[0] = [f"s_lshl_b32 {sWToff}, {sQw}, 15", f"s_add_u32 m0, {sW4K}, {slot * T}", f"s_add_u32 {sWToff}, {sWToff}, {sWP}"] + g[0]
        g[1] = [f"s_add_u32 {sQw}, {sQw}, 1"] + g[1]
        g[2] = [f"s_and_b32 {sQw}, {sQw}, 31"] + g[2]
        return g
    def emit_groups(self, groups):
        for g in groups:
            for l in g: self.A("s_nop 0" if l == "@M0" else l)
    @staticmethod
    def cost(l):
        if l.startswith("v_exp"): return 8
        if l.startswith("buffer_"): return 16
        return 4
    def spread(self, fill, gaps, lo, hi, base):
        tot = sum(self.cost(l) for l in fill) + sum(base[lo:hi])
        per = tot / (hi - lo); g = lo; acc = 0.0
        k = 0
        for g in range(lo, hi):
            acc += base[g]; tgt = per * (g - lo + 1)
            while k < len(fill) and (acc + self.cost(fill[k]) / 2 <= tgt or g == hi - 1):
                gaps[g].append(fill[k]); acc += self.cost(fill[k]); base[g] += self.cost(fill[k]); k += 1
    def exp_ops(self, S, lo, hi):
        ops = []
        ex = lambda i: f"v_exp_f32 v{S+i}, v{S+i}"
        def cvt(i):
            kb, qb, r = i // 8, (i // 4) % 2, i % 4
            return f"v_cvt_pk_bf16_f32 v{P0 + 8*(kb//2) + 4*qb + 2*(kb%2) + r//2}, v{S+i}, v{S+i+1}"
        prs = list(range(lo, hi, 2))
        for k, i in enumerate(prs):
            ops += [ex(i), ex(i + 1)]
            if k > 0: ops += [cvt(prs[k-1])]
        ops += ["s_nop 0", cvt(prs[-1])]
        return ops
    def max_ops(self, S):
        ops = []
        for qb in range(2):
            r = [S + 8 * kb + 4 * qb + j for kb in range(4) for j in range(4)]
            o = [f"v_max3_f32 {vMx[qb]}, v{r[0]}, v{r[1]}, v{r[2]}"]
            for i in range(3, 15, 2): o.append(f"v_max3_f32 {vMx[qb]}, {vMx[qb]}, v{r[i]}, v{r[i+1]}")
            o.append(f"v_max_f32 {vMx[qb]}, {vMx[qb]}, v{r[15]}")
            ops.append(o)
        out = [x for pr in zip(*ops) for x in pr]
        out.append(f"v_max_f32 {vMc}, {vMx[0]}, {vMx[1]}")
        return out
    def qk_units(self, Sn, slot, tag="k"):
        un = []
        for i in range(16):
            kb, s = i // 4, i % 4
            fr = AKF + 4 * (i % 8)
            ms = [f"{MF} {vt(Sn+8*kb+4*qb,4)}, {at(fr,4)}, {at(AQ+16*qb+4*s,4)}, {vt(NEG+4*qb,4) if s == 0 else vt(Sn+8*kb+4*qb,4)}" for qb in range(2)]
            un.append((ms, [(tag, i)], [(f"ds_read_b128 {at(fr,4)}, {vKa[s]} offset:{slot*T + kb*4096}", (tag, i))]))
        return un
    def pv_units(self, slot):
        un = []
        for i in range(16):
            u, db = i // 8, i % 8
            fr = AVF + 4 * (i % 8)
            ms = [f"{MF} {vt(O0+8*db+4*qb,4)}, {at(fr,4)}, {vt(P0+8*u+4*qb,4)}, {vt(O0+8*db+4*qb,4)}" for qb in range(2)]
            un.append((ms, [("v", i)], [(f"ds_read_b64_tr_b16 {at(fr,2)}, {vVa[db]} offset:{slot*T + u*8192}", ("v", i)),
                                          (f"ds_read_b64_tr_b16 {at(fr+2,2)}, {vVa[db]} offset:{slot*T + u*8192 + 4096}", ("v", i))]))
        return un
    def stream(self, units, nun, NA, G, gaps, mid, extra=None):
        A = self.A
        for i in range(nun):
            if i % G == 0: A.lds_wait(*sum((units[j][1] for j in range(i, min(nun, i + G))), []))
            rds = units[i + NA][2] if i + NA < len(units) else []
            A(units[i][0][0])
            mid(i)
            if rds: A.lds(*rds[0])
            for l in gaps[2 * i]: A(l)
            A(units[i][0][1])
            for r in rds[1:]: A.lds(*r)
            for l in gaps[2 * i + 1]: A(l)
            if extra and i in extra: A(extra[i])
    def place(self, gaps, base, groups, positions):
        for g, p in zip(groups, positions):
            if "@M0" in g:
                k = g.index("@M0"); gaps[p - 1] = gaps[p - 1] + g[:k]; base[p - 1] += 4 * k; g = g[k + 1:]
            gaps[p] = gaps[p] + g; base[p] += sum(self.cost(l) for l in g)
    def simulate_loop(self):
        n1, n2, n3 = {}, {}, {}
        for t in range(32):
            n1[t] = self.vm_need(("V", t))
            self.vm_issue(("V", t + 2), 4)
            n2[t] = self.vm_need(("K", t + 2)) if t < 30 else 63
            self.vm_issue(("K", t + 4), 4)
            if t == PUB_T: n3[t] = self.vm_need(("FZ",))
        return n1, n2, n3
    def aload(self, R, j, soff):
        return [f"buffer_load_dwordx4 {R(4*j,4)}, {vL16}, {srd(SWS)}, {soff} offen offset:{(j%4)*1024}{self.ldf}"]
    def body(self, c, n1, n2):
        A = self.A
        par = c % 2; NA = self.nahead; G = self.wgrp
        S, Sn = (SA, SB) if par == 0 else (SB, SA)
        sel = lambda d: min(v for t, v in d.items() if t % 6 == c)
        units = self.qk_units(Sn, (c + 1) % 3) + self.pv_units(c % 3) + self.qk_units(S, (c + 2) % 3, "kn")[:NA]
        bp = 16 - NA
        gaps = [[] for _ in range(64)]; base = [0] * 64
        for i in range(32):
            nr = len(units[i + NA][2])
            base[2 * i] += 4; base[2 * i + 1] += 4 * (nr - 1)
            if (i + 1) % G == 0: base[2 * i + 1] += 4
            if i % 16 == bp: base[2 * i] += 12
        self.place(gaps, base, self.tile_KV(False, (c + 2) % 3), [p + 1 for p in self.latepos[:3]] + [31])
        self.place(gaps, base, self.tile_KV(True, (c + 1) % 3), [32 + p + 1 for p in self.latepos[:3]] + [63])
        self.spread(self.exp_ops(S, 0, self.split), gaps, 0, 32, base)
        self.spread(self.exp_ops(S, self.split, 32), gaps, 32, 32 + self.lim, base)
        self.spread(self.max_ops(Sn), gaps, 32 + self.lim, 64, base)
        lm = lambda u, qb: f"{MF} {vt(LACC+4*qb,4)}, {vt(ONES,4)}, {vt(P0+8*u+4*qb,4)}, {vt(LACC+4*qb,4)}"
        extra = {16 + 3: lm(0, 0), 16 + 7: lm(0, 1), 16 + 11: lm(1, 0), 16 + 15: lm(1, 1)}
        def mid(i):
            if i % 16 == bp:
                A(f"s_waitcnt vmcnt({sel(n1) if i < 16 else sel(n2)})"); A("s_barrier")
        A.lds_q = [("k", i) for i in range(NA)]
        self.stream(units, 32, NA, G, gaps, mid, extra)
    def widen(self, a, b):
        return [[f"v_permlane32_swap_b32 v{a}, v{b}", f"v_permlane32_swap_b32 v{a+1}, v{b+1}"],
                [f"v_permlane16_swap_b32 v{a}, v{b}", f"v_permlane16_swap_b32 v{a+1}, v{b+1}"]]
    def qfin_ops(self, from_acc):
        pair = vt(int(vF[0][1:]), 2); out = []
        for s in range(4):
            t = P0 if from_acc else O0 + 16 * s
            if from_acc: out += [f"v_accvgpr_read_b32 v{t+j}, a{AACC+16*s+j}" for j in range(16)]
            out += [f"v_pk_mul_f32 {vt(t+2*j,2)}, {vt(t+2*j,2)}, {pair}" for j in range(8)]
            for q4 in range(4): out += [f"v_cvt_pk_bf16_f32 v{t+4*q4+j}, v{t+4*q4+2*j}, v{t+4*q4+2*j+1}" for j in range(2)]
            w0, w1 = self.widen(t, t + 8), self.widen(t + 4, t + 12)
            out += ["s_nop 0"] + w0[0] + w1[0] + w0[1] + w1[1]
            for qb in range(2):
                for j, r in enumerate((t + 4*qb, t + 4*qb + 1, t + 8 + 4*qb, t + 8 + 4*qb + 1)):
                    out.append(f"v_accvgpr_write_b32 a{AQ+16*qb+4*s+j}, v{r}")
        return out
    def zero_acc(self): return [f"v_accvgpr_write_b32 a{AACC+i}, 0" for i in range(64)]
    def epilogue(self, hold):
        A = self.A
        A("s_nop 4")
        for qb in range(2):
            A(f"v_rcp_f32 v{vInv+2*qb}, v{LACC+4*qb}"); A(f"v_rcp_f32 v{vInv+2*qb+1}, v{LACC+4*qb}")
        A("s_nop 0")
        for v in range(4):
            for qb in range(2):
                src = [O0 + 16*v + 4*qb, O0 + 16*v + 8 + 4*qb]
                dst = HELD + 8*v + 4*qb if hold else SA + 8*v + 4*qb
                for b in src:
                    for j in range(2): A(f"v_pk_mul_f32 {vt(b+2*j,2)}, {vt(b+2*j,2)}, {vt(vInv+2*qb,2)}")
                for k, b in enumerate(src):
                    for j in range(2): A(f"v_cvt_pk_bf16_f32 v{dst+2*k+j}, v{b+2*j}, v{b+2*j+1}")
                if not hold: A(self.ostore(dst, v, qb))
            if not hold: A(f"s_add_u32 {sOT}, {sOT}, 4096")
    def ostore(self, reg, v, qb):
        return f"buffer_store_dwordx4 {vt(reg,4)}, {vL16}, {srd(SWS)}, {sOT} offen offset:{qb*1024}{self.stf}"
    def store_held(self):
        for v in range(4):
            for qb in range(2): self.A(self.ostore(HELD + 8*v + 4*qb, v, qb))
            self.A(f"s_add_u32 {sOT}, {sOT}, 4096")
    def make_srd(self, b, p, size):
        A = self.A
        A(f"s_mov_b32 s{b}, s{p}"); A(f"s_mov_b32 s{b+1}, s{p+1}")
        A(f"s_mov_b32 s{b+2}, 0x{size:x}"); A(f"s_mov_b32 s{b+3}, 0x20000")
    def one_lane(self, lines, wave0=False):
        A = self.A
        lab = A.newlabel("Lo")
        if wave0: A(f"s_cmp_eq_u32 {sW}, 0"); A(f"s_cbranch_scc0 {lab}")
        A("s_mov_b64 exec, 1")
        for l in lines: A(l)
        A("s_mov_b64 exec, -1")
        if wave0: A.label(lab)
    def spin(self, name, cmp_line, load_line, sleep):
        A = self.A
        A(f"s_mov_b32 {sSpin}, 0x40000")
        A.label(name)
        A(cmp_line)
        A(f"s_cbranch_vccz {name}_ok")
        A(f"s_sub_u32 {sSpin}, {sSpin}, 1"); A(f"s_cbranch_scc1 {name}_ok")
        if sleep: A(f"s_sleep {sleep}")
        A(load_line)
        A("s_waitcnt vmcnt(0)")
        A(f"s_branch {name}")
        A.label(name + "_ok")
    def rowmax(self, floor):
        A = self.A
        for qb, tm in ((0, vTm), (1, vMc)): A(f"v_mov_b32 {tm}, {vMx[qb]}")
        A("s_nop 0")
        for qb, tm in ((0, vTm), (1, vMc)): A(f"v_permlane32_swap_b32 {vMx[qb]}, {tm}")
        for qb, tm in ((0, vTm), (1, vMc)): A(f"v_max_f32 {vMx[qb]}, {vMx[qb]}, {tm}")
        for qb, tm in ((0, vTm), (1, vMc)): A(f"v_mov_b32 {tm}, {vMx[qb]}")
        A("s_nop 0")
        for qb, tm in ((0, vTm), (1, vMc)): A(f"v_permlane16_swap_b32 {vMx[qb]}, {tm}")
        for qb, tm in ((0, vTm), (1, vMc)): A(f"v_max3_f32 {vMx[qb]}, {vMx[qb]}, {tm}, {floor}")

    def kernel(self):
        A = self.A
        tg, tl15, tr, tc, ta, tb, td, te = [tmp(i) for i in range(8)]
        A("s_cmp_ge_u32 s2, 256"); A("s_cbranch_scc1 L_end")
        if self.stamps: A("s_memrealtime s[98:99]")
        A("s_load_dwordx16 s[64:79], s[0:1], 0")
        self.stamp(0)
        A("v_lshrrev_b32 v1, 6, v0"); A("v_and_b32 v2, 63, v0")
        A(f"v_readfirstlane_b32 {sW}, v1")
        A(f"v_lshlrev_b32 {vL16}, 4, v2")
        A(f"s_getpc_b64 s[{SCODE}:{SCODE+1}]")
        A.label("L_pc")
        A(f"s_mov_b32 s{SCODE+2}, L_codeend-L_pc"); A(f"s_mov_b32 s{SCODE+3}, 0x20000")
        A(f"s_lshr_b32 {sT0}, s2, 3"); A(f"s_lshl_b32 {sT0}, {sT0}, 2"); A(f"s_add_u32 {sT0}, {sT0}, {sW}")
        A(f"s_and_b32 {sT0}, {sT0}, 63"); A(f"s_lshl_b32 {sT0}, {sT0}, 10")
        A(f"buffer_load_dwordx4 v[128:131], {vL16}, {srd(SCODE)}, {sT0} offen"); self.vm_issue(("CODE",), 1)
        A(f"s_lshl_b32 {sW4K}, {sW}, 12"); A(f"s_lshl_b32 {sW2K}, {sW}, 11")
        A(f"v_lshrrev_b32 {tg}, 4, v2"); A(f"v_and_b32 {tc}, 3, v2")
        A(f"v_lshrrev_b32 {ta}, 2, v2"); A(f"v_lshl_add_u32 {ta}, v1, 5, {ta}")
        A(f"v_sub_u32 {tb}, 0, {tg}"); A(f"v_and_b32 {tb}, 3, {tb}"); A(f"v_xor_b32 {tb}, {tb}, {tc}"); A(f"v_lshlrev_b32 {tb}, 4, {tb}")
        A(f"v_lshl_add_u32 {vXd[0]}, {ta}, 10, {tb}"); A(f"v_add_u32 {vXd[1]}, {16384 - 1024}, {vXd[0]}")
        A(f"v_lshrrev_b32 {ta}, 5, v2"); A(f"v_and_b32 {tb}, 1, v1"); A(f"v_lshl_add_u32 {tb}, {tb}, 2, {ta}"); A(f"v_lshlrev_b32 {tb}, 1, {tb}")
        A(f"v_and_b32 {td}, 31, v2"); A(f"v_xor_b32 {tb}, {tb}, {td}"); A(f"v_lshlrev_b32 {tb}, 4, {tb}")
        A(f"v_lshl_add_u32 {ta}, v1, 3, {ta}"); A(f"v_lshl_add_u32 {vWd[0]}, {ta}, 13, {tb}"); A(f"v_xor_b32 {tb}, 64, {vWd[0]}")
        A(f"v_add_u32 {vWd[1]}, 15360, {tb}"); A(f"v_add_u32 {vWd[2]}, {2*15360}, {vWd[0]}"); A(f"v_add_u32 {vWd[3]}, {3*15360}, {tb}")
        A(f"s_and_b32 {sBat}, s2, 1"); A(f"s_lshl_b32 {sBat}, {sBat}, 3")
        A(f"s_bfe_u32 {sT1}, s2, 0x30003"); A(f"s_add_u32 {sBat}, {sBat}, {sT1}")
        A(f"s_lshr_b32 {sT2}, s2, 6")
        if self.rot == 2:
            A(f"s_lshl_b32 {sTi}, {sT2}, 1"); A(f"s_add_u32 {sTi}, {sTi}, {sT1}"); A(f"s_lshl_b32 {sTi}, {sTi}, 1"); A(f"s_and_b32 {sTi}, {sTi}, 15")
        elif self.rot == 1:
            A(f"s_add_u32 {sTi}, {sT2}, {sT1}"); A(f"s_and_b32 {sTi}, {sTi}, 1"); A(f"s_lshl_b32 {sTi}, {sTi}, 3")
        elif self.rot == 3:
            A(f"s_add_u32 {sTi}, {sT2}, {sT1}"); A(f"s_and_b32 {sTi}, {sTi}, 3"); A(f"s_lshl_b32 {sTi}, {sTi}, 2")
        else: A(f"s_mov_b32 {sTi}, 0")
        A(f"s_bfe_u32 {sT1}, s2, 0x20001"); A(f"s_lshl_b32 {sT1}, {sT1}, 3")
        A(f"s_lshl_b32 {sT3}, {sT2}, 1"); A(f"s_add_u32 {sT3}, {sT3}, {sT1}")
        A(f"s_add_u32 {sT1}, {sT1}, {sT2}")
        A(f"s_lshl_b32 {sXb}, {sBat}, 17"); A(f"s_lshl_b32 {sWb}, {sT3}, 8")
        A("s_waitcnt lgkmcnt(0)")
        self.make_srd(SX, 64, 2 << 20); self.make_srd(SWQ, 70, 4 << 20)
        XS = [9 * T, 9 * T + 8192, 2 * T, 2 * T + 8192]; WS_ = [6 * T, 7 * T, 8 * T, 5 * T]
        self.emit_groups(self.tile_XW(XS[0], WS_[0])); self.vm_issue(("P", 0), 6)
        self.stamp(1)
        A(f"s_lshl_b32 {sT2}, {sBat}, 5"); A(f"s_add_u32 {sT2}, {sT2}, {sT3}"); A(f"s_lshl_b32 {sT2}, {sT2}, 18")
        A(f"s_add_u32 s66, s66, {sT2}"); A("s_addc_u32 s67, s67, 0"); A(f"s_add_u32 s68, s68, {sT2}"); A("s_addc_u32 s69, s69, 0")
        A(f"s_mov_b32 {sKoff}, 0"); A(f"s_mov_b32 {sVoff}, 0")
        A(f"s_lshl_b32 {sT0}, {sBat}, 1"); A(f"s_lshr_b32 {sT2}, {sW}, 1"); A(f"s_add_u32 {sT0}, {sT0}, {sT2}")
        A(f"s_lshl_b32 {sFlagP}, {sT0}, 2"); A(f"s_lshr_b32 {sT2}, {sT1}, 3"); A(f"s_add_u32 {sFlagP}, {sFlagP}, {sT2}")
        A(f"s_lshl_b32 {sFlagP}, {sFlagP}, 7"); A(f"s_and_b32 {sT2}, {sT1}, 3"); A(f"s_lshl_b32 {sT2}, {sT2}, 3")
        A(f"s_add_u32 {sFlagP}, {sFlagP}, {sT2}"); A(f"s_and_b32 {sT2}, {sW}, 1"); A(f"s_lshl_b32 {sT1}, {sT2}, 2")
        A(f"s_add_u32 {sFlagP}, {sFlagP}, {sT1}"); A(f"s_add_u32 {sFlagP}, {sFlagP}, {WS_FLAG}")
        A(f"s_lshl_b32 {sT0}, {sT0}, 5"); A(f"s_add_u32 {sT0}, {sT0}, {sT3}"); A(f"s_lshl_b32 {sT0}, {sT0}, 14")
        A(f"s_lshl_b32 {sT2}, {sT2}, 11"); A(f"s_add_u32 {sOT}, {sT0}, {sT2}")
        self.emit_groups(self.tile_XW(XS[1], WS_[1])); self.vm_issue(("P", 1), 6)
        A(f"s_mov_b32 {sC}, 0x{f2u(CSC):08x}"); A(f"s_mov_b32 {sThr}, 0x{f2u(8.0):08x}")
        self.make_srd(SK, 66, 512 << 10); self.make_srd(SV, 68, 512 << 10)
        self.make_srd(SWO, 72, 4 << 20); self.make_srd(SWS, 78, WS_SIZE)
        self.make_srd(SOUT, 74, 2 << 20); self.make_srd(SDBG, 76, 256)
        A(f"v_and_b32 {tl15}, 15, v2"); A(f"v_lshl_add_u32 {ta}, v1, 4, {tg}")
        A(f"v_lshlrev_b32 {tb}, 1, {tg}"); A(f"v_xor_b32 {tb}, {tb}, {tl15}"); A(f"v_lshlrev_b32 {tb}, 4, {tb}")
        A(f"v_lshl_add_u32 {vVd[0]}, {ta}, 8, {tb}"); A(f"v_xor_b32 {vVd[1]}, 128, {vVd[0]}")
        A(f"v_xor_b32 {tb}, {tl15}, {tg}"); A(f"v_lshlrev_b32 {tb}, 4, {tb}")
        A(f"v_lshl_add_u32 {vKd[0]}, {ta}, 8, {tb}")
        for i in range(1, 4): A(f"v_xor_b32 {vKd[i]}, {64*i}, {vKd[0]}")
        self.emit_groups(self.tile_XW(XS[2], WS_[2])); self.vm_issue(("P", 2), 6)
        A(f"v_lshl_add_u32 {vKa[0]}, {tl15}, 8, {tb}")
        for s in range(1, 4): A(f"v_xor_b32 {vKa[s]}, {64*s}, {vKa[0]}")
        A(f"v_bfe_u32 {tr}, v2, 2, 2")
        A(f"v_sub_u32 {ta}, 0, {tr}"); A(f"v_and_b32 {ta}, 3, {ta}"); A(f"v_xor_b32 {ta}, {ta}, {tg}"); A(f"v_lshlrev_b32 {ta}, 4, {ta}")
        A(f"v_lshl_add_u32 {tb}, v1, 5, {tl15}"); A(f"v_lshl_add_u32 {ta}, {tb}, 6, {ta}")
        A(f"v_add_u32 {vXa}, {XS[0]}, {ta}")
        A(f"v_and_b32 {ta}, 1, {tg}"); A(f"v_lshl_add_u32 {ta}, {ta}, 2, {tr}")
        A(f"v_lshlrev_b32 {ta}, 5, {ta}"); A(f"v_lshl_add_u32 {ta}, {tc}, 3, {ta}")
        A(f"v_lshl_add_u32 {td}, {tg}, 2, {tr}")
        A(f"v_lshl_add_u32 {tb}, {td}, 8, {ta}"); A(f"v_add_u32 {vVa[0]}, {LV}, {tb}")
        for b in range(1, 8): A(f"v_xor_b32 {vVa[b]}, {32*b}, {vVa[0]}")
        A(f"v_lshl_add_u32 {tb}, {tg}, 3, {tr}"); A(f"v_lshl_add_u32 {tb}, {tb}, 9, {ta}"); A(f"v_add_u32 {vWa[0]}, {5*T}, {tb}")
        for b in range(1, 8): A(f"v_xor_b32 {vWa[b]}, {32*b}, {vWa[0]}")
        A(f"v_lshrrev_b32 {ta}, 3, v2"); A(f"v_and_b32 {tb}, 7, v2"); A(f"v_lshlrev_b32 {te}, 1, {tg}"); A(f"v_xor_b32 {tb}, {tb}, {te}")
        A(f"v_lshlrev_b32 {tb}, 4, {tb}"); A(f"v_lshl_add_u32 {vWs[0]}, {ta}, 10, {tb}")
        for i in range(1, 4): A(f"v_add_u32 {vWs[i]}, {i * 7168}, {vWs[0]}")
        A(f"v_bfe_u32 {ta}, {td}, 1, 2"); A(f"v_lshlrev_b32 {ta}, 5, {ta}"); A(f"v_lshl_add_u32 {ta}, {tc}, 3, {ta}")
        A(f"v_lshl_add_u32 {ta}, {td}, 7, {ta}"); A(f"v_add_u32 {vWr}, {sW4K}, {ta}")
        A(f"v_cmp_eq_u32 vcc, 0, {tc}"); A(f"v_mov_b32 {ta}, 0x3f803f80"); A(f"v_mov_b32 {vZero}, 0"); A(f"v_mov_b32 {vOne}, 1")
        for k in range(4): A(f"v_cndmask_b32 v{ONES+k}, 0, {ta}, vcc")
        for k in range(16): A(f"v_mov_b32 v{LACC+k}, 0")
        A(f"s_and_b32 {sT0}, s2, 7"); A(f"s_lshl_b32 {sT0}, {sT0}, 2"); A(f"s_lshr_b32 {sT1}, s2, 6")
        A(f"s_add_u32 {sB2}, {sT0}, {sT1}")
        A(f"s_lshl_b32 {sT0}, {sB2}, 19"); A(f"s_lshl_b32 {sT1}, {sW}, 17"); A(f"s_add_u32 {sAreal}, {sT0}, {sT1}")
        A(f"s_bfe_u32 {sT0}, s2, 0x30003"); A(f"s_lshl_b32 {sT0}, {sT0}, 7")
        A(f"s_lshl_b32 {sT1}, {sW}, 20"); A(f"s_add_u32 {sWP}, {sT0}, {sT1}")
        A(f"s_lshr_b32 {sT0}, {sB2}, 1"); A(f"s_lshl_b32 {sT0}, {sT0}, 2"); A(f"s_add_u32 {sT0}, {sT0}, {64 if self.hdbg else 0}"); A(f"v_mov_b32 {vPoff}, {sT0}")
        if self.rotO:
            A(f"s_bfe_u32 {sT0}, s2, 0x30003"); A(f"s_lshr_b32 {sT1}, s2, 6"); A(f"s_lshl_b32 {sT1}, {sT1}, 1"); A(f"s_add_u32 {sT0}, {sT0}, {sT1}")
            A(f"s_lshl_b32 {sT0}, {sT0}, 2"); A(f"s_and_b32 {sQw}, {sT0}, 31")
        else: A(f"s_mov_b32 {sQw}, 0")
        A(f"s_mov_b32 {sQa}, {sQw}")
        A(f"s_lshl_b32 {sFlagC}, {sB2}, 2"); A(f"s_add_u32 {sFlagC}, {sFlagC}, {sW}"); A(f"s_lshl_b32 {sFlagC}, {sFlagC}, 7")
        A(f"s_add_u32 {sFlagC}, {sFlagC}, {WS_FLAG}")
        self.one_lane([f"buffer_store_dword {vZero}, {vZero}, {srd(SWS)}, {sFlagP} offen sc1"]); self.vm_issue(("FZ",), 1)
        self.hstamp(0)
        NA = 5; BP = 16 - NA; NU = 256
        XF = lambda pi, qb: at(AKF + 8 * (pi % 2) + 4 * qb, 4)
        units = []
        for pi in range(16):
            for t in range(16):
                m = 16 * pi + t; fr = AVF + 4 * (m % 8)
                D = lambda qb: vt(O0 + 8*t + 4*qb, 4) if t < 8 else at(AACC + 8*(t-8) + 4*qb, 4)
                wo_ = WS_[pi % 4] - 5 * T + (t // 8) * 256
                units.append(([f"{MF} {D(qb)}, {at(fr,4)}, {XF(pi, qb)}, {'0' if pi == 0 else D(qb)}" for qb in range(2)],
                              [("w", m), ("x", pi)],
                              [(f"ds_read_b64_tr_b16 {at(fr,2)}, {vWa[t % 8]} offset:{wo_}", ("w", m)),
                               (f"ds_read_b64_tr_b16 {at(fr+2,2)}, {vWa[t % 8]} offset:{wo_ + 2048}", ("w", m))]))
        sched = []
        early = [("K", 0), ("K", 1), ("V", 0), ("V", 1)]
        for j in range(3, 16):
            first = 0 if j == 3 else 16 * (j - 3) + BP
            sched.append((first, ("P", j), self.tile_XW(XS[j % 4], WS_[j % 4])))
            for (kind, sl), at_ in zip(early, self.kvpos):
                if at_ == j - 3: sched.append((first, (kind, sl), self.tile_KV(kind == "K", sl)))
        gaps = [[] for _ in range(2 * NU)]; vmat = {}
        pos = 0
        for first, tag, groups in sched:
            for g in groups:
                pos = max(pos, first)
                g = [("s_nop 0" if l == "@M0" else l) for l in g]
                k = max(i for i, l in enumerate(g) if l.startswith("buffer_"))
                gaps[2 * pos] += g[:k]; gaps[2 * pos + 1] += g[k:]; vmat[pos] = tag
                pos += 1
        xrd = lambda pi, qb: (f"ds_read_b128 {XF(pi, qb)}, {vXa} offset:{qb * 1024}", ("x", pi))
        def mid(m):
            pi, k = m // 16, m % 16
            if m - 1 in vmat: self.vm_issue(vmat[m - 1], 1)
            if pi < 15:
                if k == 2: A(f"v_add_u32 {vXa}, {XS[(pi + 1) % 4] - XS[pi % 4]}, {vXa}")
                if k == BP:
                    A(f"s_waitcnt vmcnt({self.vm_need(('P', pi + 1))})"); A("s_barrier")
                    if pi % 2 == 1: self.stamp(3 + pi // 2)
                if BP < k <= BP + 2: A.lds(*xrd(pi + 1, k - BP - 1))
        A(f"s_waitcnt vmcnt({self.vm_need(('P', 0))})")
        A("s_barrier")
        self.stamp(2); self.hstamp(1)
        A.lds_reset()
        for qb in range(2): A.lds(*xrd(0, qb))
        for m in range(NA):
            for r in units[m][2]: A.lds(*r)
        self.stream(units, NU, NA, 2, gaps, mid)
        assert NU - 1 not in vmat
        A(f"v_mov_b32 {vF[0]}, {sC}"); A(f"v_mov_b32 {vF[1]}, {sC}")
        for k in range(8): A(f"v_mov_b32 v{NEG+k}, 0")
        A(f"s_waitcnt vmcnt({self.vm_need(('K', 0))})")
        A("s_barrier")
        units = self.qk_units(SA, 0) + self.qk_units(SB, 1, "kn")[:6]
        for i in range(6): A.lds(*units[i][2][0])
        g = self.tile_KV(True, 2); self.vm_issue(("K", 2), 4)
        qa = self.qfin_ops(False); n4 = len(qa) // 4
        for i in range(4):
            self.emit_groups(g[i:i+1])
            for l in qa[n4*i:n4*i+n4]: A(l)
        self.stamp(10); self.hstamp(2)
        gaps = [[] for _ in range(32)]; base = [4, 0] * 16
        if self.epark:
            grp = [x for k in range(4) for x in self.tile_Wo(6 + k)]
            for i, gq in enumerate(grp):
                gaps[2 * i] += gq[:-1]; gaps[2 * i + 1] += gq[-1:]; base[2 * i] += 4 * (len(gq) - 1); base[2 * i + 1] += 16
        self.spread([f"v_mov_b32 v{O0+k}, 0" for k in range(64)], gaps, 0, 32, base)
        def mid0(i):
            if self.epark and i > 0: self.vm_issue(("EP",), 1)
            if i == 10: A(f"s_waitcnt vmcnt({self.vm_need(('K', 1))})"); A("s_barrier")
        self.stream(units, 16, 6, 2, gaps, mid0)
        if self.epark: self.vm_issue(("EP",), 1)
        A("s_barrier")
        g = self.tile_KV(True, 0); self.vm_issue(("K", 3), 4)
        self.emit_groups(g[:2])
        for l in self.max_ops(SA): A(l)
        self.emit_groups(g[2:])
        if self.warm:
            A(f"s_lshl_b32 {sT0}, s2, 14"); A(f"s_add_u32 {sT0}, {sT0}, {sW4K}")
            for i in range(4): A(f"buffer_load_dwordx4 {at(240 + 4*i, 4)}, {vL16}, {srd(SWO)}, {sT0} offen offset:{i*1024}")
            self.vm_issue(("WARM",), 4)
        A(f"s_mov_b32 {sT}, 0")
        A(f"s_call_b64 {sRet}, L_init")
        n1, n2, n3 = self.simulate_loop()
        self.n = (n1, n2, n3)
        xs = {PUB_T, 14, 15, 31, self.oa_t}
        if self.lpark: xs |= {28, 29, 30}
        xmask = sum(1 << t for t in xs)
        A.label("L_loop")
        for c in range(6):
            self.body(c, n1, n2)
            self.istamp()
            A(f"s_bitcmp1_b32 0x{xmask:08x}, {sT}"); A(f"s_cbranch_scc1 L_x_{c}")
            A.label(f"L_c_{c}")
            A(f"v_cmp_lt_f32 vcc, {sThr}, {vMc}")
            A(f"s_cbranch_vccnz L_r_{c}")
            A.label(f"L_n_{c}")
            A(f"s_add_u32 {sT}, {sT}, 1")
        A("s_branch L_loop")
        for c in range(6):
            A.label(f"L_x_{c}"); A(f"s_call_b64 {sRet}, L_extras"); A(f"s_branch L_c_{c}")
            A.label(f"L_r_{c}"); A(f"s_call_b64 {sLink2}, L_rare"); A(f"s_branch L_n_{c}")
        A(".p2align 3")
        ssub = lambda S: [f"v_sub_f32 v{S+i}, v{S+i}, {vMx[(i//4)%2]}" for i in range(32)]
        A.label("L_init")
        A(f"s_mov_b32 {sFloor}, 0x{f2u(-1e30):08x}")
        self.rowmax(sFloor)
        for i in range(8): A(f"v_sub_f32 v{NEG+i}, 0, {vMx[i//4]}")
        for l in ssub(SA): A(l)
        A(f"v_mov_b32 {vMc}, 0")
        A(f"s_setpc_b64 {sRet}")
        A.label("L_rare")
        self.rowmax("0")
        for qb in range(2): A(f"v_exp_f32 {vF[qb]}, -{vMx[qb]}")
        for i in range(8): A(f"v_sub_f32 v{NEG+i}, v{NEG+i}, {vMx[i//4]}")
        for qb in range(2): A(f"v_mul_f32 v{LACC+4*qb}, {vF[qb]}, v{LACC+4*qb}")
        for i in range(64): A(f"v_mul_f32 v{O0+i}, {vF[(i//4)%2]}, v{O0+i}")
        A(f"s_bitcmp1_b32 {sT}, 0"); A("s_cbranch_scc1 L_rare_a")
        for l in ssub(SB): A(l)
        A(f"s_setpc_b64 {sLink2}")
        A.label("L_rare_a")
        for l in ssub(SA): A(l)
        A(f"s_setpc_b64 {sLink2}")
        def tree(ts):
            if len(ts) == 1:
                A(f"s_branch L_t{ts[0]}"); return
            if len(ts) == 2:
                A(f"s_cmp_eq_u32 {sT}, {ts[0]}"); A(f"s_cbranch_scc1 L_t{ts[0]}"); A(f"s_branch L_t{ts[1]}"); return
            h = len(ts) // 2; lab = A.newlabel("Ld")
            A(f"s_cmp_ge_u32 {sT}, {ts[h]}"); A(f"s_cbranch_scc1 {lab}")
            tree(ts[:h]); A.label(lab); tree(ts[h:])
        A.label("L_extras")
        tree(sorted(xs))
        for t in sorted(xs):
            if t == 31: continue
            A.label(f"L_t{t}")
            if t == 14:
                A(f"v_cmp_lt_f32 vcc, {sThr}, {vMc}")
                A("s_cbranch_vccz L_x14b")
                A(f"s_call_b64 {sLink2}, L_rare")
                A.label("L_x14b")
                A(f"v_mov_b32 {vF[0]}, {sC}"); A(f"v_mov_b32 {vF[1]}, {sC}")
                for l in self.qfin_ops(True): A(l)
                for k in range(8): A(f"v_mov_b32 v{NEG+k}, 0")
                for l in self.zero_acc(): A(l)
                A(f"v_mov_b32 {vMc}, 0")
            if t == 15:
                self.epilogue(True)
                for i in range(64): A(f"v_mov_b32 v{O0+i}, 0")
                A(f"v_mov_b32 v{LACC}, 0"); A(f"v_mov_b32 v{LACC+4}, 0")
                self.stamp(11)
                A("s_branch L_init")
                continue
            if t == PUB_T:
                A(f"s_waitcnt vmcnt({n3[t]})"); A("s_barrier")
                A(f"s_lshl_b32 {sT0}, {sBat}, 2")
                self.one_lane([f"buffer_atomic_add {vOne}, {vZero}, {srd(SDBG)}, {sT0} offen offset:{64 if self.hdbg else 0} sc1"], wave0=True)
            if self.lpark and t in (28, 29, 30):
                if t == 28:
                    for k in range(3): A(f"s_mov_b32 s{SK+k}, s{SWO+k}")
                    for i in range(4): A(f"v_mov_b32 {vKd[i]}, {vWs[i]}")
                A(f"s_lshl_b32 {sKoff}, {sQw}, 15"); A(f"s_add_u32 {sKoff}, {sKoff}, {sWP}")
                A(f"s_add_u32 {sQw}, {sQw}, 1"); A(f"s_and_b32 {sQw}, {sQw}, 31")
            if t == self.oa_t: self.store_held()
            A(f"s_setpc_b64 {sRet}")
        A.label("L_t31")
        A("s_waitcnt lgkmcnt(0)")
        self.stamp(12)
        self.tail()
        self.hstamp(14)
        self.dump_stamps()
        A.label("L_end")
        A("s_endpgm")
        A.label("L_codeend")

    def tail(self):
        A = self.A
        vm = []
        def need(tag): return min(63, len(vm) - 1 - max(i for i, q in enumerate(vm) if q == tag)) if tag in vm else 63
        pollW = f"buffer_load_dword {vPoll}, {vPoff}, {srd(SDBG)}, 0 offen sc1"
        vRd = [[f"v{16 + 4*k + nb}" for nb in range(4)] for k in range(3)]
        vFl, vLin = "v28", "v29"
        order = ([6, 7, 8, 9] if self.epark else []) + ([0, 1, 2] if self.lpark else [])
        npark = len(order)
        order += [k for k in (3, 4, 5, 0, 1, 2, 6, 7, 8, 9) if k not in order]
        SLOT = lambda p: order[p % 10]
        NR = min(self.nreg, npark)
        A(pollW); vm.append("poll")
        if self.oa_t == 31: self.store_held(); vm += ["OB"] * 8
        self.epilogue(False); vm += ["OB"] * 8
        self.stamp(13)
        for k in range(3):
            A(f"v_add_u32 {vRd[k][0]}, {k * 65536}, {vWr}")
            for nb in range(1, 4): A(f"v_xor_b32 {vRd[k][nb]}, {32*nb}, {vRd[k][0]}")
        A(f"v_and_b32 {vFl}, 7, v2"); A(f"v_lshlrev_b32 {vFl}, 2, {vFl}")
        A(f"v_add_u32 {vLin}, {sW4K}, {vL16}")
        A("s_barrier")
        NS = 5
        ASET = lambda p: (lambda j, n: at(AQ + 16 * (p % NS) + j, n) if p % NS < 2 else at(AKF + 16 * (p % NS - 2) + j, n))
        def WSET(p):
            if p < min(NR, 6): return lambda j, n: at(AFREE + 16 * p + j, n)
            if p < NR: return lambda j, n: vt(P0 + 16 * (p - 6) + j, n)
            return lambda j, n: vt(O0 + 16 * (p % 3) + j, n)
        def wgroups(p): return [(x, ("W", p)) for x in self.tile_Wo(SLOT(p))]
        def agroups(p):
            g = [self.aload(ASET(p), j, sAoff) for j in range(4)]
            g[0] = [f"s_lshl_b32 {sAoff}, {sQa}, 12", f"s_add_u32 {sQa}, {sQa}, 1", f"s_add_u32 {sAoff}, {sAoff}, {sAreal}"] + g[0]
            g[1] = [f"s_and_b32 {sQa}, {sQa}, 31"] + g[1]
            return [(x, ("A", p)) for x in g]
        def wreads(p):
            base = SLOT(p) * T
            return [f"ds_read_b64_tr_b16 {WSET(p)(4*nb + 2*hf, 2)}, {vRd[base // 65536][nb]} offset:{base % 65536 + hf*2048}"
                    for nb in range(4) for hf in range(2)]
        def emit(g):
            for l in g[0]: A(l)
            vm.append(g[1])
        pollB = f"buffer_load_dword {vPoll}, {vFl}, {srd(SWS)}, {sFlagC} offen sc1"
        wn = npark; an = 0
        while wn < min(10, npark + 3):
            for g in wgroups(wn): emit(g)
            wn += 1
        A(f"s_waitcnt vmcnt({need('poll')})")
        A.lds_reset()
        for p in range(NR):
            for l in wreads(p): A(l)
            if p % 2 == 1 or p == NR - 1: A("s_waitcnt lgkmcnt(0)")
        self.spin("L_c1", f"v_cmp_gt_u32 vcc, 16, {vPoll}", pollW, 2)
        A(f"s_waitcnt vmcnt({need('OB')})")
        self.one_lane([f"buffer_store_dword {vOne}, {vZero}, {srd(SWS)}, {sFlagP} offen sc1"]); vm.append("fl")
        self.stamp(14); self.hstamp(11)
        while wn < 10 + NR:
            for g in wgroups(wn): emit(g)
            wn += 1
        A(pollB); vm.append("pb")
        self.stamp(15)
        A(f"s_waitcnt vmcnt({need('pb')})")
        self.spin("L_c2", f"v_cmp_ne_u32 vcc, 1, {vPoll}", pollB, 0)
        self.stamp(18); self.hstamp(12)
        while an < self.aahead:
            for g in agroups(an): emit(g)
            an += 1
        if NR == 0:
            for l in wreads(0): A.lds(l, ("w", 0))
        for p in range(32):
            tags = [("A", p)] + ([("W", p + 1)] if p < 31 else [])
            A(f"s_waitcnt vmcnt({min(need(tg) for tg in tags)})")
            A.lds_wait(("w", p))
            gs = []
            if an < 32: gs += agroups(an); an += 1
            if wn < 32 and wn - 10 <= p: gs = [x for pr in itertools.zip_longest(gs, wgroups(wn)) for x in pr if x]; wn += 1
            rds = wreads(p + 1) if NR <= p + 1 < 32 else []
            step = 2 if len(gs) > 4 else 4
            k = 0
            for nb in range(4):
                for q in range(4):
                    d = at(AACC + 16 * q + 4 * nb, 4)
                    A(f"{MF} {d}, {WSET(p)(4*nb, 4)}, {ASET(p)(4*q, 4)}, {d}")
                    if k % 2 == 1 and k // 2 < len(rds): A.lds(rds[k // 2], ("w", p + 1))
                    if k % step == 0 and k // step < len(gs): emit(gs[k // step])
                    k += 1
        self.stamp(16); self.hstamp(13)
        A(f"v_lshl_add_u32 v3, v1, 14, {vL16}")
        A("v_and_b32 v5, 15, v2"); A("v_lshrrev_b32 v6, 4, v2"); A("v_lshlrev_b32 v5, 10, v5"); A("v_lshl_add_u32 v5, v6, 4, v5")
        A(f"s_lshl_b32 {sT0}, {sB2}, 16"); A(f"s_lshl_b32 {sT1}, {sW}, 14"); A(f"s_add_u32 {sT0}, {sT0}, {sT1}")
        A(f"s_bfe_u32 {sT1}, s2, 0x30003"); A(f"s_lshl_b32 {sT1}, {sT1}, 7"); A(f"s_add_u32 {sT0}, {sT0}, {sT1}")
        A("s_barrier")
        for blk in range(4):
            for q in range(4):
                A(f"ds_write_b128 v3, {at(AACC+16*blk+4*q,4)} offset:{blk*4096+q*1024}")
                if (blk * 4 + q) % 8 == 7: A("s_waitcnt lgkmcnt(0)")
        A("s_barrier")
        for src in range(4):
            for q in range(4):
                A(f"ds_read_b128 {vt(64+16*src+4*q,4)}, {vLin} offset:{src*16384+q*1024}")
            if src % 2 == 1: A("s_waitcnt lgkmcnt(0)")
        for i in range(16): A(f"v_add_f32 v{64+i}, v{64+i}, v{80+i}")
        for i in range(16): A(f"v_add_f32 v{96+i}, v{96+i}, v{112+i}")
        for i in range(16): A(f"v_add_f32 v{64+i}, v{64+i}, v{96+i}")
        for j in range(8): A(f"v_cvt_pk_bf16_f32 v{80+j}, v{64+2*j}, v{64+2*j+1}")
        w0, w1 = self.widen(80, 82), self.widen(84, 86)
        A("s_nop 0")
        for l in w0[0] + w1[0] + w0[1] + w1[1]: A(l)
        A(f"buffer_store_dwordx4 {vt(80,4)}, v5, {srd(SOUT)}, {sT0} offen")
        A(f"buffer_store_dwordx4 {vt(84,4)}, v5, {srd(SOUT)}, {sT0} offen offset:64")

    def dump_stamps(self):
        if not self.stamps: return
        A = self.A
        A("s_waitcnt vmcnt(0)")
        self.stamp(17)
        A("s_memrealtime s[100:101]")
        A("s_getreg_b32 s3, hwreg(HW_REG_XCC_ID)")
        A("s_waitcnt lgkmcnt(0)")
        A(f"v_writelane_b32 v{VST}, s98, 61"); A(f"v_writelane_b32 v{VST}, s100, 62"); A(f"v_writelane_b32 v{VST}, s3, 63")
        A(f"s_lshl_b32 {sT1}, s2, 2"); A(f"s_add_u32 {sT1}, {sT1}, {sW}"); A(f"s_mul_i32 {sT1}, {sT1}, 768")
        A(f"s_add_u32 {sT1}, {sT1}, {WS_STAMP}")
        A(f"v_lshrrev_b32 v3, 2, {vL16}")
        for k in range(3): A(f"buffer_store_dword v{VST+k}, v3, {srd(SWS)}, {sT1} offen offset:{256*k}")

HDR = open("standalone__mha_block_cached__near_ridge.s.ref").read().split("; Override")[0]
def desc(name):
    return f""".amdhsa_kernel {name}
  .amdhsa_next_free_vgpr 512
  .amdhsa_next_free_sgpr 102
  .amdhsa_accum_offset 256
  .amdhsa_group_segment_fixed_size 0
  .amdhsa_kernarg_size 64
  .amdhsa_user_sgpr_count 2
  .amdhsa_user_sgpr_kernarg_segment_ptr 1
  .amdhsa_system_sgpr_workgroup_id_x 1
.end_amdhsa_kernel
"""
def build(path, verbose=False, cls=None, **kw):
    g = (cls or Gen)(**kw); g.kernel()
    la = align8(g.A.lines)
    bad = check_hazards(la)
    print(path, "hazards:", bad, "lines", len(la))
    if verbose: print(g.n)
    s = HDR + "; @launch grid=(256,1,1) block=(256,1,1) lds=163840\n"
    s += '.amdgcn_target "amdgcn-amd-amdhsa--gfx950"\n.text\n'
    s += f".globl {KN}\n.p2align 8\n.type {KN},@function\n{KN}:\n" + "\n".join(la) + "\n"
    s += '.section .rodata,"a"\n.p2align 6\n' + desc(KN)
    open(path, "w").write(s)
if __name__ == "__main__":
    build("v12.s")
    build("v12_h.s", hdbg=True)
```

```python
import sys, math, struct, itertools
sys.path.insert(0, "work")
from asmlib import Asm, check_hazards, align8

KN = "standalone__mha_block_cached__near_ridge_kernel"
def f2u(x): return struct.unpack("<I", struct.pack("<f", x))[0]
CSC = math.log2(math.e) / math.sqrt(128.0)
T = 16384
LK, LV = 0, 3 * T
WS_FLAG = 16 << 20
WS_STAMP = 21 << 20
WS_SIZE = 22 << 20
SK, SV, SX, SWQ, SWO, SWS, SOUT, SDBG = 4, 8, 12, 16, 20, 24, 28, 32
def srd(b): return f"s[{b}:{b+3}]"
sW, sW4K, sKoff, sVoff, sW2K, sWP, sThr, sT, sC, sQw, sFloor, sQa = [f"s{i}" for i in range(36, 48)]
sXoff, sWoff, sOT, sT0, sT1, sT2 = [f"s{i}" for i in range(48, 54)]
sLink = "s[54:55]"; sRet = "s[92:93]"; sLink2 = "s[94:95]"
sAoff, sWToff, sB2, sT3 = [f"s{i}" for i in range(56, 60)]
sTi, sXb, sWb, sAreal, sFlagP, sFlagC, sBat, sSpin = [f"s{i}" for i in range(80, 88)]
SCODE = 88
vWs = ["v3", "v4", "v5", "v6"]; vWr = "v7"
vInv = 8
vPoll = "v12"; vPoff = "v13"; vZero = "v14"; vOne = "v15"
vKa = [f"v{i}" for i in range(16, 20)]
vVa = [f"v{i}" for i in range(20, 28)]
vKd = [f"v{i}" for i in range(28, 32)]
vVd = ["v32", "v33"]; vMx = ["v34", "v35"]; vMc = "v36"; vTm = "v37"; vF = ["v38", "v39"]; vL16 = "v40"
VST = 41
ONES, LACC, NEG = 44, 48, 56
O0, SA, SB, P0, HELD = 64, 128, 160, 192, 208
vWa = [f"v{i}" for i in range(160, 168)]; vXa = "v168"; vXd = ["v169", "v170"]; vWd = [f"v{i}" for i in range(171, 175)]
def tmp(i): return f"v{176 + i}"
AQ, AACC, AKF, AVF, AFREE = 0, 32, 96, 128, 160
def vt(b, n): return f"v[{b}:{b+n-1}]"
def at(b, n): return f"a[{b}:{b+n-1}]"
MF = "v_mfma_f32_16x16x32_bf16"
PUB_T = 2

class Gen:
    def __init__(self, stamps=False, nt=" nt", split=24, wgrp=2, nahead=6, latepos=(20, 24, 28, 31), stf=" sc1", ldf=" sc1",
                 kvpos=(0, 2, 5, 8), dbg=(), rotO=False, rot=2, aahead=4, wof="", oa_t=29, warm=True, epark=True, lpark=True, nreg=7, lim=12, hdbg=False):
        self.A = Asm(); self.vm = []
        self.__dict__.update({k: v for k, v in locals().items() if k != "self"})
        self.latepos = list(latepos)
    def vm_issue(self, tag, n): self.vm += [tag] * n
    def vm_need(self, *tags):
        idx = max(i for i, q in enumerate(self.vm) if q in tags)
        return min(63, len(self.vm) - 1 - idx)
    def stamp(self, k):
        if self.stamps:
            self.A("s_memtime s[96:97]"); self.A("s_waitcnt lgkmcnt(0)"); self.A(f"v_writelane_b32 v{VST}, s96, {k}")
    def hstamp(self, k):
        if not self.hdbg: return
        A = self.A
        A("s_memrealtime s[100:101]"); A("s_waitcnt lgkmcnt(0)"); A(f"v_writelane_b32 v{VST}, s100, {k}")
        if k == 15:
            lab = A.newlabel("Lh")
            A(f"s_cmp_eq_u32 s2, {self.hdbg - 1}"); A(f"s_cbranch_scc0 {lab}"); A(f"s_cmp_eq_u32 {sW}, 0"); A(f"s_cbranch_scc0 {lab}")
            A(f"v_readlane_b32 s100, v{VST}, 0"); A("s_nop 3"); A(f"v_subrev_u32 v{VST}, s100, v{VST}"); A(f"v_lshrrev_b32 v{VST+1}, 2, {vL16}")
            A("s_mov_b64 exec, 0xffff"); A(f"buffer_store_dword v{VST}, v{VST+1}, {srd(SDBG)}, 0 offen"); A("s_mov_b64 exec, -1")
            A.label(lab)
    def istamp(self):
        if self.hdbg:
            A = self.A; lab = A.newlabel("Lh")
            A(f"s_and_b32 s96, {sT}, 3"); A("s_cmp_eq_u32 s96, 3"); A(f"s_cbranch_scc0 {lab}")
            A("s_memrealtime s[100:101]"); A(f"s_lshr_b32 s96, {sT}, 2"); A("s_add_u32 m0, s96, 3"); A("s_waitcnt lgkmcnt(0)")
            A(f"v_writelane_b32 v{VST}, s100, m0")
            A.label(lab)
        if not self.stamps: return
        A = self.A
        A("s_memtime s[96:97]"); A("s_memrealtime s[100:101]"); A(f"s_add_u32 m0, {sT}, 32"); A("s_waitcnt lgkmcnt(0)")
        A(f"v_writelane_b32 v{VST+2}, s96, m0"); A(f"v_writelane_b32 v{VST+1}, s100, m0")
    def dma(self, voff, srdb, soff, imm, flags=""):
        return f"buffer_load_dwordx4 {voff}, {srd(srdb)}, {soff} offen offset:{imm}{flags} lds"
    def tile_KV(self, isK, slot):
        off, base, voffs, srdb = (sKoff, LK, vKd, SK) if isK else (sVoff, LV, vVd * 2, SV)
        g = [[self.dma(voffs[i], srdb, off, i * 1024, self.nt)] for i in range(4)]
        g[0] = [f"s_add_u32 m0, {sW4K}, {base + slot*T}", "@M0"] + g[0]
        g[3] = g[3] + [f"s_add_u32 {off}, {off}, {T}"]
        return g
    def tile_XW(self, xbase, wbase):
        return [[f"s_lshl_b32 {sXoff}, {sTi}, 6", f"s_add_u32 m0, {sW2K}, {xbase}", f"s_add_u32 {sXoff}, {sXoff}, {sXb}", self.dma(vXd[0], SX, sXoff, 0)],
                [f"s_lshl_b32 {sWoff}, {sTi}, 18", self.dma(vXd[1], SX, sXoff, 1024)],
                [f"s_add_u32 m0, {sW4K}, {wbase}", f"s_add_u32 {sWoff}, {sWoff}, {sWb}", self.dma(vWd[0], SWQ, sWoff, 0)],
                [f"s_add_u32 {sTi}, {sTi}, 1", self.dma(vWd[1], SWQ, sWoff, 1024)],
                [f"s_and_b32 {sTi}, {sTi}, 15", self.dma(vWd[2], SWQ, sWoff, 2048)],
                [self.dma(vWd[3], SWQ, sWoff, 3072)]]
    def tile_Wo(self, slot):
        g = [[self.dma(vWs[i], SWO, sWToff, i * 1024, self.wof)] for i in range(4)]
        g[0] = [f"s_lshl_b32 {sWToff}, {sQw}, 15", f"s_add_u32 m0, {sW4K}, {slot * T}", f"s_add_u32 {sWToff}, {sWToff}, {sWP}"] + g[0]
        g[1] = [f"s_add_u32 {sQw}, {sQw}, 1"] + g[1]
        g[2] = [f"s_and_b32 {sQw}, {sQw}, 31"] + g[2]
        return g
    def emit_groups(self, groups):
        for g in groups:
            for l in g: self.A("s_nop 0" if l == "@M0" else l)
    @staticmethod
    def cost(l):
        if l.startswith("v_exp"): return 8
        if l.startswith("buffer_"): return 16
        return 4
    def spread(self, fill, gaps, lo, hi, base):
        tot = sum(self.cost(l) for l in fill) + sum(base[lo:hi])
        per = tot / (hi - lo); g = lo; acc = 0.0
        k = 0
        for g in range(lo, hi):
            acc += base[g]; tgt = per * (g - lo + 1)
            while k < len(fill) and (acc + self.cost(fill[k]) / 2 <= tgt or g == hi - 1):
                gaps[g].append(fill[k]); acc += self.cost(fill[k]); base[g] += self.cost(fill[k]); k += 1
    def exp_ops(self, S, lo, hi):
        ops = []
        ex = lambda i: f"v_exp_f32 v{S+i}, v{S+i}"
        def cvt(i):
            kb, qb, r = i // 8, (i // 4) % 2, i % 4
            return f"v_cvt_pk_bf16_f32 v{P0 + 8*(kb//2) + 4*qb + 2*(kb%2) + r//2}, v{S+i}, v{S+i+1}"
        prs = list(range(lo, hi, 2))
        for k, i in enumerate(prs):
            ops += [ex(i), ex(i + 1)]
            if k > 0: ops += [cvt(prs[k-1])]
        ops += ["s_nop 0", cvt(prs[-1])]
        return ops
    def max_ops(self, S):
        ops = []
        for qb in range(2):
            r = [S + 8 * kb + 4 * qb + j for kb in range(4) for j in range(4)]
            o = [f"v_max3_f32 {vMx[qb]}, v{r[0]}, v{r[1]}, v{r[2]}"]
            for i in range(3, 15, 2): o.append(f"v_max3_f32 {vMx[qb]}, {vMx[qb]}, v{r[i]}, v{r[i+1]}")
            o.append(f"v_max_f32 {vMx[qb]}, {vMx[qb]}, v{r[15]}")
            ops.append(o)
        out = [x for pr in zip(*ops) for x in pr]
        out.append(f"v_max_f32 {vMc}, {vMx[0]}, {vMx[1]}")
        return out
    def qk_units(self, Sn, slot, tag="k"):
        un = []
        for i in range(16):
            kb, s = i // 4, i % 4
            fr = AKF + 4 * (i % 8)
            ms = [f"{MF} {vt(Sn+8*kb+4*qb,4)}, {at(fr,4)}, {at(AQ+16*qb+4*s,4)}, {vt(NEG+4*qb,4) if s == 0 else vt(Sn+8*kb+4*qb,4)}" for qb in range(2)]
            un.append((ms, [(tag, i)], [(f"ds_read_b128 {at(fr,4)}, {vKa[s]} offset:{slot*T + kb*4096}", (tag, i))]))
        return un
    def pv_units(self, slot):
        un = []
        for i in range(16):
            u, db = i // 8, i % 8
            fr = AVF + 4 * (i % 8)
            ms = [f"{MF} {vt(O0+8*db+4*qb,4)}, {at(fr,4)}, {vt(P0+8*u+4*qb,4)}, {vt(O0+8*db+4*qb,4)}" for qb in range(2)]
            un.append((ms, [("v", i)], [(f"ds_read_b64_tr_b16 {at(fr,2)}, {vVa[db]} offset:{slot*T + u*8192}", ("v", i)),
                                          (f"ds_read_b64_tr_b16 {at(fr+2,2)}, {vVa[db]} offset:{slot*T + u*8192 + 4096}", ("v", i))]))
        return un
    def stream(self, units, nun, NA, G, gaps, mid, extra=None):
        A = self.A
        for i in range(nun):
            if i % G == 0: A.lds_wait(*sum((units[j][1] for j in range(i, min(nun, i + G))), []))
            rds = units[i + NA][2] if i + NA < len(units) else []
            A(units[i][0][0])
            mid(i)
            if rds: A.lds(*rds[0])
            for l in gaps[2 * i]: A(l)
            A(units[i][0][1])
            for r in rds[1:]: A.lds(*r)
            for l in gaps[2 * i + 1]: A(l)
            if extra and i in extra: A(extra[i])
    def place(self, gaps, base, groups, positions):
        for g, p in zip(groups, positions):
            if "@M0" in g:
                k = g.index("@M0"); gaps[p - 1] = gaps[p - 1] + g[:k]; base[p - 1] += 4 * k; g = g[k + 1:]
            gaps[p] = gaps[p] + g; base[p] += sum(self.cost(l) for l in g)
    def simulate_loop(self):
        n1, n2, n3 = {}, {}, {}
        for t in range(32):
            n1[t] = self.vm_need(("V", t))
            self.vm_issue(("V", t + 2), 4)
            n2[t] = self.vm_need(("K", t + 2)) if t < 30 else 63
            self.vm_issue(("K", t + 4), 4)
            if t == PUB_T: n3[t] = self.vm_need(("FZ",))
        return n1, n2, n3
    def aload(self, R, j, soff):
        return [f"buffer_load_dwordx4 {R(4*j,4)}, {vL16}, {srd(SWS)}, {soff} offen offset:{(j%4)*1024}{self.ldf}"]
    def body(self, c, n1, n2):
        A = self.A
        par = c % 2; NA = self.nahead; G = self.wgrp
        S, Sn = (SA, SB) if par == 0 else (SB, SA)
        sel = lambda d: min(v for t, v in d.items() if t % 6 == c)
        units = self.qk_units(Sn, (c + 1) % 3) + self.pv_units(c % 3) + self.qk_units(S, (c + 2) % 3, "kn")[:NA]
        bp = 16 - NA
        gaps = [[] for _ in range(64)]; base = [0] * 64
        for i in range(32):
            nr = len(units[i + NA][2])
            base[2 * i] += 4; base[2 * i + 1] += 4 * (nr - 1)
            if (i + 1) % G == 0: base[2 * i + 1] += 4
            if i % 16 == bp: base[2 * i] += 12
        self.place(gaps, base, self.tile_KV(False, (c + 2) % 3), [p + 1 for p in self.latepos[:3]] + [31])
        self.place(gaps, base, self.tile_KV(True, (c + 1) % 3), [32 + p + 1 for p in self.latepos[:3]] + [63])
        self.spread(self.exp_ops(S, 0, self.split), gaps, 0, 32, base)
        self.spread(self.exp_ops(S, self.split, 32), gaps, 32, 32 + self.lim, base)
        self.spread(self.max_ops(Sn), gaps, 32 + self.lim, 64, base)
        lm = lambda u, qb: f"{MF} {vt(LACC+4*qb,4)}, {vt(ONES,4)}, {vt(P0+8*u+4*qb,4)}, {vt(LACC+4*qb,4)}"
        extra = {16 + 3: lm(0, 0), 16 + 7: lm(0, 1), 16 + 11: lm(1, 0), 16 + 15: lm(1, 1)}
        def mid(i):
            if i % 16 == bp:
                A(f"s_waitcnt vmcnt({sel(n1) if i < 16 else sel(n2)})"); A("s_barrier")
        A.lds_q = [("k", i) for i in range(NA)]
        self.stream(units, 32, NA, G, gaps, mid, extra)
    def widen(self, a, b):
        return [[f"v_permlane32_swap_b32 v{a}, v{b}", f"v_permlane32_swap_b32 v{a+1}, v{b+1}"],
                [f"v_permlane16_swap_b32 v{a}, v{b}", f"v_permlane16_swap_b32 v{a+1}, v{b+1}"]]
    def qfin_ops(self, from_acc):
        pair = vt(int(vF[0][1:]), 2); out = []
        for s in range(4):
            t = P0 if from_acc else O0 + 16 * s
            if from_acc: out += [f"v_accvgpr_read_b32 v{t+j}, a{AACC+16*s+j}" for j in range(16)]
            out += [f"v_pk_mul_f32 {vt(t+2*j,2)}, {vt(t+2*j,2)}, {pair}" for j in range(8)]
            for q4 in range(4): out += [f"v_cvt_pk_bf16_f32 v{t+4*q4+j}, v{t+4*q4+2*j}, v{t+4*q4+2*j+1}" for j in range(2)]
            w0, w1 = self.widen(t, t + 8), self.widen(t + 4, t + 12)
            out += ["s_nop 0"] + w0[0] + w1[0] + w0[1] + w1[1]
            for qb in range(2):
                for j, r in enumerate((t + 4*qb, t + 4*qb + 1, t + 8 + 4*qb, t + 8 + 4*qb + 1)):
                    out.append(f"v_accvgpr_write_b32 a{AQ+16*qb+4*s+j}, v{r}")
        return out
    def zero_acc(self): return [f"v_accvgpr_write_b32 a{AACC+i}, 0" for i in range(64)]
    def epilogue(self, hold):
        A = self.A
        A("s_nop 4")
        for qb in range(2):
            A(f"v_rcp_f32 v{vInv+2*qb}, v{LACC+4*qb}"); A(f"v_rcp_f32 v{vInv+2*qb+1}, v{LACC+4*qb}")
        A("s_nop 0")
        for v in range(4):
            for qb in range(2):
                src = [O0 + 16*v + 4*qb, O0 + 16*v + 8 + 4*qb]
                dst = HELD + 8*v + 4*qb if hold else SA + 8*v + 4*qb
                for b in src:
                    for j in range(2): A(f"v_pk_mul_f32 {vt(b+2*j,2)}, {vt(b+2*j,2)}, {vt(vInv+2*qb,2)}")
                for k, b in enumerate(src):
                    for j in range(2): A(f"v_cvt_pk_bf16_f32 v{dst+2*k+j}, v{b+2*j}, v{b+2*j+1}")
                if not hold: A(self.ostore(dst, v, qb))
            if not hold: A(f"s_add_u32 {sOT}, {sOT}, 4096")
    def ostore(self, reg, v, qb):
        return f"buffer_store_dwordx4 {vt(reg,4)}, {vL16}, {srd(SWS)}, {sOT} offen offset:{qb*1024}{self.stf}"
    def store_held(self):
        for v in range(4):
            for qb in range(2): self.A(self.ostore(HELD + 8*v + 4*qb, v, qb))
            self.A(f"s_add_u32 {sOT}, {sOT}, 4096")
    def make_srd(self, b, p, size):
        A = self.A
        A(f"s_mov_b32 s{b}, s{p}"); A(f"s_mov_b32 s{b+1}, s{p+1}")
        A(f"s_mov_b32 s{b+2}, 0x{size:x}"); A(f"s_mov_b32 s{b+3}, 0x20000")
    def one_lane(self, lines, wave0=False):
        A = self.A
        lab = A.newlabel("Lo")
        if wave0: A(f"s_cmp_eq_u32 {sW}, 0"); A(f"s_cbranch_scc0 {lab}")
        A("s_mov_b64 exec, 1")
        for l in lines: A(l)
        A("s_mov_b64 exec, -1")
        if wave0: A.label(lab)
    def spin(self, name, cmp_line, load_line, sleep):
        A = self.A
        A(f"s_mov_b32 {sSpin}, 0x40000")
        A.label(name)
        A(cmp_line)
        A(f"s_cbranch_vccz {name}_ok")
        A(f"s_sub_u32 {sSpin}, {sSpin}, 1"); A(f"s_cbranch_scc1 {name}_ok")
        if sleep: A(f"s_sleep {sleep}")
        A(load_line)
        A("s_waitcnt vmcnt(0)")
        A(f"s_branch {name}")
        A.label(name + "_ok")
    def rowmax(self, floor):
        A = self.A
        for qb, tm in ((0, vTm), (1, vMc)): A(f"v_mov_b32 {tm}, {vMx[qb]}")
        A("s_nop 0")
        for qb, tm in ((0, vTm), (1, vMc)): A(f"v_permlane32_swap_b32 {vMx[qb]}, {tm}")
        for qb, tm in ((0, vTm), (1, vMc)): A(f"v_max_f32 {vMx[qb]}, {vMx[qb]}, {tm}")
        for qb, tm in ((0, vTm), (1, vMc)): A(f"v_mov_b32 {tm}, {vMx[qb]}")
        A("s_nop 0")
        for qb, tm in ((0, vTm), (1, vMc)): A(f"v_permlane16_swap_b32 {vMx[qb]}, {tm}")
        for qb, tm in ((0, vTm), (1, vMc)): A(f"v_max3_f32 {vMx[qb]}, {vMx[qb]}, {tm}, {floor}")

    def kernel(self):
        A = self.A
        tg, tl15, tr, tc, ta, tb, td, te = [tmp(i) for i in range(8)]
        A("s_cmp_ge_u32 s2, 256"); A("s_cbranch_scc1 L_end")
        if self.stamps: A("s_memrealtime s[98:99]")
        A("s_load_dwordx16 s[64:79], s[0:1], 0")
        self.stamp(0); self.hstamp(0)
        A("v_lshrrev_b32 v1, 6, v0"); A("v_and_b32 v2, 63, v0")
        A(f"v_readfirstlane_b32 {sW}, v1")
        A(f"v_lshlrev_b32 {vL16}, 4, v2")
        A(f"s_getpc_b64 s[{SCODE}:{SCODE+1}]")
        A.label("L_pc")
        A(f"s_mov_b32 s{SCODE+2}, L_codeend-L_pc"); A(f"s_mov_b32 s{SCODE+3}, 0x20000")
        A(f"s_lshr_b32 {sT0}, s2, 3"); A(f"s_lshl_b32 {sT0}, {sT0}, 2"); A(f"s_add_u32 {sT0}, {sT0}, {sW}")
        A(f"s_and_b32 {sT0}, {sT0}, 63"); A(f"s_lshl_b32 {sT0}, {sT0}, 10")
        A(f"buffer_load_dwordx4 v[128:131], {vL16}, {srd(SCODE)}, {sT0} offen"); self.vm_issue(("CODE",), 1)
        A(f"s_lshl_b32 {sW4K}, {sW}, 12"); A(f"s_lshl_b32 {sW2K}, {sW}, 11")
        A(f"v_lshrrev_b32 {tg}, 4, v2"); A(f"v_and_b32 {tc}, 3, v2")
        A(f"v_lshrrev_b32 {ta}, 2, v2"); A(f"v_lshl_add_u32 {ta}, v1, 5, {ta}")
        A(f"v_sub_u32 {tb}, 0, {tg}"); A(f"v_and_b32 {tb}, 3, {tb}"); A(f"v_xor_b32 {tb}, {tb}, {tc}"); A(f"v_lshlrev_b32 {tb}, 4, {tb}")
        A(f"v_lshl_add_u32 {vXd[0]}, {ta}, 10, {tb}"); A(f"v_add_u32 {vXd[1]}, {16384 - 1024}, {vXd[0]}")
        A(f"v_lshrrev_b32 {ta}, 5, v2"); A(f"v_and_b32 {tb}, 1, v1"); A(f"v_lshl_add_u32 {tb}, {tb}, 2, {ta}"); A(f"v_lshlrev_b32 {tb}, 1, {tb}")
        A(f"v_and_b32 {td}, 31, v2"); A(f"v_xor_b32 {tb}, {tb}, {td}"); A(f"v_lshlrev_b32 {tb}, 4, {tb}")
        A(f"v_lshl_add_u32 {ta}, v1, 3, {ta}"); A(f"v_lshl_add_u32 {vWd[0]}, {ta}, 13, {tb}"); A(f"v_xor_b32 {tb}, 64, {vWd[0]}")
        A(f"v_add_u32 {vWd[1]}, 15360, {tb}"); A(f"v_add_u32 {vWd[2]}, {2*15360}, {vWd[0]}"); A(f"v_add_u32 {vWd[3]}, {3*15360}, {tb}")
        A(f"s_and_b32 {sBat}, s2, 1"); A(f"s_lshl_b32 {sBat}, {sBat}, 3")
        A(f"s_bfe_u32 {sT1}, s2, 0x30003"); A(f"s_add_u32 {sBat}, {sBat}, {sT1}")
        A(f"s_lshr_b32 {sT2}, s2, 6")
        if self.rot == 2:
            A(f"s_lshl_b32 {sTi}, {sT2}, 1"); A(f"s_add_u32 {sTi}, {sTi}, {sT1}"); A(f"s_lshl_b32 {sTi}, {sTi}, 1"); A(f"s_and_b32 {sTi}, {sTi}, 15")
        elif self.rot == 1:
            A(f"s_add_u32 {sTi}, {sT2}, {sT1}"); A(f"s_and_b32 {sTi}, {sTi}, 1"); A(f"s_lshl_b32 {sTi}, {sTi}, 3")
        elif self.rot == 3:
            A(f"s_add_u32 {sTi}, {sT2}, {sT1}"); A(f"s_and_b32 {sTi}, {sTi}, 3"); A(f"s_lshl_b32 {sTi}, {sTi}, 2")
        else: A(f"s_mov_b32 {sTi}, 0")
        A(f"s_bfe_u32 {sT1}, s2, 0x20001"); A(f"s_lshl_b32 {sT1}, {sT1}, 3")
        A(f"s_lshl_b32 {sT3}, {sT2}, 1"); A(f"s_add_u32 {sT3}, {sT3}, {sT1}")
        A(f"s_add_u32 {sT1}, {sT1}, {sT2}")
        A(f"s_lshl_b32 {sXb}, {sBat}, 17"); A(f"s_lshl_b32 {sWb}, {sT3}, 8")
        A("s_waitcnt lgkmcnt(0)")
        self.make_srd(SX, 64, 2 << 20); self.make_srd(SWQ, 70, 4 << 20)
        XS = [9 * T, 9 * T + 8192, 2 * T, 2 * T + 8192]; WS_ = [6 * T, 7 * T, 8 * T, 5 * T]
        self.emit_groups(self.tile_XW(XS[0], WS_[0])); self.vm_issue(("P", 0), 6)
        self.stamp(1)
        A(f"s_lshl_b32 {sT2}, {sBat}, 5"); A(f"s_add_u32 {sT2}, {sT2}, {sT3}"); A(f"s_lshl_b32 {sT2}, {sT2}, 18")
        A(f"s_add_u32 s66, s66, {sT2}"); A("s_addc_u32 s67, s67, 0"); A(f"s_add_u32 s68, s68, {sT2}"); A("s_addc_u32 s69, s69, 0")
        A(f"s_mov_b32 {sKoff}, 0"); A(f"s_mov_b32 {sVoff}, 0")
        A(f"s_lshl_b32 {sT0}, {sBat}, 1"); A(f"s_lshr_b32 {sT2}, {sW}, 1"); A(f"s_add_u32 {sT0}, {sT0}, {sT2}")
        A(f"s_lshl_b32 {sFlagP}, {sT0}, 2"); A(f"s_lshr_b32 {sT2}, {sT1}, 3"); A(f"s_add_u32 {sFlagP}, {sFlagP}, {sT2}")
        A(f"s_lshl_b32 {sFlagP}, {sFlagP}, 7"); A(f"s_and_b32 {sT2}, {sT1}, 3"); A(f"s_lshl_b32 {sT2}, {sT2}, 3")
        A(f"s_add_u32 {sFlagP}, {sFlagP}, {sT2}"); A(f"s_and_b32 {sT2}, {sW}, 1"); A(f"s_lshl_b32 {sT1}, {sT2}, 2")
        A(f"s_add_u32 {sFlagP}, {sFlagP}, {sT1}"); A(f"s_add_u32 {sFlagP}, {sFlagP}, {WS_FLAG}")
        A(f"s_lshl_b32 {sT0}, {sT0}, 5"); A(f"s_add_u32 {sT0}, {sT0}, {sT3}"); A(f"s_lshl_b32 {sT0}, {sT0}, 14")
        A(f"s_lshl_b32 {sT2}, {sT2}, 11"); A(f"s_add_u32 {sOT}, {sT0}, {sT2}")
        self.emit_groups(self.tile_XW(XS[1], WS_[1])); self.vm_issue(("P", 1), 6)
        A(f"s_mov_b32 {sC}, 0x{f2u(CSC):08x}"); A(f"s_mov_b32 {sThr}, 0x{f2u(8.0):08x}")
        self.make_srd(SK, 66, 512 << 10); self.make_srd(SV, 68, 512 << 10)
        self.make_srd(SWO, 72, 4 << 20); self.make_srd(SWS, 78, WS_SIZE)
        self.make_srd(SOUT, 74, 2 << 20); self.make_srd(SDBG, 76, 256)
        A(f"v_and_b32 {tl15}, 15, v2"); A(f"v_lshl_add_u32 {ta}, v1, 4, {tg}")
        A(f"v_lshlrev_b32 {tb}, 1, {tg}"); A(f"v_xor_b32 {tb}, {tb}, {tl15}"); A(f"v_lshlrev_b32 {tb}, 4, {tb}")
        A(f"v_lshl_add_u32 {vVd[0]}, {ta}, 8, {tb}"); A(f"v_xor_b32 {vVd[1]}, 128, {vVd[0]}")
        A(f"v_xor_b32 {tb}, {tl15}, {tg}"); A(f"v_lshlrev_b32 {tb}, 4, {tb}")
        A(f"v_lshl_add_u32 {vKd[0]}, {ta}, 8, {tb}")
        for i in range(1, 4): A(f"v_xor_b32 {vKd[i]}, {64*i}, {vKd[0]}")
        self.emit_groups(self.tile_XW(XS[2], WS_[2])); self.vm_issue(("P", 2), 6)
        A(f"v_lshl_add_u32 {vKa[0]}, {tl15}, 8, {tb}")
        for s in range(1, 4): A(f"v_xor_b32 {vKa[s]}, {64*s}, {vKa[0]}")
        A(f"v_bfe_u32 {tr}, v2, 2, 2")
        A(f"v_sub_u32 {ta}, 0, {tr}"); A(f"v_and_b32 {ta}, 3, {ta}"); A(f"v_xor_b32 {ta}, {ta}, {tg}"); A(f"v_lshlrev_b32 {ta}, 4, {ta}")
        A(f"v_lshl_add_u32 {tb}, v1, 5, {tl15}"); A(f"v_lshl_add_u32 {ta}, {tb}, 6, {ta}")
        A(f"v_add_u32 {vXa}, {XS[0]}, {ta}")
        A(f"v_and_b32 {ta}, 1, {tg}"); A(f"v_lshl_add_u32 {ta}, {ta}, 2, {tr}")
        A(f"v_lshlrev_b32 {ta}, 5, {ta}"); A(f"v_lshl_add_u32 {ta}, {tc}, 3, {ta}")
        A(f"v_lshl_add_u32 {td}, {tg}, 2, {tr}")
        A(f"v_lshl_add_u32 {tb}, {td}, 8, {ta}"); A(f"v_add_u32 {vVa[0]}, {LV}, {tb}")
        for b in range(1, 8): A(f"v_xor_b32 {vVa[b]}, {32*b}, {vVa[0]}")
        A(f"v_lshl_add_u32 {tb}, {tg}, 3, {tr}"); A(f"v_lshl_add_u32 {tb}, {tb}, 9, {ta}"); A(f"v_add_u32 {vWa[0]}, {5*T}, {tb}")
        for b in range(1, 8): A(f"v_xor_b32 {vWa[b]}, {32*b}, {vWa[0]}")
        A(f"v_lshrrev_b32 {ta}, 3, v2"); A(f"v_and_b32 {tb}, 7, v2"); A(f"v_lshlrev_b32 {te}, 1, {tg}"); A(f"v_xor_b32 {tb}, {tb}, {te}")
        A(f"v_lshlrev_b32 {tb}, 4, {tb}"); A(f"v_lshl_add_u32 {vWs[0]}, {ta}, 10, {tb}")
        for i in range(1, 4): A(f"v_add_u32 {vWs[i]}, {i * 7168}, {vWs[0]}")
        A(f"v_bfe_u32 {ta}, {td}, 1, 2"); A(f"v_lshlrev_b32 {ta}, 5, {ta}"); A(f"v_lshl_add_u32 {ta}, {tc}, 3, {ta}")
        A(f"v_lshl_add_u32 {ta}, {td}, 7, {ta}"); A(f"v_add_u32 {vWr}, {sW4K}, {ta}")
        A(f"v_cmp_eq_u32 vcc, 0, {tc}"); A(f"v_mov_b32 {ta}, 0x3f803f80"); A(f"v_mov_b32 {vZero}, 0"); A(f"v_mov_b32 {vOne}, 1")
        for k in range(4): A(f"v_cndmask_b32 v{ONES+k}, 0, {ta}, vcc")
        for k in range(16): A(f"v_mov_b32 v{LACC+k}, 0")
        A(f"s_and_b32 {sT0}, s2, 7"); A(f"s_lshl_b32 {sT0}, {sT0}, 2"); A(f"s_lshr_b32 {sT1}, s2, 6")
        A(f"s_add_u32 {sB2}, {sT0}, {sT1}")
        A(f"s_lshl_b32 {sT0}, {sB2}, 19"); A(f"s_lshl_b32 {sT1}, {sW}, 17"); A(f"s_add_u32 {sAreal}, {sT0}, {sT1}")
        A(f"s_bfe_u32 {sT0}, s2, 0x30003"); A(f"s_lshl_b32 {sT0}, {sT0}, 7")
        A(f"s_lshl_b32 {sT1}, {sW}, 20"); A(f"s_add_u32 {sWP}, {sT0}, {sT1}")
        A(f"s_lshr_b32 {sT0}, {sB2}, 1"); A(f"s_lshl_b32 {sT0}, {sT0}, 2"); A(f"s_add_u32 {sT0}, {sT0}, {64 if self.hdbg else 0}"); A(f"v_mov_b32 {vPoff}, {sT0}")
        if self.rotO:
            A(f"s_bfe_u32 {sT0}, s2, 0x30003"); A(f"s_lshr_b32 {sT1}, s2, 6"); A(f"s_lshl_b32 {sT1}, {sT1}, 1"); A(f"s_add_u32 {sT0}, {sT0}, {sT1}")
            A(f"s_lshl_b32 {sT0}, {sT0}, 2"); A(f"s_and_b32 {sQw}, {sT0}, 31")
        else: A(f"s_mov_b32 {sQw}, 0")
        A(f"s_mov_b32 {sQa}, {sQw}")
        A(f"s_lshl_b32 {sFlagC}, {sB2}, 2"); A(f"s_add_u32 {sFlagC}, {sFlagC}, {sW}"); A(f"s_lshl_b32 {sFlagC}, {sFlagC}, 7")
        A(f"s_add_u32 {sFlagC}, {sFlagC}, {WS_FLAG}")
        self.one_lane([f"buffer_store_dword {vZero}, {vZero}, {srd(SWS)}, {sFlagP} offen sc1"]); self.vm_issue(("FZ",), 1)
        NA = 5; BP = 16 - NA; NU = 256
        XF = lambda pi, qb: at(AKF + 8 * (pi % 2) + 4 * qb, 4)
        units = []
        for pi in range(16):
            for t in range(16):
                m = 16 * pi + t; fr = AVF + 4 * (m % 8)
                D = lambda qb: vt(O0 + 8*t + 4*qb, 4) if t < 8 else at(AACC + 8*(t-8) + 4*qb, 4)
                wo_ = WS_[pi % 4] - 5 * T + (t // 8) * 256
                units.append(([f"{MF} {D(qb)}, {at(fr,4)}, {XF(pi, qb)}, {'0' if pi == 0 else D(qb)}" for qb in range(2)],
                              [("w", m), ("x", pi)],
                              [(f"ds_read_b64_tr_b16 {at(fr,2)}, {vWa[t % 8]} offset:{wo_}", ("w", m)),
                               (f"ds_read_b64_tr_b16 {at(fr+2,2)}, {vWa[t % 8]} offset:{wo_ + 2048}", ("w", m))]))
        sched = []
        early = [("K", 0), ("K", 1), ("V", 0), ("V", 1)]
        for j in range(3, 16):
            first = 0 if j == 3 else 16 * (j - 3) + BP
            sched.append((first, ("P", j), self.tile_XW(XS[j % 4], WS_[j % 4])))
            for (kind, sl), at_ in zip(early, self.kvpos):
                if at_ == j - 3: sched.append((first, (kind, sl), self.tile_KV(kind == "K", sl)))
        gaps = [[] for _ in range(2 * NU)]; vmat = {}
        pos = 0
        for first, tag, groups in sched:
            for g in groups:
                pos = max(pos, first)
                g = [("s_nop 0" if l == "@M0" else l) for l in g]
                k = max(i for i, l in enumerate(g) if l.startswith("buffer_"))
                gaps[2 * pos] += g[:k]; gaps[2 * pos + 1] += g[k:]; vmat[pos] = tag
                pos += 1
        xrd = lambda pi, qb: (f"ds_read_b128 {XF(pi, qb)}, {vXa} offset:{qb * 1024}", ("x", pi))
        def mid(m):
            pi, k = m // 16, m % 16
            if m - 1 in vmat: self.vm_issue(vmat[m - 1], 1)
            if pi < 15:
                if k == 2: A(f"v_add_u32 {vXa}, {XS[(pi + 1) % 4] - XS[pi % 4]}, {vXa}")
                if k == BP:
                    A(f"s_waitcnt vmcnt({self.vm_need(('P', pi + 1))})"); A("s_barrier")
                    if pi % 2 == 1: self.stamp(3 + pi // 2)
                if BP < k <= BP + 2: A.lds(*xrd(pi + 1, k - BP - 1))
        A(f"s_waitcnt vmcnt({self.vm_need(('P', 0))})")
        A("s_barrier")
        self.stamp(2); self.hstamp(1)
        A.lds_reset()
        for qb in range(2): A.lds(*xrd(0, qb))
        for m in range(NA):
            for r in units[m][2]: A.lds(*r)
        self.stream(units, NU, NA, 2, gaps, mid)
        assert NU - 1 not in vmat
        A(f"v_mov_b32 {vF[0]}, {sC}"); A(f"v_mov_b32 {vF[1]}, {sC}")
        for k in range(8): A(f"v_mov_b32 v{NEG+k}, 0")
        A(f"s_waitcnt vmcnt({self.vm_need(('K', 0))})")
        A("s_barrier")
        units = self.qk_units(SA, 0) + self.qk_units(SB, 1, "kn")[:6]
        for i in range(6): A.lds(*units[i][2][0])
        g = self.tile_KV(True, 2); self.vm_issue(("K", 2), 4)
        qa = self.qfin_ops(False); n4 = len(qa) // 4
        for i in range(4):
            self.emit_groups(g[i:i+1])
            for l in qa[n4*i:n4*i+n4]: A(l)
        self.stamp(10); self.hstamp(2)
        gaps = [[] for _ in range(32)]; base = [4, 0] * 16
        if self.epark:
            grp = [x for k in range(4) for x in self.tile_Wo(6 + k)]
            for i, gq in enumerate(grp):
                gaps[2 * i] += gq[:-1]; gaps[2 * i + 1] += gq[-1:]; base[2 * i] += 4 * (len(gq) - 1); base[2 * i + 1] += 16
        self.spread([f"v_mov_b32 v{O0+k}, 0" for k in range(64)], gaps, 0, 32, base)
        def mid0(i):
            if self.epark and i > 0: self.vm_issue(("EP",), 1)
            if i == 10: A(f"s_waitcnt vmcnt({self.vm_need(('K', 1))})"); A("s_barrier")
        self.stream(units, 16, 6, 2, gaps, mid0)
        if self.epark: self.vm_issue(("EP",), 1)
        A("s_barrier")
        g = self.tile_KV(True, 0); self.vm_issue(("K", 3), 4)
        self.emit_groups(g[:2])
        for l in self.max_ops(SA): A(l)
        self.emit_groups(g[2:])
        if self.warm:
            A(f"s_lshl_b32 {sT0}, s2, 14"); A(f"s_add_u32 {sT0}, {sT0}, {sW4K}")
            for i in range(4): A(f"buffer_load_dwordx4 {at(240 + 4*i, 4)}, {vL16}, {srd(SWO)}, {sT0} offen offset:{i*1024}")
            self.vm_issue(("WARM",), 4)
        A(f"s_mov_b32 {sT}, 0")
        A(f"s_call_b64 {sRet}, L_init")
        n1, n2, n3 = self.simulate_loop()
        self.n = (n1, n2, n3)
        xs = {PUB_T, 14, 15, 31, self.oa_t}
        if self.lpark: xs |= {28, 29, 30}
        xmask = sum(1 << t for t in xs)
        A.label("L_loop")
        for c in range(6):
            self.body(c, n1, n2)
            self.istamp()
            A(f"s_bitcmp1_b32 0x{xmask:08x}, {sT}"); A(f"s_cbranch_scc1 L_x_{c}")
            A.label(f"L_c_{c}")
            A(f"v_cmp_lt_f32 vcc, {sThr}, {vMc}")
            A(f"s_cbranch_vccnz L_r_{c}")
            A.label(f"L_n_{c}")
            A(f"s_add_u32 {sT}, {sT}, 1")
        A("s_branch L_loop")
        for c in range(6):
            A.label(f"L_x_{c}"); A(f"s_call_b64 {sRet}, L_extras"); A(f"s_branch L_c_{c}")
            A.label(f"L_r_{c}"); A(f"s_call_b64 {sLink2}, L_rare"); A(f"s_branch L_n_{c}")
        A(".p2align 3")
        ssub = lambda S: [f"v_sub_f32 v{S+i}, v{S+i}, {vMx[(i//4)%2]}" for i in range(32)]
        A.label("L_init")
        A(f"s_mov_b32 {sFloor}, 0x{f2u(-1e30):08x}")
        self.rowmax(sFloor)
        for i in range(8): A(f"v_sub_f32 v{NEG+i}, 0, {vMx[i//4]}")
        for l in ssub(SA): A(l)
        A(f"v_mov_b32 {vMc}, 0")
        A(f"s_setpc_b64 {sRet}")
        A.label("L_rare")
        self.rowmax("0")
        for qb in range(2): A(f"v_exp_f32 {vF[qb]}, -{vMx[qb]}")
        for i in range(8): A(f"v_sub_f32 v{NEG+i}, v{NEG+i}, {vMx[i//4]}")
        for qb in range(2): A(f"v_mul_f32 v{LACC+4*qb}, {vF[qb]}, v{LACC+4*qb}")
        for i in range(64): A(f"v_mul_f32 v{O0+i}, {vF[(i//4)%2]}, v{O0+i}")
        A(f"s_bitcmp1_b32 {sT}, 0"); A("s_cbranch_scc1 L_rare_a")
        for l in ssub(SB): A(l)
        A(f"s_setpc_b64 {sLink2}")
        A.label("L_rare_a")
        for l in ssub(SA): A(l)
        A(f"s_setpc_b64 {sLink2}")
        def tree(ts):
            if len(ts) == 1:
                A(f"s_branch L_t{ts[0]}"); return
            if len(ts) == 2:
                A(f"s_cmp_eq_u32 {sT}, {ts[0]}"); A(f"s_cbranch_scc1 L_t{ts[0]}"); A(f"s_branch L_t{ts[1]}"); return
            h = len(ts) // 2; lab = A.newlabel("Ld")
            A(f"s_cmp_ge_u32 {sT}, {ts[h]}"); A(f"s_cbranch_scc1 {lab}")
            tree(ts[:h]); A.label(lab); tree(ts[h:])
        A.label("L_extras")
        tree(sorted(xs))
        for t in sorted(xs):
            if t == 31: continue
            A.label(f"L_t{t}")
            if t == 14:
                A(f"v_cmp_lt_f32 vcc, {sThr}, {vMc}")
                A("s_cbranch_vccz L_x14b")
                A(f"s_call_b64 {sLink2}, L_rare")
                A.label("L_x14b")
                A(f"v_mov_b32 {vF[0]}, {sC}"); A(f"v_mov_b32 {vF[1]}, {sC}")
                for l in self.qfin_ops(True): A(l)
                for k in range(8): A(f"v_mov_b32 v{NEG+k}, 0")
                for l in self.zero_acc(): A(l)
                A(f"v_mov_b32 {vMc}, 0")
            if t == 15:
                self.epilogue(True)
                for i in range(64): A(f"v_mov_b32 v{O0+i}, 0")
                A(f"v_mov_b32 v{LACC}, 0"); A(f"v_mov_b32 v{LACC+4}, 0")
                self.stamp(11)
                A("s_branch L_init")
                continue
            if t == PUB_T:
                A(f"s_waitcnt vmcnt({n3[t]})"); A("s_barrier")
                A(f"s_lshl_b32 {sT0}, {sBat}, 2")
                self.one_lane([f"buffer_atomic_add {vOne}, {vZero}, {srd(SDBG)}, {sT0} offen offset:{64 if self.hdbg else 0} sc1"], wave0=True)
            if self.lpark and t in (28, 29, 30):
                if t == 28:
                    for k in range(3): A(f"s_mov_b32 s{SK+k}, s{SWO+k}")
                    for i in range(4): A(f"v_mov_b32 {vKd[i]}, {vWs[i]}")
                A(f"s_lshl_b32 {sKoff}, {sQw}, 15"); A(f"s_add_u32 {sKoff}, {sKoff}, {sWP}")
                A(f"s_add_u32 {sQw}, {sQw}, 1"); A(f"s_and_b32 {sQw}, {sQw}, 31")
            if t == self.oa_t: self.store_held()
            A(f"s_setpc_b64 {sRet}")
        A.label("L_t31")
        A("s_waitcnt lgkmcnt(0)")
        self.stamp(12)
        self.tail()
        self.hstamp(14)
        if self.hdbg: A("s_waitcnt vmcnt(0)")
        self.hstamp(15)
        self.dump_stamps()
        A.label("L_end")
        A("s_endpgm")
        A.label("L_codeend")

    def tail(self):
        A = self.A
        vm = []
        def need(tag): return min(63, len(vm) - 1 - max(i for i, q in enumerate(vm) if q == tag)) if tag in vm else 63
        pollW = f"buffer_load_dword {vPoll}, {vPoff}, {srd(SDBG)}, 0 offen sc1"
        vRd = [[f"v{16 + 4*k + nb}" for nb in range(4)] for k in range(3)]
        vFl, vLin = "v28", "v29"
        order = ([6, 7, 8, 9] if self.epark else []) + ([0, 1, 2] if self.lpark else [])
        npark = len(order)
        order += [k for k in (3, 4, 5, 0, 1, 2, 6, 7, 8, 9) if k not in order]
        SLOT = lambda p: order[p % 10]
        NR = min(self.nreg, npark)
        A(pollW); vm.append("poll")
        if self.oa_t == 31: self.store_held(); vm += ["OB"] * 8
        self.epilogue(False); vm += ["OB"] * 8
        self.stamp(13)
        for k in range(3):
            A(f"v_add_u32 {vRd[k][0]}, {k * 65536}, {vWr}")
            for nb in range(1, 4): A(f"v_xor_b32 {vRd[k][nb]}, {32*nb}, {vRd[k][0]}")
        A(f"v_and_b32 {vFl}, 7, v2"); A(f"v_lshlrev_b32 {vFl}, 2, {vFl}")
        A(f"v_add_u32 {vLin}, {sW4K}, {vL16}")
        A("s_barrier")
        NS = 5
        ASET = lambda p: (lambda j, n: at(AQ + 16 * (p % NS) + j, n) if p % NS < 2 else at(AKF + 16 * (p % NS - 2) + j, n))
        def WSET(p):
            if p < min(NR, 6): return lambda j, n: at(AFREE + 16 * p + j, n)
            if p < NR: return lambda j, n: vt(P0 + 16 * (p - 6) + j, n)
            return lambda j, n: vt(O0 + 16 * (p % 3) + j, n)
        def wgroups(p): return [(x, ("W", p)) for x in self.tile_Wo(SLOT(p))]
        def agroups(p):
            g = [self.aload(ASET(p), j, sAoff) for j in range(4)]
            g[0] = [f"s_lshl_b32 {sAoff}, {sQa}, 12", f"s_add_u32 {sQa}, {sQa}, 1", f"s_add_u32 {sAoff}, {sAoff}, {sAreal}"] + g[0]
            g[1] = [f"s_and_b32 {sQa}, {sQa}, 31"] + g[1]
            return [(x, ("A", p)) for x in g]
        def wreads(p):
            base = SLOT(p) * T
            return [f"ds_read_b64_tr_b16 {WSET(p)(4*nb + 2*hf, 2)}, {vRd[base // 65536][nb]} offset:{base % 65536 + hf*2048}"
                    for nb in range(4) for hf in range(2)]
        def emit(g):
            for l in g[0]: A(l)
            vm.append(g[1])
        pollB = f"buffer_load_dword {vPoll}, {vFl}, {srd(SWS)}, {sFlagC} offen sc1"
        wn = npark; an = 0
        while wn < min(10, npark + 3):
            for g in wgroups(wn): emit(g)
            wn += 1
        A(f"s_waitcnt vmcnt({need('poll')})")
        A.lds_reset()
        for p in range(NR):
            for l in wreads(p): A(l)
            if p % 2 == 1 or p == NR - 1: A("s_waitcnt lgkmcnt(0)")
        self.spin("L_c1", f"v_cmp_gt_u32 vcc, 16, {vPoll}", pollW, 2)
        A(f"s_waitcnt vmcnt({need('OB')})")
        self.one_lane([f"buffer_store_dword {vOne}, {vZero}, {srd(SWS)}, {sFlagP} offen sc1"]); vm.append("fl")
        self.stamp(14); self.hstamp(11)
        while wn < 10 + NR:
            for g in wgroups(wn): emit(g)
            wn += 1
        A(pollB); vm.append("pb")
        self.stamp(15)
        A(f"s_waitcnt vmcnt({need('pb')})")
        self.spin("L_c2", f"v_cmp_ne_u32 vcc, 1, {vPoll}", pollB, 0)
        self.stamp(18); self.hstamp(12)
        while an < self.aahead:
            for g in agroups(an): emit(g)
            an += 1
        if NR == 0:
            for l in wreads(0): A.lds(l, ("w", 0))
        for p in range(32):
            tags = [("A", p)] + ([("W", p + 1)] if p < 31 else [])
            A(f"s_waitcnt vmcnt({min(need(tg) for tg in tags)})")
            A.lds_wait(("w", p))
            gs = []
            if an < 32: gs += agroups(an); an += 1
            if wn < 32 and wn - 10 <= p: gs = [x for pr in itertools.zip_longest(gs, wgroups(wn)) for x in pr if x]; wn += 1
            rds = wreads(p + 1) if NR <= p + 1 < 32 else []
            step = 2 if len(gs) > 4 else 4
            k = 0
            for nb in range(4):
                for q in range(4):
                    d = at(AACC + 16 * q + 4 * nb, 4)
                    A(f"{MF} {d}, {WSET(p)(4*nb, 4)}, {ASET(p)(4*q, 4)}, {d}")
                    if k % 2 == 1 and k // 2 < len(rds): A.lds(rds[k // 2], ("w", p + 1))
                    if k % step == 0 and k // step < len(gs): emit(gs[k // step])
                    k += 1
        self.stamp(16); self.hstamp(13)
        A(f"v_lshl_add_u32 v3, v1, 14, {vL16}")
        A("v_and_b32 v5, 15, v2"); A("v_lshrrev_b32 v6, 4, v2"); A("v_lshlrev_b32 v5, 10, v5"); A("v_lshl_add_u32 v5, v6, 4, v5")
        A(f"s_lshl_b32 {sT0}, {sB2}, 16"); A(f"s_lshl_b32 {sT1}, {sW}, 14"); A(f"s_add_u32 {sT0}, {sT0}, {sT1}")
        A(f"s_bfe_u32 {sT1}, s2, 0x30003"); A(f"s_lshl_b32 {sT1}, {sT1}, 7"); A(f"s_add_u32 {sT0}, {sT0}, {sT1}")
        A("s_barrier")
        for blk in range(4):
            for q in range(4):
                A(f"ds_write_b128 v3, {at(AACC+16*blk+4*q,4)} offset:{blk*4096+q*1024}")
                if (blk * 4 + q) % 8 == 7: A("s_waitcnt lgkmcnt(0)")
        A("s_barrier")
        for src in range(4):
            for q in range(4):
                A(f"ds_read_b128 {vt(64+16*src+4*q,4)}, {vLin} offset:{src*16384+q*1024}")
            if src % 2 == 1: A("s_waitcnt lgkmcnt(0)")
        for i in range(16): A(f"v_add_f32 v{64+i}, v{64+i}, v{80+i}")
        for i in range(16): A(f"v_add_f32 v{96+i}, v{96+i}, v{112+i}")
        for i in range(16): A(f"v_add_f32 v{64+i}, v{64+i}, v{96+i}")
        for j in range(8): A(f"v_cvt_pk_bf16_f32 v{80+j}, v{64+2*j}, v{64+2*j+1}")
        w0, w1 = self.widen(80, 82), self.widen(84, 86)
        A("s_nop 0")
        for l in w0[0] + w1[0] + w0[1] + w1[1]: A(l)
        A(f"buffer_store_dwordx4 {vt(80,4)}, v5, {srd(SOUT)}, {sT0} offen")
        A(f"buffer_store_dwordx4 {vt(84,4)}, v5, {srd(SOUT)}, {sT0} offen offset:64")

    def dump_stamps(self):
        if not self.stamps: return
        A = self.A
        A("s_waitcnt vmcnt(0)")
        self.stamp(17)
        A("s_memrealtime s[100:101]")
        A("s_getreg_b32 s3, hwreg(HW_REG_XCC_ID)")
        A("s_waitcnt lgkmcnt(0)")
        A(f"v_writelane_b32 v{VST}, s98, 61"); A(f"v_writelane_b32 v{VST}, s100, 62"); A(f"v_writelane_b32 v{VST}, s3, 63")
        A(f"s_lshl_b32 {sT1}, s2, 2"); A(f"s_add_u32 {sT1}, {sT1}, {sW}"); A(f"s_mul_i32 {sT1}, {sT1}, 768")
        A(f"s_add_u32 {sT1}, {sT1}, {WS_STAMP}")
        A(f"v_lshrrev_b32 v3, 2, {vL16}")
        for k in range(3): A(f"buffer_store_dword v{VST+k}, v3, {srd(SWS)}, {sT1} offen offset:{256*k}")

HDR = open("standalone__mha_block_cached__near_ridge.s.ref").read().split("; Override")[0]
def desc(name):
    return f""".amdhsa_kernel {name}
  .amdhsa_next_free_vgpr 512
  .amdhsa_next_free_sgpr 102
  .amdhsa_accum_offset 256
  .amdhsa_group_segment_fixed_size 0
  .amdhsa_kernarg_size 64
  .amdhsa_user_sgpr_count 2
  .amdhsa_user_sgpr_kernarg_segment_ptr 1
  .amdhsa_system_sgpr_workgroup_id_x 1
.end_amdhsa_kernel
"""
def build(path, verbose=False, cls=None, **kw):
    g = (cls or Gen)(**kw); g.kernel()
    la = align8(g.A.lines)
    bad = check_hazards(la)
    print(path, "hazards:", bad, "lines", len(la))
    if verbose: print(g.n)
    s = HDR + "; @launch grid=(256,1,1) block=(256,1,1) lds=163840\n"
    s += '.amdgcn_target "amdgcn-amd-amdhsa--gfx950"\n.text\n'
    s += f".globl {KN}\n.p2align 8\n.type {KN},@function\n{KN}:\n" + "\n".join(la) + "\n"
    s += '.section .rodata,"a"\n.p2align 6\n' + desc(KN)
    open(path, "w").write(s)
if __name__ == "__main__":
    build("v12_h.s", hdbg=1)
    build("v12_h2.s", hdbg=78)
```

```python
import sys, math, struct, itertools
sys.path.insert(0, "work")
from asmlib import Asm, check_hazards, align8

KN = "standalone__mha_block_cached__near_ridge_kernel"
def f2u(x): return struct.unpack("<I", struct.pack("<f", x))[0]
CSC = math.log2(math.e) / math.sqrt(128.0)
T = 16384
LK, LV = 0, 3 * T
WS_FLAG = 16 << 20
WS_STAMP = 21 << 20
WS_SIZE = 22 << 20
SK, SV, SX, SWQ, SWO, SWS, SOUT, SDBG = 4, 8, 12, 16, 20, 24, 28, 32
def srd(b): return f"s[{b}:{b+3}]"
sW, sW4K, sKoff, sVoff, sW2K, sWP, sThr, sT, sC, sQw, sFloor, sQa = [f"s{i}" for i in range(36, 48)]
sXoff, sWoff, sOT, sT0, sT1, sT2 = [f"s{i}" for i in range(48, 54)]
sLink = "s[54:55]"; sRet = "s[92:93]"; sLink2 = "s[94:95]"
sAoff, sWToff, sB2, sT3, sRot = [f"s{i}" for i in range(56, 61)]
sTi, sXb, sWb, sAreal, sFlagP, sFlagC, sBat, sSpin = [f"s{i}" for i in range(80, 88)]
SCODE = 88
vWs = ["v3", "v4", "v5", "v6"]; vWr = "v7"
vInv = 8
vPoll = "v12"; vPoff = "v13"; vZero = "v14"; vOne = "v15"
vKa = [f"v{i}" for i in range(16, 20)]
vVa = [f"v{i}" for i in range(20, 28)]
vKd = [f"v{i}" for i in range(28, 32)]
vVd = ["v32", "v33"]; vMx = ["v34", "v35"]; vMc = "v36"; vTm = "v37"; vF = ["v38", "v39"]; vL16 = "v40"
VST = 41
ONES, LACC, NEG = 44, 48, 56
O0, SA, SB, P0, HELD = 64, 128, 160, 192, 208
vWa = [f"v{i}" for i in range(160, 168)]; vXa = "v168"; vXd = ["v169", "v170"]; vWd = [f"v{i}" for i in range(171, 175)]
def tmp(i): return f"v{176 + i}"
AQ, AACC, AKF, AVF, AFREE = 0, 32, 96, 128, 160
def vt(b, n): return f"v[{b}:{b+n-1}]"
def at(b, n): return f"a[{b}:{b+n-1}]"
MF = "v_mfma_f32_16x16x32_bf16"
PUB_T = 2

class Gen:
    def __init__(self, stamps=False, nt=" nt", split=24, wgrp=2, nahead=6, latepos=(20, 24, 28, 31), stf=" sc1", ldf=" sc1",
                 kvpos=(0, 2, 5, 8), dbg=(), rotO=False, rot=2, aahead=4, wof="", oa_t=29, warm=True, epark=True, lpark=True, nreg=7, lim=12, hdbg=False, nmax=63, rotW=8):
        self.A = Asm(); self.vm = []
        self.__dict__.update({k: v for k, v in locals().items() if k != "self"})
        self.latepos = list(latepos); self.wcnt = 0; self.acnt = 0
    def vm_issue(self, tag, n): self.vm += [tag] * n
    def vm_need(self, *tags):
        idx = max(i for i, q in enumerate(self.vm) if q in tags)
        return min(63, len(self.vm) - 1 - idx)
    def stamp(self, k):
        if self.stamps:
            self.A("s_memtime s[96:97]"); self.A("s_waitcnt lgkmcnt(0)"); self.A(f"v_writelane_b32 v{VST}, s96, {k}")
    def hstamp(self, k):
        if not self.hdbg: return
        A = self.A
        A("s_memrealtime s[100:101]"); A("s_waitcnt lgkmcnt(0)"); A(f"v_writelane_b32 v{VST}, s100, {k}")
        if k == 15:
            lab = A.newlabel("Lh")
            A(f"s_cmp_eq_u32 s2, {self.hdbg - 1}"); A(f"s_cbranch_scc0 {lab}"); A(f"s_cmp_eq_u32 {sW}, 0"); A(f"s_cbranch_scc0 {lab}")
            A(f"v_readlane_b32 s100, v{VST}, 0"); A("s_nop 3"); A(f"v_subrev_u32 v{VST}, s100, v{VST}"); A(f"v_lshrrev_b32 v{VST+1}, 2, {vL16}")
            A("s_mov_b64 exec, 0xffff"); A(f"buffer_store_dword v{VST}, v{VST+1}, {srd(SDBG)}, 0 offen"); A("s_mov_b64 exec, -1")
            A.label(lab)
    def istamp(self):
        if self.hdbg:
            A = self.A; lab = A.newlabel("Lh")
            A(f"s_and_b32 s96, {sT}, 3"); A("s_cmp_eq_u32 s96, 3"); A(f"s_cbranch_scc0 {lab}")
            A("s_memrealtime s[100:101]"); A(f"s_lshr_b32 s96, {sT}, 2"); A("s_add_u32 m0, s96, 3"); A("s_waitcnt lgkmcnt(0)")
            A(f"v_writelane_b32 v{VST}, s100, m0")
            A.label(lab)
        if not self.stamps: return
        A = self.A
        A("s_memtime s[96:97]"); A("s_memrealtime s[100:101]"); A(f"s_add_u32 m0, {sT}, 32"); A("s_waitcnt lgkmcnt(0)")
        A(f"v_writelane_b32 v{VST+2}, s96, m0"); A(f"v_writelane_b32 v{VST+1}, s100, m0")
    def dma(self, voff, srdb, soff, imm, flags=""):
        return f"buffer_load_dwordx4 {voff}, {srd(srdb)}, {soff} offen offset:{imm}{flags} lds"
    def tile_KV(self, isK, slot):
        off, base, voffs, srdb = (sKoff, LK, vKd, SK) if isK else (sVoff, LV, vVd * 2, SV)
        g = [[self.dma(voffs[i], srdb, off, i * 1024, self.nt)] for i in range(4)]
        g[0] = [f"s_add_u32 m0, {sW4K}, {base + slot*T}", "@M0"] + g[0]
        g[3] = g[3] + [f"s_add_u32 {off}, {off}, {T}"]
        return g
    def tile_XW(self, xbase, wbase):
        return [[f"s_lshl_b32 {sXoff}, {sTi}, 6", f"s_add_u32 m0, {sW2K}, {xbase}", f"s_add_u32 {sXoff}, {sXoff}, {sXb}", self.dma(vXd[0], SX, sXoff, 0)],
                [f"s_lshl_b32 {sWoff}, {sTi}, 18", self.dma(vXd[1], SX, sXoff, 1024)],
                [f"s_add_u32 m0, {sW4K}, {wbase}", f"s_add_u32 {sWoff}, {sWoff}, {sWb}", self.dma(vWd[0], SWQ, sWoff, 0)],
                [f"s_add_u32 {sTi}, {sTi}, 1", self.dma(vWd[1], SWQ, sWoff, 1024)],
                [f"s_and_b32 {sTi}, {sTi}, 15", self.dma(vWd[2], SWQ, sWoff, 2048)],
                [self.dma(vWd[3], SWQ, sWoff, 3072)]]
    def tile_Wo(self, slot):
        g = [[self.dma(vWs[i], SWO, sWToff, i * 1024, self.wof)] for i in range(4)]
        g[0] = [f"s_lshl_b32 {sWToff}, {sQw}, 15", f"s_add_u32 m0, {sW4K}, {slot * T}", f"s_add_u32 {sWToff}, {sWToff}, {sWP}"] + g[0]
        for i, l in enumerate(self.nextq(sQw, self.wcnt)): g[1 + i % 3] = g[1 + i % 3] + [l] if i >= 3 else [l] + g[1 + i]
        self.wcnt += 1
        return g
    def nextq(self, s, cnt):
        if self.rotO != 2: return [f"s_add_u32 {s}, {s}, 1", f"s_and_b32 {s}, {s}, 31"]
        W = self.rotW
        if (cnt + 1) % W == 0: return [f"s_add_u32 {s}, {sRot}, {cnt + 1}"]
        return [f"s_add_u32 {s}, {s}, 1", f"s_and_b32 {s}, {s}, {W - 1}", f"s_add_u32 {s}, {s}, {cnt // W * W}"]
    def emit_groups(self, groups):
        for g in groups:
            for l in g: self.A("s_nop 0" if l == "@M0" else l)
    @staticmethod
    def cost(l):
        if l.startswith("v_exp"): return 8
        if l.startswith("buffer_"): return 16
        return 4
    def spread(self, fill, gaps, lo, hi, base):
        tot = sum(self.cost(l) for l in fill) + sum(base[lo:hi])
        per = tot / (hi - lo); g = lo; acc = 0.0
        k = 0
        for g in range(lo, hi):
            acc += base[g]; tgt = per * (g - lo + 1)
            while k < len(fill) and (acc + self.cost(fill[k]) / 2 <= tgt or g == hi - 1):
                gaps[g].append(fill[k]); acc += self.cost(fill[k]); base[g] += self.cost(fill[k]); k += 1
    def exp_ops(self, S, lo, hi):
        ops = []
        ex = lambda i: f"v_exp_f32 v{S+i}, v{S+i}"
        def cvt(i):
            kb, qb, r = i // 8, (i // 4) % 2, i % 4
            return f"v_cvt_pk_bf16_f32 v{P0 + 8*(kb//2) + 4*qb + 2*(kb%2) + r//2}, v{S+i}, v{S+i+1}"
        prs = list(range(lo, hi, 2))
        for k, i in enumerate(prs):
            ops += [ex(i), ex(i + 1)]
            if k > 0: ops += [cvt(prs[k-1])]
        ops += ["s_nop 0", cvt(prs[-1])]
        return ops
    def max_ops(self, S):
        ops = []
        for qb in range(2):
            r = [S + 8 * kb + 4 * qb + j for kb in range(4) for j in range(4)]
            o = [f"v_max3_f32 {vMx[qb]}, v{r[0]}, v{r[1]}, v{r[2]}"]
            for i in range(3, 15, 2): o.append(f"v_max3_f32 {vMx[qb]}, {vMx[qb]}, v{r[i]}, v{r[i+1]}")
            o.append(f"v_max_f32 {vMx[qb]}, {vMx[qb]}, v{r[15]}")
            ops.append(o)
        out = [x for pr in zip(*ops) for x in pr]
        out.append(f"v_max_f32 {vMc}, {vMx[0]}, {vMx[1]}")
        return out
    def qk_units(self, Sn, slot, tag="k"):
        un = []
        for i in range(16):
            kb, s = i // 4, i % 4
            fr = AKF + 4 * (i % 8)
            ms = [f"{MF} {vt(Sn+8*kb+4*qb,4)}, {at(fr,4)}, {at(AQ+16*qb+4*s,4)}, {vt(NEG+4*qb,4) if s == 0 else vt(Sn+8*kb+4*qb,4)}" for qb in range(2)]
            un.append((ms, [(tag, i)], [(f"ds_read_b128 {at(fr,4)}, {vKa[s]} offset:{slot*T + kb*4096}", (tag, i))]))
        return un
    def pv_units(self, slot):
        un = []
        for i in range(16):
            u, db = i // 8, i % 8
            fr = AVF + 4 * (i % 8)
            ms = [f"{MF} {vt(O0+8*db+4*qb,4)}, {at(fr,4)}, {vt(P0+8*u+4*qb,4)}, {vt(O0+8*db+4*qb,4)}" for qb in range(2)]
            un.append((ms, [("v", i)], [(f"ds_read_b64_tr_b16 {at(fr,2)}, {vVa[db]} offset:{slot*T + u*8192}", ("v", i)),
                                          (f"ds_read_b64_tr_b16 {at(fr+2,2)}, {vVa[db]} offset:{slot*T + u*8192 + 4096}", ("v", i))]))
        return un
    def stream(self, units, nun, NA, G, gaps, mid, extra=None):
        A = self.A
        for i in range(nun):
            if i % G == 0: A.lds_wait(*sum((units[j][1] for j in range(i, min(nun, i + G))), []))
            rds = units[i + NA][2] if i + NA < len(units) else []
            A(units[i][0][0])
            mid(i)
            if rds: A.lds(*rds[0])
            for l in gaps[2 * i]: A(l)
            A(units[i][0][1])
            for r in rds[1:]: A.lds(*r)
            for l in gaps[2 * i + 1]: A(l)
            if extra and i in extra: A(extra[i])
    def place(self, gaps, base, groups, positions):
        for g, p in zip(groups, positions):
            if "@M0" in g:
                k = g.index("@M0"); gaps[p - 1] = gaps[p - 1] + g[:k]; base[p - 1] += 4 * k; g = g[k + 1:]
            gaps[p] = gaps[p] + g; base[p] += sum(self.cost(l) for l in g)
    def simulate_loop(self):
        n1, n2, n3 = {}, {}, {}
        for t in range(32):
            n1[t] = self.vm_need(("V", t))
            self.vm_issue(("V", t + 2), 4)
            n2[t] = self.vm_need(("K", t + 2)) if t < 30 else 63
            self.vm_issue(("K", t + 4), 4)
            if t == PUB_T: n3[t] = self.vm_need(("FZ",))
        return n1, n2, n3
    def aload(self, R, j, soff):
        return [f"buffer_load_dwordx4 {R(4*j,4)}, {vL16}, {srd(SWS)}, {soff} offen offset:{(j%4)*1024}{self.ldf}"]
    def body(self, c, n1, n2):
        A = self.A
        par = c % 2; NA = self.nahead; G = self.wgrp
        S, Sn = (SA, SB) if par == 0 else (SB, SA)
        sel = lambda d: min(self.nmax, min(v for t, v in d.items() if t % 6 == c))
        units = self.qk_units(Sn, (c + 1) % 3) + self.pv_units(c % 3) + self.qk_units(S, (c + 2) % 3, "kn")[:NA]
        bp = 16 - NA
        gaps = [[] for _ in range(64)]; base = [0] * 64
        for i in range(32):
            nr = len(units[i + NA][2])
            base[2 * i] += 4; base[2 * i + 1] += 4 * (nr - 1)
            if (i + 1) % G == 0: base[2 * i + 1] += 4
            if i % 16 == bp: base[2 * i] += 12
        self.place(gaps, base, self.tile_KV(False, (c + 2) % 3), [p + 1 for p in self.latepos[:3]] + [31])
        self.place(gaps, base, self.tile_KV(True, (c + 1) % 3), [32 + p + 1 for p in self.latepos[:3]] + [63])
        self.spread(self.exp_ops(S, 0, self.split), gaps, 0, 32, base)
        self.spread(self.exp_ops(S, self.split, 32), gaps, 32, 32 + self.lim, base)
        self.spread(self.max_ops(Sn), gaps, 32 + self.lim, 64, base)
        lm = lambda u, qb: f"{MF} {vt(LACC+4*qb,4)}, {vt(ONES,4)}, {vt(P0+8*u+4*qb,4)}, {vt(LACC+4*qb,4)}"
        extra = {16 + 3: lm(0, 0), 16 + 7: lm(0, 1), 16 + 11: lm(1, 0), 16 + 15: lm(1, 1)}
        def mid(i):
            if i % 16 == bp:
                A(f"s_waitcnt vmcnt({sel(n1) if i < 16 else sel(n2)})"); A("s_barrier")
        A.lds_q = [("k", i) for i in range(NA)]
        self.stream(units, 32, NA, G, gaps, mid, extra)
    def widen(self, a, b):
        return [[f"v_permlane32_swap_b32 v{a}, v{b}", f"v_permlane32_swap_b32 v{a+1}, v{b+1}"],
                [f"v_permlane16_swap_b32 v{a}, v{b}", f"v_permlane16_swap_b32 v{a+1}, v{b+1}"]]
    def qfin_ops(self, from_acc):
        pair = vt(int(vF[0][1:]), 2); out = []
        for s in range(4):
            t = P0 if from_acc else O0 + 16 * s
            if from_acc: out += [f"v_accvgpr_read_b32 v{t+j}, a{AACC+16*s+j}" for j in range(16)]
            out += [f"v_pk_mul_f32 {vt(t+2*j,2)}, {vt(t+2*j,2)}, {pair}" for j in range(8)]
            for q4 in range(4): out += [f"v_cvt_pk_bf16_f32 v{t+4*q4+j}, v{t+4*q4+2*j}, v{t+4*q4+2*j+1}" for j in range(2)]
            w0, w1 = self.widen(t, t + 8), self.widen(t + 4, t + 12)
            out += ["s_nop 0"] + w0[0] + w1[0] + w0[1] + w1[1]
            for qb in range(2):
                for j, r in enumerate((t + 4*qb, t + 4*qb + 1, t + 8 + 4*qb, t + 8 + 4*qb + 1)):
                    out.append(f"v_accvgpr_write_b32 a{AQ+16*qb+4*s+j}, v{r}")
        return out
    def zero_acc(self): return [f"v_accvgpr_write_b32 a{AACC+i}, 0" for i in range(64)]
    def epilogue(self, hold):
        A = self.A
        A("s_nop 4")
        for qb in range(2):
            A(f"v_rcp_f32 v{vInv+2*qb}, v{LACC+4*qb}"); A(f"v_rcp_f32 v{vInv+2*qb+1}, v{LACC+4*qb}")
        A("s_nop 0")
        for v in range(4):
            for qb in range(2):
                src = [O0 + 16*v + 4*qb, O0 + 16*v + 8 + 4*qb]
                dst = HELD + 8*v + 4*qb if hold else SA + 8*v + 4*qb
                for b in src:
                    for j in range(2): A(f"v_pk_mul_f32 {vt(b+2*j,2)}, {vt(b+2*j,2)}, {vt(vInv+2*qb,2)}")
                for k, b in enumerate(src):
                    for j in range(2): A(f"v_cvt_pk_bf16_f32 v{dst+2*k+j}, v{b+2*j}, v{b+2*j+1}")
                if not hold: A(self.ostore(dst, v, qb))
            if not hold: A(f"s_add_u32 {sOT}, {sOT}, 4096")
    def ostore(self, reg, v, qb):
        return f"buffer_store_dwordx4 {vt(reg,4)}, {vL16}, {srd(SWS)}, {sOT} offen offset:{qb*1024}{self.stf}"
    def store_held(self):
        for v in range(4):
            for qb in range(2): self.A(self.ostore(HELD + 8*v + 4*qb, v, qb))
            self.A(f"s_add_u32 {sOT}, {sOT}, 4096")
    def make_srd(self, b, p, size):
        A = self.A
        A(f"s_mov_b32 s{b}, s{p}"); A(f"s_mov_b32 s{b+1}, s{p+1}")
        A(f"s_mov_b32 s{b+2}, 0x{size:x}"); A(f"s_mov_b32 s{b+3}, 0x20000")
    def one_lane(self, lines, wave0=False):
        A = self.A
        lab = A.newlabel("Lo")
        if wave0: A(f"s_cmp_eq_u32 {sW}, 0"); A(f"s_cbranch_scc0 {lab}")
        A("s_mov_b64 exec, 1")
        for l in lines: A(l)
        A("s_mov_b64 exec, -1")
        if wave0: A.label(lab)
    def spin(self, name, cmp_line, load_line, sleep):
        A = self.A
        A(f"s_mov_b32 {sSpin}, 0x40000")
        A.label(name)
        A(cmp_line)
        A(f"s_cbranch_vccz {name}_ok")
        A(f"s_sub_u32 {sSpin}, {sSpin}, 1"); A(f"s_cbranch_scc1 {name}_ok")
        if sleep: A(f"s_sleep {sleep}")
        A(load_line)
        A("s_waitcnt vmcnt(0)")
        A(f"s_branch {name}")
        A.label(name + "_ok")
    def rowmax(self, floor):
        A = self.A
        for qb, tm in ((0, vTm), (1, vMc)): A(f"v_mov_b32 {tm}, {vMx[qb]}")
        A("s_nop 0")
        for qb, tm in ((0, vTm), (1, vMc)): A(f"v_permlane32_swap_b32 {vMx[qb]}, {tm}")
        for qb, tm in ((0, vTm), (1, vMc)): A(f"v_max_f32 {vMx[qb]}, {vMx[qb]}, {tm}")
        for qb, tm in ((0, vTm), (1, vMc)): A(f"v_mov_b32 {tm}, {vMx[qb]}")
        A("s_nop 0")
        for qb, tm in ((0, vTm), (1, vMc)): A(f"v_permlane16_swap_b32 {vMx[qb]}, {tm}")
        for qb, tm in ((0, vTm), (1, vMc)): A(f"v_max3_f32 {vMx[qb]}, {vMx[qb]}, {tm}, {floor}")

    def kernel(self):
        A = self.A
        tg, tl15, tr, tc, ta, tb, td, te = [tmp(i) for i in range(8)]
        A("s_cmp_ge_u32 s2, 256"); A("s_cbranch_scc1 L_end")
        if self.stamps: A("s_memrealtime s[98:99]")
        A("s_load_dwordx16 s[64:79], s[0:1], 0")
        self.stamp(0); self.hstamp(0)
        A("v_lshrrev_b32 v1, 6, v0"); A("v_and_b32 v2, 63, v0")
        A(f"v_readfirstlane_b32 {sW}, v1")
        A(f"v_lshlrev_b32 {vL16}, 4, v2")
        A(f"s_getpc_b64 s[{SCODE}:{SCODE+1}]")
        A.label("L_pc")
        A(f"s_mov_b32 s{SCODE+2}, L_codeend-L_pc"); A(f"s_mov_b32 s{SCODE+3}, 0x20000")
        A(f"s_lshr_b32 {sT0}, s2, 3"); A(f"s_lshl_b32 {sT0}, {sT0}, 2"); A(f"s_add_u32 {sT0}, {sT0}, {sW}")
        A(f"s_and_b32 {sT0}, {sT0}, 63"); A(f"s_lshl_b32 {sT0}, {sT0}, 10")
        A(f"buffer_load_dwordx4 v[128:131], {vL16}, {srd(SCODE)}, {sT0} offen"); self.vm_issue(("CODE",), 1)
        A(f"s_lshl_b32 {sW4K}, {sW}, 12"); A(f"s_lshl_b32 {sW2K}, {sW}, 11")
        A(f"v_lshrrev_b32 {tg}, 4, v2"); A(f"v_and_b32 {tc}, 3, v2")
        A(f"v_lshrrev_b32 {ta}, 2, v2"); A(f"v_lshl_add_u32 {ta}, v1, 5, {ta}")
        A(f"v_sub_u32 {tb}, 0, {tg}"); A(f"v_and_b32 {tb}, 3, {tb}"); A(f"v_xor_b32 {tb}, {tb}, {tc}"); A(f"v_lshlrev_b32 {tb}, 4, {tb}")
        A(f"v_lshl_add_u32 {vXd[0]}, {ta}, 10, {tb}"); A(f"v_add_u32 {vXd[1]}, {16384 - 1024}, {vXd[0]}")
        A(f"v_lshrrev_b32 {ta}, 5, v2"); A(f"v_and_b32 {tb}, 1, v1"); A(f"v_lshl_add_u32 {tb}, {tb}, 2, {ta}"); A(f"v_lshlrev_b32 {tb}, 1, {tb}")
        A(f"v_and_b32 {td}, 31, v2"); A(f"v_xor_b32 {tb}, {tb}, {td}"); A(f"v_lshlrev_b32 {tb}, 4, {tb}")
        A(f"v_lshl_add_u32 {ta}, v1, 3, {ta}"); A(f"v_lshl_add_u32 {vWd[0]}, {ta}, 13, {tb}"); A(f"v_xor_b32 {tb}, 64, {vWd[0]}")
        A(f"v_add_u32 {vWd[1]}, 15360, {tb}"); A(f"v_add_u32 {vWd[2]}, {2*15360}, {vWd[0]}"); A(f"v_add_u32 {vWd[3]}, {3*15360}, {tb}")
        A(f"s_and_b32 {sBat}, s2, 1"); A(f"s_lshl_b32 {sBat}, {sBat}, 3")
        A(f"s_bfe_u32 {sT1}, s2, 0x30003"); A(f"s_add_u32 {sBat}, {sBat}, {sT1}")
        A(f"s_lshr_b32 {sT2}, s2, 6")
        if self.rot == 2:
            A(f"s_lshl_b32 {sTi}, {sT2}, 1"); A(f"s_add_u32 {sTi}, {sTi}, {sT1}"); A(f"s_lshl_b32 {sTi}, {sTi}, 1"); A(f"s_and_b32 {sTi}, {sTi}, 15")
        elif self.rot == 1:
            A(f"s_add_u32 {sTi}, {sT2}, {sT1}"); A(f"s_and_b32 {sTi}, {sTi}, 1"); A(f"s_lshl_b32 {sTi}, {sTi}, 3")
        elif self.rot == 3:
            A(f"s_add_u32 {sTi}, {sT2}, {sT1}"); A(f"s_and_b32 {sTi}, {sTi}, 3"); A(f"s_lshl_b32 {sTi}, {sTi}, 2")
        else: A(f"s_mov_b32 {sTi}, 0")
        A(f"s_bfe_u32 {sT1}, s2, 0x20001"); A(f"s_lshl_b32 {sT1}, {sT1}, 3")
        A(f"s_lshl_b32 {sT3}, {sT2}, 1"); A(f"s_add_u32 {sT3}, {sT3}, {sT1}")
        A(f"s_add_u32 {sT1}, {sT1}, {sT2}")
        A(f"s_lshl_b32 {sXb}, {sBat}, 17"); A(f"s_lshl_b32 {sWb}, {sT3}, 8")
        A("s_waitcnt lgkmcnt(0)")
        self.make_srd(SX, 64, 2 << 20); self.make_srd(SWQ, 70, 4 << 20)
        XS = [9 * T, 9 * T + 8192, 2 * T, 2 * T + 8192]; WS_ = [6 * T, 7 * T, 8 * T, 5 * T]
        self.emit_groups(self.tile_XW(XS[0], WS_[0])); self.vm_issue(("P", 0), 6)
        self.stamp(1)
        A(f"s_lshl_b32 {sT2}, {sBat}, 5"); A(f"s_add_u32 {sT2}, {sT2}, {sT3}"); A(f"s_lshl_b32 {sT2}, {sT2}, 18")
        A(f"s_add_u32 s66, s66, {sT2}"); A("s_addc_u32 s67, s67, 0"); A(f"s_add_u32 s68, s68, {sT2}"); A("s_addc_u32 s69, s69, 0")
        A(f"s_mov_b32 {sKoff}, 0"); A(f"s_mov_b32 {sVoff}, 0")
        A(f"s_lshl_b32 {sT0}, {sBat}, 1"); A(f"s_lshr_b32 {sT2}, {sW}, 1"); A(f"s_add_u32 {sT0}, {sT0}, {sT2}")
        A(f"s_lshl_b32 {sFlagP}, {sT0}, 2"); A(f"s_lshr_b32 {sT2}, {sT1}, 3"); A(f"s_add_u32 {sFlagP}, {sFlagP}, {sT2}")
        A(f"s_lshl_b32 {sFlagP}, {sFlagP}, 7"); A(f"s_and_b32 {sT2}, {sT1}, 3"); A(f"s_lshl_b32 {sT2}, {sT2}, 3")
        A(f"s_add_u32 {sFlagP}, {sFlagP}, {sT2}"); A(f"s_and_b32 {sT2}, {sW}, 1"); A(f"s_lshl_b32 {sT1}, {sT2}, 2")
        A(f"s_add_u32 {sFlagP}, {sFlagP}, {sT1}"); A(f"s_add_u32 {sFlagP}, {sFlagP}, {WS_FLAG}")
        A(f"s_lshl_b32 {sT0}, {sT0}, 5"); A(f"s_add_u32 {sT0}, {sT0}, {sT3}"); A(f"s_lshl_b32 {sT0}, {sT0}, 14")
        A(f"s_lshl_b32 {sT2}, {sT2}, 11"); A(f"s_add_u32 {sOT}, {sT0}, {sT2}")
        self.emit_groups(self.tile_XW(XS[1], WS_[1])); self.vm_issue(("P", 1), 6)
        A(f"s_mov_b32 {sC}, 0x{f2u(CSC):08x}"); A(f"s_mov_b32 {sThr}, 0x{f2u(8.0):08x}")
        self.make_srd(SK, 66, 512 << 10); self.make_srd(SV, 68, 512 << 10)
        self.make_srd(SWO, 72, 4 << 20); self.make_srd(SWS, 78, WS_SIZE)
        self.make_srd(SOUT, 74, 2 << 20); self.make_srd(SDBG, 76, 256)
        A(f"v_and_b32 {tl15}, 15, v2"); A(f"v_lshl_add_u32 {ta}, v1, 4, {tg}")
        A(f"v_lshlrev_b32 {tb}, 1, {tg}"); A(f"v_xor_b32 {tb}, {tb}, {tl15}"); A(f"v_lshlrev_b32 {tb}, 4, {tb}")
        A(f"v_lshl_add_u32 {vVd[0]}, {ta}, 8, {tb}"); A(f"v_xor_b32 {vVd[1]}, 128, {vVd[0]}")
        A(f"v_xor_b32 {tb}, {tl15}, {tg}"); A(f"v_lshlrev_b32 {tb}, 4, {tb}")
        A(f"v_lshl_add_u32 {vKd[0]}, {ta}, 8, {tb}")
        for i in range(1, 4): A(f"v_xor_b32 {vKd[i]}, {64*i}, {vKd[0]}")
        self.emit_groups(self.tile_XW(XS[2], WS_[2])); self.vm_issue(("P", 2), 6)
        A(f"v_lshl_add_u32 {vKa[0]}, {tl15}, 8, {tb}")
        for s in range(1, 4): A(f"v_xor_b32 {vKa[s]}, {64*s}, {vKa[0]}")
        A(f"v_bfe_u32 {tr}, v2, 2, 2")
        A(f"v_sub_u32 {ta}, 0, {tr}"); A(f"v_and_b32 {ta}, 3, {ta}"); A(f"v_xor_b32 {ta}, {ta}, {tg}"); A(f"v_lshlrev_b32 {ta}, 4, {ta}")
        A(f"v_lshl_add_u32 {tb}, v1, 5, {tl15}"); A(f"v_lshl_add_u32 {ta}, {tb}, 6, {ta}")
        A(f"v_add_u32 {vXa}, {XS[0]}, {ta}")
        A(f"v_and_b32 {ta}, 1, {tg}"); A(f"v_lshl_add_u32 {ta}, {ta}, 2, {tr}")
        A(f"v_lshlrev_b32 {ta}, 5, {ta}"); A(f"v_lshl_add_u32 {ta}, {tc}, 3, {ta}")
        A(f"v_lshl_add_u32 {td}, {tg}, 2, {tr}")
        A(f"v_lshl_add_u32 {tb}, {td}, 8, {ta}"); A(f"v_add_u32 {vVa[0]}, {LV}, {tb}")
        for b in range(1, 8): A(f"v_xor_b32 {vVa[b]}, {32*b}, {vVa[0]}")
        A(f"v_lshl_add_u32 {tb}, {tg}, 3, {tr}"); A(f"v_lshl_add_u32 {tb}, {tb}, 9, {ta}"); A(f"v_add_u32 {vWa[0]}, {5*T}, {tb}")
        for b in range(1, 8): A(f"v_xor_b32 {vWa[b]}, {32*b}, {vWa[0]}")
        A(f"v_lshrrev_b32 {ta}, 3, v2"); A(f"v_and_b32 {tb}, 7, v2"); A(f"v_lshlrev_b32 {te}, 1, {tg}"); A(f"v_xor_b32 {tb}, {tb}, {te}")
        A(f"v_lshlrev_b32 {tb}, 4, {tb}"); A(f"v_lshl_add_u32 {vWs[0]}, {ta}, 10, {tb}")
        for i in range(1, 4): A(f"v_add_u32 {vWs[i]}, {i * 7168}, {vWs[0]}")
        A(f"v_bfe_u32 {ta}, {td}, 1, 2"); A(f"v_lshlrev_b32 {ta}, 5, {ta}"); A(f"v_lshl_add_u32 {ta}, {tc}, 3, {ta}")
        A(f"v_lshl_add_u32 {ta}, {td}, 7, {ta}"); A(f"v_add_u32 {vWr}, {sW4K}, {ta}")
        A(f"v_cmp_eq_u32 vcc, 0, {tc}"); A(f"v_mov_b32 {ta}, 0x3f803f80"); A(f"v_mov_b32 {vZero}, 0"); A(f"v_mov_b32 {vOne}, 1")
        for k in range(4): A(f"v_cndmask_b32 v{ONES+k}, 0, {ta}, vcc")
        for k in range(16): A(f"v_mov_b32 v{LACC+k}, 0")
        A(f"s_and_b32 {sT0}, s2, 7"); A(f"s_lshl_b32 {sT0}, {sT0}, 2"); A(f"s_lshr_b32 {sT1}, s2, 6")
        A(f"s_add_u32 {sB2}, {sT0}, {sT1}")
        A(f"s_lshl_b32 {sT0}, {sB2}, 19"); A(f"s_lshl_b32 {sT1}, {sW}, 17"); A(f"s_add_u32 {sAreal}, {sT0}, {sT1}")
        A(f"s_bfe_u32 {sT0}, s2, 0x30003"); A(f"s_lshl_b32 {sT0}, {sT0}, 7")
        A(f"s_lshl_b32 {sT1}, {sW}, 20"); A(f"s_add_u32 {sWP}, {sT0}, {sT1}")
        A(f"s_lshr_b32 {sT0}, {sB2}, 1"); A(f"s_lshl_b32 {sT0}, {sT0}, 2"); A(f"s_add_u32 {sT0}, {sT0}, {64 if self.hdbg else 0}"); A(f"v_mov_b32 {vPoff}, {sT0}")
        if self.rotO:
            A(f"s_bfe_u32 {sT0}, s2, 0x30003"); A(f"s_lshr_b32 {sT1}, s2, 6"); A(f"s_lshl_b32 {sT1}, {sT1}, 1"); A(f"s_add_u32 {sT0}, {sT0}, {sT1}")
            if self.rotO == 1: A(f"s_lshl_b32 {sT0}, {sT0}, 2"); A(f"s_and_b32 {sQw}, {sT0}, 31")
            else:
                if self.rotW == 16: A(f"s_lshl_b32 {sT0}, {sT0}, 1")
                A(f"s_and_b32 {sQw}, {sT0}, {self.rotW - 1}"); A(f"s_mov_b32 {sRot}, {sQw}")
        else: A(f"s_mov_b32 {sQw}, 0")
        A(f"s_mov_b32 {sQa}, {sQw}")
        A(f"s_lshl_b32 {sFlagC}, {sB2}, 2"); A(f"s_add_u32 {sFlagC}, {sFlagC}, {sW}"); A(f"s_lshl_b32 {sFlagC}, {sFlagC}, 7")
        A(f"s_add_u32 {sFlagC}, {sFlagC}, {WS_FLAG}")
        self.one_lane([f"buffer_store_dword {vZero}, {vZero}, {srd(SWS)}, {sFlagP} offen sc1"]); self.vm_issue(("FZ",), 1)
        NA = 5; BP = 16 - NA; NU = 256
        XF = lambda pi, qb: at(AKF + 8 * (pi % 2) + 4 * qb, 4)
        units = []
        for pi in range(16):
            for t in range(16):
                m = 16 * pi + t; fr = AVF + 4 * (m % 8)
                D = lambda qb: vt(O0 + 8*t + 4*qb, 4) if t < 8 else at(AACC + 8*(t-8) + 4*qb, 4)
                wo_ = WS_[pi % 4] - 5 * T + (t // 8) * 256
                units.append(([f"{MF} {D(qb)}, {at(fr,4)}, {XF(pi, qb)}, {'0' if pi == 0 else D(qb)}" for qb in range(2)],
                              [("w", m), ("x", pi)],
                              [(f"ds_read_b64_tr_b16 {at(fr,2)}, {vWa[t % 8]} offset:{wo_}", ("w", m)),
                               (f"ds_read_b64_tr_b16 {at(fr+2,2)}, {vWa[t % 8]} offset:{wo_ + 2048}", ("w", m))]))
        sched = []
        early = [("K", 0), ("K", 1), ("V", 0), ("V", 1)]
        for j in range(3, 16):
            first = 0 if j == 3 else 16 * (j - 3) + BP
            sched.append((first, ("P", j), self.tile_XW(XS[j % 4], WS_[j % 4])))
            for (kind, sl), at_ in zip(early, self.kvpos):
                if at_ == j - 3: sched.append((first, (kind, sl), self.tile_KV(kind == "K", sl)))
        gaps = [[] for _ in range(2 * NU)]; vmat = {}
        pos = 0
        for first, tag, groups in sched:
            for g in groups:
                pos = max(pos, first)
                g = [("s_nop 0" if l == "@M0" else l) for l in g]
                k = max(i for i, l in enumerate(g) if l.startswith("buffer_"))
                gaps[2 * pos] += g[:k]; gaps[2 * pos + 1] += g[k:]; vmat[pos] = tag
                pos += 1
        xrd = lambda pi, qb: (f"ds_read_b128 {XF(pi, qb)}, {vXa} offset:{qb * 1024}", ("x", pi))
        def mid(m):
            pi, k = m // 16, m % 16
            if m - 1 in vmat: self.vm_issue(vmat[m - 1], 1)
            if pi < 15:
                if k == 2: A(f"v_add_u32 {vXa}, {XS[(pi + 1) % 4] - XS[pi % 4]}, {vXa}")
                if k == BP:
                    A(f"s_waitcnt vmcnt({self.vm_need(('P', pi + 1))})"); A("s_barrier")
                    if pi % 2 == 1: self.stamp(3 + pi // 2)
                if BP < k <= BP + 2: A.lds(*xrd(pi + 1, k - BP - 1))
        A(f"s_waitcnt vmcnt({self.vm_need(('P', 0))})")
        A("s_barrier")
        self.stamp(2); self.hstamp(1)
        A.lds_reset()
        for qb in range(2): A.lds(*xrd(0, qb))
        for m in range(NA):
            for r in units[m][2]: A.lds(*r)
        self.stream(units, NU, NA, 2, gaps, mid)
        assert NU - 1 not in vmat
        A(f"v_mov_b32 {vF[0]}, {sC}"); A(f"v_mov_b32 {vF[1]}, {sC}")
        for k in range(8): A(f"v_mov_b32 v{NEG+k}, 0")
        A(f"s_waitcnt vmcnt({self.vm_need(('K', 0))})")
        A("s_barrier")
        units = self.qk_units(SA, 0) + self.qk_units(SB, 1, "kn")[:6]
        for i in range(6): A.lds(*units[i][2][0])
        g = self.tile_KV(True, 2); self.vm_issue(("K", 2), 4)
        qa = self.qfin_ops(False); n4 = len(qa) // 4
        for i in range(4):
            self.emit_groups(g[i:i+1])
            for l in qa[n4*i:n4*i+n4]: A(l)
        self.stamp(10); self.hstamp(2)
        gaps = [[] for _ in range(32)]; base = [4, 0] * 16
        if self.epark:
            grp = [x for k in range(4) for x in self.tile_Wo(6 + k)]
            for i, gq in enumerate(grp):
                gaps[2 * i] += gq[:-1]; gaps[2 * i + 1] += gq[-1:]; base[2 * i] += 4 * (len(gq) - 1); base[2 * i + 1] += 16
        self.spread([f"v_mov_b32 v{O0+k}, 0" for k in range(64)], gaps, 0, 32, base)
        def mid0(i):
            if self.epark and i > 0: self.vm_issue(("EP",), 1)
            if i == 10: A(f"s_waitcnt vmcnt({self.vm_need(('K', 1))})"); A("s_barrier")
        self.stream(units, 16, 6, 2, gaps, mid0)
        if self.epark: self.vm_issue(("EP",), 1)
        A("s_barrier")
        g = self.tile_KV(True, 0); self.vm_issue(("K", 3), 4)
        self.emit_groups(g[:2])
        for l in self.max_ops(SA): A(l)
        self.emit_groups(g[2:])
        if self.warm:
            A(f"s_lshl_b32 {sT0}, s2, 14"); A(f"s_add_u32 {sT0}, {sT0}, {sW4K}")
            for i in range(4): A(f"buffer_load_dwordx4 {at(240 + 4*i, 4)}, {vL16}, {srd(SWO)}, {sT0} offen offset:{i*1024}")
            self.vm_issue(("WARM",), 4)
        A(f"s_mov_b32 {sT}, 0")
        A(f"s_call_b64 {sRet}, L_init")
        n1, n2, n3 = self.simulate_loop()
        self.n = (n1, n2, n3)
        xs = {PUB_T, 14, 15, 31, self.oa_t}
        if self.lpark: xs |= {28, 29, 30}
        xmask = sum(1 << t for t in xs)
        A.label("L_loop")
        for c in range(6):
            self.body(c, n1, n2)
            self.istamp()
            A(f"s_bitcmp1_b32 0x{xmask:08x}, {sT}"); A(f"s_cbranch_scc1 L_x_{c}")
            A.label(f"L_c_{c}")
            A(f"v_cmp_lt_f32 vcc, {sThr}, {vMc}")
            A(f"s_cbranch_vccnz L_r_{c}")
            A.label(f"L_n_{c}")
            A(f"s_add_u32 {sT}, {sT}, 1")
        A("s_branch L_loop")
        for c in range(6):
            A.label(f"L_x_{c}"); A(f"s_call_b64 {sRet}, L_extras"); A(f"s_branch L_c_{c}")
            A.label(f"L_r_{c}"); A(f"s_call_b64 {sLink2}, L_rare"); A(f"s_branch L_n_{c}")
        A(".p2align 3")
        ssub = lambda S: [f"v_sub_f32 v{S+i}, v{S+i}, {vMx[(i//4)%2]}" for i in range(32)]
        A.label("L_init")
        A(f"s_mov_b32 {sFloor}, 0x{f2u(-1e30):08x}")
        self.rowmax(sFloor)
        for i in range(8): A(f"v_sub_f32 v{NEG+i}, 0, {vMx[i//4]}")
        for l in ssub(SA): A(l)
        A(f"v_mov_b32 {vMc}, 0")
        A(f"s_setpc_b64 {sRet}")
        A.label("L_rare")
        self.rowmax("0")
        for qb in range(2): A(f"v_exp_f32 {vF[qb]}, -{vMx[qb]}")
        for i in range(8): A(f"v_sub_f32 v{NEG+i}, v{NEG+i}, {vMx[i//4]}")
        for qb in range(2): A(f"v_mul_f32 v{LACC+4*qb}, {vF[qb]}, v{LACC+4*qb}")
        for i in range(64): A(f"v_mul_f32 v{O0+i}, {vF[(i//4)%2]}, v{O0+i}")
        A(f"s_bitcmp1_b32 {sT}, 0"); A("s_cbranch_scc1 L_rare_a")
        for l in ssub(SB): A(l)
        A(f"s_setpc_b64 {sLink2}")
        A.label("L_rare_a")
        for l in ssub(SA): A(l)
        A(f"s_setpc_b64 {sLink2}")
        def tree(ts):
            if len(ts) == 1:
                A(f"s_branch L_t{ts[0]}"); return
            if len(ts) == 2:
                A(f"s_cmp_eq_u32 {sT}, {ts[0]}"); A(f"s_cbranch_scc1 L_t{ts[0]}"); A(f"s_branch L_t{ts[1]}"); return
            h = len(ts) // 2; lab = A.newlabel("Ld")
            A(f"s_cmp_ge_u32 {sT}, {ts[h]}"); A(f"s_cbranch_scc1 {lab}")
            tree(ts[:h]); A.label(lab); tree(ts[h:])
        A.label("L_extras")
        tree(sorted(xs))
        for t in sorted(xs):
            if t == 31: continue
            A.label(f"L_t{t}")
            if t == 14:
                A(f"v_cmp_lt_f32 vcc, {sThr}, {vMc}")
                A("s_cbranch_vccz L_x14b")
                A(f"s_call_b64 {sLink2}, L_rare")
                A.label("L_x14b")
                A(f"v_mov_b32 {vF[0]}, {sC}"); A(f"v_mov_b32 {vF[1]}, {sC}")
                for l in self.qfin_ops(True): A(l)
                for k in range(8): A(f"v_mov_b32 v{NEG+k}, 0")
                for l in self.zero_acc(): A(l)
                A(f"v_mov_b32 {vMc}, 0")
            if t == 15:
                self.epilogue(True)
                for i in range(64): A(f"v_mov_b32 v{O0+i}, 0")
                A(f"v_mov_b32 v{LACC}, 0"); A(f"v_mov_b32 v{LACC+4}, 0")
                self.stamp(11)
                A("s_branch L_init")
                continue
            if t == PUB_T:
                A(f"s_waitcnt vmcnt({n3[t]})"); A("s_barrier")
                A(f"s_lshl_b32 {sT0}, {sBat}, 2")
                self.one_lane([f"buffer_atomic_add {vOne}, {vZero}, {srd(SDBG)}, {sT0} offen offset:{64 if self.hdbg else 0} sc1"], wave0=True)
            if self.lpark and t in (28, 29, 30):
                if t == 28:
                    for k in range(3): A(f"s_mov_b32 s{SK+k}, s{SWO+k}")
                    for i in range(4): A(f"v_mov_b32 {vKd[i]}, {vWs[i]}")
                A(f"s_lshl_b32 {sKoff}, {sQw}, 15"); A(f"s_add_u32 {sKoff}, {sKoff}, {sWP}")
                for l in self.nextq(sQw, self.wcnt): A(l)
                self.wcnt += 1
            if t == self.oa_t: self.store_held()
            A(f"s_setpc_b64 {sRet}")
        A.label("L_t31")
        A("s_waitcnt lgkmcnt(0)")
        self.stamp(12)
        self.tail()
        self.hstamp(14)
        if self.hdbg: A("s_waitcnt vmcnt(0)")
        self.hstamp(15)
        self.dump_stamps()
        A.label("L_end")
        A("s_endpgm")
        A.label("L_codeend")

    def tail(self):
        A = self.A
        vm = []
        def need(tag): return min(63, len(vm) - 1 - max(i for i, q in enumerate(vm) if q == tag)) if tag in vm else 63
        pollW = f"buffer_load_dword {vPoll}, {vPoff}, {srd(SDBG)}, 0 offen sc1"
        vRd = [[f"v{16 + 4*k + nb}" for nb in range(4)] for k in range(3)]
        vFl, vLin = "v28", "v29"
        order = ([6, 7, 8, 9] if self.epark else []) + ([0, 1, 2] if self.lpark else [])
        npark = len(order)
        order += [k for k in (3, 4, 5, 0, 1, 2, 6, 7, 8, 9) if k not in order]
        SLOT = lambda p: order[p % 10]
        NR = min(self.nreg, npark)
        A(pollW); vm.append("poll")
        if self.oa_t == 31: self.store_held(); vm += ["OB"] * 8
        self.epilogue(False); vm += ["OB"] * 8
        self.stamp(13)
        for k in range(3):
            A(f"v_add_u32 {vRd[k][0]}, {k * 65536}, {vWr}")
            for nb in range(1, 4): A(f"v_xor_b32 {vRd[k][nb]}, {32*nb}, {vRd[k][0]}")
        A(f"v_and_b32 {vFl}, 7, v2"); A(f"v_lshlrev_b32 {vFl}, 2, {vFl}")
        A(f"v_add_u32 {vLin}, {sW4K}, {vL16}")
        A("s_barrier")
        NS = 5
        ASET = lambda p: (lambda j, n: at(AQ + 16 * (p % NS) + j, n) if p % NS < 2 else at(AKF + 16 * (p % NS - 2) + j, n))
        def WSET(p):
            if p < min(NR, 6): return lambda j, n: at(AFREE + 16 * p + j, n)
            if p < NR: return lambda j, n: vt(P0 + 16 * (p - 6) + j, n)
            return lambda j, n: vt(O0 + 16 * (p % 3) + j, n)
        def wgroups(p): return [(x, ("W", p)) for x in self.tile_Wo(SLOT(p))]
        def agroups(p):
            g = [self.aload(ASET(p), j, sAoff) for j in range(4)]
            g[0] = [f"s_lshl_b32 {sAoff}, {sQa}, 12", f"s_add_u32 {sAoff}, {sAoff}, {sAreal}"] + g[0]
            for i, l in enumerate(self.nextq(sQa, p)): g[1 + i] = [l] + g[1 + i]
            return [(x, ("A", p)) for x in g]
        def wreads(p):
            base = SLOT(p) * T
            return [f"ds_read_b64_tr_b16 {WSET(p)(4*nb + 2*hf, 2)}, {vRd[base // 65536][nb]} offset:{base % 65536 + hf*2048}"
                    for nb in range(4) for hf in range(2)]
        def emit(g):
            for l in g[0]: A(l)
            vm.append(g[1])
        pollB = f"buffer_load_dword {vPoll}, {vFl}, {srd(SWS)}, {sFlagC} offen sc1"
        wn = npark; an = 0
        while wn < min(10, npark + 3):
            for g in wgroups(wn): emit(g)
            wn += 1
        A(f"s_waitcnt vmcnt({need('poll')})")
        A.lds_reset()
        for p in range(NR):
            for l in wreads(p): A(l)
            if p % 2 == 1 or p == NR - 1: A("s_waitcnt lgkmcnt(0)")
        self.spin("L_c1", f"v_cmp_gt_u32 vcc, 16, {vPoll}", pollW, 2)
        A(f"s_waitcnt vmcnt({need('OB')})")
        self.one_lane([f"buffer_store_dword {vOne}, {vZero}, {srd(SWS)}, {sFlagP} offen sc1"]); vm.append("fl")
        self.stamp(14); self.hstamp(11)
        while wn < 10 + NR:
            for g in wgroups(wn): emit(g)
            wn += 1
        A(pollB); vm.append("pb")
        self.stamp(15)
        A(f"s_waitcnt vmcnt({need('pb')})")
        self.spin("L_c2", f"v_cmp_ne_u32 vcc, 1, {vPoll}", pollB, 0)
        self.stamp(18); self.hstamp(12)
        while an < self.aahead:
            for g in agroups(an): emit(g)
            an += 1
        if NR == 0:
            for l in wreads(0): A.lds(l, ("w", 0))
        for p in range(32):
            tags = [("A", p)] + ([("W", p + 1)] if p < 31 else [])
            A(f"s_waitcnt vmcnt({min(need(tg) for tg in tags)})")
            A.lds_wait(("w", p))
            gs = []
            if an < 32: gs += agroups(an); an += 1
            if wn < 32 and wn - 10 <= p: gs = [x for pr in itertools.zip_longest(gs, wgroups(wn)) for x in pr if x]; wn += 1
            rds = wreads(p + 1) if NR <= p + 1 < 32 else []
            step = 2 if len(gs) > 4 else 4
            k = 0
            for nb in range(4):
                for q in range(4):
                    d = at(AACC + 16 * q + 4 * nb, 4)
                    A(f"{MF} {d}, {WSET(p)(4*nb, 4)}, {ASET(p)(4*q, 4)}, {d}")
                    if k % 2 == 1 and k // 2 < len(rds): A.lds(rds[k // 2], ("w", p + 1))
                    if k % step == 0 and k // step < len(gs): emit(gs[k // step])
                    k += 1
        self.stamp(16); self.hstamp(13)
        A(f"v_lshl_add_u32 v3, v1, 14, {vL16}")
        A("v_and_b32 v5, 15, v2"); A("v_lshrrev_b32 v6, 4, v2"); A("v_lshlrev_b32 v5, 10, v5"); A("v_lshl_add_u32 v5, v6, 4, v5")
        A(f"s_lshl_b32 {sT0}, {sB2}, 16"); A(f"s_lshl_b32 {sT1}, {sW}, 14"); A(f"s_add_u32 {sT0}, {sT0}, {sT1}")
        A(f"s_bfe_u32 {sT1}, s2, 0x30003"); A(f"s_lshl_b32 {sT1}, {sT1}, 7"); A(f"s_add_u32 {sT0}, {sT0}, {sT1}")
        A("s_barrier")
        for blk in range(4):
            for q in range(4):
                A(f"ds_write_b128 v3, {at(AACC+16*blk+4*q,4)} offset:{blk*4096+q*1024}")
                if (blk * 4 + q) % 8 == 7: A("s_waitcnt lgkmcnt(0)")
        A("s_barrier")
        for src in range(4):
            for q in range(4):
                A(f"ds_read_b128 {vt(64+16*src+4*q,4)}, {vLin} offset:{src*16384+q*1024}")
            if src % 2 == 1: A("s_waitcnt lgkmcnt(0)")
        for i in range(16): A(f"v_add_f32 v{64+i}, v{64+i}, v{80+i}")
        for i in range(16): A(f"v_add_f32 v{96+i}, v{96+i}, v{112+i}")
        for i in range(16): A(f"v_add_f32 v{64+i}, v{64+i}, v{96+i}")
        for j in range(8): A(f"v_cvt_pk_bf16_f32 v{80+j}, v{64+2*j}, v{64+2*j+1}")
        w0, w1 = self.widen(80, 82), self.widen(84, 86)
        A("s_nop 0")
        for l in w0[0] + w1[0] + w0[1] + w1[1]: A(l)
        A(f"buffer_store_dwordx4 {vt(80,4)}, v5, {srd(SOUT)}, {sT0} offen")
        A(f"buffer_store_dwordx4 {vt(84,4)}, v5, {srd(SOUT)}, {sT0} offen offset:64")

    def dump_stamps(self):
        if not self.stamps: return
        A = self.A
        A("s_waitcnt vmcnt(0)")
        self.stamp(17)
        A("s_memrealtime s[100:101]")
        A("s_getreg_b32 s3, hwreg(HW_REG_XCC_ID)")
        A("s_waitcnt lgkmcnt(0)")
        A(f"v_writelane_b32 v{VST}, s98, 61"); A(f"v_writelane_b32 v{VST}, s100, 62"); A(f"v_writelane_b32 v{VST}, s3, 63")
        A(f"s_lshl_b32 {sT1}, s2, 2"); A(f"s_add_u32 {sT1}, {sT1}, {sW}"); A(f"s_mul_i32 {sT1}, {sT1}, 768")
        A(f"s_add_u32 {sT1}, {sT1}, {WS_STAMP}")
        A(f"v_lshrrev_b32 v3, 2, {vL16}")
        for k in range(3): A(f"buffer_store_dword v{VST+k}, v3, {srd(SWS)}, {sT1} offen offset:{256*k}")

HDR = open("standalone__mha_block_cached__near_ridge.s.ref").read().split("; Override")[0]
def desc(name):
    return f""".amdhsa_kernel {name}
  .amdhsa_next_free_vgpr 512
  .amdhsa_next_free_sgpr 102
  .amdhsa_accum_offset 256
  .amdhsa_group_segment_fixed_size 0
  .amdhsa_kernarg_size 64
  .amdhsa_user_sgpr_count 2
  .amdhsa_user_sgpr_kernarg_segment_ptr 1
  .amdhsa_system_sgpr_workgroup_id_x 1
.end_amdhsa_kernel
"""
def build(path, verbose=False, cls=None, **kw):
    g = (cls or Gen)(**kw); g.kernel()
    la = align8(g.A.lines)
    bad = check_hazards(la)
    print(path, "hazards:", bad, "lines", len(la))
    if verbose: print(g.n)
    s = HDR + "; @launch grid=(256,1,1) block=(256,1,1) lds=163840\n"
    s += '.amdgcn_target "amdgcn-amd-amdhsa--gfx950"\n.text\n'
    s += f".globl {KN}\n.p2align 8\n.type {KN},@function\n{KN}:\n" + "\n".join(la) + "\n"
    s += '.section .rodata,"a"\n.p2align 6\n' + desc(KN)
    open(path, "w").write(s)
if __name__ == "__main__":
    build("v12_c.s", stamps=True)
    build("v12_n8_c.s", stamps=True, nmax=8)
    build("v12_n4_c.s", stamps=True, nmax=4)
    build("v12_r8_c.s", stamps=True, rotO=2)
    build("v12_r8.s", rotO=2)
    build("v12_r16.s", rotO=2, rotW=16)
    build("v12_n4.s", nmax=4)
    build("v12_n8.s", nmax=8)
```

```python
import sys, math, struct, itertools
sys.path.insert(0, "work")
from asmlib import Asm, check_hazards, align8

KN = "standalone__mha_block_cached__near_ridge_kernel"
def f2u(x): return struct.unpack("<I", struct.pack("<f", x))[0]
CSC = math.log2(math.e) / math.sqrt(128.0)
T = 16384
LK, LV = 0, 3 * T
WS_FLAG = 16 << 20
WS_STAMP = 21 << 20
WS_SIZE = 22 << 20
SK, SV, SX, SWQ, SWO, SWS, SOUT, SDBG = 4, 8, 12, 16, 20, 24, 28, 32
def srd(b): return f"s[{b}:{b+3}]"
sW, sW4K, sKoff, sVoff, sW2K, sWP, sThr, sT, sC, sQw, sFloor, sQa = [f"s{i}" for i in range(36, 48)]
sXoff, sWoff, sOT, sT0, sT1, sT2 = [f"s{i}" for i in range(48, 54)]
sLink = "s[54:55]"; sRet = "s[92:93]"; sLink2 = "s[94:95]"
sAoff, sWToff, sB2, sT3, sRot = [f"s{i}" for i in range(56, 61)]
sTi, sXb, sWb, sAreal, sFlagP, sFlagC, sBat, sSpin = [f"s{i}" for i in range(80, 88)]
SCODE = 88
vWs = ["v3", "v4", "v5", "v6"]; vWr = "v7"
vInv = 8
vPoll = "v12"; vPoff = "v13"; vZero = "v14"; vOne = "v15"
vKa = [f"v{i}" for i in range(16, 20)]
vVa = [f"v{i}" for i in range(20, 28)]
vKd = [f"v{i}" for i in range(28, 32)]
vMx = ["v34", "v35"]; vMc = "v36"; vTm = "v37"; vF = ["v38", "v39"]; vL16 = "v40"
vVd = ["v32", "v33", "v240", "v241"]
VST = 41
ONES, LACC, NEG = 44, 48, 56
O0, SA, SB, P0, HELD = 64, 128, 160, 192, 208
vWa = [f"v{i}" for i in range(244, 252)]; vWd = [f"v{i}" for i in range(252, 256)]
vXa = ["v160", "v161"]; vXd = [f"v{i}" for i in range(162, 166)]
LX = 6 * T
QT = [1, 3, 5, 7, 9, 11, 12, 13]
def XR(pi, s, qb):
    k = 16 * pi + 8 * s + 4 * qb
    return at(160 + k, 4) if k < 96 else vt(208 + k - 96, 4)
def tmp(i): return f"v{176 + i}"
AQ, AACC, AKF, AVF, AFREE = 0, 32, 96, 128, 160
def vt(b, n): return f"v[{b}:{b+n-1}]"
def at(b, n): return f"a[{b}:{b+n-1}]"
MF = "v_mfma_f32_16x16x32_bf16"
PUB_T = 2

class Gen:
    def __init__(self, stamps=False, nt=" nt", split=24, wgrp=2, nahead=6, latepos=(20, 24, 28, 31), stf=" sc1", ldf=" sc1",
                 kvpos=(0, 2, 5, 8), dbg=(), rotO=2, rot=2, aahead=4, wof="", oa_t=29, warm=True, epark=False, lpark=True, nreg=7, lim=12, hdbg=False, nmax=63, rotW=8, k01=1, qt=None, vpark=True):
        self.A = Asm(); self.vm = []
        self.__dict__.update({k: v for k, v in locals().items() if k != "self"})
        self.latepos = list(latepos); self.wcnt = 0; self.QT = qt or QT; self.acnt = 0
    def vm_issue(self, tag, n): self.vm += [tag] * n
    def vm_need(self, *tags):
        idx = max(i for i, q in enumerate(self.vm) if q in tags)
        return min(63, len(self.vm) - 1 - idx)
    def stamp(self, k):
        if self.stamps:
            self.A("s_memtime s[96:97]"); self.A("s_waitcnt lgkmcnt(0)"); self.A(f"v_writelane_b32 v{VST}, s96, {k}")
    def hstamp(self, k):
        if not self.hdbg: return
        A = self.A
        A("s_memrealtime s[100:101]"); A("s_waitcnt lgkmcnt(0)"); A(f"v_writelane_b32 v{VST}, s100, {k}")
        if k == 15:
            lab = A.newlabel("Lh")
            A(f"s_cmp_eq_u32 s2, {self.hdbg - 1}"); A(f"s_cbranch_scc0 {lab}"); A(f"s_cmp_eq_u32 {sW}, 0"); A(f"s_cbranch_scc0 {lab}")
            A(f"v_readlane_b32 s100, v{VST}, 0"); A("s_nop 3"); A(f"v_subrev_u32 v{VST}, s100, v{VST}"); A(f"v_lshrrev_b32 v{VST+1}, 2, {vL16}")
            A("s_mov_b64 exec, 0xffff"); A(f"buffer_store_dword v{VST}, v{VST+1}, {srd(SDBG)}, 0 offen"); A("s_mov_b64 exec, -1")
            A.label(lab)
    def istamp(self):
        if self.hdbg:
            A = self.A; lab = A.newlabel("Lh")
            A(f"s_and_b32 s96, {sT}, 3"); A("s_cmp_eq_u32 s96, 3"); A(f"s_cbranch_scc0 {lab}")
            A("s_memrealtime s[100:101]"); A(f"s_lshr_b32 s96, {sT}, 2"); A("s_add_u32 m0, s96, 3"); A("s_waitcnt lgkmcnt(0)")
            A(f"v_writelane_b32 v{VST}, s100, m0")
            A.label(lab)
        if not self.stamps: return
        A = self.A
        A("s_memtime s[96:97]"); A("s_memrealtime s[100:101]"); A(f"s_add_u32 m0, {sT}, 32"); A("s_waitcnt lgkmcnt(0)")
        A(f"v_writelane_b32 v{VST+2}, s96, m0"); A(f"v_writelane_b32 v{VST+1}, s100, m0")
    def dma(self, voff, srdb, soff, imm, flags=""):
        return f"buffer_load_dwordx4 {voff}, {srd(srdb)}, {soff} offen offset:{imm}{flags} lds"
    def tile_KV(self, isK, slot):
        off, base, voffs, srdb = (sKoff, LK, vKd, SK) if isK else (sVoff, LV, vVd, SV)
        g = [[self.dma(voffs[i], srdb, off, i * 1024, self.nt)] for i in range(4)]
        g[0] = [f"s_add_u32 m0, {sW4K}, {base + slot*T}", "@M0"] + g[0]
        g[3] = g[3] + [f"s_add_u32 {off}, {off}, {T}"]
        return g
    def tile_X(self, base):
        g = [[self.dma(vXd[i], SX, sXoff, i * 1024)] for i in range(4)]
        g[0] = [f"s_lshl_b32 {sXoff}, {sTi}, 7", f"s_add_u32 m0, {sW4K}, {base}", f"s_add_u32 {sXoff}, {sXoff}, {sXb}"] + g[0]
        return g
    def tile_W(self, base):
        g = [[self.dma(vWd[i], SWQ, sWoff, i * 1024)] for i in range(4)]
        g[0] = [f"s_lshl_b32 {sWoff}, {sTi}, 19", f"s_add_u32 m0, {sW4K}, {base}", f"s_add_u32 {sWoff}, {sWoff}, {sWb}"] + g[0]
        g[1] = [f"s_add_u32 {sTi}, {sTi}, 1"] + g[1]
        g[2] = [f"s_and_b32 {sTi}, {sTi}, 7"] + g[2]
        return g
    def tile_XW(self, xbase, wbase): return self.tile_X(xbase) + self.tile_W(wbase)
    def q_units(self, pi, woff, head_b, m0):
        un = []
        for k in range(16):
            s, t = k // 8, k % 8
            m = m0 + k; fr = AVF + 4 * (m % 8)
            D = lambda qb: at(AACC + 8*t + 4*qb, 4) if head_b else vt(O0 + 8*t + 4*qb, 4)
            un.append(([f"{MF} {D(qb)}, {at(fr,4)}, {XR(pi, s, qb)}, {'0' if pi == 0 and s == 0 else D(qb)}" for qb in range(2)],
                       [("w", m), ("x", pi, s)],
                       [(f"ds_read_b64_tr_b16 {at(fr,2)}, {vWa[t]} offset:{woff + s*8192}", ("w", m)),
                        (f"ds_read_b64_tr_b16 {at(fr+2,2)}, {vWa[t]} offset:{woff + s*8192 + 1024}", ("w", m))]))
        return un
    def tile_Wo(self, slot):
        g = [[self.dma(vWs[i], SWO, sWToff, i * 1024, self.wof)] for i in range(4)]
        g[0] = [f"s_lshl_b32 {sWToff}, {sQw}, 15", f"s_add_u32 m0, {sW4K}, {slot * T}", f"s_add_u32 {sWToff}, {sWToff}, {sWP}"] + g[0]
        for i, l in enumerate(self.nextq(sQw, self.wcnt)): g[1 + i % 3] = g[1 + i % 3] + [l] if i >= 3 else [l] + g[1 + i]
        self.wcnt += 1
        return g
    def nextq(self, s, cnt):
        if self.rotO != 2: return [f"s_add_u32 {s}, {s}, 1", f"s_and_b32 {s}, {s}, 31"]
        W = self.rotW
        if (cnt + 1) % W == 0: return [f"s_add_u32 {s}, {sRot}, {cnt + 1}"]
        return [f"s_add_u32 {s}, {s}, 1", f"s_and_b32 {s}, {s}, {W - 1}", f"s_add_u32 {s}, {s}, {cnt // W * W}"]
    def emit_groups(self, groups):
        for g in groups:
            for l in g: self.A("s_nop 0" if l == "@M0" else l)
    @staticmethod
    def cost(l):
        if l.startswith("v_exp"): return 8
        if l.startswith("buffer_"): return 16
        return 4
    def spread(self, fill, gaps, lo, hi, base):
        tot = sum(self.cost(l) for l in fill) + sum(base[lo:hi])
        per = tot / (hi - lo); g = lo; acc = 0.0
        k = 0
        for g in range(lo, hi):
            acc += base[g]; tgt = per * (g - lo + 1)
            while k < len(fill) and (acc + self.cost(fill[k]) / 2 <= tgt or g == hi - 1):
                gaps[g].append(fill[k]); acc += self.cost(fill[k]); base[g] += self.cost(fill[k]); k += 1
    def exp_ops(self, S, lo, hi):
        ops = []
        ex = lambda i: f"v_exp_f32 v{S+i}, v{S+i}"
        def cvt(i):
            kb, qb, r = i // 8, (i // 4) % 2, i % 4
            return f"v_cvt_pk_bf16_f32 v{P0 + 8*(kb//2) + 4*qb + 2*(kb%2) + r//2}, v{S+i}, v{S+i+1}"
        prs = list(range(lo, hi, 2))
        for k, i in enumerate(prs):
            ops += [ex(i), ex(i + 1)]
            if k > 0: ops += [cvt(prs[k-1])]
        ops += ["s_nop 0", cvt(prs[-1])]
        return ops
    def max_ops(self, S):
        ops = []
        for qb in range(2):
            r = [S + 8 * kb + 4 * qb + j for kb in range(4) for j in range(4)]
            o = [f"v_max3_f32 {vMx[qb]}, v{r[0]}, v{r[1]}, v{r[2]}"]
            for i in range(3, 15, 2): o.append(f"v_max3_f32 {vMx[qb]}, {vMx[qb]}, v{r[i]}, v{r[i+1]}")
            o.append(f"v_max_f32 {vMx[qb]}, {vMx[qb]}, v{r[15]}")
            ops.append(o)
        out = [x for pr in zip(*ops) for x in pr]
        out.append(f"v_max_f32 {vMc}, {vMx[0]}, {vMx[1]}")
        return out
    def qk_units(self, Sn, slot, tag="k"):
        un = []
        for i in range(16):
            kb, s = i // 4, i % 4
            fr = AKF + 4 * (i % 8)
            ms = [f"{MF} {vt(Sn+8*kb+4*qb,4)}, {at(fr,4)}, {at(AQ+16*qb+4*s,4)}, {vt(NEG+4*qb,4) if s == 0 else vt(Sn+8*kb+4*qb,4)}" for qb in range(2)]
            un.append((ms, [(tag, i)], [(f"ds_read_b128 {at(fr,4)}, {vKa[s]} offset:{slot*T + kb*4096}", (tag, i))]))
        return un
    def pv_units(self, slot):
        un = []
        for i in range(16):
            u, db = i // 8, i % 8
            fr = AVF + 4 * (i % 8)
            ms = [f"{MF} {vt(O0+8*db+4*qb,4)}, {at(fr,4)}, {vt(P0+8*u+4*qb,4)}, {vt(O0+8*db+4*qb,4)}" for qb in range(2)]
            un.append((ms, [("v", i)], [(f"ds_read_b64_tr_b16 {at(fr,2)}, {vVa[db]} offset:{slot*T + u*8192}", ("v", i)),
                                          (f"ds_read_b64_tr_b16 {at(fr+2,2)}, {vVa[db]} offset:{slot*T + u*8192 + 4096}", ("v", i))]))
        return un
    def stream(self, units, nun, NA, G, gaps, mid, extra=None):
        A = self.A
        for i in range(nun):
            if i % G == 0: A.lds_wait(*sum((units[j][1] for j in range(i, min(nun, i + G))), []))
            rds = units[i + NA][2] if i + NA < len(units) else []
            A(units[i][0][0])
            mid(i)
            if rds: A.lds(*rds[0])
            for l in gaps[2 * i]: A(l)
            A(units[i][0][1])
            for r in rds[1:]: A.lds(*r)
            for l in gaps[2 * i + 1]: A(l)
            if extra and i in extra: A(extra[i])
    def place(self, gaps, base, groups, positions):
        for g, p in zip(groups, positions):
            if "@M0" in g:
                k = g.index("@M0"); gaps[p - 1] = gaps[p - 1] + g[:k]; base[p - 1] += 4 * k; g = g[k + 1:]
            gaps[p] = gaps[p] + g; base[p] += sum(self.cost(l) for l in g)
    def simulate_loop(self):
        n1, n2, n3 = {}, {}, {}
        for t in range(32):
            n1[t] = self.vm_need(("V", t))
            self.vm_issue(("V", t + 2), 4)
            n2[t] = self.vm_need(("K", t + 2)) if t < 30 else 63
            if t in self.QT: n2[t] = min(n2[t], self.vm_need(("E", self.QT.index(t))))
            self.vm_issue(("K", t + 4), 4)
            if t in self.QT[:6]: self.vm_issue(("E", self.QT.index(t) + 2), 4)
            if t == PUB_T: n3[t] = self.vm_need(("FZ",))
        return n1, n2, n3
    def aload(self, R, j, soff):
        return [f"buffer_load_dwordx4 {R(4*j,4)}, {vL16}, {srd(SWS)}, {soff} offen offset:{(j%4)*1024}{self.ldf}"]
    def body(self, c, n1, n2):
        A = self.A
        par = c % 2; NA = self.nahead; G = self.wgrp
        S, Sn = (SA, SB) if par == 0 else (SB, SA)
        sel = lambda d: min(self.nmax, min(v for t, v in d.items() if t % 6 == c))
        units = self.qk_units(Sn, (c + 1) % 3) + self.pv_units(c % 3) + self.qk_units(S, (c + 2) % 3, "kn")[:NA]
        bp = 16 - NA
        gaps = [[] for _ in range(64)]; base = [0] * 64
        for i in range(32):
            nr = len(units[i + NA][2])
            base[2 * i] += 4; base[2 * i + 1] += 4 * (nr - 1)
            if (i + 1) % G == 0: base[2 * i + 1] += 4
            if i % 16 == bp: base[2 * i] += 12
        self.place(gaps, base, self.tile_KV(False, (c + 2) % 3), [p + 1 for p in self.latepos[:3]] + [31])
        self.place(gaps, base, self.tile_KV(True, (c + 1) % 3), [32 + p + 1 for p in self.latepos[:3]] + [63])
        self.spread(self.exp_ops(S, 0, self.split), gaps, 0, 32, base)
        self.spread(self.exp_ops(S, self.split, 32), gaps, 32, 32 + self.lim, base)
        self.spread(self.max_ops(Sn), gaps, 32 + self.lim, 64, base)
        lm = lambda u, qb: f"{MF} {vt(LACC+4*qb,4)}, {vt(ONES,4)}, {vt(P0+8*u+4*qb,4)}, {vt(LACC+4*qb,4)}"
        extra = {16 + 3: lm(0, 0), 16 + 7: lm(0, 1), 16 + 11: lm(1, 0), 16 + 15: lm(1, 1)}
        def mid(i):
            if i % 16 == bp:
                A(f"s_waitcnt vmcnt({sel(n1) if i < 16 else sel(n2)})"); A("s_barrier")
        A.lds_q = [("k", i) for i in range(NA)]
        self.stream(units, 32, NA, G, gaps, mid, extra)
    def widen(self, a, b):
        return [[f"v_permlane32_swap_b32 v{a}, v{b}", f"v_permlane32_swap_b32 v{a+1}, v{b+1}"],
                [f"v_permlane16_swap_b32 v{a}, v{b}", f"v_permlane16_swap_b32 v{a+1}, v{b+1}"]]
    def qfin_ops(self, from_acc):
        pair = vt(int(vF[0][1:]), 2); out = []
        for s in range(4):
            t = P0 if from_acc else O0 + 16 * s
            if from_acc: out += [f"v_accvgpr_read_b32 v{t+j}, a{AACC+16*s+j}" for j in range(16)]
            out += [f"v_pk_mul_f32 {vt(t+2*j,2)}, {vt(t+2*j,2)}, {pair}" for j in range(8)]
            for q4 in range(4): out += [f"v_cvt_pk_bf16_f32 v{t+4*q4+j}, v{t+4*q4+2*j}, v{t+4*q4+2*j+1}" for j in range(2)]
            w0, w1 = self.widen(t, t + 8), self.widen(t + 4, t + 12)
            out += ["s_nop 0"] + w0[0] + w1[0] + w0[1] + w1[1]
            for qb in range(2):
                for j, r in enumerate((t + 4*qb, t + 4*qb + 1, t + 8 + 4*qb, t + 8 + 4*qb + 1)):
                    out.append(f"v_accvgpr_write_b32 a{AQ+16*qb+4*s+j}, v{r}")
        return out
    def zero_acc(self): return [f"v_accvgpr_write_b32 a{AACC+i}, 0" for i in range(64)]
    def epilogue(self, hold):
        A = self.A
        A("s_nop 4")
        for qb in range(2):
            A(f"v_rcp_f32 v{vInv+2*qb}, v{LACC+4*qb}"); A(f"v_rcp_f32 v{vInv+2*qb+1}, v{LACC+4*qb}")
        A("s_nop 0")
        for v in range(4):
            for qb in range(2):
                src = [O0 + 16*v + 4*qb, O0 + 16*v + 8 + 4*qb]
                dst = HELD + 8*v + 4*qb if hold else SA + 8*v + 4*qb
                for b in src:
                    for j in range(2): A(f"v_pk_mul_f32 {vt(b+2*j,2)}, {vt(b+2*j,2)}, {vt(vInv+2*qb,2)}")
                for k, b in enumerate(src):
                    for j in range(2): A(f"v_cvt_pk_bf16_f32 v{dst+2*k+j}, v{b+2*j}, v{b+2*j+1}")
                if not hold: A(self.ostore(dst, v, qb))
            if not hold: A(f"s_add_u32 {sOT}, {sOT}, 4096")
    def ostore(self, reg, v, qb):
        return f"buffer_store_dwordx4 {vt(reg,4)}, {vL16}, {srd(SWS)}, {sOT} offen offset:{qb*1024}{self.stf}"
    def store_held(self):
        for v in range(4):
            for qb in range(2): self.A(self.ostore(HELD + 8*v + 4*qb, v, qb))
            self.A(f"s_add_u32 {sOT}, {sOT}, 4096")
    def make_srd(self, b, p, size):
        A = self.A
        A(f"s_mov_b32 s{b}, s{p}"); A(f"s_mov_b32 s{b+1}, s{p+1}")
        A(f"s_mov_b32 s{b+2}, 0x{size:x}"); A(f"s_mov_b32 s{b+3}, 0x20000")
    def one_lane(self, lines, wave0=False):
        A = self.A
        lab = A.newlabel("Lo")
        if wave0: A(f"s_cmp_eq_u32 {sW}, 0"); A(f"s_cbranch_scc0 {lab}")
        A("s_mov_b64 exec, 1")
        for l in lines: A(l)
        A("s_mov_b64 exec, -1")
        if wave0: A.label(lab)
    def spin(self, name, cmp_line, load_line, sleep):
        A = self.A
        A(f"s_mov_b32 {sSpin}, 0x40000")
        A.label(name)
        A(cmp_line)
        A(f"s_cbranch_vccz {name}_ok")
        A(f"s_sub_u32 {sSpin}, {sSpin}, 1"); A(f"s_cbranch_scc1 {name}_ok")
        if sleep: A(f"s_sleep {sleep}")
        A(load_line)
        A("s_waitcnt vmcnt(0)")
        A(f"s_branch {name}")
        A.label(name + "_ok")
    def rowmax(self, floor):
        A = self.A
        for qb, tm in ((0, vTm), (1, vMc)): A(f"v_mov_b32 {tm}, {vMx[qb]}")
        A("s_nop 0")
        for qb, tm in ((0, vTm), (1, vMc)): A(f"v_permlane32_swap_b32 {vMx[qb]}, {tm}")
        for qb, tm in ((0, vTm), (1, vMc)): A(f"v_max_f32 {vMx[qb]}, {vMx[qb]}, {tm}")
        for qb, tm in ((0, vTm), (1, vMc)): A(f"v_mov_b32 {tm}, {vMx[qb]}")
        A("s_nop 0")
        for qb, tm in ((0, vTm), (1, vMc)): A(f"v_permlane16_swap_b32 {vMx[qb]}, {tm}")
        for qb, tm in ((0, vTm), (1, vMc)): A(f"v_max3_f32 {vMx[qb]}, {vMx[qb]}, {tm}, {floor}")

    def kernel(self):
        A = self.A
        tg, tl15, tr, tc, ta, tb, td, te = [tmp(i) for i in range(8)]
        A("s_cmp_ge_u32 s2, 256"); A("s_cbranch_scc1 L_end")
        if self.stamps: A("s_memrealtime s[98:99]")
        A("s_load_dwordx16 s[64:79], s[0:1], 0")
        self.stamp(0); self.hstamp(0)
        A("v_lshrrev_b32 v1, 6, v0"); A("v_and_b32 v2, 63, v0")
        A(f"v_readfirstlane_b32 {sW}, v1")
        A(f"v_lshlrev_b32 {vL16}, 4, v2")
        A(f"s_getpc_b64 s[{SCODE}:{SCODE+1}]")
        A.label("L_pc")
        A(f"s_mov_b32 s{SCODE+2}, L_codeend-L_pc"); A(f"s_mov_b32 s{SCODE+3}, 0x20000")
        A(f"s_lshr_b32 {sT0}, s2, 3"); A(f"s_lshl_b32 {sT0}, {sT0}, 2"); A(f"s_add_u32 {sT0}, {sT0}, {sW}")
        A(f"s_and_b32 {sT0}, {sT0}, 63"); A(f"s_lshl_b32 {sT0}, {sT0}, 10")
        A(f"buffer_load_dwordx4 v[128:131], {vL16}, {srd(SCODE)}, {sT0} offen"); self.vm_issue(("CODE",), 1)
        A(f"s_lshl_b32 {sW4K}, {sW}, 12"); A(f"s_lshl_b32 {sW2K}, {sW}, 11")
        A(f"v_lshrrev_b32 {tg}, 4, v2"); A(f"v_and_b32 {tc}, 3, v2")
        A(f"v_lshrrev_b32 {ta}, 3, v2"); A(f"v_lshl_add_u32 {ta}, v1, 5, {ta}")
        A(f"v_and_b32 {tb}, 7, v2"); A(f"v_xor_b32 {tb}, {tb}, {tg}"); A(f"v_lshlrev_b32 {tb}, 4, {tb}")
        A(f"v_lshl_add_u32 {vXd[0]}, {ta}, 10, {tb}"); A(f"v_xor_b32 {tb}, 64, {vXd[0]}")
        A(f"v_add_u32 {vXd[1]}, 7168, {tb}"); A(f"v_add_u32 {vXd[2]}, {2*7168}, {vXd[0]}"); A(f"v_add_u32 {vXd[3]}, {3*7168}, {tb}")
        A(f"v_and_b32 {tl15}, 15, v2"); A(f"v_lshl_add_u32 {ta}, v1, 4, {tg}")
        A(f"v_lshlrev_b32 {tb}, 1, {tg}"); A(f"v_xor_b32 {tb}, {tb}, {tl15}"); A(f"v_lshlrev_b32 {tb}, 4, {tb}")
        A(f"v_lshl_add_u32 {vWd[0]}, {ta}, 13, {tb}"); A(f"v_xor_b32 {td}, 128, {vWd[0]}")
        A(f"v_add_u32 {vWd[1]}, 31744, {vWd[0]}"); A(f"v_add_u32 {vWd[2]}, {2*31744}, {td}"); A(f"v_add_u32 {vWd[3]}, {3*31744}, {td}")
        A(f"s_and_b32 {sBat}, s2, 1"); A(f"s_lshl_b32 {sBat}, {sBat}, 3")
        A(f"s_bfe_u32 {sT1}, s2, 0x30003"); A(f"s_add_u32 {sBat}, {sBat}, {sT1}")
        A(f"s_lshr_b32 {sT2}, s2, 6")
        if self.rot == 2:
            A(f"s_lshl_b32 {sTi}, {sT2}, 1"); A(f"s_add_u32 {sTi}, {sTi}, {sT1}"); A(f"s_and_b32 {sTi}, {sTi}, 7")
        elif self.rot == 1:
            A(f"s_add_u32 {sTi}, {sT2}, {sT1}"); A(f"s_and_b32 {sTi}, {sTi}, 1"); A(f"s_lshl_b32 {sTi}, {sTi}, 2")
        else: A(f"s_mov_b32 {sTi}, 0")
        A(f"s_bfe_u32 {sT1}, s2, 0x20001"); A(f"s_lshl_b32 {sT1}, {sT1}, 3")
        A(f"s_lshl_b32 {sT3}, {sT2}, 1"); A(f"s_add_u32 {sT3}, {sT3}, {sT1}")
        A(f"s_add_u32 {sT1}, {sT1}, {sT2}")
        A(f"s_lshl_b32 {sXb}, {sBat}, 17"); A(f"s_lshl_b32 {sWb}, {sT3}, 8")
        A("s_waitcnt lgkmcnt(0)")
        self.make_srd(SX, 64, 2 << 20); self.make_srd(SWQ, 70, 4 << 20)
        XS = [3 * T, 2 * T, 8 * T, 9 * T]; WS_ = [4 * T, 5 * T, 6 * T, 7 * T]
        self.emit_groups(self.tile_XW(XS[0], WS_[0])); self.vm_issue(("P", 0), 8)
        self.stamp(1)
        A(f"s_lshl_b32 {sT2}, {sBat}, 5"); A(f"s_add_u32 {sT2}, {sT2}, {sT3}"); A(f"s_lshl_b32 {sT2}, {sT2}, 18")
        A(f"s_add_u32 s66, s66, {sT2}"); A("s_addc_u32 s67, s67, 0"); A(f"s_add_u32 s68, s68, {sT2}"); A("s_addc_u32 s69, s69, 0")
        A(f"s_mov_b32 {sKoff}, 0"); A(f"s_mov_b32 {sVoff}, 0")
        A(f"s_lshl_b32 {sT0}, {sBat}, 1"); A(f"s_lshr_b32 {sT2}, {sW}, 1"); A(f"s_add_u32 {sT0}, {sT0}, {sT2}")
        A(f"s_lshl_b32 {sFlagP}, {sT0}, 2"); A(f"s_lshr_b32 {sT2}, {sT1}, 3"); A(f"s_add_u32 {sFlagP}, {sFlagP}, {sT2}")
        A(f"s_lshl_b32 {sFlagP}, {sFlagP}, 7"); A(f"s_and_b32 {sT2}, {sT1}, 3"); A(f"s_lshl_b32 {sT2}, {sT2}, 3")
        A(f"s_add_u32 {sFlagP}, {sFlagP}, {sT2}"); A(f"s_and_b32 {sT2}, {sW}, 1"); A(f"s_lshl_b32 {sT1}, {sT2}, 2")
        A(f"s_add_u32 {sFlagP}, {sFlagP}, {sT1}"); A(f"s_add_u32 {sFlagP}, {sFlagP}, {WS_FLAG}")
        A(f"s_lshl_b32 {sT0}, {sT0}, 5"); A(f"s_add_u32 {sT0}, {sT0}, {sT3}"); A(f"s_lshl_b32 {sT0}, {sT0}, 14")
        A(f"s_lshl_b32 {sT2}, {sT2}, 11"); A(f"s_add_u32 {sOT}, {sT0}, {sT2}")
        self.emit_groups(self.tile_XW(XS[1], WS_[1])); self.vm_issue(("P", 1), 8)
        A(f"s_mov_b32 {sC}, 0x{f2u(CSC):08x}"); A(f"s_mov_b32 {sThr}, 0x{f2u(8.0):08x}")
        self.make_srd(SK, 66, 512 << 10); self.make_srd(SV, 68, 512 << 10)
        self.make_srd(SWO, 72, 4 << 20); self.make_srd(SWS, 78, WS_SIZE)
        self.make_srd(SOUT, 74, 2 << 20); self.make_srd(SDBG, 76, 256)
        A(f"v_lshl_add_u32 {vVd[0]}, {ta}, 8, {tb}"); A(f"v_xor_b32 {vVd[1]}, 128, {vVd[0]}")
        A(f"v_mov_b32 {vVd[2]}, {vVd[0]}"); A(f"v_mov_b32 {vVd[3]}, {vVd[1]}")
        A(f"v_xor_b32 {tb}, {tl15}, {tg}"); A(f"v_lshlrev_b32 {tb}, 4, {tb}")
        A(f"v_lshl_add_u32 {vKd[0]}, {ta}, 8, {tb}")
        for i in range(1, 4): A(f"v_xor_b32 {vKd[i]}, {64*i}, {vKd[0]}")
        A(f"v_lshl_add_u32 {vKa[0]}, {tl15}, 8, {tb}")
        for s in range(1, 4): A(f"v_xor_b32 {vKa[s]}, {64*s}, {vKa[0]}")
        A(f"v_bfe_u32 {tr}, v2, 2, 2")
        A(f"v_lshrrev_b32 {ta}, 1, {tl15}"); A(f"v_xor_b32 {ta}, {ta}, {tg}"); A(f"v_lshlrev_b32 {ta}, 4, {ta}")
        A(f"v_lshl_add_u32 {tb}, v1, 5, {tl15}"); A(f"v_lshl_add_u32 {ta}, {tb}, 7, {ta}")
        A(f"v_add_u32 {vXa[0]}, {XS[0]}, {ta}"); A(f"v_xor_b32 {vXa[1]}, 64, {vXa[0]}")
        A(f"v_and_b32 {ta}, 1, {tg}"); A(f"v_lshl_add_u32 {ta}, {ta}, 2, {tr}")
        A(f"v_lshlrev_b32 {ta}, 5, {ta}"); A(f"v_lshl_add_u32 {ta}, {tc}, 3, {ta}")
        A(f"v_lshl_add_u32 {td}, {tg}, 2, {tr}")
        A(f"v_lshl_add_u32 {tb}, {td}, 8, {ta}"); A(f"v_add_u32 {vVa[0]}, {LV}, {tb}")
        for b in range(1, 8): A(f"v_xor_b32 {vVa[b]}, {32*b}, {vVa[0]}")
        A(f"v_lshl_add_u32 {tb}, {tg}, 3, {tr}"); A(f"v_lshl_add_u32 {tb}, {tb}, 8, {ta}"); A(f"v_add_u32 {vWa[0]}, {WS_[0]}, {tb}")
        for b in range(1, 8): A(f"v_xor_b32 {vWa[b]}, {32*b}, {vWa[0]}")
        A(f"v_lshrrev_b32 {ta}, 3, v2"); A(f"v_and_b32 {tb}, 7, v2"); A(f"v_lshlrev_b32 {te}, 1, {tg}"); A(f"v_xor_b32 {tb}, {tb}, {te}")
        A(f"v_lshlrev_b32 {tb}, 4, {tb}"); A(f"v_lshl_add_u32 {vWs[0]}, {ta}, 10, {tb}")
        for i in range(1, 4): A(f"v_add_u32 {vWs[i]}, {i * 7168}, {vWs[0]}")
        A(f"v_bfe_u32 {ta}, {td}, 1, 2"); A(f"v_lshlrev_b32 {ta}, 5, {ta}"); A(f"v_lshl_add_u32 {ta}, {tc}, 3, {ta}")
        A(f"v_lshl_add_u32 {ta}, {td}, 7, {ta}"); A(f"v_add_u32 {vWr}, {sW4K}, {ta}")
        A(f"v_cmp_eq_u32 vcc, 0, {tc}"); A(f"v_mov_b32 {ta}, 0x3f803f80"); A(f"v_mov_b32 {vZero}, 0"); A(f"v_mov_b32 {vOne}, 1")
        for k in range(4): A(f"v_cndmask_b32 v{ONES+k}, 0, {ta}, vcc")
        for k in range(16): A(f"v_mov_b32 v{LACC+k}, 0")
        A(f"s_and_b32 {sT0}, s2, 7"); A(f"s_lshl_b32 {sT0}, {sT0}, 2"); A(f"s_lshr_b32 {sT1}, s2, 6")
        A(f"s_add_u32 {sB2}, {sT0}, {sT1}")
        A(f"s_lshl_b32 {sT0}, {sB2}, 19"); A(f"s_lshl_b32 {sT1}, {sW}, 17"); A(f"s_add_u32 {sAreal}, {sT0}, {sT1}")
        A(f"s_bfe_u32 {sT0}, s2, 0x30003"); A(f"s_lshl_b32 {sT0}, {sT0}, 7")
        A(f"s_lshl_b32 {sT1}, {sW}, 20"); A(f"s_add_u32 {sWP}, {sT0}, {sT1}")
        A(f"s_lshr_b32 {sT0}, {sB2}, 1"); A(f"s_lshl_b32 {sT0}, {sT0}, 2"); A(f"s_add_u32 {sT0}, {sT0}, {64 if self.hdbg else 0}"); A(f"v_mov_b32 {vPoff}, {sT0}")
        if self.rotO:
            A(f"s_bfe_u32 {sT0}, s2, 0x30003"); A(f"s_lshr_b32 {sT1}, s2, 6"); A(f"s_lshl_b32 {sT1}, {sT1}, 1"); A(f"s_add_u32 {sT0}, {sT0}, {sT1}")
            if self.rotO == 1: A(f"s_lshl_b32 {sT0}, {sT0}, 2"); A(f"s_and_b32 {sQw}, {sT0}, 31")
            else:
                if self.rotW == 16: A(f"s_lshl_b32 {sT0}, {sT0}, 1")
                A(f"s_and_b32 {sQw}, {sT0}, {self.rotW - 1}"); A(f"s_mov_b32 {sRot}, {sQw}")
        else: A(f"s_mov_b32 {sQw}, 0")
        A(f"s_mov_b32 {sQa}, {sQw}")
        A(f"s_lshl_b32 {sFlagC}, {sB2}, 2"); A(f"s_add_u32 {sFlagC}, {sFlagC}, {sW}"); A(f"s_lshl_b32 {sFlagC}, {sFlagC}, 7")
        A(f"s_add_u32 {sFlagC}, {sFlagC}, {WS_FLAG}")
        self.one_lane([f"buffer_store_dword {vZero}, {vZero}, {srd(SWS)}, {sFlagP} offen sc1"]); self.vm_issue(("FZ",), 1)
        NA = 5; BP = 16 - NA; NU = 128
        units = []
        for pi in range(8): units += self.q_units(pi, WS_[pi % 4] - WS_[0], False, 16 * pi)
        sched = []
        def xw(j, first): sched.append((first, ("P", j), self.tile_XW(XS[j % 4], WS_[j % 4])))
        def kv(kind, sl, first): sched.append((first, (kind, sl), self.tile_KV(kind == "K", sl)))
        if self.k01 == 0: kv("K", 0, 0); kv("K", 1, 0)
        xw(2, 0)
        if self.k01 == 1: kv("K", 0, 0)
        xw(3, 0)
        if self.k01 == 1: kv("K", 1, 0)
        for j in range(4, 8): xw(j, 16 * (j - 3) + BP)
        if self.k01 == 2: kv("K", 0, 0); kv("K", 1, 0)
        kv("V", 0, 16 * 5 + BP); kv("V", 1, 16 * 5 + BP); kv("K", 2, 16 * 6 + BP)
        gaps = [[] for _ in range(2 * NU)]; vmat = {}
        pos = 0
        for first, tag, groups in sched:
            for g in groups:
                pos = max(pos, first)
                g = [("s_nop 0" if l == "@M0" else l) for l in g]
                k = max(i for i, l in enumerate(g) if l.startswith("buffer_"))
                gaps[2 * pos] += g[:k]; gaps[2 * pos + 1] += g[k:]; vmat[pos] = tag
                pos += 1
        xrd = lambda pi, j: (f"ds_read_b128 {XR(pi, j // 2, j % 2)}, {vXa[j // 2]} offset:{(j % 2) * 2048}", ("x", pi, j // 2))
        def mid(m):
            pi, k = m // 16, m % 16
            if m - 1 in vmat: self.vm_issue(vmat[m - 1], 1)
            if pi < 7:
                if 2 <= k < 4: A(f"v_add_u32 {vXa[k-2]}, {XS[(pi + 1) % 4] - XS[pi % 4]}, {vXa[k-2]}")
                if k == BP:
                    A(f"s_waitcnt vmcnt({self.vm_need(('P', pi + 1))})"); A("s_barrier")
                    self.stamp(3 + pi)
                if BP < k <= BP + 4: A.lds(*xrd(pi + 1, k - BP - 1))
        A(f"s_waitcnt vmcnt({self.vm_need(('P', 0))})")
        A("s_barrier")
        self.stamp(2); self.hstamp(1)
        A.lds_reset()
        for j in range(4): A.lds(*xrd(0, j))
        for m in range(NA):
            for r in units[m][2]: A.lds(*r)
        self.stream(units, NU, NA, 2, gaps, mid)
        assert NU - 1 not in vmat
        A(f"s_add_u32 {sWb}, {sWb}, 256")
        for r in vWa: A(f"v_add_u32 {r}, {LX - WS_[0]}, {r}")
        A(f"v_mov_b32 {vF[0]}, {sC}"); A(f"v_mov_b32 {vF[1]}, {sC}")
        for k in range(8): A(f"v_mov_b32 v{NEG+k}, 0")
        A(f"s_waitcnt vmcnt({self.vm_need(('K', 0))})")
        A("s_barrier")
        units = self.qk_units(SA, 0) + self.qk_units(SB, 1, "kn")[:6]
        for i in range(6): A.lds(*units[i][2][0])
        for l in self.qfin_ops(False): A(l)
        self.stamp(10); self.hstamp(2)
        gaps = [[] for _ in range(32)]; base = [4, 0] * 16
        grp = self.tile_W(LX) + self.tile_W(LX + T)
        for i, gq in enumerate(grp):
            gaps[4 * i] += gq[:-1]; gaps[4 * i + 1] += gq[-1:]; base[4 * i] += 4 * (len(gq) - 1); base[4 * i + 1] += 16
        self.spread([f"v_mov_b32 v{O0+k}, 0" for k in range(64)], gaps, 0, 32, base)
        def mid0(i):
            if i % 2 == 1: self.vm_issue(("E", i // 8), 1)
            if i == 10: A(f"s_waitcnt vmcnt({self.vm_need(('K', 1))})"); A("s_barrier")
        self.stream(units, 16, 6, 2, gaps, mid0)
        A("s_barrier")
        g = self.tile_KV(True, 0); self.vm_issue(("K", 3), 4)
        self.emit_groups(g[:2])
        for l in self.max_ops(SA): A(l)
        self.emit_groups(g[2:])
        if self.warm:
            A(f"s_lshl_b32 {sT0}, s2, 14"); A(f"s_add_u32 {sT0}, {sT0}, {sW4K}")
            for i in range(4): A(f"buffer_load_dwordx4 {vt(vInv, 4)}, {vL16}, {srd(SWO)}, {sT0} offen offset:{i*1024}")
            self.vm_issue(("WARM",), 4)
        A(f"s_mov_b32 {sT}, 0")
        A(f"s_call_b64 {sRet}, L_init")
        n1, n2, n3 = self.simulate_loop()
        self.n = (n1, n2, n3)
        xs = {PUB_T, 14, 15, 31, self.oa_t} | set(self.QT)
        if self.lpark: xs |= {28, 29, 30}
        xmask = sum(1 << t for t in xs)
        A.label("L_loop")
        for c in range(6):
            self.body(c, n1, n2)
            self.istamp()
            A(f"s_bitcmp1_b32 0x{xmask:08x}, {sT}"); A(f"s_cbranch_scc1 L_x_{c}")
            A.label(f"L_c_{c}")
            A(f"v_cmp_lt_f32 vcc, {sThr}, {vMc}")
            A(f"s_cbranch_vccnz L_r_{c}")
            A.label(f"L_n_{c}")
            A(f"s_add_u32 {sT}, {sT}, 1")
        A("s_branch L_loop")
        for c in range(6):
            A.label(f"L_x_{c}"); A(f"s_call_b64 {sRet}, L_extras"); A(f"s_branch L_c_{c}")
            A.label(f"L_r_{c}"); A(f"s_call_b64 {sLink2}, L_rare"); A(f"s_branch L_n_{c}")
        A(".p2align 3")
        ssub = lambda S: [f"v_sub_f32 v{S+i}, v{S+i}, {vMx[(i//4)%2]}" for i in range(32)]
        A.label("L_init")
        A(f"s_mov_b32 {sFloor}, 0x{f2u(-1e30):08x}")
        self.rowmax(sFloor)
        for i in range(8): A(f"v_sub_f32 v{NEG+i}, 0, {vMx[i//4]}")
        for l in ssub(SA): A(l)
        A(f"v_mov_b32 {vMc}, 0")
        A(f"s_setpc_b64 {sRet}")
        A.label("L_rare")
        self.rowmax("0")
        for qb in range(2): A(f"v_exp_f32 {vF[qb]}, -{vMx[qb]}")
        for i in range(8): A(f"v_sub_f32 v{NEG+i}, v{NEG+i}, {vMx[i//4]}")
        for qb in range(2): A(f"v_mul_f32 v{LACC+4*qb}, {vF[qb]}, v{LACC+4*qb}")
        for i in range(64): A(f"v_mul_f32 v{O0+i}, {vF[(i//4)%2]}, v{O0+i}")
        A(f"s_bitcmp1_b32 {sT}, 0"); A("s_cbranch_scc1 L_rare_a")
        for l in ssub(SB): A(l)
        A(f"s_setpc_b64 {sLink2}")
        A.label("L_rare_a")
        for l in ssub(SA): A(l)
        A(f"s_setpc_b64 {sLink2}")
        def tree(ts):
            if len(ts) == 1:
                A(f"s_branch L_t{ts[0]}"); return
            if len(ts) == 2:
                A(f"s_cmp_eq_u32 {sT}, {ts[0]}"); A(f"s_cbranch_scc1 L_t{ts[0]}"); A(f"s_branch L_t{ts[1]}"); return
            h = len(ts) // 2; lab = A.newlabel("Ld")
            A(f"s_cmp_ge_u32 {sT}, {ts[h]}"); A(f"s_cbranch_scc1 {lab}")
            tree(ts[:h]); A.label(lab); tree(ts[h:])
        A.label("L_extras")
        tree(sorted(xs))
        for t in sorted(xs):
            if t == 31: continue
            A.label(f"L_t{t}")
            if t in self.QT:
                i = self.QT.index(t)
                un = self.q_units(i, (i % 4) * T, True, 0)
                gaps = [[] for _ in range(32)]
                if i < 6:
                    for k, gq in enumerate(self.tile_W(LX + ((i + 2) % 4) * T)):
                        gaps[8 * k + 2] += gq[:-1]; gaps[8 * k + 3] += gq[-1:]
                A("s_waitcnt lgkmcnt(0)")
                A.lds_reset()
                for m in range(6):
                    for r in un[m][2]: A.lds(*r)
                self.stream(un, 16, 6, 2, gaps, lambda m: None)
            if t == 14:
                A(f"v_cmp_lt_f32 vcc, {sThr}, {vMc}")
                A("s_cbranch_vccz L_x14b")
                A(f"s_call_b64 {sLink2}, L_rare")
                A.label("L_x14b")
                A(f"v_mov_b32 {vF[0]}, {sC}"); A(f"v_mov_b32 {vF[1]}, {sC}")
                for l in self.qfin_ops(True): A(l)
                for k in range(8): A(f"v_mov_b32 v{NEG+k}, 0")
                for l in self.zero_acc(): A(l)
                A(f"v_mov_b32 {vMc}, 0")
            if t == 15:
                self.epilogue(True)
                for i in range(64): A(f"v_mov_b32 v{O0+i}, 0")
                A(f"v_mov_b32 v{LACC}, 0"); A(f"v_mov_b32 v{LACC+4}, 0")
                self.stamp(11)
                A("s_branch L_init")
                continue
            if t == PUB_T:
                A(f"s_waitcnt vmcnt({n3[t]})"); A("s_barrier")
                A(f"s_lshl_b32 {sT0}, {sBat}, 2")
                self.one_lane([f"buffer_atomic_add {vOne}, {vZero}, {srd(SDBG)}, {sT0} offen offset:{64 if self.hdbg else 0} sc1"], wave0=True)
            if self.lpark and t in (28, 29, 30):
                if t == 28:
                    for k in range(3): A(f"s_mov_b32 s{SK+k}, s{SWO+k}")
                    for i in range(4): A(f"v_mov_b32 {vKd[i]}, {vWs[i]}")
                A(f"s_lshl_b32 {sKoff}, {sQw}, 15"); A(f"s_add_u32 {sKoff}, {sKoff}, {sWP}")
                for l in self.nextq(sQw, self.wcnt): A(l)
                self.wcnt += 1
            if self.vpark and t in (29, 30):
                if t == 29:
                    for k in range(3): A(f"s_mov_b32 s{SV+k}, s{SWO+k}")
                    for i in range(4): A(f"v_mov_b32 {vVd[i]}, {vWs[i]}")
                A(f"s_lshl_b32 {sVoff}, {sQw}, 15"); A(f"s_add_u32 {sVoff}, {sVoff}, {sWP}")
                for l in self.nextq(sQw, self.wcnt): A(l)
                self.wcnt += 1
            if t == self.oa_t: self.store_held()
            A(f"s_setpc_b64 {sRet}")
        A.label("L_t31")
        A("s_waitcnt lgkmcnt(0)")
        self.stamp(12)
        self.tail()
        self.hstamp(14)
        if self.hdbg: A("s_waitcnt vmcnt(0)")
        self.hstamp(15)
        self.dump_stamps()
        A.label("L_end")
        A("s_endpgm")
        A.label("L_codeend")

    def tail(self):
        A = self.A
        vm = []
        def need(tag): return min(63, len(vm) - 1 - max(i for i, q in enumerate(vm) if q == tag)) if tag in vm else 63
        pollW = f"buffer_load_dword {vPoll}, {vPoff}, {srd(SDBG)}, 0 offen sc1"
        vRd = [[f"v{16 + 4*k + nb}" for nb in range(4)] for k in range(3)]
        vFl, vLin = "v28", "v29"
        order = ([0, 1, 5, 2, 3] if self.vpark else [0, 1, 2]) if self.lpark else []
        npark = len(order)
        order += [k for k in (6, 7, 8, 9, 4, 3, 5, 0, 1, 2) if k not in order]
        SLOT = lambda p: order[p % 10]
        NR = min(self.nreg, npark)
        A(pollW); vm.append("poll")
        if self.oa_t == 31: self.store_held(); vm += ["OB"] * 8
        self.epilogue(False); vm += ["OB"] * 8
        self.stamp(13)
        for k in range(3):
            A(f"v_add_u32 {vRd[k][0]}, {k * 65536}, {vWr}")
            for nb in range(1, 4): A(f"v_xor_b32 {vRd[k][nb]}, {32*nb}, {vRd[k][0]}")
        A(f"v_and_b32 {vFl}, 7, v2"); A(f"v_lshlrev_b32 {vFl}, 2, {vFl}")
        A(f"v_add_u32 {vLin}, {sW4K}, {vL16}")
        A("s_barrier")
        NS = 5
        ASET = lambda p: (lambda j, n: at(AQ + 16 * (p % NS) + j, n) if p % NS < 2 else at(AKF + 16 * (p % NS - 2) + j, n))
        def WSET(p):
            if p < min(NR, 6): return lambda j, n: at(AFREE + 16 * p + j, n)
            if p < NR: return lambda j, n: vt(P0 + 16 * (p - 6) + j, n)
            return lambda j, n: vt(O0 + 16 * (p % 3) + j, n)
        def wgroups(p): return [(x, ("W", p)) for x in self.tile_Wo(SLOT(p))]
        def agroups(p):
            g = [self.aload(ASET(p), j, sAoff) for j in range(4)]
            g[0] = [f"s_lshl_b32 {sAoff}, {sQa}, 12", f"s_add_u32 {sAoff}, {sAoff}, {sAreal}"] + g[0]
            for i, l in enumerate(self.nextq(sQa, p)): g[1 + i] = [l] + g[1 + i]
            return [(x, ("A", p)) for x in g]
        def wreads(p):
            base = SLOT(p) * T
            return [f"ds_read_b64_tr_b16 {WSET(p)(4*nb + 2*hf, 2)}, {vRd[base // 65536][nb]} offset:{base % 65536 + hf*2048}"
                    for nb in range(4) for hf in range(2)]
        def emit(g):
            for l in g[0]: A(l)
            vm.append(g[1])
        pollB = f"buffer_load_dword {vPoll}, {vFl}, {srd(SWS)}, {sFlagC} offen sc1"
        wn = npark; an = 0
        while wn < min(10, npark + 3):
            for g in wgroups(wn): emit(g)
            wn += 1
        A(f"s_waitcnt vmcnt({need('poll')})")
        A.lds_reset()
        for p in range(NR):
            for l in wreads(p): A(l)
            if p % 2 == 1 or p == NR - 1: A("s_waitcnt lgkmcnt(0)")
        self.spin("L_c1", f"v_cmp_gt_u32 vcc, 16, {vPoll}", pollW, 2)
        A(f"s_waitcnt vmcnt({need('OB')})")
        self.one_lane([f"buffer_store_dword {vOne}, {vZero}, {srd(SWS)}, {sFlagP} offen sc1"]); vm.append("fl")
        self.stamp(14); self.hstamp(11)
        while wn < 10 + NR:
            for g in wgroups(wn): emit(g)
            wn += 1
        A(pollB); vm.append("pb")
        self.stamp(15)
        A(f"s_waitcnt vmcnt({need('pb')})")
        self.spin("L_c2", f"v_cmp_ne_u32 vcc, 1, {vPoll}", pollB, 0)
        self.stamp(18); self.hstamp(12)
        while an < self.aahead:
            for g in agroups(an): emit(g)
            an += 1
        if NR == 0:
            for l in wreads(0): A.lds(l, ("w", 0))
        for p in range(32):
            tags = [("A", p)] + ([("W", p + 1)] if p < 31 else [])
            A(f"s_waitcnt vmcnt({min(need(tg) for tg in tags)})")
            A.lds_wait(("w", p))
            gs = []
            if an < 32: gs += agroups(an); an += 1
            if wn < 32 and wn - 10 <= p: gs = [x for pr in itertools.zip_longest(gs, wgroups(wn)) for x in pr if x]; wn += 1
            rds = wreads(p + 1) if NR <= p + 1 < 32 else []
            step = 2 if len(gs) > 4 else 4
            k = 0
            for nb in range(4):
                for q in range(4):
                    d = at(AACC + 16 * q + 4 * nb, 4)
                    A(f"{MF} {d}, {WSET(p)(4*nb, 4)}, {ASET(p)(4*q, 4)}, {d}")
                    if k % 2 == 1 and k // 2 < len(rds): A.lds(rds[k // 2], ("w", p + 1))
                    if k % step == 0 and k // step < len(gs): emit(gs[k // step])
                    k += 1
        self.stamp(16); self.hstamp(13)
        A(f"v_lshl_add_u32 v3, v1, 14, {vL16}")
        A("v_and_b32 v5, 15, v2"); A("v_lshrrev_b32 v6, 4, v2"); A("v_lshlrev_b32 v5, 10, v5"); A("v_lshl_add_u32 v5, v6, 4, v5")
        A(f"s_lshl_b32 {sT0}, {sB2}, 16"); A(f"s_lshl_b32 {sT1}, {sW}, 14"); A(f"s_add_u32 {sT0}, {sT0}, {sT1}")
        A(f"s_bfe_u32 {sT1}, s2, 0x30003"); A(f"s_lshl_b32 {sT1}, {sT1}, 7"); A(f"s_add_u32 {sT0}, {sT0}, {sT1}")
        A("s_barrier")
        for blk in range(4):
            for q in range(4):
                A(f"ds_write_b128 v3, {at(AACC+16*blk+4*q,4)} offset:{blk*4096+q*1024}")
                if (blk * 4 + q) % 8 == 7: A("s_waitcnt lgkmcnt(0)")
        A("s_barrier")
        for src in range(4):
            for q in range(4):
                A(f"ds_read_b128 {vt(64+16*src+4*q,4)}, {vLin} offset:{src*16384+q*1024}")
            if src % 2 == 1: A("s_waitcnt lgkmcnt(0)")
        for i in range(16): A(f"v_add_f32 v{64+i}, v{64+i}, v{80+i}")
        for i in range(16): A(f"v_add_f32 v{96+i}, v{96+i}, v{112+i}")
        for i in range(16): A(f"v_add_f32 v{64+i}, v{64+i}, v{96+i}")
        for j in range(8): A(f"v_cvt_pk_bf16_f32 v{80+j}, v{64+2*j}, v{64+2*j+1}")
        w0, w1 = self.widen(80, 82), self.widen(84, 86)
        A("s_nop 0")
        for l in w0[0] + w1[0] + w0[1] + w1[1]: A(l)
        A(f"buffer_store_dwordx4 {vt(80,4)}, v5, {srd(SOUT)}, {sT0} offen")
        A(f"buffer_store_dwordx4 {vt(84,4)}, v5, {srd(SOUT)}, {sT0} offen offset:64")

    def dump_stamps(self):
        if not self.stamps: return
        A = self.A
        A("s_waitcnt vmcnt(0)")
        self.stamp(17)
        A("s_memrealtime s[100:101]")
        A("s_getreg_b32 s3, hwreg(HW_REG_XCC_ID)")
        A("s_waitcnt lgkmcnt(0)")
        A(f"v_writelane_b32 v{VST}, s98, 61"); A(f"v_writelane_b32 v{VST}, s100, 62"); A(f"v_writelane_b32 v{VST}, s3, 63")
        A(f"s_lshl_b32 {sT1}, s2, 2"); A(f"s_add_u32 {sT1}, {sT1}, {sW}"); A(f"s_mul_i32 {sT1}, {sT1}, 768")
        A(f"s_add_u32 {sT1}, {sT1}, {WS_STAMP}")
        A(f"v_lshrrev_b32 v3, 2, {vL16}")
        for k in range(3): A(f"buffer_store_dword v{VST+k}, v3, {srd(SWS)}, {sT1} offen offset:{256*k}")

HDR = open("standalone__mha_block_cached__near_ridge.s.ref").read().split("; Override")[0]
def desc(name):
    return f""".amdhsa_kernel {name}
  .amdhsa_next_free_vgpr 512
  .amdhsa_next_free_sgpr 102
  .amdhsa_accum_offset 256
  .amdhsa_group_segment_fixed_size 0
  .amdhsa_kernarg_size 64
  .amdhsa_user_sgpr_count 2
  .amdhsa_user_sgpr_kernarg_segment_ptr 1
  .amdhsa_system_sgpr_workgroup_id_x 1
.end_amdhsa_kernel
"""
def build(path, verbose=False, cls=None, **kw):
    g = (cls or Gen)(**kw); g.kernel()
    la = align8(g.A.lines)
    bad = check_hazards(la)
    print(path, "hazards:", bad, "lines", len(la))
    if verbose: print(g.n)
    s = HDR + "; @launch grid=(256,1,1) block=(256,1,1) lds=163840\n"
    s += '.amdgcn_target "amdgcn-amd-amdhsa--gfx950"\n.text\n'
    s += f".globl {KN}\n.p2align 8\n.type {KN},@function\n{KN}:\n" + "\n".join(la) + "\n"
    s += '.section .rodata,"a"\n.p2align 6\n' + desc(KN)
    open(path, "w").write(s)
if __name__ == "__main__":
    build("v13.s", verbose=True)
    build("v13_c.s", stamps=True)
    build("v13_n4.s", nmax=4)
    build("v13_n4_c.s", nmax=4, stamps=True)
```

```python
import re

class Asm:
    def __init__(self):
        self.lines = []
        self.lds_q = []
        self.uid = 0
    def __call__(self, s):
        for ln in s.split("\n"):
            ln = ln.strip()
            if ln:
                self.lines.append(ln)
    def label(self, n): self.lines.append(n + ":")
    def newlabel(self, p="L"):
        self.uid += 1
        return f"{p}_{self.uid}"
    def lds_reset(self): self.lds_q = []
    def lds(self, text, tag=None):
        self(text)
        self.lds_q.append(tag)
        assert len(self.lds_q) <= 15, "too many LDS ops outstanding for exact counting"
    def lds_wait(self, *tags):
        idx = -1
        for t in tags:
            for i, q in enumerate(self.lds_q):
                if q == t: idx = max(idx, i)
        if idx < 0: return False
        n = len(self.lds_q) - 1 - idx
        self(f"s_waitcnt lgkmcnt({n})")
        self.lds_q = self.lds_q[idx + 1:]
        return True
    def lds_drain(self):
        if self.lds_q:
            self("s_waitcnt lgkmcnt(0)")
        self.lds_q = []
    def text(self): return "\n".join(self.lines) + "\n"

TRANS = ("v_exp_f32", "v_log_f32", "v_rcp_f32", "v_rsq_f32", "v_sqrt_f32", "v_sin_f32", "v_cos_f32")

def regs(tok):
    tok = tok.strip()
    tok = re.sub(r"^-", "", tok)
    m = re.match(r"^abs\((.*)\)$", tok)
    if m: tok = m.group(1)
    m = re.match(r"^\|(.*)\|$", tok)
    if m: tok = m.group(1)
    m = re.match(r"^([vas])(\d+)$", tok)
    if m:
        k, n = m.group(1), int(m.group(2))
        return {("v", n + 256)} if k == "a" else {(k, n)}
    m = re.match(r"^([vas])\[(\d+):(\d+)\]$", tok)
    if m:
        k, a, b = m.group(1), int(m.group(2)), int(m.group(3))
        off = 256 if k == "a" else 0
        kk = "v" if k == "a" else k
        return {(kk, i + off) for i in range(a, b + 1)}
    if tok in ("vcc", "vcc_lo", "vcc_hi"): return {("s", "vcc")}
    if tok in ("exec", "exec_lo", "exec_hi"): return {("s", "exec")}
    if tok == "m0": return {("s", "m0")}
    return set()

class Ins:
    pass

def parse(line):
    I = Ins()
    I.text = line
    line = line.split(";")[0].strip()
    parts = line.split(None, 1)
    I.op = parts[0]
    ops = []
    if len(parts) > 1:
        ops = [o.strip() for o in re.split(r",(?![^\[]*\])", parts[1])]
        if ops:
            last = ops[-1].split()
            I.mods = last[1:]
            ops[-1] = last[0] if last else ""
    if not hasattr(I, "mods"): I.mods = []
    I.ops = ops
    op = I.op
    I.kind = "other"; I.w = set(); I.r = set(); I.srcA = I.srcB = I.srcC = set(); I.data = set()
    I.ws = 1
    if op == "s_nop": I.ws = int(ops[0], 0) + 1; I.kind = "nop"
    elif op.startswith("v_mfma"):
        I.kind = "mfma"; I.w = regs(ops[0]); I.srcA = regs(ops[1]); I.srcB = regs(ops[2]); I.srcC = regs(ops[3])
        I.r = I.srcA | I.srcB | I.srcC
        I.passes = 8 if "32x32" in op else 4
    elif op.startswith("ds_read") or op.startswith("ds_bpermute") or op.startswith("ds_swizzle"):
        I.kind = "ds"; I.w = regs(ops[0]); I.r = set().union(*[regs(o) for o in ops[1:]])
    elif op.startswith("ds_"):
        I.kind = "ds"; I.r = set().union(*[regs(o) for o in ops])
    elif op.startswith("buffer_load") or op.startswith("global_load"):
        I.kind = "vmem"
        if "lds" in I.mods or "_lds_" in op:
            I.r = set().union(*[regs(o) for o in ops]) | {("s", "m0")}; I.dma = True
        else:
            I.w = regs(ops[0]); I.r = set().union(*[regs(o) for o in ops[1:]])
    elif op.startswith("buffer_store") or op.startswith("buffer_atomic") or op.startswith("global_store") or op.startswith("global_atomic"):
        I.kind = "vmem"; I.r = set().union(*[regs(o) for o in ops])
        if op.startswith("buffer_store_dwordx4") or op.startswith("buffer_store_dwordx3"):
            I.data = regs(ops[0])
        if op.startswith("global_store_dwordx4"): I.data = regs(ops[1])
        if "atomic" in op and "sc0" in I.mods: I.w = regs(ops[0])
    elif op.startswith("buffer_"):
        I.kind = "vmem"
    elif op.startswith("v_"):
        I.kind = "valu"
        I.trans = any(op.startswith(t) for t in TRANS)
        if op.startswith("v_permlane"):
            I.w = regs(ops[0]) | regs(ops[1]); I.r = set(I.w); I.perm = True
        elif op.startswith("v_cmp"):
            I.w = regs(ops[0]); I.r = set().union(*[regs(o) for o in ops[1:]])
        elif op.startswith("v_nop"):
            pass
        else:
            I.w = regs(ops[0]); I.r = set().union(set(), *[regs(o) for o in ops[1:]])
            if op.startswith("v_fmac") or op.startswith("v_writelane"): I.r |= I.w
            if op.startswith("v_add_co") or op.startswith("v_addc_co") or op.startswith("v_sub_co"):
                I.w |= regs(ops[1])
            if op.startswith("v_cndmask") and len(ops) == 3: I.r |= {("s", "vcc")}
        I.lane = op.startswith("v_readlane") or op.startswith("v_readfirstlane")
        I.dpp = "_dpp" in op or any(m.startswith("row_") or m.startswith("quad_perm") for m in I.mods)
    elif op.startswith("s_"):
        I.kind = "salu"
        if ops and not op.startswith("s_cmp") and not op.startswith("s_bitcmp") and not op.startswith("s_cbranch") and not op.startswith("s_waitcnt") and not op.startswith("s_branch") and not op.startswith("s_setpc"):
            I.w = regs(ops[0])
        I.r = set().union(set(), *[regs(o) for o in ops[1:]])
    return I

def check_hazards(lines, verbose=True):
    ins = []; labels = {}
    for ln in lines:
        s = ln.split(";")[0].strip()
        if not s or s.startswith("."): continue
        if s.endswith(":"):
            labels[s[:-1]] = len(ins); continue
        ins.append(parse(s))
    n = len(ins)
    preds = [[] for _ in range(n + 1)]
    calls = {}
    for i, I in enumerate(ins):
        if I.op == "s_call_b64":
            preds[labels[I.ops[1]]].append(i)
            calls.setdefault(I.ops[0], []).append(i + 1)
    for i, I in enumerate(ins):
        if I.op == "s_branch": preds[labels[I.ops[0]]].append(i)
        elif I.op.startswith("s_cbranch"):
            preds[labels[I.ops[0]]].append(i); preds[i + 1].append(i)
        elif I.op == "s_endpgm": pass
        elif I.op == "s_call_b64": pass
        elif I.op == "s_setpc_b64":
            for r in calls.get(I.ops[0], []): preds[r].append(i)
        else: preds[i + 1].append(i)
    vr = lambda s: {x for x in s if x[0] == "v"}
    sr = lambda s: {x for x in s if x[0] == "s"}
    def need(P, C):
        req = 0; why = ""
        def up(v, w):
            nonlocal req, why
            if v > req: req, why = v, w
        if P.kind == "valu":
            pw = vr(P.w)
            if C.kind == "mfma" and pw & C.r: up(2, "VALU->MFMA")
            if C.kind == "valu":
                if getattr(P, "trans", False) and not C.trans and pw & (C.r): up(1, "trans->VALU")
                if getattr(C, "perm", False) and pw & C.r: up(2, "VALU->permlane")
                if C.lane and pw & C.r: up(1, "VALU->readlane")
                if C.dpp and pw & C.r: up(2, "VALU->DPP")
                if sr(P.w) & sr(C.r): up(2, "VALU sgpr->VALU")
            if C.kind == "vmem" and sr(P.w) & sr(C.r): up(5, "VALU sgpr->VMEM")
        if P.kind == "mfma":
            big = {8: 12, 4: 8}[P.passes]; ov = {8: 10, 4: 6}[P.passes]; war = {8: 7, 4: 3}[P.passes]
            if C.kind == "mfma":
                if P.w & (C.srcA | C.srcB): up(big, "MFMA D->MFMA A/B")
                if P.w & C.srcC and P.w != C.srcC: up(ov, "MFMA D->MFMA C overlap")
                if P.w & C.w and not (P.w & C.srcC): up(big, "MFMA D->MFMA D WAW (conservative)")
            elif C.kind in ("valu", "vmem", "ds"):
                if P.w & (C.r | C.w): up(big, "MFMA D->VALU/MEM")
                if C.kind == "valu" and P.srcC & C.w: up(war, "MFMA C WAR")
        if P.kind == "salu" and ("s", "m0") in P.w and C.kind == "vmem" and getattr(C, "dma", False): up(1, "M0->DMA")
        if P.kind == "vmem" and P.data:
            if C.kind == "valu" and P.data & C.w: up(2, "store data WAR")
            elif P.data & C.w: up(1, "store data WAR")
        return req, why
    bad = 0
    MAXD = 13
    for ci, C in enumerate(ins):
        if C.kind in ("nop", "other"): continue
        stack = [(p, 0) for p in preds[ci]]
        seen = {}
        while stack:
            pi, d = stack.pop()
            if pi in seen and seen[pi] <= d: continue
            seen[pi] = d
            P = ins[pi]
            req, why = need(P, C)
            if req > d:
                bad += 1
                if verbose: print(f"HAZARD {why}: need {req} have {d}\n   P[{pi}]: {P.text}\n   C[{ci}]: {C.text}")
            nd = d + P.ws
            if nd < MAXD:
                for q in preds[pi]: stack.append((q, nd))
    return bad

import subprocess, os, tempfile
def inst_sizes(lines):
    src = '.amdgcn_target "amdgcn-amd-amdhsa--gfx950"\n.text\n'
    body = []
    idx = []
    for i, ln in enumerate(lines):
        s = ln.split(";")[0].strip()
        if not s or s.startswith("."): continue
        body.append(s)
        if not s.endswith(":"): idx.append(i)
    d = tempfile.mkdtemp()
    open(d + "/a.s", "w").write(src + "\n".join(body) + "\n")
    r = subprocess.run(["clang", "-x", "assembler", "-target", "amdgcn-amd-amdhsa", "-mcpu=gfx950",
                        "-c", d + "/a.s", "-o", d + "/a.o"], capture_output=True, text=True)
    assert r.returncode == 0, r.stderr[:3000]
    out = subprocess.run(["llvm-objdump", "-d", "-z", "--mcpu=gfx950", d + "/a.o"], capture_output=True, text=True).stdout
    sz = []
    for l in out.splitlines():
        m = re.search(r"// ([0-9A-F]{12}): ((?:[0-9A-F]{8} ?)+)", l)
        if m: sz.append(4 * len(m.group(2).split()))
    assert len(sz) == len(idx), (len(sz), len(idx))
    res = [None] * len(lines)
    for i, s in zip(idx, sz): res[i] = s
    return res

PROMOTE = ("v_exp_f32", "v_add_f32", "v_mul_f32", "v_add_u32", "v_max_f32", "v_sub_f32", "v_mov_b32", "v_xor_b32", "v_rcp_f32",
           "v_and_b32", "v_or_b32", "v_lshlrev_b32", "v_lshrrev_b32")
def align8(lines, nops=True):
    sz = inst_sizes(lines)
    out = []; pos = 0; cand = None
    for ln, s in zip(lines, sz):
        t = ln.split(";")[0].strip()
        if t.startswith(".p2align"):
            out.append(ln); pos = 0; cand = None; continue
        if s is None:
            out.append(ln); continue
        if s >= 8 and pos % 8 == 4:
            if cand is not None:
                op, rest = out[cand].split(None, 1)
                out[cand] = op + "_e64 " + rest
                pos += 4
            elif nops:
                out.append("s_nop 0"); pos += 4
        out.append(ln)
        if s == 4:
            op = t.split()[0]
            if op in PROMOTE: cand = len(out) - 1
        else:
            cand = None
        pos += s
    return out
```

```python
import sys, math, struct, itertools
sys.path.insert(0, "work")
from asmlib import Asm, check_hazards, align8

KN = "standalone__mha_block_cached__near_ridge_kernel"
def f2u(x): return struct.unpack("<I", struct.pack("<f", x))[0]
CSC = math.log2(math.e) / math.sqrt(128.0)
T = 16384
LK, LV = 0, 3 * T
WS_FLAG = 16 << 20
WS_STAMP = 21 << 20
WS_XF = (16 << 20) + (64 << 10)
WS_PX = 24 << 20
WS_SIZE = 40 << 20
SK, SV, SX, SWQ, SWO, SWS, SOUT, SDBG = 4, 8, 12, 16, 20, 24, 28, 32
def srd(b): return f"s[{b}:{b+3}]"
sW, sW4K, sKoff, sVoff, sW2K, sWP, sThr, sT, sC, sQw, sFloor, sQa = [f"s{i}" for i in range(36, 48)]
sXoff, sWoff, sOT, sT0, sT1, sT2 = [f"s{i}" for i in range(48, 54)]
sLink = "s[54:55]"; sRet = "s[92:93]"; sLink2 = "s[94:95]"
sAoff, sWToff, sB2, sT3, sRot = [f"s{i}" for i in range(56, 61)]
sKs, sPXs, sPXr, sXFs, sXFr, sOutO, sA2 = "s61", "s62", "s63", "s3", "s45", "s47", "s60"
sTi, sXb, sWb, sAreal, sFlagP, sFlagC, sBat, sSpin = [f"s{i}" for i in range(80, 88)]
SCODE = 88
vWs = ["v3", "v4", "v5", "v6"]; vWr = "v7"
vInv = 8
vPoll = "v12"; vPoff = "v13"; vZero = "v14"; vOne = "v15"; vXv = "v7"
vKa = [f"v{i}" for i in range(16, 20)]
vVa = [f"v{i}" for i in range(20, 28)]
vKd = [f"v{i}" for i in range(28, 32)]
vMx = ["v34", "v35"]; vMc = "v36"; vTm = "v37"; vF = ["v38", "v39"]; vL16 = "v40"
vVd = ["v32", "v33", "v240", "v241"]
VST = 41
ONES, LACC, NEG = 44, 48, 56
O0, SA, SB, P0, HELD = 64, 128, 160, 192, 208
vWa = [f"v{i}" for i in range(160, 168)]; vXa = "v168"; vXd = ["v169", "v170"]; vWd = [f"v{i}" for i in range(171, 175)]
AQ2 = 224
LX = 6 * T
QT = [1, 3, 5, 7, 9, 11, 12, 13]
def XR(pi, s, qb):
    k = 16 * pi + 8 * s + 4 * qb
    return at(160 + k, 4) if k < 96 else vt(208 + k - 96, 4)
def tmp(i): return f"v{176 + i}"
AQ, AACC, AKF, AVF, AFREE = 0, 32, 96, 128, 160
def vt(b, n): return f"v[{b}:{b+n-1}]"
def at(b, n): return f"a[{b}:{b+n-1}]"
MF = "v_mfma_f32_16x16x32_bf16"
PUB_T = 2

class Gen:
    def __init__(self, stamps=False, nt=" nt", split=24, wgrp=4, nahead=7, latepos=(18, 22, 26, 31), stf=" sc1", ldf=" sc1",
                 kvpos=(0, 2, 5, 8), dbg=(), rotO=2, rot=2, aahead=4, wof="", oa_t=29, warm=True, epark=False, lpark=True, nreg=9, lim=12, hdbg=False, nmax=4, rotW=8, k01=1, qt=None, vpark=True, mid=(), fin=(), early_poll=True, fsp=2, npk=9, slp=0, lx=True, nearflag='', local=False, wfirst=3, pg=4, wall=False, nops=False, pna=6, qbt=(4, 6, 8, 10), vsum=False):
        self.A = Asm(); self.vm = []
        self.__dict__.update({k: v for k, v in locals().items() if k != "self"})
        self.latepos = list(latepos); self.wcnt = 0; self.parks = []; self.mid = list(mid); self.fin = list(fin); self.QT = []; self.acnt = 0
    def vm_issue(self, tag, n): self.vm += [tag] * n
    def vm_need(self, *tags):
        idx = max(i for i, q in enumerate(self.vm) if q in tags)
        return min(63, len(self.vm) - 1 - idx)
    def stamp(self, k):
        if self.stamps:
            self.A("s_memtime s[96:97]"); self.A("s_waitcnt lgkmcnt(0)"); self.A(f"v_writelane_b32 v{VST}, s96, {k}")
    def hstamp(self, k):
        if not self.hdbg: return
        A = self.A
        A("s_memrealtime s[100:101]"); A("s_waitcnt lgkmcnt(0)"); A(f"v_writelane_b32 v{VST}, s100, {k}")
        if k == 15:
            lab = A.newlabel("Lh")
            A(f"s_cmp_eq_u32 s2, {self.hdbg - 1}"); A(f"s_cbranch_scc0 {lab}"); A(f"s_cmp_eq_u32 {sW}, 0"); A(f"s_cbranch_scc0 {lab}")
            A(f"v_readlane_b32 s100, v{VST}, 0"); A("s_nop 3"); A(f"v_subrev_u32 v{VST}, s100, v{VST}"); A(f"v_lshrrev_b32 v{VST+1}, 2, {vL16}")
            A("s_mov_b64 exec, 0xffff"); A(f"buffer_store_dword v{VST}, v{VST+1}, {srd(SDBG)}, 0 offen"); A("s_mov_b64 exec, -1")
            A.label(lab)
    def istamp(self):
        if self.hdbg:
            A = self.A; lab = A.newlabel("Lh")
            A(f"s_and_b32 s96, {sT}, 3"); A("s_cmp_eq_u32 s96, 3"); A(f"s_cbranch_scc0 {lab}")
            A("s_memrealtime s[100:101]"); A(f"s_lshr_b32 s96, {sT}, 2"); A("s_add_u32 m0, s96, 3"); A("s_waitcnt lgkmcnt(0)")
            A(f"v_writelane_b32 v{VST}, s100, m0")
            A.label(lab)
        if not self.stamps: return
        A = self.A
        A("s_memtime s[96:97]"); A("s_memrealtime s[100:101]"); A(f"s_add_u32 m0, {sT}, 32"); A("s_waitcnt lgkmcnt(0)")
        A(f"v_writelane_b32 v{VST+2}, s96, m0"); A(f"v_writelane_b32 v{VST+1}, s100, m0")
    def dma(self, voff, srdb, soff, imm, flags=""):
        return f"buffer_load_dwordx4 {voff}, {srd(srdb)}, {soff} offen offset:{imm}{flags} lds"
    def tile_KV(self, isK, slot):
        off, base, voffs, srdb = (sKoff, LK, vKd, SK) if isK else (sVoff, LV, vVd, SV)
        g = [[self.dma(voffs[i], srdb, off, i * 1024, self.nt)] for i in range(4)]
        g[0] = [f"s_add_u32 m0, {sW4K}, {base + slot*T}", "@M0"] + g[0]
        g[3] = g[3] + [f"s_add_u32 {off}, {off}, {T}"]
        return g
    def tile_XW(self, xbase, wbase):
        return [[f"s_lshl_b32 {sXoff}, {sTi}, 6", f"s_add_u32 m0, {sW2K}, {xbase}", f"s_add_u32 {sXoff}, {sXoff}, {sXb}", self.dma(vXd[0], SX, sXoff, 0)],
                [f"s_lshl_b32 {sWoff}, {sTi}, 18", self.dma(vXd[1], SX, sXoff, 1024)],
                [f"s_add_u32 m0, {sW4K}, {wbase}", f"s_add_u32 {sWoff}, {sWoff}, {sWb}", self.dma(vWd[0], SWQ, sWoff, 0)],
                [f"s_add_u32 {sTi}, {sTi}, 1", self.dma(vWd[1], SWQ, sWoff, 1024)],
                [f"s_and_b32 {sTi}, {sTi}, 15", self.dma(vWd[2], SWQ, sWoff, 2048)],
                [self.dma(vWd[3], SWQ, sWoff, 3072)]]
    def tile_Wo(self, slot):
        g = [[self.dma(vWs[i], SWO, sWToff, i * 1024, self.wof)] for i in range(4)]
        g[0] = [f"s_add_u32 m0, {sW4K}, {slot * T}", f"s_add_u32 {sWToff}, {sWP}, {self.wcnt * 65536}"] + g[0]
        self.wcnt += 1
        return g
    def emit_groups(self, groups):
        for g in groups:
            for l in g: self.A("s_nop 0" if l == "@M0" else l)
    @staticmethod
    def cost(l):
        if l.startswith("v_exp"): return 8
        if l.startswith("buffer_"): return 16
        return 4
    def spread(self, fill, gaps, lo, hi, base):
        tot = sum(self.cost(l) for l in fill) + sum(base[lo:hi])
        per = tot / (hi - lo); g = lo; acc = 0.0
        k = 0
        for g in range(lo, hi):
            acc += base[g]; tgt = per * (g - lo + 1)
            while k < len(fill) and (acc + self.cost(fill[k]) / 2 <= tgt or g == hi - 1):
                gaps[g].append(fill[k]); acc += self.cost(fill[k]); base[g] += self.cost(fill[k]); k += 1
    def exp_ops(self, S, lo, hi):
        ops = []
        ex = lambda i: f"v_exp_f32 v{S+i}, v{S+i}"
        def cvt(i):
            kb, qb, r = i // 8, (i // 4) % 2, i % 4
            return f"v_cvt_pk_bf16_f32 v{P0 + 8*(kb//2) + 4*qb + 2*(kb%2) + r//2}, v{S+i}, v{S+i+1}"
        prs = list(range(lo, hi, 2))
        for k, i in enumerate(prs):
            ops += [ex(i), ex(i + 1)]
            if k > 0: ops += [cvt(prs[k-1])]
        ops += ["s_nop 0", cvt(prs[-1])]
        return ops
    def max_ops(self, S):
        ops = []
        for qb in range(2):
            r = [S + 8 * kb + 4 * qb + j for kb in range(4) for j in range(4)]
            o = [f"v_max3_f32 {vMx[qb]}, v{r[0]}, v{r[1]}, v{r[2]}"]
            for i in range(3, 15, 2): o.append(f"v_max3_f32 {vMx[qb]}, {vMx[qb]}, v{r[i]}, v{r[i+1]}")
            o.append(f"v_max_f32 {vMx[qb]}, {vMx[qb]}, v{r[15]}")
            ops.append(o)
        out = [x for pr in zip(*ops) for x in pr]
        out.append(f"v_max_f32 {vMc}, {vMx[0]}, {vMx[1]}")
        return out
    def qk_units(self, Sn, slot, tag="k"):
        un = []
        for i in range(16):
            kb, s = i // 4, i % 4
            fr = AKF + 4 * (i % 8)
            ms = [f"{MF} {vt(Sn+8*kb+4*qb,4)}, {at(fr,4)}, {at(AQ+16*qb+4*s,4)}, {vt(NEG+4*qb,4) if s == 0 else vt(Sn+8*kb+4*qb,4)}" for qb in range(2)]
            un.append((ms, [(tag, i)], [(f"ds_read_b128 {at(fr,4)}, {vKa[s]} offset:{slot*T + kb*4096}", (tag, i))]))
        return un
    def pv_units(self, slot):
        un = []
        for i in range(16):
            u, db = i // 8, i % 8
            fr = AVF + 4 * (i % 8)
            ms = [f"{MF} {vt(O0+8*db+4*qb,4)}, {at(fr,4)}, {vt(P0+8*u+4*qb,4)}, {vt(O0+8*db+4*qb,4)}" for qb in range(2)]
            un.append((ms, [("v", i)], [(f"ds_read_b64_tr_b16 {at(fr,2)}, {vVa[db]} offset:{slot*T + u*8192}", ("v", i)),
                                          (f"ds_read_b64_tr_b16 {at(fr+2,2)}, {vVa[db]} offset:{slot*T + u*8192 + 4096}", ("v", i))]))
        return un
    def stream(self, units, nun, NA, G, gaps, mid, extra=None):
        A = self.A
        for i in range(nun):
            if i % G == 0: A.lds_wait(*sum((units[j][1] for j in range(i, min(nun, i + G))), []))
            rds = units[i + NA][2] if i + NA < len(units) else []
            A(units[i][0][0])
            mid(i)
            if rds: A.lds(*rds[0])
            for l in gaps[2 * i]: A(l)
            A(units[i][0][1])
            for r in rds[1:]: A.lds(*r)
            for l in gaps[2 * i + 1]: A(l)
            if extra and i in extra: A(extra[i])
    def place(self, gaps, base, groups, positions):
        for g, p in zip(groups, positions):
            if "@M0" in g:
                k = g.index("@M0"); gaps[p - 1] = gaps[p - 1] + g[:k]; base[p - 1] += 4 * k; g = g[k + 1:]
            gaps[p] = gaps[p] + g; base[p] += sum(self.cost(l) for l in g)
    def simulate_loop(self):
        n1, n2, n3 = {}, {}, {}
        for t in range(29):
            n1[t] = self.vm_need(("V", t))
            self.vm_issue(("V", t + 2), 4)
            n2[t] = self.vm_need(("K", t + 2)) if t < 30 else 63
            for i, tq in enumerate(self.QT):
                if tq == t: n2[t] = min(n2[t], self.vm_need(("E", i)))
            self.vm_issue(("K", t + 4), 4)
            for i, tq in enumerate(self.QT[:-2]):
                if tq == t: self.vm_issue(("E", i + 2), 4)
            if t == PUB_T: n3[t] = self.vm_need(("FZ",))
        return n1, n2, n3
    def aload(self, R, j, soff):
        return [f"buffer_load_dwordx4 {R(4*j,4)}, {vL16}, {srd(SWS)}, {soff} offen offset:{(j%4)*1024}{self.ldf}"]
    def body(self, c, n1, n2):
        A = self.A
        par = c % 2; NA = self.nahead; G = self.wgrp
        S, Sn = (SA, SB) if par == 0 else (SB, SA)
        sel = lambda d: min(self.nmax, min(v for t, v in d.items() if t % 6 == c))
        units = self.qk_units(Sn, (c + 1) % 3) + self.pv_units(c % 3) + self.qk_units(S, (c + 2) % 3, "kn")[:NA]
        bp = 16 - NA
        gaps = [[] for _ in range(64)]; base = [0] * 64
        for i in range(32):
            nr = len(units[i + NA][2])
            base[2 * i] += 4; base[2 * i + 1] += 4 * (nr - 1)
            if (i + 1) % G == 0: base[2 * i + 1] += 4
            if i % 16 == bp: base[2 * i] += 12
        self.place(gaps, base, self.tile_KV(False, (c + 2) % 3), [p + 1 for p in self.latepos[:3]] + [31])
        self.place(gaps, base, self.tile_KV(True, (c + 1) % 3), [32 + p + 1 for p in self.latepos[:3]] + [63])
        self.spread(self.exp_ops(S, 0, self.split), gaps, 0, 32, base)
        self.spread(self.exp_ops(S, self.split, 32), gaps, 32, 32 + self.lim, base)
        self.spread(self.max_ops(Sn), gaps, 32 + self.lim, 64, base)
        lm = lambda u, qb: f"{MF} {vt(LACC+4*qb,4)}, {vt(ONES,4)}, {vt(P0+8*u+4*qb,4)}, {vt(LACC+4*qb,4)}"
        extra = {16 + 3: lm(0, 0), 16 + 7: lm(0, 1), 16 + 11: lm(1, 0), 16 + 15: lm(1, 1)}
        def mid(i):
            if i % 16 == bp:
                A(f"s_waitcnt vmcnt({sel(n1) if i < 16 else sel(n2)})"); A("s_barrier")
        A.lds_q = [("k", i) for i in range(NA)]
        self.stream(units, 32, NA, G, gaps, mid, extra)
    def final_bodies(self):
        A = self.A; NA = self.nahead; G = self.wgrp; bp = 16 - NA
        lm = lambda u, qb: f"{MF} {vt(LACC+4*qb,4)}, {vt(ONES,4)}, {vt(P0+8*u+4*qb,4)}, {vt(LACC+4*qb,4)}"
        bb29, ba30, bb30, ba31 = 32 + 2 * bp + 1, 64 + 2 * bp + 1, 96 + 2 * bp + 1, 128
        todo = []
        for v in range(4):
            for qb in range(2):
                todo.append((33, [self.ostore(HELD + 8*v + 4*qb, v, qb)] + ([f"s_add_u32 {sOT}, {sOT}, 8192"] if qb else []), "OA"))
        for slot, first in [(2, 33), (6, 33), (7, 33), (8, 33), (9, 33), (0, bb29), (5, ba30), (1, bb30), (3, ba31)][:self.npk]:
            todo.append((first, slot, None))
        plan = {}; pos = 33
        for first, what, tag in todo:
            groups = [what] if tag else self.tile_Wo(what)
            if not tag:
                if max(pos, first) + 3 * self.fsp >= 158: self.wcnt -= 1; break
                self.parks.append(("lds", what))
            for g in groups:
                pos = max(pos, first)
                plan[pos] = (g, tag or "PK"); pos += self.fsp
        def run(t, units, nun, off, exps, waits, extra):
            ng = 2 * nun
            gaps = [[] for _ in range(ng)]; base = [0] * ng; vmat = {}
            for i in range(nun):
                nr = len(units[i + NA][2]) if i + NA < len(units) else 0
                base[2 * i] += 4 * min(1, nr); base[2 * i + 1] += 4 * max(0, nr - 1)
            if t == 29:
                ps = [p + 1 for p in self.latepos[:3]] + [31]
                self.place(gaps, base, self.tile_KV(False, 1), ps)
                for p in ps: vmat[p] = ("V", 31)
            for p, (g, tag) in plan.items():
                if off <= p < off + ng:
                    gaps[p - off] += g; base[p - off] += sum(self.cost(l) for l in g); vmat[p - off] = tag
            for ops, lo, hi in exps: self.spread(ops, gaps, lo, hi, base)
            done = [0]
            def log(upto):
                for p in range(done[0], upto):
                    if p in vmat: self.vm_issue(vmat[p], 1)
                done[0] = upto
            def mid(i):
                log(2 * i)
                if i in waits:
                    if waits[i]: A(f"s_waitcnt vmcnt({self.vm_need(waits[i])})")
                    A("s_barrier")
            self.stream(units, nun, NA, G, gaps, mid, extra)
            log(ng)
        def check(k):
            A(f"v_cmp_lt_f32 vcc, {sThr}, {vMc}"); A(f"s_cbranch_vccz L_f{k}"); A(f"s_call_b64 {sLink2}, L_rare"); A.label(f"L_f{k}")
            A(f"s_add_u32 {sT}, {sT}, 1")
        ex2 = {16 + 3: lm(0, 0), 16 + 7: lm(0, 1), 16 + 11: lm(1, 0), 16 + 15: lm(1, 1)}
        check(28)
        for t in (29, 30):
            c = t % 6; S, Sn = (SA, SB) if c % 2 == 0 else (SB, SA)
            units = self.qk_units(Sn, (c + 1) % 3) + self.pv_units(c % 3) + (self.qk_units(S, (c + 2) % 3, "kn")[:NA] if t == 29 else [])
            A.lds_q = [("k", i) for i in range(NA)]
            run(t, units, 32, 64 * (t - 29),
                [(self.exp_ops(S, 0, self.split), 0, 32), (self.exp_ops(S, self.split, 32), 32, 32 + self.lim), (self.max_ops(Sn), 32 + self.lim, 64)],
                {bp: ("V", t), 16 + bp: ("K", 31) if t == 29 else None}, ex2)
            self.istamp()
            check(t)
        units = self.pv_units(1)
        e = self.exp_ops(SB, 0, 32)
        k0 = next(i for i, l in enumerate(e) if l.startswith(f"v_cvt_pk_bf16_f32 v{P0 + 7},")) + 1
        for l in e[:k0 - 6]: A(l)
        A(f"s_waitcnt vmcnt({self.vm_need(('V', 31))})"); A("s_barrier")
        A.lds_reset()
        for i in range(NA):
            for r in units[i][2]: A.lds(*r)
        for l in e[k0 - 6:k0]: A(l)
        A("s_nop 0")
        run(31, units, 16, 128, [(e[k0:], 0, 13)], {}, {3: lm(0, 0), 7: lm(0, 1), 11: lm(1, 0), 15: lm(1, 1)})
        self.istamp()
    def widen(self, a, b):
        return [[f"v_permlane32_swap_b32 v{a}, v{b}", f"v_permlane32_swap_b32 v{a+1}, v{b+1}"],
                [f"v_permlane16_swap_b32 v{a}, v{b}", f"v_permlane16_swap_b32 v{a+1}, v{b+1}"]]
    def qfin_ops(self, from_acc, steps=range(4), AQ=AQ):
        pair = vt(int(vF[0][1:]), 2); out = []
        for s in steps:
            t = P0 if from_acc else O0 + 16 * s
            if from_acc: out += [f"v_accvgpr_read_b32 v{t+j}, a{AACC+16*s+j}" for j in range(16)]
            out += [f"v_pk_mul_f32 {vt(t+2*j,2)}, {vt(t+2*j,2)}, {pair}" for j in range(8)]
            for q4 in range(4): out += [f"v_cvt_pk_bf16_f32 v{t+4*q4+j}, v{t+4*q4+2*j}, v{t+4*q4+2*j+1}" for j in range(2)]
            w0, w1 = self.widen(t, t + 8), self.widen(t + 4, t + 12)
            out += ["s_nop 0"] + w0[0] + w1[0] + w0[1] + w1[1]
            for qb in range(2):
                for j, r in enumerate((t + 4*qb, t + 4*qb + 1, t + 8 + 4*qb, t + 8 + 4*qb + 1)):
                    out.append(f"v_accvgpr_write_b32 a{AQ+16*qb+4*s+j}, v{r}")
        return out
    def zero_acc(self): return [f"v_accvgpr_write_b32 a{AACC+i}, 0" for i in range(64)]
    def epilogue(self, hold):
        A = self.A
        A("s_nop 4")
        for qb in range(2):
            A(f"v_rcp_f32 v{vInv+2*qb}, v{LACC+4*qb}"); A(f"v_rcp_f32 v{vInv+2*qb+1}, v{LACC+4*qb}")
        A("s_nop 0")
        for v in range(4):
            for qb in range(2):
                src = [O0 + 16*v + 4*qb, O0 + 16*v + 8 + 4*qb]
                dst = HELD + 8*v + 4*qb if hold else SA + 8*v + 4*qb
                for b in src:
                    for j in range(2): A(f"v_pk_mul_f32 {vt(b+2*j,2)}, {vt(b+2*j,2)}, {vt(vInv+2*qb,2)}")
                for k, b in enumerate(src):
                    for j in range(2): A(f"v_cvt_pk_bf16_f32 v{dst+2*k+j}, v{b+2*j}, v{b+2*j+1}")
                if not hold: A(self.ostore(dst, v, qb))
            if not hold: A(f"s_add_u32 {sOT}, {sOT}, 8192")
    def ostore(self, reg, v, qb):
        return f"buffer_store_dwordx4 {vt(reg,4)}, {vL16}, {srd(SWS)}, {sOT} offen offset:{qb*1024}{self.stf}"
    def store_held(self):
        for v in range(4):
            for qb in range(2): self.A(self.ostore(HELD + 8*v + 4*qb, v, qb))
            self.A(f"s_add_u32 {sOT}, {sOT}, 4096")
    def make_srd(self, b, p, size):
        A = self.A
        A(f"s_mov_b32 s{b}, s{p}"); A(f"s_mov_b32 s{b+1}, s{p+1}")
        A(f"s_mov_b32 s{b+2}, 0x{size:x}"); A(f"s_mov_b32 s{b+3}, 0x20000")
    def one_lane(self, lines, wave0=False):
        A = self.A
        lab = A.newlabel("Lo")
        if wave0: A(f"s_cmp_eq_u32 {sW}, 0"); A(f"s_cbranch_scc0 {lab}")
        A("s_mov_b64 exec, 1")
        for l in lines: A(l)
        A("s_mov_b64 exec, -1")
        if wave0: A.label(lab)
    def spin(self, name, cmp_line, load_line, sleep):
        A = self.A
        A(f"s_mov_b32 {sSpin}, 0x40000")
        A.label(name)
        for l in cmp_line.split("|"): A(l)
        A(f"s_cbranch_vccz {name}_ok")
        A(f"s_sub_u32 {sSpin}, {sSpin}, 1"); A(f"s_cbranch_scc1 {name}_ok")
        if sleep: A(f"s_sleep {sleep}")
        A(load_line)
        A("s_waitcnt vmcnt(0)")
        A(f"s_branch {name}")
        A.label(name + "_ok")
    def rowmax(self, floor):
        A = self.A
        for qb, tm in ((0, vTm), (1, vMc)): A(f"v_mov_b32 {tm}, {vMx[qb]}")
        A("s_nop 0")
        for qb, tm in ((0, vTm), (1, vMc)): A(f"v_permlane32_swap_b32 {vMx[qb]}, {tm}")
        for qb, tm in ((0, vTm), (1, vMc)): A(f"v_max_f32 {vMx[qb]}, {vMx[qb]}, {tm}")
        for qb, tm in ((0, vTm), (1, vMc)): A(f"v_mov_b32 {tm}, {vMx[qb]}")
        A("s_nop 0")
        for qb, tm in ((0, vTm), (1, vMc)): A(f"v_permlane16_swap_b32 {vMx[qb]}, {tm}")
        for qb, tm in ((0, vTm), (1, vMc)): A(f"v_max3_f32 {vMx[qb]}, {vMx[qb]}, {tm}, {floor}")

    def kernel(self):
        A = self.A
        tg, tl15, tr, tc, ta, tb, td, te = [tmp(i) for i in range(8)]
        A("s_cmp_ge_u32 s2, 256"); A("s_cbranch_scc1 L_end")
        if self.stamps: A("s_memrealtime s[98:99]")
        A("s_load_dwordx16 s[64:79], s[0:1], 0")
        self.stamp(0); self.hstamp(0)
        A("v_lshrrev_b32 v1, 6, v0"); A("v_and_b32 v2, 63, v0")
        A(f"v_readfirstlane_b32 {sW}, v1")
        A(f"v_lshlrev_b32 {vL16}, 4, v2")
        A(f"s_getpc_b64 s[{SCODE}:{SCODE+1}]")
        A.label("L_pc")
        A(f"s_mov_b32 s{SCODE+2}, L_codeend-L_pc"); A(f"s_mov_b32 s{SCODE+3}, 0x20000")
        A(f"s_lshr_b32 {sT0}, s2, 3"); A(f"s_lshl_b32 {sT0}, {sT0}, 2"); A(f"s_add_u32 {sT0}, {sT0}, {sW}")
        A(f"s_and_b32 {sT0}, {sT0}, 63"); A(f"s_lshl_b32 {sT0}, {sT0}, 10")
        A(f"buffer_load_dwordx4 v[128:131], {vL16}, {srd(SCODE)}, {sT0} offen"); self.vm_issue(("CODE",), 1)
        A(f"s_lshl_b32 {sW4K}, {sW}, 12"); A(f"s_lshl_b32 {sW2K}, {sW}, 11")
        A(f"v_lshrrev_b32 {tg}, 4, v2"); A(f"v_and_b32 {tc}, 3, v2")
        A(f"v_lshrrev_b32 {ta}, 2, v2"); A(f"v_lshl_add_u32 {ta}, v1, 5, {ta}")
        A(f"v_sub_u32 {tb}, 0, {tg}"); A(f"v_and_b32 {tb}, 3, {tb}"); A(f"v_xor_b32 {tb}, {tb}, {tc}"); A(f"v_lshlrev_b32 {tb}, 4, {tb}")
        A(f"v_lshl_add_u32 {vXd[0]}, {ta}, 10, {tb}"); A(f"v_add_u32 {vXd[1]}, {16384 - 1024}, {vXd[0]}")
        A(f"v_lshrrev_b32 {ta}, 5, v2"); A(f"v_and_b32 {tb}, 1, v1"); A(f"v_lshl_add_u32 {tb}, {tb}, 2, {ta}"); A(f"v_lshlrev_b32 {tb}, 1, {tb}")
        A(f"v_and_b32 {td}, 31, v2"); A(f"v_xor_b32 {tb}, {tb}, {td}"); A(f"v_lshlrev_b32 {tb}, 4, {tb}")
        A(f"v_lshl_add_u32 {ta}, v1, 3, {ta}"); A(f"v_lshl_add_u32 {vWd[0]}, {ta}, 13, {tb}"); A(f"v_xor_b32 {tb}, 64, {vWd[0]}")
        A(f"v_add_u32 {vWd[1]}, 15360, {tb}"); A(f"v_add_u32 {vWd[2]}, {2*15360}, {vWd[0]}"); A(f"v_add_u32 {vWd[3]}, {3*15360}, {tb}")
        if self.local:
            A(f"s_and_b32 {sBat}, s2, 7"); A(f"s_lshl_b32 {sBat}, {sBat}, 1"); A(f"s_lshr_b32 {sT2}, s2, 7"); A(f"s_add_u32 {sBat}, {sBat}, {sT2}")
            A(f"s_bfe_u32 {sT1}, s2, 0x40003")
            if self.rot == 2: A(f"s_lshl_b32 {sTi}, {sT2}, 3"); A(f"s_add_u32 {sTi}, {sTi}, {sT1}"); A(f"s_and_b32 {sTi}, {sTi}, 15")
            elif self.rot == 1: A(f"s_lshl_b32 {sTi}, {sT2}, 3")
            else: A(f"s_mov_b32 {sTi}, 0")
            A(f"s_lshl_b32 {sT3}, {sT1}, 1")
            A(f"s_and_b32 {sT2}, {sT1}, 3"); A(f"s_lshr_b32 {sT1}, {sT1}, 2"); A(f"s_lshl_b32 {sT1}, {sT1}, 3"); A(f"s_add_u32 {sT1}, {sT1}, {sT2}")
        else:
            A(f"s_and_b32 {sBat}, s2, 1"); A(f"s_lshl_b32 {sBat}, {sBat}, 3")
            A(f"s_bfe_u32 {sT1}, s2, 0x30003"); A(f"s_add_u32 {sBat}, {sBat}, {sT1}")
            A(f"s_lshr_b32 {sT2}, s2, 6")
            if self.rot == 2:
                A(f"s_lshl_b32 {sTi}, {sT2}, 1"); A(f"s_add_u32 {sTi}, {sTi}, {sT1}"); A(f"s_lshl_b32 {sTi}, {sTi}, 1"); A(f"s_and_b32 {sTi}, {sTi}, 15")
            elif self.rot == 1:
                A(f"s_add_u32 {sTi}, {sT2}, {sT1}"); A(f"s_and_b32 {sTi}, {sTi}, 1"); A(f"s_lshl_b32 {sTi}, {sTi}, 3")
            elif self.rot == 3:
                A(f"s_add_u32 {sTi}, {sT2}, {sT1}"); A(f"s_and_b32 {sTi}, {sTi}, 3"); A(f"s_lshl_b32 {sTi}, {sTi}, 2")
            else: A(f"s_mov_b32 {sTi}, 0")
            A(f"s_bfe_u32 {sT1}, s2, 0x20001"); A(f"s_lshl_b32 {sT1}, {sT1}, 3")
            A(f"s_lshl_b32 {sT3}, {sT2}, 1"); A(f"s_add_u32 {sT3}, {sT3}, {sT1}")
            A(f"s_add_u32 {sT1}, {sT1}, {sT2}")
        A(f"s_lshl_b32 {sXb}, {sBat}, 17"); A(f"s_lshl_b32 {sWb}, {sT3}, 8")
        A("s_waitcnt lgkmcnt(0)")
        self.make_srd(SX, 64, 2 << 20); self.make_srd(SWQ, 70, 4 << 20)
        XS = [9 * T, 9 * T + 8192, 2 * T, 2 * T + 8192]; WS_ = [6 * T, 7 * T, 8 * T, 5 * T]
        self.emit_groups(self.tile_XW(XS[0], WS_[0])); self.vm_issue(("P", 0), 6)
        self.stamp(1)
        A(f"s_lshl_b32 {sT2}, {sBat}, 5"); A(f"s_add_u32 {sT2}, {sT2}, {sT3}"); A(f"s_lshl_b32 {sT2}, {sT2}, 18")
        A(f"s_add_u32 s66, s66, {sT2}"); A("s_addc_u32 s67, s67, 0"); A(f"s_add_u32 s68, s68, {sT2}"); A("s_addc_u32 s69, s69, 0")
        A(f"s_mov_b32 {sKoff}, 0"); A(f"s_mov_b32 {sVoff}, 0")
        A(f"s_lshl_b32 {sFlagP}, {sBat}, 2"); A(f"s_lshr_b32 {sT2}, {sT1}, 3"); A(f"s_add_u32 {sFlagP}, {sFlagP}, {sT2}")
        A(f"s_lshl_b32 {sFlagP}, {sFlagP}, 2"); A(f"s_add_u32 {sFlagP}, {sFlagP}, {sW}"); A(f"s_lshl_b32 {sFlagP}, {sFlagP}, 7")
        A(f"s_and_b32 {sT2}, {sT1}, 3"); A(f"s_lshl_b32 {sT2}, {sT2}, 2"); A(f"s_add_u32 {sFlagP}, {sFlagP}, {sT2}")
        A(f"s_add_u32 {sFlagP}, {sFlagP}, {WS_FLAG}")
        A(f"s_lshl_b32 {sT0}, {sBat}, 5"); A(f"s_add_u32 {sT0}, {sT0}, {sT3}"); A(f"s_lshl_b32 {sT0}, {sT0}, 15")
        A(f"s_add_u32 {sOT}, {sT0}, {sW2K}")
        self.emit_groups(self.tile_XW(XS[1], WS_[1])); self.vm_issue(("P", 1), 6)
        A(f"s_mov_b32 {sC}, 0x{f2u(CSC):08x}"); A(f"s_mov_b32 {sThr}, 0x{f2u(8.0):08x}")
        self.make_srd(SK, 66, 512 << 10); self.make_srd(SV, 68, 512 << 10)
        self.make_srd(SWO, 72, 4 << 20); self.make_srd(SWS, 78, WS_SIZE)
        self.make_srd(SOUT, 74, 2 << 20); self.make_srd(SDBG, 76, 256)
        A(f"v_and_b32 {tl15}, 15, v2"); A(f"v_lshl_add_u32 {ta}, v1, 4, {tg}")
        A(f"v_lshlrev_b32 {tb}, 1, {tg}"); A(f"v_xor_b32 {tb}, {tb}, {tl15}"); A(f"v_lshlrev_b32 {tb}, 4, {tb}")
        A(f"v_lshl_add_u32 {vVd[0]}, {ta}, 8, {tb}"); A(f"v_xor_b32 {vVd[1]}, 128, {vVd[0]}")
        A(f"v_mov_b32 {vVd[2]}, {vVd[0]}"); A(f"v_mov_b32 {vVd[3]}, {vVd[1]}")
        A(f"v_xor_b32 {tb}, {tl15}, {tg}"); A(f"v_lshlrev_b32 {tb}, 4, {tb}")
        A(f"v_lshl_add_u32 {vKd[0]}, {ta}, 8, {tb}")
        for i in range(1, 4): A(f"v_xor_b32 {vKd[i]}, {64*i}, {vKd[0]}")
        self.emit_groups(self.tile_XW(XS[2], WS_[2])); self.vm_issue(("P", 2), 6)
        A(f"v_lshl_add_u32 {vKa[0]}, {tl15}, 8, {tb}")
        for s in range(1, 4): A(f"v_xor_b32 {vKa[s]}, {64*s}, {vKa[0]}")
        A(f"v_bfe_u32 {tr}, v2, 2, 2")
        A(f"v_sub_u32 {ta}, 0, {tr}"); A(f"v_and_b32 {ta}, 3, {ta}"); A(f"v_xor_b32 {ta}, {ta}, {tg}"); A(f"v_lshlrev_b32 {ta}, 4, {ta}")
        A(f"v_lshl_add_u32 {tb}, v1, 5, {tl15}"); A(f"v_lshl_add_u32 {ta}, {tb}, 6, {ta}")
        A(f"v_add_u32 {vXa}, {XS[0]}, {ta}")
        A(f"v_and_b32 {ta}, 1, {tg}"); A(f"v_lshl_add_u32 {ta}, {ta}, 2, {tr}")
        A(f"v_lshlrev_b32 {ta}, 5, {ta}"); A(f"v_lshl_add_u32 {ta}, {tc}, 3, {ta}")
        A(f"v_lshl_add_u32 {td}, {tg}, 2, {tr}")
        A(f"v_lshl_add_u32 {tb}, {td}, 8, {ta}"); A(f"v_add_u32 {vVa[0]}, {LV}, {tb}")
        for b in range(1, 8): A(f"v_xor_b32 {vVa[b]}, {32*b}, {vVa[0]}")
        A(f"v_lshl_add_u32 {tb}, {tg}, 3, {tr}"); A(f"v_lshl_add_u32 {tb}, {tb}, 9, {ta}"); A(f"v_add_u32 {vWa[0]}, {5*T}, {tb}")
        for b in range(1, 8): A(f"v_xor_b32 {vWa[b]}, {32*b}, {vWa[0]}")
        A(f"v_and_b32 {ta}, 0xff, {vVd[0]}"); A(f"v_lshrrev_b32 {tb}, 8, {vVd[0]}"); A(f"v_lshl_add_u32 {vWs[0]}, {tb}, 10, {ta}")
        A(f"v_xor_b32 {ta}, 128, {vWs[0]}")
        A(f"v_add_u32 {vWs[1]}, 3072, {ta}"); A(f"v_add_u32 {vWs[2]}, 6144, {vWs[0]}"); A(f"v_add_u32 {vWs[3]}, 9216, {ta}")
        A(f"v_cmp_eq_u32 vcc, 0, {tc}"); A(f"v_mov_b32 {ta}, 0x3f803f80"); A(f"v_mov_b32 {vZero}, 0"); A(f"v_mov_b32 {vOne}, 1")
        for k in range(4): A(f"v_cndmask_b32 v{ONES+k}, 0, {ta}, vcc")
        for k in range(16): A(f"v_mov_b32 v{LACC+k}, 0")
        A(f"s_and_b32 {sT0}, s2, 7"); A(f"s_lshl_b32 {sT0}, {sT0}, 1"); A(f"s_lshr_b32 {sT1}, s2, 7"); A(f"s_add_u32 {sB2}, {sT0}, {sT1}")
        A(f"s_bfe_u32 {sKs}, s2, 0x20005"); A(f"s_bfe_u32 {sT3}, s2, 0x20003")
        A(f"s_lshl_b32 {sT0}, {sB2}, 2"); A(f"s_add_u32 {sT0}, {sT0}, {sKs}")
        A(f"s_lshl_b32 {sAreal}, {sT0}, 18"); A(f"s_add_u32 {sAreal}, {sAreal}, {sW2K}")
        A(f"s_lshl_b32 {sFlagC}, {sT0}, 2"); A(f"s_add_u32 {sFlagC}, {sFlagC}, {sW}"); A(f"s_lshl_b32 {sFlagC}, {sFlagC}, 7")
        A(f"s_add_u32 {sFlagC}, {sFlagC}, {WS_FLAG}")
        A(f"s_lshl_b32 {sWP}, {sKs}, 20"); A(f"s_lshl_b32 {sT1}, {sT3}, 8"); A(f"s_add_u32 {sWP}, {sWP}, {sT1}")
        A(f"s_lshl_b32 {sOutO}, {sT0}, 15"); A(f"s_add_u32 {sOutO}, {sOutO}, {sT1}"); A(f"s_lshl_b32 {sT1}, {sW}, 6"); A(f"s_add_u32 {sOutO}, {sOutO}, {sT1}")
        A(f"s_lshl_b32 {sT0}, {sB2}, 2"); A(f"s_add_u32 {sT0}, {sT0}, {sT3}"); A(f"s_lshl_b32 {sT0}, {sT0}, 2")
        A(f"s_add_u32 {sT1}, {sT0}, {sW}"); A(f"s_add_u32 {sT2}, {sT0}, {sKs}")
        A(f"s_lshl_b32 {sPXs}, {sT1}, 2"); A(f"s_add_u32 {sPXs}, {sPXs}, {sKs}"); A(f"s_lshl_b32 {sPXs}, {sPXs}, 14"); A(f"s_add_u32 {sPXs}, {sPXs}, {WS_PX}")
        A(f"s_lshl_b32 {sPXr}, {sT2}, 16"); A(f"s_add_u32 {sPXr}, {sPXr}, {sW4K}"); A(f"s_add_u32 {sPXr}, {sPXr}, {WS_PX}")
        A(f"s_lshl_b32 {sXFs}, {sT1}, 7"); A(f"s_lshl_b32 {sT1}, {sKs}, 2"); A(f"s_add_u32 {sXFs}, {sXFs}, {sT1}"); A(f"s_add_u32 {sXFs}, {sXFs}, {WS_XF}")
        A(f"s_lshl_b32 {sXFr}, {sT2}, 7"); A(f"s_add_u32 {sXFr}, {sXFr}, {WS_XF}")
        A(f"v_and_b32 {ta}, 1, v2"); A(f"v_lshlrev_b32 {ta}, 6, {ta}"); A(f"s_lshl_b32 {sT0}, {sB2}, 2"); A(f"v_add_u32 {vPoff}, {sT0}, {ta}")
        A(f"s_getreg_b32 {sT0}, hwreg(HW_REG_XCC_ID, 0, 4)"); A(f"s_mul_i32 {sT1}, {sT0}, {sT0}")
        A(f"s_lshl_b32 {sT0}, {sT0}, 8"); A(f"s_lshl_b32 {sT1}, {sT1}, 16"); A(f"s_add_u32 {sT0}, {sT0}, {sT1}"); A(f"s_add_u32 {sA2}, {sT0}, 1")
        A(f"v_mov_b32 {vXv}, {sA2}"); A(f"s_lshl_b32 {sA2}, {sA2}, 4")
        self.one_lane([f"buffer_store_dword {vZero}, {vZero}, {srd(SWS)}, {sFlagP} offen sc1",
                       f"buffer_store_dword {vZero}, {vZero}, {srd(SWS)}, {sXFs} offen sc1"]); self.vm_issue(("FZ",), 2)
        NA = self.pna; BP = 16 - NA; NU = 256
        XF = lambda pi, qb: at(AKF + 8 * (pi % 2) + 4 * qb, 4)
        units = []
        for pi in range(16):
            for t in range(16):
                m = 16 * pi + t; fr = AVF + 4 * (m % 8)
                D = lambda qb: vt(O0 + 8*t + 4*qb, 4) if t < 8 else at(AACC + 8*(t-8) + 4*qb, 4)
                wo_ = WS_[pi % 4] - 5 * T + (t // 8) * 256
                units.append(([f"{MF} {D(qb)}, {at(fr,4)}, {XF(pi, qb)}, {'0' if pi == 0 else D(qb)}" for qb in range(2)],
                              [("w", m), ("x", pi)],
                              [(f"ds_read_b64_tr_b16 {at(fr,2)}, {vWa[t % 8]} offset:{wo_}", ("w", m)),
                               (f"ds_read_b64_tr_b16 {at(fr+2,2)}, {vWa[t % 8]} offset:{wo_ + 2048}", ("w", m))]))
        sched = []
        early = [("K", 0), ("K", 1), ("V", 0), ("V", 1)]
        for j in range(3, 16):
            first = 0 if j == 3 else 16 * (j - 3) + BP
            sched.append((first, ("P", j), self.tile_XW(XS[j % 4], WS_[j % 4])))
            for (kind, sl), at_ in zip(early, self.kvpos):
                if at_ == j - 3: sched.append((first, (kind, sl), self.tile_KV(kind == "K", sl)))
        gaps = [[] for _ in range(2 * NU)]; vmat = {}
        pos = 0
        for first, tag, groups in sched:
            for g in groups:
                pos = max(pos, first)
                g = [("s_nop 0" if l == "@M0" else l) for l in g]
                k = max(i for i, l in enumerate(g) if l.startswith("buffer_"))
                gaps[2 * pos] += g[:k]; gaps[2 * pos + 1] += g[k:]; vmat[pos] = tag
                pos += 1
        xrd = lambda pi, qb: (f"ds_read_b128 {XF(pi, qb)}, {vXa} offset:{qb * 1024}", ("x", pi))
        def mid(m):
            pi, k = m // 16, m % 16
            if m - 1 in vmat: self.vm_issue(vmat[m - 1], 1)
            if pi < 15:
                if k == 2: A(f"v_add_u32 {vXa}, {XS[(pi + 1) % 4] - XS[pi % 4]}, {vXa}")
                if k == BP:
                    A(f"s_waitcnt vmcnt({self.vm_need(('P', pi + 1))})"); A("s_barrier")
                    if pi % 2 == 1: self.stamp(3 + pi // 2)
                if BP < k <= BP + 2: A.lds(*xrd(pi + 1, k - BP - 1))
        A(f"s_waitcnt vmcnt({self.vm_need(('P', 0))})")
        A("s_barrier")
        self.stamp(2); self.hstamp(1)
        A.lds_reset()
        for qb in range(2): A.lds(*xrd(0, qb))
        for m in range(NA):
            for r in units[m][2]: A.lds(*r)
        self.stream(units, NU, NA, self.pg, gaps, mid)
        assert NU - 1 not in vmat
        A(f"v_mov_b32 {vF[0]}, {sC}"); A(f"v_mov_b32 {vF[1]}, {sC}")
        for k in range(8): A(f"v_mov_b32 v{NEG+k}, 0")
        A(f"s_waitcnt vmcnt({self.vm_need(('K', 0))})")
        A("s_barrier")
        NB = self.nahead
        units = self.qk_units(SA, 0) + self.qk_units(SB, 1, "kn")[:NB]
        for i in range(NB): A.lds(*units[i][2][0])
        g = self.tile_KV(True, 2); self.vm_issue(("K", 2), 4)
        qa = self.qfin_ops(False); n4 = len(qa) // 4
        for i in range(4):
            self.emit_groups(g[i:i+1])
            for l in qa[n4*i:n4*i+n4]: A(l)
        self.stamp(10); self.hstamp(2)
        gaps = [[] for _ in range(32)]; base = [4, 0] * 16
        if self.epark:
            grp = [x for k in range(4) for x in self.tile_Wo(6 + k)]
            self.parks += [("lds", 6 + k) for k in range(4)]
            for i, gq in enumerate(grp):
                gaps[2 * i] += gq[:-1]; gaps[2 * i + 1] += gq[-1:]; base[2 * i] += 4 * (len(gq) - 1); base[2 * i + 1] += 16
        self.spread([f"v_mov_b64 {vt(O0+2*k,2)}, 0" for k in range(32)], gaps, 0, 32, base)
        def mid0(i):
            if self.epark and i > 0: self.vm_issue(("EP",), 1)
            if i == 16 - NB: A(f"s_waitcnt vmcnt({self.vm_need(('K', 1))})"); A("s_barrier")
        self.stream(units, 16, NB, self.wgrp, gaps, mid0)
        if self.epark: self.vm_issue(("EP",), 1)
        A("s_barrier")
        g = self.tile_KV(True, 0); self.vm_issue(("K", 3), 4)
        self.emit_groups(g[:2])
        for l in self.max_ops(SA): A(l)
        self.emit_groups(g[2:])
        if self.warm:
            A(f"s_lshl_b32 {sT0}, s2, 14"); A(f"s_add_u32 {sT0}, {sT0}, {sW4K}")
            for i in range(4): A(f"buffer_load_dwordx4 {vt(vInv, 4)}, {vL16}, {srd(SWO)}, {sT0} offen offset:{i*1024}")
            self.vm_issue(("WARM",), 4)
        A(f"s_mov_b32 {sT}, 0")
        A(f"s_call_b64 {sRet}, L_init")
        n1, n2, n3 = self.simulate_loop()
        self.n = (n1, n2, n3)
        xs = {PUB_T, 14, 15, 28} | set(self.qbt)
        xs |= set(self.mid) | {t + 2 for t in self.mid}
        xmask = sum(1 << t for t in xs)
        A.label("L_loop")
        for c in range(6):
            self.body(c, n1, n2)
            self.istamp()
            A(f"s_bitcmp1_b32 0x{xmask:08x}, {sT}"); A(f"s_cbranch_scc1 L_x_{c}")
            A.label(f"L_c_{c}")
            A(f"v_cmp_lt_f32 vcc, {sThr}, {vMc}")
            A(f"s_cbranch_vccnz L_r_{c}")
            A.label(f"L_n_{c}")
            A(f"s_add_u32 {sT}, {sT}, 1")
        A("s_branch L_loop")
        for c in range(6):
            A.label(f"L_x_{c}"); A(f"s_call_b64 {sRet}, L_extras"); A(f"s_branch L_c_{c}")
            A.label(f"L_r_{c}"); A(f"s_call_b64 {sLink2}, L_rare"); A(f"s_branch L_n_{c}")
        A(".p2align 3")
        ssub = lambda S: [f"v_sub_f32 v{S+i}, v{S+i}, {vMx[(i//4)%2]}" for i in range(32)]
        A.label("L_init")
        A(f"s_mov_b32 {sFloor}, 0x{f2u(-1e30):08x}")
        self.rowmax(sFloor)
        for i in range(8): A(f"v_sub_f32 v{NEG+i}, 0, {vMx[i//4]}")
        for l in ssub(SA): A(l)
        A(f"v_mov_b32 {vMc}, 0")
        A(f"s_setpc_b64 {sRet}")
        A.label("L_rare")
        self.rowmax("0")
        for qb in range(2): A(f"v_exp_f32 {vF[qb]}, -{vMx[qb]}")
        for i in range(8): A(f"v_sub_f32 v{NEG+i}, v{NEG+i}, {vMx[i//4]}")
        for qb in range(2): A(f"v_mul_f32 v{LACC+4*qb}, {vF[qb]}, v{LACC+4*qb}")
        for i in range(64): A(f"v_mul_f32 v{O0+i}, {vF[(i//4)%2]}, v{O0+i}")
        A(f"s_bitcmp1_b32 {sT}, 0"); A("s_cbranch_scc1 L_rare_a")
        for l in ssub(SB): A(l)
        A(f"s_setpc_b64 {sLink2}")
        A.label("L_rare_a")
        for l in ssub(SA): A(l)
        A(f"s_setpc_b64 {sLink2}")
        def tree(ts):
            if len(ts) == 1:
                A(f"s_branch L_t{ts[0]}"); return
            if len(ts) == 2:
                A(f"s_cmp_eq_u32 {sT}, {ts[0]}"); A(f"s_cbranch_scc1 L_t{ts[0]}"); A(f"s_branch L_t{ts[1]}"); return
            h = len(ts) // 2; lab = A.newlabel("Ld")
            A(f"s_cmp_ge_u32 {sT}, {ts[h]}"); A(f"s_cbranch_scc1 {lab}")
            tree(ts[:h]); A.label(lab); tree(ts[h:])
        A.label("L_extras")
        tree(sorted(xs))
        for t in sorted(xs):
            if t == 28: continue
            A.label(f"L_t{t}")
            if t in self.qbt:
                A(f"v_mov_b32 {vF[0]}, {sC}"); A(f"v_mov_b32 {vF[1]}, {sC}")
                for l in self.qfin_ops(True, [self.qbt.index(t)], AQ2): A(l)
            if t == 14:
                A(f"v_cmp_lt_f32 vcc, {sThr}, {vMc}")
                A("s_cbranch_vccz L_x14b")
                A(f"s_call_b64 {sLink2}, L_rare")
                A.label("L_x14b")
                if self.qbt:
                    for k in range(32): A(f"v_accvgpr_mov_b32 a{AQ+k}, a{AQ2+k}")
                else:
                    A(f"v_mov_b32 {vF[0]}, {sC}"); A(f"v_mov_b32 {vF[1]}, {sC}")
                    for l in self.qfin_ops(True): A(l)
                for k in range(8): A(f"v_mov_b32 v{NEG+k}, 0")
                A(f"v_mov_b32 {vMc}, 0")
            if t == 15:
                self.epilogue(True)
                for i in range(32): A(f"v_mov_b64 {vt(O0+2*i,2)}, 0")
                A(f"v_mov_b32 v{LACC}, 0"); A(f"v_mov_b32 v{LACC+4}, 0")
                self.stamp(11)
                A("s_branch L_init")
                continue
            if t == PUB_T:
                A(f"s_waitcnt vmcnt({n3[t]})"); A("s_barrier")
                A(f"s_lshl_b32 {sT0}, {sBat}, 2")
                A(f"s_lshl_b32 {sT1}, {sB2}, 2")
                self.one_lane([f"buffer_atomic_add {vOne}, {vZero}, {srd(SDBG)}, {sT0} offen sc1",
                               f"buffer_atomic_add {vXv}, {vZero}, {srd(SDBG)}, {sT1} offen offset:64 sc1"], wave0=True)
            if t - 2 in self.mid:
                i = self.mid.index(t - 2)
                A("s_waitcnt vmcnt(16)")
                for nb in range(4):
                    A(f"v_xor_b32 {vTm}, {32*nb}, {vWr}"); A(f"v_add_u32 {vTm}, {(6 + i % 4) * T}, {vTm}")
                    for hf in range(2): A(f"ds_read_b64_tr_b16 {at(AFREE + 16*i + 4*nb + 2*hf, 2)}, {vTm} offset:{hf*2048}")
                A("s_waitcnt lgkmcnt(0)")
            if t in self.mid:
                self.emit_groups(self.tile_Wo(6 + self.mid.index(t) % 4)); self.parks.append(("reg", self.mid.index(t)))
            A(f"s_setpc_b64 {sRet}")
        A.label("L_t28")
        self.final_bodies()
        self.stamp(12)
        self.tail()
        self.hstamp(14)
        if self.hdbg: A("s_waitcnt vmcnt(0)")
        self.hstamp(15)
        self.dump_stamps()
        A.label("L_end")
        A("s_endpgm")
        A.label("L_codeend")

    def tail(self):
        A = self.A; NA = self.nahead; G = self.wgrp
        vm = []
        def need(tag): return min(63, len(vm) - 1 - max(i for i, q in enumerate(vm) if q == tag)) if tag in vm else 63
        pollW = f"buffer_load_dword {vPoll}, {vPoff}, {srd(SDBG)}, 0 offen sc1"
        vFl, vPol2, vL8 = "v28", "v29", "v30"
        vB = [[f"v{P0 + i}" for i in range(8)], [f"v{P0 + 8 + i}" for i in range(8)], [f"v{240 + i}" for i in range(8)]]
        slot_of = {p: k for p, (kind, k) in enumerate(self.parks)}
        free = [k for k in (3, 4, 1, 5, 0, 2, 6, 7, 8, 9) if k not in slot_of.values()]
        pollB = f"buffer_load_dword {vPol2}, {vFl}, {srd(SWS)}, {sFlagC} offen sc1"
        A(f"v_and_b32 {vFl}, 3, v2"); A(f"v_lshlrev_b32 {vFl}, 2, {vFl}")
        A(pollW); vm.append("poll")
        self.epilogue(False); vm += ["OB"] * 8
        self.stamp(13)
        for k, d in enumerate((-LV, 4 * T - LV, 8 * T - LV)):
            for db in range(8): A(f"v_add_u32 {vB[k][db]}, {d}, {vVa[db]}")
        A(f"v_add_u32 {vL8}, 8192, {vL16}")
        A(f"s_waitcnt vmcnt({need('poll')})")
        A("s_barrier")
        def wgroups(p):
            slot_of[p] = free.pop(0)
            return [(x, ("W", p)) for x in self.tile_Wo(slot_of[p])]
        AF = lambda p, u, qb: at(AFREE + 16 * (p % 4) + 8 * u + 4 * qb, 4)
        def agroups(p):
            g = [[f"buffer_load_dwordx4 {AF(p, u, qb)}, {vL8 if u else vL16}, {srd(SWS)}, {sAoff} offen offset:{qb*1024}{self.ldf}"] for u in range(2) for qb in range(2)]
            g[0] = [f"s_add_u32 {sAoff}, {sAreal}, {p * 16384}"] + g[0]
            return [(x, ("A", p)) for x in g]
        def emit(g):
            for l in g[0]: A(l)
            vm.append(g[1])
        wn = len(self.parks)
        while free:
            for g in wgroups(wn): emit(g)
            wn += 1
        self.spin("L_c1", f"v_and_b32 {vTm}, 0xff, {vPoll}|v_cmp_gt_u32 vcc, 16, {vTm}", pollW, 2)
        A(f"v_readlane_b32 {sT3}, {vPoll}, 1")
        A(f"s_waitcnt vmcnt({need('OB')})")
        self.one_lane([f"buffer_store_dword {vOne}, {vZero}, {srd(SWS)}, {sFlagP} offen sc1"]); vm.append("fl")
        self.stamp(14)
        A(pollB); vm.append("pb")
        self.stamp(15)
        A(f"s_waitcnt vmcnt({need('pb')})")
        self.spin("L_c2", f"v_cmp_ne_u32 vcc, 1, {vPol2}", pollB, self.slp)
        self.stamp(18)
        for p in range(3):
            for g in agroups(p): emit(g)
        seen = set(range(len(self.parks)))
        plan_slots = dict(slot_of)
        fr2 = list(free); order = sorted(slot_of)
        for p in range(wn, 16): plan_slots[p] = plan_slots[p - 10]
        units = []
        for p in range(16):
            for i in range(16):
                u, db = i // 8, i % 8; m = 16 * p + i; fr = AVF + 4 * (m % 8); sl = plan_slots[p]
                D = lambda qb: at(AACC + 8 * db + 4 * qb, 4)
                off = (sl % 4) * T + u * 8192
                units.append(([f"{MF} {D(qb)}, {at(fr,4)}, {AF(p, u, qb)}, {'0' if p == 0 and u == 0 else D(qb)}" for qb in range(2)], [("w", m)],
                              [(f"ds_read_b64_tr_b16 {at(fr,2)}, {vB[sl // 4][db]} offset:{off}", ("w", m)),
                               (f"ds_read_b64_tr_b16 {at(fr+2,2)}, {vB[sl // 4][db]} offset:{off + 4096}", ("w", m))]))
        bp = 16 - NA
        gaps = [[] for _ in range(512)]
        pend = []
        def mid(m):
            nonlocal wn
            p, i = m // 16, m % 16
            if i == 1 and p + 3 < 16: pend.extend(agroups(p + 3))
            if i == bp:
                issue = wn < 16 and wn - 10 <= p - 1
                vis = p + 1 < 16 and p + 1 not in seen
                if vis:
                    A(f"s_waitcnt vmcnt({need(('W', p + 1))})")
                    for q in range(16):
                        if ("W", q) in vm and need(("W", q)) >= need(("W", p + 1)): seen.add(q)
                if issue or vis: A("s_barrier")
                if issue:
                    free.append(slot_of[wn - 10]); pend.extend(wgroups(wn)); wn += 1
            if i == 15 and p < 15: A(f"s_waitcnt vmcnt({need(('A', p + 1))})")
            if pend and i % 2 == 1: emit(pend.pop(0))
        A.lds_reset()
        for m in range(NA):
            for r in units[m][2]: A.lds(*r)
        A(f"s_waitcnt vmcnt({need(('A', 0))})")
        self.stream(units, 256, NA, G, gaps, mid)
        assert slot_of == plan_slots and not pend
        self.stamp(16)
        A(f"v_mov_b32 v3, {vL16}"); A(f"v_add_u32 v4, {sW4K}, {vL16}")
        A("v_and_b32 v5, 15, v2"); A("v_lshrrev_b32 v6, 4, v2"); A("v_lshlrev_b32 v5, 10, v5"); A("v_lshl_add_u32 v5, v6, 4, v5")
        A(f"v_lshrrev_b32 v7, 2, {vFl}")
        A(f"s_cmp_eq_u32 {sW}, {sKs}"); A("s_cbranch_scc1 L_own")
        if self.lx:
            A(f"s_cmp_eq_u32 {sT3}, {sA2}"); A("s_cbranch_scc1 L_near")
        for fl, lab in ((self.stf, None), ("", "L_near")):
            if lab and not self.lx: continue
            if lab: A.label(lab)
            for f in range(16):
                A(f"buffer_store_dwordx4 {at(AACC + 4*f, 4)}, {vL16}, {srd(SWS)}, {sPXs} offen offset:{(f % 4) * 1024}{fl}")
                if f % 4 == 3: A(f"s_add_u32 {sPXs}, {sPXs}, 4096")
            A("s_barrier")
            A("s_waitcnt vmcnt(0)")
            self.one_lane([f"buffer_store_dword {vOne}, {vZero}, {srd(SWS)}, {sXFs} offen{' sc1' if fl else self.nearflag}"])
            A("s_branch L_join")
        A.label("L_own")
        A("s_barrier")
        for f in range(16):
            A(f"ds_write_b128 v3, {at(AACC + 4*f, 4)} offset:{f * 1024}")
            if f % 8 == 7: A("s_waitcnt lgkmcnt(0)")
        A.label("L_join")
        A("s_barrier")
        for f in range(4): A(f"ds_read_b128 {vt(64 + 4*f, 4)}, v4 offset:{f * 1024}")
        pollX = f"buffer_load_dword {vPol2}, {vFl}, {srd(SWS)}, {sXFr} offen sc1"
        A(f"v_cmp_ne_u32 s[96:97], {sKs}, v7")
        A(pollX); A("s_waitcnt vmcnt(0)")
        A(f"s_mov_b32 {sSpin}, 0x40000")
        A.label("L_c3")
        A(f"v_cmp_ne_u32 vcc, 1, {vPol2}")
        A("s_and_b64 vcc, vcc, s[96:97]")
        A("s_cbranch_vccz L_c3_ok")
        A(f"s_sub_u32 {sSpin}, {sSpin}, 1"); A("s_cbranch_scc1 L_c3_ok")
        A(pollX); A("s_waitcnt vmcnt(0)")
        A("s_branch L_c3")
        A.label("L_c3_ok")
        self.stamp(19)
        for k in range(1, 4):
            A(f"s_add_u32 {sT0}, {sKs}, {k}"); A(f"s_and_b32 {sT0}, {sT0}, 3"); A(f"s_lshl_b32 {sT0}, {sT0}, 14"); A(f"s_add_u32 {sT0}, {sT0}, {sPXr}")
            for f in range(4): A(f"buffer_load_dwordx4 {vt(64 + 16*k + 4*f, 4)}, {vL16}, {srd(SWS)}, {sT0} offen offset:{f * 1024}{self.ldf}")
        A("s_waitcnt vmcnt(8) lgkmcnt(0)")
        for i in range(16): A(f"v_add_f32 v{64+i}, v{64+i}, v{80+i}")
        A("s_waitcnt vmcnt(4)")
        for i in range(16): A(f"v_add_f32 v{64+i}, v{64+i}, v{96+i}")
        A("s_waitcnt vmcnt(0)")
        for i in range(16): A(f"v_add_f32 v{64+i}, v{64+i}, v{112+i}")
        for qb in range(2):
            for d in range(2):
                for j in range(2): A(f"v_cvt_pk_bf16_f32 v{80 + 4*qb + 2*d + j}, v{64 + 8*d + 4*qb + 2*j}, v{64 + 8*d + 4*qb + 2*j + 1}")
        w0, w1 = self.widen(80, 82), self.widen(84, 86)
        A("s_nop 0")
        for l in w0[0] + w1[0] + w0[1] + w1[1]: A(l)
        A(f"s_add_u32 {sT0}, {sOutO}, 16384")
        A(f"buffer_store_dwordx4 {vt(80,4)}, v5, {srd(SOUT)}, {sOutO} offen")
        A(f"buffer_store_dwordx4 {vt(84,4)}, v5, {srd(SOUT)}, {sT0} offen")

    def dump_stamps(self):
        if not self.stamps: return
        A = self.A
        A("s_waitcnt vmcnt(0)")
        self.stamp(17)
        A("s_memrealtime s[100:101]")
        A("s_getreg_b32 s3, hwreg(HW_REG_XCC_ID)")
        A("s_waitcnt lgkmcnt(0)")
        A(f"v_writelane_b32 v{VST}, s98, 61"); A(f"v_writelane_b32 v{VST}, s100, 62"); A(f"v_writelane_b32 v{VST}, s3, 63")
        A(f"s_lshl_b32 {sT1}, s2, 2"); A(f"s_add_u32 {sT1}, {sT1}, {sW}"); A(f"s_mul_i32 {sT1}, {sT1}, 768")
        A(f"s_add_u32 {sT1}, {sT1}, {WS_STAMP}")
        A(f"v_lshrrev_b32 v3, 2, {vL16}")
        for k in range(3): A(f"buffer_store_dword v{VST+k}, v3, {srd(SWS)}, {sT1} offen offset:{256*k}")

HDR = open("standalone__mha_block_cached__near_ridge.s.ref").read().split("; Override")[0]
def desc(name):
    return f""".amdhsa_kernel {name}
  .amdhsa_next_free_vgpr 512
  .amdhsa_next_free_sgpr 102
  .amdhsa_accum_offset 256
  .amdhsa_group_segment_fixed_size 0
  .amdhsa_kernarg_size 64
  .amdhsa_user_sgpr_count 2
  .amdhsa_user_sgpr_kernarg_segment_ptr 1
  .amdhsa_system_sgpr_workgroup_id_x 1
.end_amdhsa_kernel
"""
def build(path, verbose=False, cls=None, **kw):
    g = (cls or Gen)(**kw); g.kernel()
    la = align8(g.A.lines, g.nops)
    bad = check_hazards(la)
    print(path, "hazards:", bad, "lines", len(la))
    if verbose: print(g.n)
    s = HDR + "; @launch grid=(256,1,1) block=(256,1,1) lds=163840\n"
    s += '.amdgcn_target "amdgcn-amd-amdhsa--gfx950"\n.text\n'
    s += f".globl {KN}\n.p2align 8\n.type {KN},@function\n{KN}:\n" + "\n".join(la) + "\n"
    s += '.section .rodata,"a"\n.p2align 6\n' + desc(KN)
    open(path, "w").write(s)
if __name__ == "__main__":
    build("v22.s")
    build("v22_c.s", stamps=True)
    build("v22f.s", nearflag=" sc1")
    build("v22n.s", nmax=63)
```

```python
import sys, math, struct, itertools
sys.path.insert(0, "work")
from asmlib import Asm, check_hazards, align8

KN = "standalone__mha_block_cached__near_ridge_kernel"
def f2u(x): return struct.unpack("<I", struct.pack("<f", x))[0]
CSC = math.log2(math.e) / math.sqrt(128.0)
T = 16384
LK, LV = 0, 3 * T
WS_FLAG = 16 << 20
WS_STAMP = 21 << 20
WS_SIZE = 22 << 20
SK, SV, SX, SWQ, SWO, SWS, SOUT, SDBG = 4, 8, 12, 16, 20, 24, 28, 32
def srd(b): return f"s[{b}:{b+3}]"
sW, sW4K, sKoff, sVoff, sW2K, sWP, sThr, sT, sC, sQw, sFloor, sQa = [f"s{i}" for i in range(36, 48)]
sXoff, sWoff, sOT, sT0, sT1, sT2 = [f"s{i}" for i in range(48, 54)]
sLink = "s[54:55]"; sRet = "s[92:93]"; sLink2 = "s[94:95]"
sAoff, sWToff, sB2, sT3, sRot = [f"s{i}" for i in range(56, 61)]
sTi, sXb, sWb, sAreal, sFlagP, sFlagC, sBat, sSpin = [f"s{i}" for i in range(80, 88)]
SCODE = 88
vWs = ["v3", "v4", "v5", "v6"]; vWr = "v7"
vInv = 8
vPoll = "v12"; vPoff = "v13"; vZero = "v14"; vOne = "v15"
vKa = [f"v{i}" for i in range(16, 20)]
vVa = [f"v{i}" for i in range(20, 28)]
vKd = [f"v{i}" for i in range(28, 32)]
vMx = ["v34", "v35"]; vMc = "v36"; vTm = "v37"; vF = ["v38", "v39"]; vL16 = "v40"
vVd = ["v32", "v33", "v240", "v241"]
VST = 41
ONES, LACC, NEG = 44, 48, 56
O0, SA, SB, P0, HELD = 64, 128, 160, 192, 208
vWa = [f"v{i}" for i in range(244, 252)]; vWd = [f"v{i}" for i in range(252, 256)]
vXa = ["v160", "v161"]; vXd = [f"v{i}" for i in range(162, 166)]
LX = 6 * T
QT = [1, 3, 5, 7, 9, 11, 12, 13]
def XR(pi, s, qb):
    k = 16 * pi + 8 * s + 4 * qb
    return at(160 + k, 4) if k < 96 else vt(208 + k - 96, 4)
def tmp(i): return f"v{176 + i}"
AQ, AACC, AKF, AVF, AFREE = 0, 32, 96, 128, 160
def vt(b, n): return f"v[{b}:{b+n-1}]"
def at(b, n): return f"a[{b}:{b+n-1}]"
MF = "v_mfma_f32_16x16x32_bf16"
PUB_T = 2

class Gen:
    def __init__(self, stamps=False, nt=" nt", split=24, wgrp=4, nahead=7, latepos=(18, 22, 26, 31), stf=" sc1", ldf=" sc1",
                 kvpos=(0, 2, 5, 8), dbg=(), rotO=3, rot=2, aahead=4, wof="", oa_t=29, warm=True, epark=False, lpark=True, nreg=9, lim=12, hdbg=False, nmax=63, rotW=8, k01=1, qt=None, vpark=True, mid=(), fin=(), early_poll=True, fsp=3, npk=9, wfirst=3, pg=4, wall=True, nops=False, exact_from=None, exact_to=27):
        self.A = Asm(); self.vm = []
        self.__dict__.update({k: v for k, v in locals().items() if k != "self"})
        self.latepos = list(latepos); self.wcnt = 0; self.parks = []; self.mid = list(mid); self.fin = list(fin); self.QT = QT if qt is None else qt; self.acnt = 0
    def vm_issue(self, tag, n): self.vm += [tag] * n
    def vm_need(self, *tags):
        idx = max(i for i, q in enumerate(self.vm) if q in tags)
        return min(63, len(self.vm) - 1 - idx)
    def stamp(self, k):
        if self.stamps:
            self.A("s_memtime s[96:97]"); self.A("s_waitcnt lgkmcnt(0)"); self.A(f"v_writelane_b32 v{VST}, s96, {k}")
    def hstamp(self, k):
        if not self.hdbg: return
        A = self.A
        A("s_memrealtime s[100:101]"); A("s_waitcnt lgkmcnt(0)"); A(f"v_writelane_b32 v{VST}, s100, {k}")
        if k == 15:
            lab = A.newlabel("Lh")
            A(f"s_cmp_eq_u32 s2, {self.hdbg - 1}"); A(f"s_cbranch_scc0 {lab}"); A(f"s_cmp_eq_u32 {sW}, 0"); A(f"s_cbranch_scc0 {lab}")
            A(f"v_readlane_b32 s100, v{VST}, 0"); A("s_nop 3"); A(f"v_subrev_u32 v{VST}, s100, v{VST}"); A(f"v_lshrrev_b32 v{VST+1}, 2, {vL16}")
            A("s_mov_b64 exec, 0xffff"); A(f"buffer_store_dword v{VST}, v{VST+1}, {srd(SDBG)}, 0 offen"); A("s_mov_b64 exec, -1")
            A.label(lab)
    def istamp(self):
        if self.hdbg:
            A = self.A; lab = A.newlabel("Lh")
            A(f"s_and_b32 s96, {sT}, 3"); A("s_cmp_eq_u32 s96, 3"); A(f"s_cbranch_scc0 {lab}")
            A("s_memrealtime s[100:101]"); A(f"s_lshr_b32 s96, {sT}, 2"); A("s_add_u32 m0, s96, 3"); A("s_waitcnt lgkmcnt(0)")
            A(f"v_writelane_b32 v{VST}, s100, m0")
            A.label(lab)
        if not self.stamps: return
        A = self.A
        A("s_memtime s[96:97]"); A("s_memrealtime s[100:101]"); A(f"s_add_u32 m0, {sT}, 32"); A("s_waitcnt lgkmcnt(0)")
        A(f"v_writelane_b32 v{VST+2}, s96, m0"); A(f"v_writelane_b32 v{VST+1}, s100, m0")
    def dma(self, voff, srdb, soff, imm, flags=""):
        return f"buffer_load_dwordx4 {voff}, {srd(srdb)}, {soff} offen offset:{imm}{flags} lds"
    def tile_KV(self, isK, slot):
        off, base, voffs, srdb = (sKoff, LK, vKd, SK) if isK else (sVoff, LV, vVd, SV)
        g = [[self.dma(voffs[i], srdb, off, i * 1024, self.nt)] for i in range(4)]
        g[0] = [f"s_add_u32 m0, {sW4K}, {base + slot*T}", "@M0"] + g[0]
        g[3] = g[3] + [f"s_add_u32 {off}, {off}, {T}"]
        return g
    def tile_X(self, base):
        g = [[self.dma(vXd[i], SX, sXoff, i * 1024)] for i in range(4)]
        g[0] = [f"s_lshl_b32 {sXoff}, {sTi}, 7", f"s_add_u32 m0, {sW4K}, {base}", f"s_add_u32 {sXoff}, {sXoff}, {sXb}"] + g[0]
        return g
    def tile_W(self, base):
        g = [[self.dma(vWd[i], SWQ, sWoff, i * 1024)] for i in range(4)]
        g[0] = [f"s_lshl_b32 {sWoff}, {sTi}, 19", f"s_add_u32 m0, {sW4K}, {base}", f"s_add_u32 {sWoff}, {sWoff}, {sWb}"] + g[0]
        g[1] = [f"s_add_u32 {sTi}, {sTi}, 1"] + g[1]
        g[2] = [f"s_and_b32 {sTi}, {sTi}, 7"] + g[2]
        return g
    def tile_XW(self, xbase, wbase): return self.tile_X(xbase) + self.tile_W(wbase)
    def q_units(self, pi, woff, head_b, m0):
        un = []
        for k in range(16):
            s, t = k // 8, k % 8
            m = m0 + k; fr = AVF + 4 * (m % 8)
            D = lambda qb: at(AACC + 8*t + 4*qb, 4) if head_b else vt(O0 + 8*t + 4*qb, 4)
            un.append(([f"{MF} {D(qb)}, {at(fr,4)}, {XR(pi, s, qb)}, {'0' if pi == 0 and s == 0 else D(qb)}" for qb in range(2)],
                       [("w", m), ("x", pi, s)],
                       [(f"ds_read_b64_tr_b16 {at(fr,2)}, {vWa[t]} offset:{woff + s*8192}", ("w", m)),
                        (f"ds_read_b64_tr_b16 {at(fr+2,2)}, {vWa[t]} offset:{woff + s*8192 + 1024}", ("w", m))]))
        return un
    def tile_Wo(self, slot):
        g = [[self.dma(vWs[i], SWO, sWToff, i * 1024, self.wof)] for i in range(4)]
        g[0] = [f"s_lshl_b32 {sWToff}, {sQw}, 15", f"s_add_u32 m0, {sW4K}, {slot * T}", f"s_add_u32 {sWToff}, {sWToff}, {sWP}"] + g[0]
        for i, l in enumerate(self.nextq(sQw, self.wcnt)): g[1 + i % 3] = g[1 + i % 3] + [l] if i >= 3 else [l] + g[1 + i]
        self.wcnt += 1
        return g
    def nextq(self, s, cnt):
        if self.rotO != 2: return [f"s_add_u32 {s}, {s}, 1", f"s_and_b32 {s}, {s}, 31"]
        W = self.rotW
        if (cnt + 1) % W == 0: return [f"s_add_u32 {s}, {sRot}, {cnt + 1}"]
        return [f"s_add_u32 {s}, {s}, 1", f"s_and_b32 {s}, {s}, {W - 1}", f"s_add_u32 {s}, {s}, {cnt // W * W}"]
    def emit_groups(self, groups):
        for g in groups:
            for l in g: self.A("s_nop 0" if l == "@M0" else l)
    @staticmethod
    def cost(l):
        if l.startswith("v_exp"): return 8
        if l.startswith("buffer_"): return 16
        return 4
    def spread(self, fill, gaps, lo, hi, base):
        tot = sum(self.cost(l) for l in fill) + sum(base[lo:hi])
        per = tot / (hi - lo); g = lo; acc = 0.0
        k = 0
        for g in range(lo, hi):
            acc += base[g]; tgt = per * (g - lo + 1)
            while k < len(fill) and (acc + self.cost(fill[k]) / 2 <= tgt or g == hi - 1):
                gaps[g].append(fill[k]); acc += self.cost(fill[k]); base[g] += self.cost(fill[k]); k += 1
    def exp_ops(self, S, lo, hi):
        ops = []
        ex = lambda i: f"v_exp_f32 v{S+i}, v{S+i}"
        def cvt(i):
            kb, qb, r = i // 8, (i // 4) % 2, i % 4
            return f"v_cvt_pk_bf16_f32 v{P0 + 8*(kb//2) + 4*qb + 2*(kb%2) + r//2}, v{S+i}, v{S+i+1}"
        prs = list(range(lo, hi, 2))
        for k, i in enumerate(prs):
            ops += [ex(i), ex(i + 1)]
            if k > 0: ops += [cvt(prs[k-1])]
        ops += ["s_nop 0", cvt(prs[-1])]
        return ops
    def max_ops(self, S):
        ops = []
        for qb in range(2):
            r = [S + 8 * kb + 4 * qb + j for kb in range(4) for j in range(4)]
            o = [f"v_max3_f32 {vMx[qb]}, v{r[0]}, v{r[1]}, v{r[2]}"]
            for i in range(3, 15, 2): o.append(f"v_max3_f32 {vMx[qb]}, {vMx[qb]}, v{r[i]}, v{r[i+1]}")
            o.append(f"v_max_f32 {vMx[qb]}, {vMx[qb]}, v{r[15]}")
            ops.append(o)
        out = [x for pr in zip(*ops) for x in pr]
        out.append(f"v_max_f32 {vMc}, {vMx[0]}, {vMx[1]}")
        return out
    def qk_units(self, Sn, slot, tag="k"):
        un = []
        for i in range(16):
            kb, s = i // 4, i % 4
            fr = AKF + 4 * (i % 8)
            ms = [f"{MF} {vt(Sn+8*kb+4*qb,4)}, {at(fr,4)}, {at(AQ+16*qb+4*s,4)}, {vt(NEG+4*qb,4) if s == 0 else vt(Sn+8*kb+4*qb,4)}" for qb in range(2)]
            un.append((ms, [(tag, i)], [(f"ds_read_b128 {at(fr,4)}, {vKa[s]} offset:{slot*T + kb*4096}", (tag, i))]))
        return un
    def pv_units(self, slot):
        un = []
        for i in range(16):
            u, db = i // 8, i % 8
            fr = AVF + 4 * (i % 8)
            ms = [f"{MF} {vt(O0+8*db+4*qb,4)}, {at(fr,4)}, {vt(P0+8*u+4*qb,4)}, {vt(O0+8*db+4*qb,4)}" for qb in range(2)]
            un.append((ms, [("v", i)], [(f"ds_read_b64_tr_b16 {at(fr,2)}, {vVa[db]} offset:{slot*T + u*8192}", ("v", i)),
                                          (f"ds_read_b64_tr_b16 {at(fr+2,2)}, {vVa[db]} offset:{slot*T + u*8192 + 4096}", ("v", i))]))
        return un
    def stream(self, units, nun, NA, G, gaps, mid, extra=None):
        A = self.A
        for i in range(nun):
            if i % G == 0: A.lds_wait(*sum((units[j][1] for j in range(i, min(nun, i + G))), []))
            rds = units[i + NA][2] if i + NA < len(units) else []
            A(units[i][0][0])
            mid(i)
            if rds: A.lds(*rds[0])
            for l in gaps[2 * i]: A(l)
            A(units[i][0][1])
            for r in rds[1:]: A.lds(*r)
            for l in gaps[2 * i + 1]: A(l)
            if extra and i in extra: A(extra[i])
    def place(self, gaps, base, groups, positions):
        for g, p in zip(groups, positions):
            if "@M0" in g:
                k = g.index("@M0"); gaps[p - 1] = gaps[p - 1] + g[:k]; base[p - 1] += 4 * k; g = g[k + 1:]
            gaps[p] = gaps[p] + g; base[p] += sum(self.cost(l) for l in g)
    def simulate_loop(self):
        n1, n2, n3 = {}, {}, {}
        for t in range(29):
            n1[t] = self.vm_need(("V", t))
            self.vm_issue(("V", t + 2), 4)
            n2[t] = self.vm_need(("K", t + 2)) if t < 30 else 63
            for i, tq in enumerate(self.QT):
                if tq == t: n2[t] = min(n2[t], self.vm_need(("E", i)))
            self.vm_issue(("K", t + 4), 4)
            for i, tq in enumerate(self.QT[:-2]):
                if tq == t: self.vm_issue(("E", i + 2), 4)
            if t == PUB_T: n3[t] = self.vm_need(("FZ",))
        return n1, n2, n3
    def aload(self, R, j, soff):
        return [f"buffer_load_dwordx4 {R(4*j,4)}, {vL16}, {srd(SWS)}, {soff} offen offset:{(j%4)*1024}{self.ldf}"]
    def body(self, c, n1, n2):
        A = self.A
        par = c % 2; NA = self.nahead; G = self.wgrp
        S, Sn = (SA, SB) if par == 0 else (SB, SA)
        sel = lambda d: min(self.nmax, min(v for t, v in d.items() if t % 6 == c))
        units = self.qk_units(Sn, (c + 1) % 3) + self.pv_units(c % 3) + self.qk_units(S, (c + 2) % 3, "kn")[:NA]
        bp = 16 - NA
        gaps = [[] for _ in range(64)]; base = [0] * 64
        for i in range(32):
            nr = len(units[i + NA][2])
            base[2 * i] += 4; base[2 * i + 1] += 4 * (nr - 1)
            if (i + 1) % G == 0: base[2 * i + 1] += 4
            if i % 16 == bp: base[2 * i] += 12
        self.place(gaps, base, self.tile_KV(False, (c + 2) % 3), [p + 1 for p in self.latepos[:3]] + [31])
        self.place(gaps, base, self.tile_KV(True, (c + 1) % 3), [32 + p + 1 for p in self.latepos[:3]] + [63])
        self.spread(self.exp_ops(S, 0, self.split), gaps, 0, 32, base)
        self.spread(self.exp_ops(S, self.split, 32), gaps, 32, 32 + self.lim, base)
        self.spread(self.max_ops(Sn), gaps, 32 + self.lim, 64, base)
        lm = lambda u, qb: f"{MF} {vt(LACC+4*qb,4)}, {vt(ONES,4)}, {vt(P0+8*u+4*qb,4)}, {vt(LACC+4*qb,4)}"
        extra = {16 + 3: lm(0, 0), 16 + 7: lm(0, 1), 16 + 11: lm(1, 0), 16 + 15: lm(1, 1)}
        def mid(i):
            if i % 16 == bp:
                A(f"s_waitcnt vmcnt({sel(n1) if i < 16 else sel(n2)})"); A("s_barrier")
        A.lds_q = [("k", i) for i in range(NA)]
        self.stream(units, 32, NA, G, gaps, mid, extra)
    def final_bodies(self):
        A = self.A; NA = self.nahead; G = self.wgrp; bp = 16 - NA
        lm = lambda u, qb: f"{MF} {vt(LACC+4*qb,4)}, {vt(ONES,4)}, {vt(P0+8*u+4*qb,4)}, {vt(LACC+4*qb,4)}"
        bb29, ba30, bb30, ba31 = 32 + 2 * bp + 1, 64 + 2 * bp + 1, 96 + 2 * bp + 1, 128
        todo = []
        for v in range(4):
            for qb in range(2):
                todo.append((33, [self.ostore(HELD + 8*v + 4*qb, v, qb)] + ([f"s_add_u32 {sOT}, {sOT}, 4096"] if qb else []), "OA"))
        for slot, first in [(2, 33), (6, 33), (7, 33), (8, 33), (9, 33), (0, bb29), (5, ba30), (1, bb30), (3, ba31)][:self.npk]:
            todo.append((first, slot, None))
        plan = {}; pos = 33
        for first, what, tag in todo:
            groups = [what] if tag else self.tile_Wo(what)
            if not tag:
                if max(pos, first) + 3 * self.fsp >= 158: self.wcnt -= 1; break
                self.parks.append(("lds", what))
            for g in groups:
                pos = max(pos, first)
                plan[pos] = (g, tag or "PK"); pos += self.fsp
        def run(t, units, nun, off, exps, waits, extra):
            ng = 2 * nun
            gaps = [[] for _ in range(ng)]; base = [0] * ng; vmat = {}
            for i in range(nun):
                nr = len(units[i + NA][2]) if i + NA < len(units) else 0
                base[2 * i] += 4 * min(1, nr); base[2 * i + 1] += 4 * max(0, nr - 1)
            if t == 29:
                ps = [p + 1 for p in self.latepos[:3]] + [31]
                self.place(gaps, base, self.tile_KV(False, 1), ps)
                for p in ps: vmat[p] = ("V", 31)
            for p, (g, tag) in plan.items():
                if off <= p < off + ng:
                    gaps[p - off] += g; base[p - off] += sum(self.cost(l) for l in g); vmat[p - off] = tag
            for ops, lo, hi in exps: self.spread(ops, gaps, lo, hi, base)
            done = [0]
            def log(upto):
                for p in range(done[0], upto):
                    if p in vmat: self.vm_issue(vmat[p], 1)
                done[0] = upto
            def mid(i):
                log(2 * i)
                if i in waits:
                    if waits[i]: A(f"s_waitcnt vmcnt({self.vm_need(waits[i])})")
                    A("s_barrier")
            self.stream(units, nun, NA, G, gaps, mid, extra)
            log(ng)
        def check(k):
            A(f"v_cmp_lt_f32 vcc, {sThr}, {vMc}"); A(f"s_cbranch_vccz L_f{k}"); A(f"s_call_b64 {sLink2}, L_rare"); A.label(f"L_f{k}")
            A(f"s_add_u32 {sT}, {sT}, 1")
        ex2 = {16 + 3: lm(0, 0), 16 + 7: lm(0, 1), 16 + 11: lm(1, 0), 16 + 15: lm(1, 1)}
        check(28)
        for t in (29, 30):
            c = t % 6; S, Sn = (SA, SB) if c % 2 == 0 else (SB, SA)
            units = self.qk_units(Sn, (c + 1) % 3) + self.pv_units(c % 3) + (self.qk_units(S, (c + 2) % 3, "kn")[:NA] if t == 29 else [])
            A.lds_q = [("k", i) for i in range(NA)]
            run(t, units, 32, 64 * (t - 29),
                [(self.exp_ops(S, 0, self.split), 0, 32), (self.exp_ops(S, self.split, 32), 32, 32 + self.lim), (self.max_ops(Sn), 32 + self.lim, 64)],
                {bp: ("V", t), 16 + bp: ("K", 31) if t == 29 else None}, ex2)
            self.istamp()
            check(t)
        units = self.pv_units(1)
        e = self.exp_ops(SB, 0, 32)
        k0 = next(i for i, l in enumerate(e) if l.startswith(f"v_cvt_pk_bf16_f32 v{P0 + 7},")) + 1
        for l in e[:k0 - 6]: A(l)
        A(f"s_waitcnt vmcnt({self.vm_need(('V', 31))})"); A("s_barrier")
        A.lds_reset()
        for i in range(NA):
            for r in units[i][2]: A.lds(*r)
        for l in e[k0 - 6:k0]: A(l)
        A("s_nop 0")
        run(31, units, 16, 128, [(e[k0:], 0, 13)], {}, {3: lm(0, 0), 7: lm(0, 1), 11: lm(1, 0), 15: lm(1, 1)})
        self.istamp()
    def widen(self, a, b):
        return [[f"v_permlane32_swap_b32 v{a}, v{b}", f"v_permlane32_swap_b32 v{a+1}, v{b+1}"],
                [f"v_permlane16_swap_b32 v{a}, v{b}", f"v_permlane16_swap_b32 v{a+1}, v{b+1}"]]
    def qfin_ops(self, from_acc):
        pair = vt(int(vF[0][1:]), 2); out = []
        for s in range(4):
            t = P0 if from_acc else O0 + 16 * s
            if from_acc: out += [f"v_accvgpr_read_b32 v{t+j}, a{AACC+16*s+j}" for j in range(16)]
            out += [f"v_pk_mul_f32 {vt(t+2*j,2)}, {vt(t+2*j,2)}, {pair}" for j in range(8)]
            for q4 in range(4): out += [f"v_cvt_pk_bf16_f32 v{t+4*q4+j}, v{t+4*q4+2*j}, v{t+4*q4+2*j+1}" for j in range(2)]
            w0, w1 = self.widen(t, t + 8), self.widen(t + 4, t + 12)
            out += ["s_nop 0"] + w0[0] + w1[0] + w0[1] + w1[1]
            for qb in range(2):
                for j, r in enumerate((t + 4*qb, t + 4*qb + 1, t + 8 + 4*qb, t + 8 + 4*qb + 1)):
                    out.append(f"v_accvgpr_write_b32 a{AQ+16*qb+4*s+j}, v{r}")
        return out
    def zero_acc(self): return [f"v_accvgpr_write_b32 a{AACC+i}, 0" for i in range(64)]
    def epilogue(self, hold):
        A = self.A
        A("s_nop 4")
        for qb in range(2):
            A(f"v_rcp_f32 v{vInv+2*qb}, v{LACC+4*qb}"); A(f"v_rcp_f32 v{vInv+2*qb+1}, v{LACC+4*qb}")
        A("s_nop 0")
        for v in range(4):
            for qb in range(2):
                src = [O0 + 16*v + 4*qb, O0 + 16*v + 8 + 4*qb]
                dst = HELD + 8*v + 4*qb if hold else SA + 8*v + 4*qb
                for b in src:
                    for j in range(2): A(f"v_pk_mul_f32 {vt(b+2*j,2)}, {vt(b+2*j,2)}, {vt(vInv+2*qb,2)}")
                for k, b in enumerate(src):
                    for j in range(2): A(f"v_cvt_pk_bf16_f32 v{dst+2*k+j}, v{b+2*j}, v{b+2*j+1}")
                if not hold: A(self.ostore(dst, v, qb))
            if not hold: A(f"s_add_u32 {sOT}, {sOT}, 4096")
    def ostore(self, reg, v, qb):
        return f"buffer_store_dwordx4 {vt(reg,4)}, {vL16}, {srd(SWS)}, {sOT} offen offset:{qb*1024}{self.stf}"
    def store_held(self):
        for v in range(4):
            for qb in range(2): self.A(self.ostore(HELD + 8*v + 4*qb, v, qb))
            self.A(f"s_add_u32 {sOT}, {sOT}, 4096")
    def make_srd(self, b, p, size):
        A = self.A
        A(f"s_mov_b32 s{b}, s{p}"); A(f"s_mov_b32 s{b+1}, s{p+1}")
        A(f"s_mov_b32 s{b+2}, 0x{size:x}"); A(f"s_mov_b32 s{b+3}, 0x20000")
    def one_lane(self, lines, wave0=False):
        A = self.A
        lab = A.newlabel("Lo")
        if wave0: A(f"s_cmp_eq_u32 {sW}, 0"); A(f"s_cbranch_scc0 {lab}")
        A("s_mov_b64 exec, 1")
        for l in lines: A(l)
        A("s_mov_b64 exec, -1")
        if wave0: A.label(lab)
    def spin(self, name, cmp_line, load_line, sleep):
        A = self.A
        A(f"s_mov_b32 {sSpin}, 0x40000")
        A.label(name)
        A(cmp_line)
        A(f"s_cbranch_vccz {name}_ok")
        A(f"s_sub_u32 {sSpin}, {sSpin}, 1"); A(f"s_cbranch_scc1 {name}_ok")
        if sleep: A(f"s_sleep {sleep}")
        A(load_line)
        A("s_waitcnt vmcnt(0)")
        A(f"s_branch {name}")
        A.label(name + "_ok")
    def rowmax(self, floor):
        A = self.A
        for qb, tm in ((0, vTm), (1, vMc)): A(f"v_mov_b32 {tm}, {vMx[qb]}")
        A("s_nop 0")
        for qb, tm in ((0, vTm), (1, vMc)): A(f"v_permlane32_swap_b32 {vMx[qb]}, {tm}")
        for qb, tm in ((0, vTm), (1, vMc)): A(f"v_max_f32 {vMx[qb]}, {vMx[qb]}, {tm}")
        for qb, tm in ((0, vTm), (1, vMc)): A(f"v_mov_b32 {tm}, {vMx[qb]}")
        A("s_nop 0")
        for qb, tm in ((0, vTm), (1, vMc)): A(f"v_permlane16_swap_b32 {vMx[qb]}, {tm}")
        for qb, tm in ((0, vTm), (1, vMc)): A(f"v_max3_f32 {vMx[qb]}, {vMx[qb]}, {tm}, {floor}")

    def kernel(self):
        A = self.A
        tg, tl15, tr, tc, ta, tb, td, te = [tmp(i) for i in range(8)]
        A("s_cmp_ge_u32 s2, 256"); A("s_cbranch_scc1 L_end")
        if self.stamps: A("s_memrealtime s[98:99]")
        A("s_load_dwordx16 s[64:79], s[0:1], 0")
        self.stamp(0); self.hstamp(0)
        A("v_lshrrev_b32 v1, 6, v0"); A("v_and_b32 v2, 63, v0")
        A(f"v_readfirstlane_b32 {sW}, v1")
        A(f"v_lshlrev_b32 {vL16}, 4, v2")
        A(f"s_getpc_b64 s[{SCODE}:{SCODE+1}]")
        A.label("L_pc")
        A(f"s_mov_b32 s{SCODE+2}, L_codeend-L_pc"); A(f"s_mov_b32 s{SCODE+3}, 0x20000")
        A(f"s_lshr_b32 {sT0}, s2, 3"); A(f"s_lshl_b32 {sT0}, {sT0}, 2"); A(f"s_add_u32 {sT0}, {sT0}, {sW}")
        A(f"s_and_b32 {sT0}, {sT0}, 63"); A(f"s_lshl_b32 {sT0}, {sT0}, 10")
        A(f"buffer_load_dwordx4 v[128:131], {vL16}, {srd(SCODE)}, {sT0} offen"); self.vm_issue(("CODE",), 1)
        A(f"s_lshl_b32 {sW4K}, {sW}, 12"); A(f"s_lshl_b32 {sW2K}, {sW}, 11")
        A(f"v_lshrrev_b32 {tg}, 4, v2"); A(f"v_and_b32 {tc}, 3, v2")
        A(f"v_lshrrev_b32 {ta}, 3, v2"); A(f"v_lshl_add_u32 {ta}, v1, 5, {ta}")
        A(f"v_and_b32 {tb}, 7, v2"); A(f"v_xor_b32 {tb}, {tb}, {tg}"); A(f"v_lshlrev_b32 {tb}, 4, {tb}")
        A(f"v_lshl_add_u32 {vXd[0]}, {ta}, 10, {tb}"); A(f"v_xor_b32 {tb}, 64, {vXd[0]}")
        A(f"v_add_u32 {vXd[1]}, 7168, {tb}"); A(f"v_add_u32 {vXd[2]}, {2*7168}, {vXd[0]}"); A(f"v_add_u32 {vXd[3]}, {3*7168}, {tb}")
        A(f"v_and_b32 {tl15}, 15, v2"); A(f"v_lshl_add_u32 {ta}, v1, 4, {tg}")
        A(f"v_lshlrev_b32 {tb}, 1, {tg}"); A(f"v_xor_b32 {tb}, {tb}, {tl15}"); A(f"v_lshlrev_b32 {tb}, 4, {tb}")
        A(f"v_lshl_add_u32 {vWd[0]}, {ta}, 13, {tb}"); A(f"v_xor_b32 {td}, 128, {vWd[0]}")
        A(f"v_add_u32 {vWd[1]}, 31744, {vWd[0]}"); A(f"v_add_u32 {vWd[2]}, {2*31744}, {td}"); A(f"v_add_u32 {vWd[3]}, {3*31744}, {td}")
        A(f"s_and_b32 {sBat}, s2, 1"); A(f"s_lshl_b32 {sBat}, {sBat}, 3")
        A(f"s_bfe_u32 {sT1}, s2, 0x30003"); A(f"s_add_u32 {sBat}, {sBat}, {sT1}")
        A(f"s_lshr_b32 {sT2}, s2, 6")
        if self.rot == 2:
            A(f"s_lshl_b32 {sTi}, {sT2}, 1"); A(f"s_add_u32 {sTi}, {sTi}, {sT1}"); A(f"s_and_b32 {sTi}, {sTi}, 7")
        elif self.rot == 1:
            A(f"s_add_u32 {sTi}, {sT2}, {sT1}"); A(f"s_and_b32 {sTi}, {sTi}, 1"); A(f"s_lshl_b32 {sTi}, {sTi}, 2")
        else: A(f"s_mov_b32 {sTi}, 0")
        A(f"s_bfe_u32 {sT1}, s2, 0x20001"); A(f"s_lshl_b32 {sT1}, {sT1}, 3")
        A(f"s_lshl_b32 {sT3}, {sT2}, 1"); A(f"s_add_u32 {sT3}, {sT3}, {sT1}")
        A(f"s_add_u32 {sT1}, {sT1}, {sT2}")
        A(f"s_lshl_b32 {sXb}, {sBat}, 17"); A(f"s_lshl_b32 {sWb}, {sT3}, 8")
        A("s_waitcnt lgkmcnt(0)")
        self.make_srd(SX, 64, 2 << 20); self.make_srd(SWQ, 70, 4 << 20)
        XS = [3 * T, 2 * T, 8 * T, 9 * T]; WS_ = [4 * T, 5 * T, 6 * T, 7 * T]
        self.emit_groups(self.tile_XW(XS[0], WS_[0])); self.vm_issue(("P", 0), 8)
        self.stamp(1)
        A(f"s_lshl_b32 {sT2}, {sBat}, 5"); A(f"s_add_u32 {sT2}, {sT2}, {sT3}"); A(f"s_lshl_b32 {sT2}, {sT2}, 18")
        A(f"s_add_u32 s66, s66, {sT2}"); A("s_addc_u32 s67, s67, 0"); A(f"s_add_u32 s68, s68, {sT2}"); A("s_addc_u32 s69, s69, 0")
        A(f"s_mov_b32 {sKoff}, 0"); A(f"s_mov_b32 {sVoff}, 0")
        A(f"s_lshl_b32 {sT0}, {sBat}, 1"); A(f"s_lshr_b32 {sT2}, {sW}, 1"); A(f"s_add_u32 {sT0}, {sT0}, {sT2}")
        A(f"s_lshl_b32 {sFlagP}, {sT0}, 2"); A(f"s_lshr_b32 {sT2}, {sT1}, 3"); A(f"s_add_u32 {sFlagP}, {sFlagP}, {sT2}")
        A(f"s_lshl_b32 {sFlagP}, {sFlagP}, 7"); A(f"s_and_b32 {sT2}, {sT1}, 3"); A(f"s_lshl_b32 {sT2}, {sT2}, 3")
        A(f"s_add_u32 {sFlagP}, {sFlagP}, {sT2}"); A(f"s_and_b32 {sT2}, {sW}, 1"); A(f"s_lshl_b32 {sT1}, {sT2}, 2")
        A(f"s_add_u32 {sFlagP}, {sFlagP}, {sT1}"); A(f"s_add_u32 {sFlagP}, {sFlagP}, {WS_FLAG}")
        A(f"s_lshl_b32 {sT0}, {sT0}, 5"); A(f"s_add_u32 {sT0}, {sT0}, {sT3}"); A(f"s_lshl_b32 {sT0}, {sT0}, 14")
        A(f"s_lshl_b32 {sT2}, {sT2}, 11"); A(f"s_add_u32 {sOT}, {sT0}, {sT2}")
        self.emit_groups(self.tile_XW(XS[1], WS_[1])); self.vm_issue(("P", 1), 8)
        A(f"s_mov_b32 {sC}, 0x{f2u(CSC):08x}"); A(f"s_mov_b32 {sThr}, 0x{f2u(8.0):08x}")
        self.make_srd(SK, 66, 512 << 10); self.make_srd(SV, 68, 512 << 10)
        self.make_srd(SWO, 72, 4 << 20); self.make_srd(SWS, 78, WS_SIZE)
        self.make_srd(SOUT, 74, 2 << 20); self.make_srd(SDBG, 76, 256)
        A(f"v_lshl_add_u32 {vVd[0]}, {ta}, 8, {tb}"); A(f"v_xor_b32 {vVd[1]}, 128, {vVd[0]}")
        A(f"v_mov_b32 {vVd[2]}, {vVd[0]}"); A(f"v_mov_b32 {vVd[3]}, {vVd[1]}")
        A(f"v_xor_b32 {tb}, {tl15}, {tg}"); A(f"v_lshlrev_b32 {tb}, 4, {tb}")
        A(f"v_lshl_add_u32 {vKd[0]}, {ta}, 8, {tb}")
        for i in range(1, 4): A(f"v_xor_b32 {vKd[i]}, {64*i}, {vKd[0]}")
        A(f"v_lshl_add_u32 {vKa[0]}, {tl15}, 8, {tb}")
        for s in range(1, 4): A(f"v_xor_b32 {vKa[s]}, {64*s}, {vKa[0]}")
        A(f"v_bfe_u32 {tr}, v2, 2, 2")
        A(f"v_lshrrev_b32 {ta}, 1, {tl15}"); A(f"v_xor_b32 {ta}, {ta}, {tg}"); A(f"v_lshlrev_b32 {ta}, 4, {ta}")
        A(f"v_lshl_add_u32 {tb}, v1, 5, {tl15}"); A(f"v_lshl_add_u32 {ta}, {tb}, 7, {ta}")
        A(f"v_add_u32 {vXa[0]}, {XS[0]}, {ta}"); A(f"v_xor_b32 {vXa[1]}, 64, {vXa[0]}")
        A(f"v_and_b32 {ta}, 1, {tg}"); A(f"v_lshl_add_u32 {ta}, {ta}, 2, {tr}")
        A(f"v_lshlrev_b32 {ta}, 5, {ta}"); A(f"v_lshl_add_u32 {ta}, {tc}, 3, {ta}")
        A(f"v_lshl_add_u32 {td}, {tg}, 2, {tr}")
        A(f"v_lshl_add_u32 {tb}, {td}, 8, {ta}"); A(f"v_add_u32 {vVa[0]}, {LV}, {tb}")
        for b in range(1, 8): A(f"v_xor_b32 {vVa[b]}, {32*b}, {vVa[0]}")
        A(f"v_lshl_add_u32 {tb}, {tg}, 3, {tr}"); A(f"v_lshl_add_u32 {tb}, {tb}, 8, {ta}"); A(f"v_add_u32 {vWa[0]}, {WS_[0]}, {tb}")
        for b in range(1, 8): A(f"v_xor_b32 {vWa[b]}, {32*b}, {vWa[0]}")
        A(f"v_lshrrev_b32 {ta}, 3, v2"); A(f"v_and_b32 {tb}, 7, v2"); A(f"v_lshlrev_b32 {te}, 1, {tg}"); A(f"v_xor_b32 {tb}, {tb}, {te}")
        A(f"v_lshlrev_b32 {tb}, 4, {tb}"); A(f"v_lshl_add_u32 {vWs[0]}, {ta}, 10, {tb}")
        for i in range(1, 4): A(f"v_add_u32 {vWs[i]}, {i * 7168}, {vWs[0]}")
        A(f"v_bfe_u32 {ta}, {td}, 1, 2"); A(f"v_lshlrev_b32 {ta}, 5, {ta}"); A(f"v_lshl_add_u32 {ta}, {tc}, 3, {ta}")
        A(f"v_lshl_add_u32 {ta}, {td}, 7, {ta}"); A(f"v_add_u32 {vWr}, {sW4K}, {ta}")
        A(f"v_cmp_eq_u32 vcc, 0, {tc}"); A(f"v_mov_b32 {ta}, 0x3f803f80"); A(f"v_mov_b32 {vZero}, 0"); A(f"v_mov_b32 {vOne}, 1")
        for k in range(4): A(f"v_cndmask_b32 v{ONES+k}, 0, {ta}, vcc")
        for k in range(16): A(f"v_mov_b32 v{LACC+k}, 0")
        A(f"s_and_b32 {sT0}, s2, 7"); A(f"s_lshl_b32 {sT0}, {sT0}, 2"); A(f"s_lshr_b32 {sT1}, s2, 6")
        A(f"s_add_u32 {sB2}, {sT0}, {sT1}")
        A(f"s_lshl_b32 {sT0}, {sB2}, 19"); A(f"s_lshl_b32 {sT1}, {sW}, 17"); A(f"s_add_u32 {sAreal}, {sT0}, {sT1}")
        A(f"s_bfe_u32 {sT0}, s2, 0x30003"); A(f"s_lshl_b32 {sT0}, {sT0}, 7")
        A(f"s_lshl_b32 {sT1}, {sW}, 20"); A(f"s_add_u32 {sWP}, {sT0}, {sT1}")
        A(f"s_lshr_b32 {sT0}, {sB2}, 1"); A(f"s_lshl_b32 {sT0}, {sT0}, 2"); A(f"s_add_u32 {sT0}, {sT0}, {64 if self.hdbg else 0}"); A(f"v_mov_b32 {vPoff}, {sT0}")
        if self.rotO:
            A(f"s_bfe_u32 {sT0}, s2, 0x30003"); A(f"s_lshr_b32 {sT1}, s2, 6"); A(f"s_lshl_b32 {sT1}, {sT1}, 1"); A(f"s_add_u32 {sT0}, {sT0}, {sT1}")
            if self.rotO == 1: A(f"s_lshl_b32 {sT0}, {sT0}, 2"); A(f"s_and_b32 {sQw}, {sT0}, 31")
            elif self.rotO == 3: A(f"s_bfe_u32 {sT0}, s2, 0x30003"); A(f"s_lshl_b32 {sQw}, {sT0}, 2")
            else:
                if self.rotW == 16: A(f"s_lshl_b32 {sT0}, {sT0}, 1")
                A(f"s_and_b32 {sQw}, {sT0}, {self.rotW - 1}"); A(f"s_mov_b32 {sRot}, {sQw}")
        else: A(f"s_mov_b32 {sQw}, 0")
        A(f"s_mov_b32 {sQa}, {sQw}")
        A(f"s_lshl_b32 {sFlagC}, {sB2}, 2"); A(f"s_add_u32 {sFlagC}, {sFlagC}, {sW}"); A(f"s_lshl_b32 {sFlagC}, {sFlagC}, 7")
        A(f"s_add_u32 {sFlagC}, {sFlagC}, {WS_FLAG}")
        self.one_lane([f"buffer_store_dword {vZero}, {vZero}, {srd(SWS)}, {sFlagP} offen sc1"]); self.vm_issue(("FZ",), 1)
        NA = 5; BP = 16 - NA; NU = 128
        units = []
        for pi in range(8): units += self.q_units(pi, WS_[pi % 4] - WS_[0], False, 16 * pi)
        sched = []
        def xw(j, first): sched.append((first, ("P", j), self.tile_XW(XS[j % 4], WS_[j % 4])))
        def kv(kind, sl, first): sched.append((first, (kind, sl), self.tile_KV(kind == "K", sl)))
        if self.k01 == 0: kv("K", 0, 0); kv("K", 1, 0)
        xw(2, 0)
        if self.k01 == 1: kv("K", 0, 0)
        xw(3, 0)
        if self.k01 == 1: kv("K", 1, 0)
        for j in range(4, 8): xw(j, 16 * (j - 3) + BP)
        if self.k01 == 2: kv("K", 0, 0); kv("K", 1, 0)
        kv("V", 0, 16 * 5 + BP); kv("V", 1, 16 * 5 + BP); kv("K", 2, 16 * 6 + BP)
        gaps = [[] for _ in range(2 * NU)]; vmat = {}
        pos = 0
        for first, tag, groups in sched:
            for g in groups:
                pos = max(pos, first)
                g = [("s_nop 0" if l == "@M0" else l) for l in g]
                k = max(i for i, l in enumerate(g) if l.startswith("buffer_"))
                gaps[2 * pos] += g[:k]; gaps[2 * pos + 1] += g[k:]; vmat[pos] = tag
                pos += 1
        xrd = lambda pi, j: (f"ds_read_b128 {XR(pi, j // 2, j % 2)}, {vXa[j // 2]} offset:{(j % 2) * 2048}", ("x", pi, j // 2))
        def mid(m):
            pi, k = m // 16, m % 16
            if m - 1 in vmat: self.vm_issue(vmat[m - 1], 1)
            if pi < 7:
                if 2 <= k < 4: A(f"v_add_u32 {vXa[k-2]}, {XS[(pi + 1) % 4] - XS[pi % 4]}, {vXa[k-2]}")
                if k == BP:
                    A(f"s_waitcnt vmcnt({self.vm_need(('P', pi + 1))})"); A("s_barrier")
                    self.stamp(3 + pi)
                if BP < k <= BP + 4: A.lds(*xrd(pi + 1, k - BP - 1))
        A(f"s_waitcnt vmcnt({self.vm_need(('P', 0))})")
        A("s_barrier")
        self.stamp(2); self.hstamp(1)
        A.lds_reset()
        for j in range(4): A.lds(*xrd(0, j))
        for m in range(NA):
            for r in units[m][2]: A.lds(*r)
        self.stream(units, NU, NA, 2, gaps, mid)
        assert NU - 1 not in vmat
        A(f"s_add_u32 {sWb}, {sWb}, 256")
        for r in vWa: A(f"v_add_u32 {r}, {LX - WS_[0]}, {r}")
        A(f"v_mov_b32 {vF[0]}, {sC}"); A(f"v_mov_b32 {vF[1]}, {sC}")
        for k in range(8): A(f"v_mov_b32 v{NEG+k}, 0")
        A(f"s_waitcnt vmcnt({self.vm_need(('K', 0))})")
        A("s_barrier")
        NB = self.nahead
        units = self.qk_units(SA, 0) + self.qk_units(SB, 1, "kn")[:NB]
        for i in range(NB): A.lds(*units[i][2][0])
        for l in self.qfin_ops(False): A(l)
        self.stamp(10); self.hstamp(2)
        gaps = [[] for _ in range(32)]; base = [4, 0] * 16
        grp = self.tile_W(LX) + self.tile_W(LX + T)
        for i, gq in enumerate(grp):
            gaps[4 * i] += gq[:-1]; gaps[4 * i + 1] += gq[-1:]; base[4 * i] += 4 * (len(gq) - 1); base[4 * i + 1] += 16
        self.spread([f"v_mov_b64 {vt(O0+2*k,2)}, 0" for k in range(32)], gaps, 0, 32, base)
        def mid0(i):
            if i % 2 == 1: self.vm_issue(("E", i // 8), 1)
            if i == 16 - NB: A(f"s_waitcnt vmcnt({self.vm_need(('K', 1))})"); A("s_barrier")
        self.stream(units, 16, NB, self.wgrp, gaps, mid0)
        A("s_barrier")
        g = self.tile_KV(True, 0); self.vm_issue(("K", 3), 4)
        self.emit_groups(g[:2])
        for l in self.max_ops(SA): A(l)
        self.emit_groups(g[2:])
        if self.warm:
            A(f"s_lshl_b32 {sT0}, s2, 14"); A(f"s_add_u32 {sT0}, {sT0}, {sW4K}")
            for i in range(4): A(f"buffer_load_dwordx4 {vt(vInv, 4)}, {vL16}, {srd(SWO)}, {sT0} offen offset:{i*1024}")
            self.vm_issue(("WARM",), 4)
        A(f"s_mov_b32 {sT}, 0")
        A(f"s_call_b64 {sRet}, L_init")
        n1, n2, n3 = self.simulate_loop()
        self.n = (n1, n2, n3)
        xs = {PUB_T, 14, 15, 28} | set(self.QT)
        if self.exact_from is not None: xs |= {self.exact_from, self.exact_to}
        xs |= set(self.mid) | {t + 2 for t in self.mid}
        xmask = sum(1 << t for t in xs)
        A.label("L_loop")
        for c in range(6):
            self.body(c, n1, n2)
            self.istamp()
            A(f"s_bitcmp1_b32 0x{xmask:08x}, {sT}"); A(f"s_cbranch_scc1 L_x_{c}")
            A.label(f"L_c_{c}")
            A(f"v_cmp_lt_f32 vcc, {sThr}, {vMc}")
            A(f"s_cbranch_vccnz L_r_{c}")
            A.label(f"L_n_{c}")
            A(f"s_add_u32 {sT}, {sT}, 1")
        A("s_branch L_loop")
        for c in range(6):
            A.label(f"L_x_{c}"); A(f"s_call_b64 {sRet}, L_extras"); A(f"s_branch L_c_{c}")
            A.label(f"L_r_{c}"); A(f"s_call_b64 {sLink2}, L_rare"); A(f"s_branch L_n_{c}")
        A(".p2align 3")
        ssub = lambda S: [f"v_sub_f32 v{S+i}, v{S+i}, {vMx[(i//4)%2]}" for i in range(32)]
        A.label("L_init")
        A(f"s_mov_b32 {sFloor}, 0x{f2u(-1e30):08x}")
        self.rowmax(sFloor)
        for i in range(8): A(f"v_sub_f32 v{NEG+i}, 0, {vMx[i//4]}")
        for l in ssub(SA): A(l)
        A(f"v_mov_b32 {vMc}, 0")
        A(f"s_setpc_b64 {sRet}")
        A.label("L_rare")
        self.rowmax("0")
        for qb in range(2): A(f"v_exp_f32 {vF[qb]}, -{vMx[qb]}")
        for i in range(8): A(f"v_sub_f32 v{NEG+i}, v{NEG+i}, {vMx[i//4]}")
        for qb in range(2): A(f"v_mul_f32 v{LACC+4*qb}, {vF[qb]}, v{LACC+4*qb}")
        for i in range(64): A(f"v_mul_f32 v{O0+i}, {vF[(i//4)%2]}, v{O0+i}")
        A(f"s_bitcmp1_b32 {sT}, 0"); A("s_cbranch_scc1 L_rare_a")
        for l in ssub(SB): A(l)
        A(f"s_setpc_b64 {sLink2}")
        A.label("L_rare_a")
        for l in ssub(SA): A(l)
        A(f"s_setpc_b64 {sLink2}")
        def tree(ts):
            if len(ts) == 1:
                A(f"s_branch L_t{ts[0]}"); return
            if len(ts) == 2:
                A(f"s_cmp_eq_u32 {sT}, {ts[0]}"); A(f"s_cbranch_scc1 L_t{ts[0]}"); A(f"s_branch L_t{ts[1]}"); return
            h = len(ts) // 2; lab = A.newlabel("Ld")
            A(f"s_cmp_ge_u32 {sT}, {ts[h]}"); A(f"s_cbranch_scc1 {lab}")
            tree(ts[:h]); A.label(lab); tree(ts[h:])
        A.label("L_extras")
        tree(sorted(xs))
        for t in sorted(xs):
            if t == 28: continue
            A.label(f"L_t{t}")
            for i in [k for k, tq in enumerate(self.QT) if tq == t]:
                un = self.q_units(i, (i % 4) * T, True, 0)
                gaps = [[] for _ in range(32)]
                if i < len(self.QT) - 2:
                    for k, gq in enumerate(self.tile_W(LX + ((i + 2) % 4) * T)):
                        gaps[8 * k + 2] += gq[:-1]; gaps[8 * k + 3] += gq[-1:]
                A("s_waitcnt lgkmcnt(0)")
                A.lds_reset()
                for m in range(7):
                    for r in un[m][2]: A.lds(*r)
                self.stream(un, 16, 7, self.pg, gaps, lambda m: None)
            if t == 14:
                A(f"v_cmp_lt_f32 vcc, {sThr}, {vMc}")
                A("s_cbranch_vccz L_x14b")
                A(f"s_call_b64 {sLink2}, L_rare")
                A.label("L_x14b")
                A(f"v_mov_b32 {vF[0]}, {sC}"); A(f"v_mov_b32 {vF[1]}, {sC}")
                for l in self.qfin_ops(True): A(l)
                for k in range(8): A(f"v_mov_b32 v{NEG+k}, 0")
                A(f"v_mov_b32 {vMc}, 0")
            if t == 15:
                self.epilogue(True)
                for i in range(32): A(f"v_mov_b64 {vt(O0+2*i,2)}, 0")
                A(f"v_mov_b32 v{LACC}, 0"); A(f"v_mov_b32 v{LACC+4}, 0")
                self.stamp(11)
                A("s_branch L_init")
                continue
            if t == self.exact_from: A(f"s_mov_b32 {sThr}, 0xff800000")
            if self.exact_from is not None and t == self.exact_to: A(f"s_mov_b32 {sThr}, 0x{f2u(8.0):08x}")
            if t == PUB_T:
                A(f"s_waitcnt vmcnt({n3[t]})"); A("s_barrier")
                A(f"s_lshl_b32 {sT0}, {sBat}, 2")
                self.one_lane([f"buffer_atomic_add {vOne}, {vZero}, {srd(SDBG)}, {sT0} offen offset:{64 if self.hdbg else 0} sc1"], wave0=True)
            if t - 2 in self.mid:
                i = self.mid.index(t - 2)
                A("s_waitcnt vmcnt(16)")
                for nb in range(4):
                    A(f"v_xor_b32 {vTm}, {32*nb}, {vWr}"); A(f"v_add_u32 {vTm}, {(6 + i % 4) * T}, {vTm}")
                    for hf in range(2): A(f"ds_read_b64_tr_b16 {at(AFREE + 16*i + 4*nb + 2*hf, 2)}, {vTm} offset:{hf*2048}")
                A("s_waitcnt lgkmcnt(0)")
            if t in self.mid:
                self.emit_groups(self.tile_Wo(6 + self.mid.index(t) % 4)); self.parks.append(("reg", self.mid.index(t)))
            A(f"s_setpc_b64 {sRet}")
        A.label("L_t28")
        self.final_bodies()
        self.stamp(12)
        self.tail()
        self.hstamp(14)
        if self.hdbg: A("s_waitcnt vmcnt(0)")
        self.hstamp(15)
        self.dump_stamps()
        A.label("L_end")
        A("s_endpgm")
        A.label("L_codeend")

    def tail(self):
        A = self.A
        vm = []
        def need(tag): return min(63, len(vm) - 1 - max(i for i, q in enumerate(vm) if q == tag)) if tag in vm else 63
        pollW = f"buffer_load_dword {vPoll}, {vPoff}, {srd(SDBG)}, 0 offen sc1"
        vRd = [[f"v{16 + 4*k + nb}" for nb in range(4)] for k in range(3)]
        vFl, vLin, vPol2 = "v28", "v29", "v30"
        NP0 = len(self.parks); nmid = len(self.mid)
        slot_of = {p: k for p, (kind, k) in enumerate(self.parks) if kind == "lds"}
        reg_of = {p: at_ for p, (kind, at_) in enumerate(self.parks) if kind == "reg"}
        free = [k for k in (6, 7, 8, 9, 4, 3, 5, 0, 1, 2) if k not in slot_of.values()]
        spare = [("a", AFREE + 16 * k) for k in range(nmid, 6)] + [("v", P0), ("v", HELD), ("v", HELD + 16), ("v", SB), ("v", SB + 16)]
        spare2 = [("v", 240), ("v", 48), ("v", O0 + 32), ("v", O0 + 48), ("v", SA), ("v", SA + 16)]
        wreg = {p: ("a", AFREE + 16 * k) for p, k in reg_of.items()}
        moves = sorted(slot_of)[:min(self.nreg, len(spare))]
        for p, r in zip(moves, spare): wreg[p] = r
        pollB = f"buffer_load_dword {vPol2}, {vFl}, {srd(SWS)}, {sFlagC} offen sc1"
        A(f"v_and_b32 {vFl}, 7, v2"); A(f"v_lshlrev_b32 {vFl}, 2, {vFl}")
        A(pollW); vm.append("poll")
        self.epilogue(False); vm += ["OB"] * 8
        self.stamp(13)
        for k in range(3):
            A(f"v_add_u32 {vRd[k][0]}, {k * 65536}, {vWr}")
            for nb in range(1, 4): A(f"v_xor_b32 {vRd[k][nb]}, {32*nb}, {vRd[k][0]}")
        A(f"v_add_u32 {vLin}, {sW4K}, {vL16}")
        A("s_barrier")
        NS = 5
        ASET = lambda p: (lambda j, n: at(AQ + 16 * (p % NS) + j, n) if p % NS < 2 else at(AKF + 16 * (p % NS - 2) + j, n))
        ring = {}
        def WSET(p):
            if p in wreg:
                k, bb = wreg[p]
                return (lambda j, n: at(bb + j, n)) if k == "a" else (lambda j, n: vt(bb + j, n))
            if p not in ring: ring[p] = len(ring) % (2 if self.wall else 3)
            return lambda j, n: vt(O0 + 16 * ring[p] + j, n)
        def wgroups(p):
            slot_of[p] = free.pop(0)
            return [(x, ("W", p)) for x in self.tile_Wo(slot_of[p])]
        def agroups(p):
            g = [self.aload(ASET(p), j, sAoff) for j in range(4)]
            g[0] = [f"s_lshl_b32 {sAoff}, {sQa}, 12", f"s_add_u32 {sAoff}, {sAoff}, {sAreal}"] + g[0]
            for i, l in enumerate(self.nextq(sQa, p)): g[1 + i] = [l] + g[1 + i]
            return [(x, ("A", p)) for x in g]
        def wreads(p):
            base = slot_of[p] * T
            return [f"ds_read_b64_tr_b16 {WSET(p)(4*nb + 2*hf, 2)}, {vRd[base // 65536][nb]} offset:{base % 65536 + hf*2048}"
                    for nb in range(4) for hf in range(2)]
        def emit(g):
            for l in g[0]: A(l)
            vm.append(g[1])
        wn = NP0; an = 0
        for _ in range(min(len(free), self.wfirst)):
            for g in wgroups(wn): emit(g)
            wn += 1
        A(f"s_waitcnt vmcnt({need('poll')})")
        A.lds_reset()
        for i, p in enumerate(moves):
            for l in wreads(p): A(l)
            if i % 2 == 1 or i == len(moves) - 1: A("s_waitcnt lgkmcnt(0)")
            free.append(slot_of[p])
        self.spin("L_c1", f"v_cmp_gt_u32 vcc, 16, {vPoll}", pollW, 2)
        A(f"s_waitcnt vmcnt({need('OB')})")
        self.one_lane([f"buffer_store_dword {vOne}, {vZero}, {srd(SWS)}, {sFlagP} offen sc1"]); vm.append("fl")
        self.stamp(14); self.hstamp(11)
        if self.early_poll: A(pollB); vm.append("pb")
        while free and wn < 32:
            for g in wgroups(wn): emit(g)
            wn += 1
        if self.wall:
            cand = [p for p in sorted(slot_of) if p not in wreg]
            for p, r in zip(cand, spare[len(moves):] + spare2):
                if wn >= 32: break
                wreg[p] = r
                A(f"s_waitcnt vmcnt({need(('W', p))})")
                for l in wreads(p): A(l)
                A("s_waitcnt lgkmcnt(0)")
                free.append(slot_of[p])
                for g in wgroups(wn): emit(g)
                wn += 1
        if not self.early_poll: A(pollB); vm.append("pb")
        self.stamp(15)
        A(f"s_waitcnt vmcnt({need('pb')})")
        self.spin("L_c2", f"v_cmp_ne_u32 vcc, 1, {vPol2}", pollB, 0)
        self.stamp(18); self.hstamp(12)
        while an < self.aahead:
            for g in agroups(an): emit(g)
            an += 1
        if 0 not in wreg:
            A(f"s_waitcnt vmcnt({need(('W', 0))})")
            for l in wreads(0): A.lds(l, ("w", 0))
        for p in range(32):
            tags = [("A", p)] + ([("W", p + 1)] if p < 31 else [])
            A(f"s_waitcnt vmcnt({min(need(tg) for tg in tags)})")
            A.lds_wait(("w", p))
            if p not in wreg: free.append(slot_of[p])
            gs = []
            if an < 32: gs += agroups(an); an += 1
            if wn < 32 and free: gs = [x for pr in itertools.zip_longest(gs, wgroups(wn)) for x in pr if x]; wn += 1
            assert p + 1 in wreg or p + 1 in slot_of or p == 31
            rds = wreads(p + 1) if p + 1 < 32 and p + 1 not in wreg else []
            step = 2 if len(gs) > 4 else 4
            k = 0
            for nb in range(4):
                for q in range(4):
                    d = at(AACC + 16 * q + 4 * nb, 4)
                    A(f"{MF} {d}, {WSET(p)(4*nb, 4)}, {ASET(p)(4*q, 4)}, {d if p else 0}")
                    if k % 2 == 1 and k // 2 < len(rds): A.lds(rds[k // 2], ("w", p + 1))
                    if k % step == 0 and k // step < len(gs): emit(gs[k // step])
                    k += 1
        self.stamp(16); self.hstamp(13)
        A(f"v_lshl_add_u32 v3, v1, 14, {vL16}")
        A("v_and_b32 v5, 15, v2"); A("v_lshrrev_b32 v6, 4, v2"); A("v_lshlrev_b32 v5, 10, v5"); A("v_lshl_add_u32 v5, v6, 4, v5")
        A(f"s_lshl_b32 {sT0}, {sB2}, 16"); A(f"s_lshl_b32 {sT1}, {sW}, 14"); A(f"s_add_u32 {sT0}, {sT0}, {sT1}")
        A(f"s_bfe_u32 {sT1}, s2, 0x30003"); A(f"s_lshl_b32 {sT1}, {sT1}, 7"); A(f"s_add_u32 {sT0}, {sT0}, {sT1}")
        for blk in range(4):
            for q in range(4):
                A(f"ds_write_b128 {vLin}, {at(AACC+16*blk+4*q,4)} offset:{blk*16384+q*1024}")
                if (blk * 4 + q) % 8 == 7: A("s_waitcnt lgkmcnt(0)")
        A("s_barrier")
        for src in range(4):
            for q in range(4):
                A(f"ds_read_b128 {vt(64+16*src+4*q,4)}, v3 offset:{src*4096+q*1024}")
            if src == 2: A("s_waitcnt lgkmcnt(4)")
        A("s_waitcnt lgkmcnt(0)")
        for i in range(16): A(f"v_add_f32 v{64+i}, v{64+i}, v{80+i}")
        for i in range(16): A(f"v_add_f32 v{96+i}, v{96+i}, v{112+i}")
        for i in range(16): A(f"v_add_f32 v{64+i}, v{64+i}, v{96+i}")
        for j in range(8): A(f"v_cvt_pk_bf16_f32 v{80+j}, v{64+2*j}, v{64+2*j+1}")
        w0, w1 = self.widen(80, 82), self.widen(84, 86)
        A("s_nop 0")
        for l in w0[0] + w1[0] + w0[1] + w1[1]: A(l)
        A(f"buffer_store_dwordx4 {vt(80,4)}, v5, {srd(SOUT)}, {sT0} offen")
        A(f"buffer_store_dwordx4 {vt(84,4)}, v5, {srd(SOUT)}, {sT0} offen offset:64")

    def dump_stamps(self):
        if not self.stamps: return
        A = self.A
        A("s_waitcnt vmcnt(0)")
        self.stamp(17)
        A("s_memrealtime s[100:101]")
        A("s_getreg_b32 s3, hwreg(HW_REG_XCC_ID)")
        A("s_waitcnt lgkmcnt(0)")
        A(f"v_writelane_b32 v{VST}, s98, 61"); A(f"v_writelane_b32 v{VST}, s100, 62"); A(f"v_writelane_b32 v{VST}, s3, 63")
        A(f"s_lshl_b32 {sT1}, s2, 2"); A(f"s_add_u32 {sT1}, {sT1}, {sW}"); A(f"s_mul_i32 {sT1}, {sT1}, 768")
        A(f"s_add_u32 {sT1}, {sT1}, {WS_STAMP}")
        A(f"v_lshrrev_b32 v3, 2, {vL16}")
        for k in range(3): A(f"buffer_store_dword v{VST+k}, v3, {srd(SWS)}, {sT1} offen offset:{256*k}")

HDR = open("standalone__mha_block_cached__near_ridge.s.ref").read().split("; Override")[0]
def desc(name):
    return f""".amdhsa_kernel {name}
  .amdhsa_next_free_vgpr 512
  .amdhsa_next_free_sgpr 102
  .amdhsa_accum_offset 256
  .amdhsa_group_segment_fixed_size 0
  .amdhsa_kernarg_size 64
  .amdhsa_user_sgpr_count 2
  .amdhsa_user_sgpr_kernarg_segment_ptr 1
  .amdhsa_system_sgpr_workgroup_id_x 1
.end_amdhsa_kernel
"""
def build(path, verbose=False, cls=None, **kw):
    g = (cls or Gen)(**kw); g.kernel()
    la = align8(g.A.lines, g.nops)
    bad = check_hazards(la)
    print(path, "hazards:", bad, "lines", len(la))
    if verbose: print(g.n)
    s = HDR + "; @launch grid=(256,1,1) block=(256,1,1) lds=163840\n"
    s += '.amdgcn_target "amdgcn-amd-amdhsa--gfx950"\n.text\n'
    s += f".globl {KN}\n.p2align 8\n.type {KN},@function\n{KN}:\n" + "\n".join(la) + "\n"
    s += '.section .rodata,"a"\n.p2align 6\n' + desc(KN)
    open(path, "w").write(s)
if __name__ == "__main__":
    build("v20q4.s", rotO=2, wall=False, fsp=2, nmax=4)
    build("v20q6.s", rotO=2, wall=False, fsp=2, nmax=6)
    build("v20q4_c.s", rotO=2, wall=False, fsp=2, nmax=4, stamps=True)
```

```python
import sys, math, struct, itertools
sys.path.insert(0, "work")
from asmlib import Asm, check_hazards, align8

KN = "standalone__mha_block_cached__near_ridge_kernel"
def f2u(x): return struct.unpack("<I", struct.pack("<f", x))[0]
CSC = math.log2(math.e) / math.sqrt(128.0)
T = 16384
LK, LV = 0, 3 * T
WS_FLAG = 16 << 20
WS_STAMP = 21 << 20
WS_SIZE = 22 << 20
SK, SV, SX, SWQ, SWO, SWS, SOUT, SDBG = 4, 8, 12, 16, 20, 24, 28, 32
def srd(b): return f"s[{b}:{b+3}]"
sW, sW4K, sKoff, sVoff, sW2K, sWP, sThr, sT, sC, sQw, sFloor, sQa = [f"s{i}" for i in range(36, 48)]
sXoff, sWoff, sOT, sT0, sT1, sT2 = [f"s{i}" for i in range(48, 54)]
sLink = "s[54:55]"; sRet = "s[92:93]"; sLink2 = "s[94:95]"
sAoff, sWToff, sB2, sT3, sRot = [f"s{i}" for i in range(56, 61)]
sV9 = "s61"
sTi, sXb, sWb, sAreal, sFlagP, sFlagC, sBat, sSpin = [f"s{i}" for i in range(80, 88)]
SCODE = 88
vWs = ["v3", "v4", "v5", "v6"]; vWr = "v7"
vInv = 8
vPoll = "v12"; vPoff = "v13"; vZero = "v14"; vOne = "v15"
vKa = [f"v{i}" for i in range(16, 20)]
vVa = [f"v{i}" for i in range(20, 28)]
vKd = [f"v{i}" for i in range(28, 32)]
vMx = ["v34", "v35"]; vMc = "v36"; vTm = "v37"; vF = ["v38", "v39"]; vL16 = "v40"
vVd = ["v32", "v33", "v240", "v241"]
VST = 41
ONES, LACC, NEG = 44, 48, 56
O0, SA, SB, P0, HELD = 64, 128, 160, 192, 208
vWa = [f"v{i}" for i in range(160, 168)]; vXa = "v168"; vXd = ["v169", "v170"]; vWd = [f"v{i}" for i in range(171, 175)]
AQ2 = 224
LX = 6 * T
QT = [1, 3, 5, 7, 9, 11, 12, 13]
def XR(pi, s, qb):
    k = 16 * pi + 8 * s + 4 * qb
    return at(160 + k, 4) if k < 96 else vt(208 + k - 96, 4)
def tmp(i): return f"v{176 + i}"
AQ, AACC, AKF, AVF, AFREE = 0, 32, 96, 128, 160
def vt(b, n): return f"v[{b}:{b+n-1}]"
def at(b, n): return f"a[{b}:{b+n-1}]"
MF = "v_mfma_f32_16x16x32_bf16"
PUB_T = 2

class Gen:
    def __init__(self, stamps=False, nt=" nt", split=24, wgrp=4, nahead=7, latepos=(18, 22, 26, 31), stf=" sc1", ldf=" sc1",
                 kvpos=(10, 12, 12, 12), dbg=(), rotO=2, rot=4, aahead=4, wof="", oa_t=29, warm=0, epark=False, lpark=True, nreg=9, lim=12, hdbg=False, nmax=4, rotW=8, k01=1, qt=None, vpark=True, mid=(16, 18, 20, 22, 24, 25), fin=(), early_poll=True, fsp=2, npk=9, ncom=2, relax=2, pubs=8, local=False, wfirst=3, pg=4, wall=True, nops=False, pna=6, qbt=(4, 6, 8, 10), vsum=False):
        self.A = Asm(); self.vm = []
        self.__dict__.update({k: v for k, v in locals().items() if k != "self"})
        self.latepos = list(latepos); self.wcnt = 0; self.xcnt = 0; self.parks = []; self.mid = list(mid); self.fin = list(fin); self.QT = []; self.acnt = 0
    def vm_issue(self, tag, n): self.vm += [tag] * n
    def vm_need(self, *tags):
        idx = max(i for i, q in enumerate(self.vm) if q in tags)
        return min(63, len(self.vm) - 1 - idx)
    def stamp(self, k):
        if self.stamps:
            self.A("s_memtime s[96:97]"); self.A("s_waitcnt lgkmcnt(0)"); self.A(f"v_writelane_b32 v{VST}, s96, {k}")
    def hstamp(self, k):
        if not self.hdbg: return
        A = self.A
        A("s_memrealtime s[100:101]"); A("s_waitcnt lgkmcnt(0)"); A(f"v_writelane_b32 v{VST}, s100, {k}")
        if k == 15:
            lab = A.newlabel("Lh")
            A(f"s_cmp_eq_u32 s2, {self.hdbg - 1}"); A(f"s_cbranch_scc0 {lab}"); A(f"s_cmp_eq_u32 {sW}, 0"); A(f"s_cbranch_scc0 {lab}")
            A(f"v_readlane_b32 s100, v{VST}, 0"); A("s_nop 3"); A(f"v_subrev_u32 v{VST}, s100, v{VST}"); A(f"v_lshrrev_b32 v{VST+1}, 2, {vL16}")
            A("s_mov_b64 exec, 0xffff"); A(f"buffer_store_dword v{VST}, v{VST+1}, {srd(SDBG)}, 0 offen"); A("s_mov_b64 exec, -1")
            A.label(lab)
    def istamp(self):
        if self.hdbg:
            A = self.A; lab = A.newlabel("Lh")
            A(f"s_and_b32 s96, {sT}, 3"); A("s_cmp_eq_u32 s96, 3"); A(f"s_cbranch_scc0 {lab}")
            A("s_memrealtime s[100:101]"); A(f"s_lshr_b32 s96, {sT}, 2"); A("s_add_u32 m0, s96, 3"); A("s_waitcnt lgkmcnt(0)")
            A(f"v_writelane_b32 v{VST}, s100, m0")
            A.label(lab)
        if not self.stamps: return
        A = self.A
        A("s_memtime s[96:97]"); A("s_memrealtime s[100:101]"); A(f"s_add_u32 m0, {sT}, 32"); A("s_waitcnt lgkmcnt(0)")
        A(f"v_writelane_b32 v{VST+2}, s96, m0"); A(f"v_writelane_b32 v{VST+1}, s100, m0")
    def dma(self, voff, srdb, soff, imm, flags=""):
        return f"buffer_load_dwordx4 {voff}, {srd(srdb)}, {soff} offen offset:{imm}{flags} lds"
    def tile_KV(self, isK, slot):
        off, base, voffs, srdb = (sKoff, LK, vKd, SK) if isK else (sVoff, LV, vVd, SV)
        g = [[self.dma(voffs[i], srdb, off, i * 1024, self.nt)] for i in range(4)]
        g[0] = [f"s_add_u32 m0, {sW4K}, {base + slot*T}", "@M0"] + g[0]
        g[3] = g[3] + [f"s_add_u32 {off}, {off}, {T}"]
        return g
    def tile_XW(self, xbase, wbase):
        k = self.xcnt; self.xcnt += 1
        if self.rot != 4: adv = [[f"s_add_u32 {sTi}, {sTi}, 1"], [f"s_and_b32 {sTi}, {sTi}, 15"], []]
        elif k == self.ncom - 1: adv = [[f"s_mov_b32 {sTi}, {sFloor}"], [], []]
        else: adv = [[f"s_add_u32 {sTi}, {sTi}, 1"], [f"s_cmp_eq_u32 {sTi}, 16", f"s_cselect_b32 {sTi}, {self.ncom}, {sTi}"], []]
        return [[f"s_lshl_b32 {sXoff}, {sTi}, 6", f"s_add_u32 m0, {sW2K}, {xbase}", f"s_add_u32 {sXoff}, {sXoff}, {sXb}", self.dma(vXd[0], SX, sXoff, 0)],
                [f"s_lshl_b32 {sWoff}, {sTi}, 18", self.dma(vXd[1], SX, sXoff, 1024)],
                [f"s_add_u32 m0, {sW4K}, {wbase}", f"s_add_u32 {sWoff}, {sWoff}, {sWb}", self.dma(vWd[0], SWQ, sWoff, 0)],
                adv[0] + [self.dma(vWd[1], SWQ, sWoff, 1024)],
                adv[1] + [self.dma(vWd[2], SWQ, sWoff, 2048)],
                [self.dma(vWd[3], SWQ, sWoff, 3072)]]
    def tile_Wo(self, slot):
        g = [[self.dma(vWs[i], SWO, sWToff, i * 1024, self.wof)] for i in range(4)]
        g[0] = [f"s_lshl_b32 {sWToff}, {sQw}, 15", f"s_add_u32 m0, {sW4K}, {slot * T}", f"s_add_u32 {sWToff}, {sWToff}, {sWP}"] + g[0]
        nq = self.nextq(sQw, self.wcnt)
        if self.rotO == 5: g[1] = nq[0] + g[1]; g[2] = nq[1] + g[2]
        else:
            for i, l in enumerate(nq): g[1 + i] = [l] + g[1 + i]
        self.wcnt += 1
        return g
    def nextq(self, s, cnt):
        if self.rotO == 5:
            GW = self.rotW; n = cnt + 1; tmp_ = sT1 if s == sQw else sT2
            return [f"s_add_u32 {tmp_}, {sRot}, {n // GW * GW}", f"s_add_u32 {s}, {sV9}, {n % GW}", ], [f"s_and_b32 {tmp_}, {tmp_}, {32 - GW}", f"s_and_b32 {s}, {s}, {GW - 1}", f"s_or_b32 {s}, {s}, {tmp_}"]
        if self.rotO != 2: return [f"s_add_u32 {s}, {s}, 1", f"s_and_b32 {s}, {s}, 31"]
        W = self.rotW
        if (cnt + 1) % W == 0: return [f"s_add_u32 {s}, {sRot}, {cnt + 1}"]
        return [f"s_add_u32 {s}, {s}, 1", f"s_and_b32 {s}, {s}, {W - 1}", f"s_add_u32 {s}, {s}, {cnt // W * W}"]
    def emit_groups(self, groups):
        for g in groups:
            for l in g: self.A("s_nop 0" if l == "@M0" else l)
    @staticmethod
    def cost(l):
        if l.startswith("v_exp"): return 8
        if l.startswith("buffer_"): return 16
        return 4
    def spread(self, fill, gaps, lo, hi, base):
        tot = sum(self.cost(l) for l in fill) + sum(base[lo:hi])
        per = tot / (hi - lo); g = lo; acc = 0.0
        k = 0
        for g in range(lo, hi):
            acc += base[g]; tgt = per * (g - lo + 1)
            while k < len(fill) and (acc + self.cost(fill[k]) / 2 <= tgt or g == hi - 1):
                gaps[g].append(fill[k]); acc += self.cost(fill[k]); base[g] += self.cost(fill[k]); k += 1
    def exp_ops(self, S, lo, hi):
        ops = []
        ex = lambda i: f"v_exp_f32 v{S+i}, v{S+i}"
        def cvt(i):
            kb, qb, r = i // 8, (i // 4) % 2, i % 4
            return f"v_cvt_pk_bf16_f32 v{P0 + 8*(kb//2) + 4*qb + 2*(kb%2) + r//2}, v{S+i}, v{S+i+1}"
        prs = list(range(lo, hi, 2))
        for k, i in enumerate(prs):
            ops += [ex(i), ex(i + 1)]
            if k > 0: ops += [cvt(prs[k-1])]
        ops += ["s_nop 0", cvt(prs[-1])]
        return ops
    def max_ops(self, S):
        ops = []
        for qb in range(2):
            r = [S + 8 * kb + 4 * qb + j for kb in range(4) for j in range(4)]
            o = [f"v_max3_f32 {vMx[qb]}, v{r[0]}, v{r[1]}, v{r[2]}"]
            for i in range(3, 15, 2): o.append(f"v_max3_f32 {vMx[qb]}, {vMx[qb]}, v{r[i]}, v{r[i+1]}")
            o.append(f"v_max_f32 {vMx[qb]}, {vMx[qb]}, v{r[15]}")
            ops.append(o)
        out = [x for pr in zip(*ops) for x in pr]
        out.append(f"v_max_f32 {vMc}, {vMx[0]}, {vMx[1]}")
        return out
    def qk_units(self, Sn, slot, tag="k"):
        un = []
        for i in range(16):
            kb, s = i // 4, i % 4
            fr = AKF + 4 * (i % 8)
            ms = [f"{MF} {vt(Sn+8*kb+4*qb,4)}, {at(fr,4)}, {at(AQ+16*qb+4*s,4)}, {vt(NEG+4*qb,4) if s == 0 else vt(Sn+8*kb+4*qb,4)}" for qb in range(2)]
            un.append((ms, [(tag, i)], [(f"ds_read_b128 {at(fr,4)}, {vKa[s]} offset:{slot*T + kb*4096}", (tag, i))]))
        return un
    def pv_units(self, slot):
        un = []
        for i in range(16):
            u, db = i // 8, i % 8
            fr = AVF + 4 * (i % 8)
            ms = [f"{MF} {vt(O0+8*db+4*qb,4)}, {at(fr,4)}, {vt(P0+8*u+4*qb,4)}, {vt(O0+8*db+4*qb,4)}" for qb in range(2)]
            un.append((ms, [("v", i)], [(f"ds_read_b64_tr_b16 {at(fr,2)}, {vVa[db]} offset:{slot*T + u*8192}", ("v", i)),
                                          (f"ds_read_b64_tr_b16 {at(fr+2,2)}, {vVa[db]} offset:{slot*T + u*8192 + 4096}", ("v", i))]))
        return un
    def stream(self, units, nun, NA, G, gaps, mid, extra=None):
        A = self.A
        for i in range(nun):
            if i % G == 0: A.lds_wait(*sum((units[j][1] for j in range(i, min(nun, i + G))), []))
            rds = units[i + NA][2] if i + NA < len(units) else []
            A(units[i][0][0])
            mid(i)
            if rds: A.lds(*rds[0])
            for l in gaps[2 * i]: A(l)
            A(units[i][0][1])
            for r in rds[1:]: A.lds(*r)
            for l in gaps[2 * i + 1]: A(l)
            if extra and i in extra: A(extra[i])
    def place(self, gaps, base, groups, positions):
        for g, p in zip(groups, positions):
            if "@M0" in g:
                k = g.index("@M0"); gaps[p - 1] = gaps[p - 1] + g[:k]; base[p - 1] += 4 * k; g = g[k + 1:]
            gaps[p] = gaps[p] + g; base[p] += sum(self.cost(l) for l in g)
    def simulate_loop(self):
        n1, n2, n3 = {}, {}, {}
        for t in range(29):
            n1[t] = self.vm_need(("V", t))
            self.vm_issue(("V", t + 2), 4)
            n2[t] = self.vm_need(("K", t + 2)) if t < 30 else 63
            for i, tq in enumerate(self.QT):
                if tq == t: n2[t] = min(n2[t], self.vm_need(("E", i)))
            self.vm_issue(("K", t + 4), 4)
            for i, tq in enumerate(self.QT[:-2]):
                if tq == t: self.vm_issue(("E", i + 2), 4)
        return n1, n2, n3
    def aload(self, R, j, soff):
        return [f"buffer_load_dwordx4 {R(4*j,4)}, {vL16}, {srd(SWS)}, {soff} offen offset:{(j%4)*1024}{self.ldf}"]
    def body(self, c, n1, n2):
        A = self.A
        par = c % 2; NA = self.nahead; G = self.wgrp
        S, Sn = (SA, SB) if par == 0 else (SB, SA)
        sel = lambda d: min(self.nmax, min(v for t, v in d.items() if t % 6 == c))
        units = self.qk_units(Sn, (c + 1) % 3) + self.pv_units(c % 3) + self.qk_units(S, (c + 2) % 3, "kn")[:NA]
        bp = 16 - NA
        gaps = [[] for _ in range(64)]; base = [0] * 64
        for i in range(32):
            nr = len(units[i + NA][2])
            base[2 * i] += 4; base[2 * i + 1] += 4 * (nr - 1)
            if (i + 1) % G == 0: base[2 * i + 1] += 4
            if i % 16 == bp: base[2 * i] += 12
        self.place(gaps, base, self.tile_KV(False, (c + 2) % 3), [p + 1 for p in self.latepos[:3]] + [31])
        self.place(gaps, base, self.tile_KV(True, (c + 1) % 3), [32 + p + 1 for p in self.latepos[:3]] + [63])
        self.spread(self.exp_ops(S, 0, self.split), gaps, 0, 32, base)
        self.spread(self.exp_ops(S, self.split, 32), gaps, 32, 32 + self.lim, base)
        self.spread(self.max_ops(Sn), gaps, 32 + self.lim, 64, base)
        lm = lambda u, qb: f"{MF} {vt(LACC+4*qb,4)}, {vt(ONES,4)}, {vt(P0+8*u+4*qb,4)}, {vt(LACC+4*qb,4)}"
        extra = {16 + 3: lm(0, 0), 16 + 7: lm(0, 1), 16 + 11: lm(1, 0), 16 + 15: lm(1, 1)}
        def mid(i):
            if i % 16 == bp:
                d = n1 if i < 16 else n2
                ex = min(v for t, v in d.items() if t % 6 == c)
                if c < self.relax and ex > sel(d):
                    lab = A.newlabel("Lr")
                    A(f"s_waitcnt vmcnt({ex})"); A(f"s_cmp_lt_u32 {sT}, {self.relax}"); A(f"s_cbranch_scc1 {lab}")
                    A(f"s_waitcnt vmcnt({sel(d)})"); A.label(lab)
                else: A(f"s_waitcnt vmcnt({sel(d)})")
                A("s_barrier")
        A.lds_q = [("k", i) for i in range(NA)]
        self.stream(units, 32, NA, G, gaps, mid, extra)
    def final_bodies(self):
        A = self.A; NA = self.nahead; G = self.wgrp; bp = 16 - NA
        lm = lambda u, qb: f"{MF} {vt(LACC+4*qb,4)}, {vt(ONES,4)}, {vt(P0+8*u+4*qb,4)}, {vt(LACC+4*qb,4)}"
        bb29, ba30, bb30, ba31 = 32 + 2 * bp + 1, 64 + 2 * bp + 1, 96 + 2 * bp + 1, 128
        todo = []
        for v in range(4):
            for qb in range(2):
                todo.append((33, [self.ostore(HELD + 8*v + 4*qb, v, qb)] + ([f"s_add_u32 {sOT}, {sOT}, 4096"] if qb else []), "OA"))
        for slot, first in [(2, 33), (6, 33), (7, 33), (8, 33), (9, 33), (0, bb29), (5, ba30), (1, bb30), (3, ba31)][:self.npk]:
            todo.append((first, slot, None))
        plan = {}; pos = 33
        for first, what, tag in todo:
            groups = [what] if tag else self.tile_Wo(what)
            if not tag:
                if max(pos, first) + 3 * self.fsp >= 158: self.wcnt -= 1; break
                self.parks.append(("lds", what))
            for g in groups:
                pos = max(pos, first)
                plan[pos] = (g, tag or "PK"); pos += self.fsp
        def run(t, units, nun, off, exps, waits, extra):
            ng = 2 * nun
            gaps = [[] for _ in range(ng)]; base = [0] * ng; vmat = {}
            for i in range(nun):
                nr = len(units[i + NA][2]) if i + NA < len(units) else 0
                base[2 * i] += 4 * min(1, nr); base[2 * i + 1] += 4 * max(0, nr - 1)
            if t == 29:
                ps = [p + 1 for p in self.latepos[:3]] + [31]
                self.place(gaps, base, self.tile_KV(False, 1), ps)
                for p in ps: vmat[p] = ("V", 31)
            for p, (g, tag) in plan.items():
                if off <= p < off + ng:
                    gaps[p - off] += g; base[p - off] += sum(self.cost(l) for l in g); vmat[p - off] = tag
            for ops, lo, hi in exps: self.spread(ops, gaps, lo, hi, base)
            done = [0]
            def log(upto):
                for p in range(done[0], upto):
                    if p in vmat: self.vm_issue(vmat[p], 1)
                done[0] = upto
            def mid(i):
                log(2 * i)
                if i in waits:
                    if waits[i]: A(f"s_waitcnt vmcnt({self.vm_need(waits[i])})")
                    A("s_barrier")
            self.stream(units, nun, NA, G, gaps, mid, extra)
            log(ng)
        def check(k):
            A(f"v_cmp_lt_f32 vcc, {sThr}, {vMc}"); A(f"s_cbranch_vccz L_f{k}"); A(f"s_call_b64 {sLink2}, L_rare"); A.label(f"L_f{k}")
            A(f"s_add_u32 {sT}, {sT}, 1")
        ex2 = {16 + 3: lm(0, 0), 16 + 7: lm(0, 1), 16 + 11: lm(1, 0), 16 + 15: lm(1, 1)}
        check(28)
        for t in (29, 30):
            c = t % 6; S, Sn = (SA, SB) if c % 2 == 0 else (SB, SA)
            units = self.qk_units(Sn, (c + 1) % 3) + self.pv_units(c % 3) + (self.qk_units(S, (c + 2) % 3, "kn")[:NA] if t == 29 else [])
            A.lds_q = [("k", i) for i in range(NA)]
            run(t, units, 32, 64 * (t - 29),
                [(self.exp_ops(S, 0, self.split), 0, 32), (self.exp_ops(S, self.split, 32), 32, 32 + self.lim), (self.max_ops(Sn), 32 + self.lim, 64)],
                {bp: ("V", t), 16 + bp: ("K", 31) if t == 29 else None}, ex2)
            self.istamp()
            check(t)
        units = self.pv_units(1)
        e = self.exp_ops(SB, 0, 32)
        k0 = next(i for i, l in enumerate(e) if l.startswith(f"v_cvt_pk_bf16_f32 v{P0 + 7},")) + 1
        for l in e[:k0 - 6]: A(l)
        A(f"s_waitcnt vmcnt({self.vm_need(('V', 31))})"); A("s_barrier")
        A.lds_reset()
        for i in range(NA):
            for r in units[i][2]: A.lds(*r)
        for l in e[k0 - 6:k0]: A(l)
        A("s_nop 0")
        run(31, units, 16, 128, [(e[k0:], 0, 13)], {}, {3: lm(0, 0), 7: lm(0, 1), 11: lm(1, 0), 15: lm(1, 1)})
        self.istamp()
    def widen(self, a, b):
        return [[f"v_permlane32_swap_b32 v{a}, v{b}", f"v_permlane32_swap_b32 v{a+1}, v{b+1}"],
                [f"v_permlane16_swap_b32 v{a}, v{b}", f"v_permlane16_swap_b32 v{a+1}, v{b+1}"]]
    def qfin_ops(self, from_acc, steps=range(4), AQ=AQ):
        pair = vt(int(vF[0][1:]), 2); out = []
        for s in steps:
            t = P0 if from_acc else O0 + 16 * s
            if from_acc: out += [f"v_accvgpr_read_b32 v{t+j}, a{AACC+16*s+j}" for j in range(16)]
            out += [f"v_pk_mul_f32 {vt(t+2*j,2)}, {vt(t+2*j,2)}, {pair}" for j in range(8)]
            for q4 in range(4): out += [f"v_cvt_pk_bf16_f32 v{t+4*q4+j}, v{t+4*q4+2*j}, v{t+4*q4+2*j+1}" for j in range(2)]
            w0, w1 = self.widen(t, t + 8), self.widen(t + 4, t + 12)
            out += ["s_nop 0"] + w0[0] + w1[0] + w0[1] + w1[1]
            for qb in range(2):
                for j, r in enumerate((t + 4*qb, t + 4*qb + 1, t + 8 + 4*qb, t + 8 + 4*qb + 1)):
                    out.append(f"v_accvgpr_write_b32 a{AQ+16*qb+4*s+j}, v{r}")
        return out
    def zero_acc(self): return [f"v_accvgpr_write_b32 a{AACC+i}, 0" for i in range(64)]
    def epilogue(self, hold):
        A = self.A
        A("s_nop 4")
        for qb in range(2):
            A(f"v_rcp_f32 v{vInv+2*qb}, v{LACC+4*qb}"); A(f"v_rcp_f32 v{vInv+2*qb+1}, v{LACC+4*qb}")
        A("s_nop 0")
        for v in range(4):
            for qb in range(2):
                src = [O0 + 16*v + 4*qb, O0 + 16*v + 8 + 4*qb]
                dst = HELD + 8*v + 4*qb if hold else SA + 8*v + 4*qb
                for b in src:
                    for j in range(2): A(f"v_pk_mul_f32 {vt(b+2*j,2)}, {vt(b+2*j,2)}, {vt(vInv+2*qb,2)}")
                for k, b in enumerate(src):
                    for j in range(2): A(f"v_cvt_pk_bf16_f32 v{dst+2*k+j}, v{b+2*j}, v{b+2*j+1}")
                if not hold: A(self.ostore(dst, v, qb))
            if not hold: A(f"s_add_u32 {sOT}, {sOT}, 4096")
    def warm_loads(self):
        A = self.A
        A(f"s_lshl_b32 {sT0}, s2, 14"); A(f"s_add_u32 {sT0}, {sT0}, {sW4K}")
        for i in range(4): A(f"buffer_load_dwordx4 {vt(vInv, 4)}, {vL16}, {srd(SWO)}, {sT0} offen offset:{i*1024}")
        self.vm_issue(("WARM",), 4)
    def ostore(self, reg, v, qb):
        return f"buffer_store_dwordx4 {vt(reg,4)}, {vL16}, {srd(SWS)}, {sOT} offen offset:{qb*1024}{self.stf}"
    def store_held(self):
        for v in range(4):
            for qb in range(2): self.A(self.ostore(HELD + 8*v + 4*qb, v, qb))
            self.A(f"s_add_u32 {sOT}, {sOT}, 4096")
    def make_srd(self, b, p, size):
        A = self.A
        A(f"s_mov_b32 s{b}, s{p}"); A(f"s_mov_b32 s{b+1}, s{p+1}")
        A(f"s_mov_b32 s{b+2}, 0x{size:x}"); A(f"s_mov_b32 s{b+3}, 0x20000")
    def one_lane(self, lines, wave0=False):
        A = self.A
        lab = A.newlabel("Lo")
        if wave0: A(f"s_cmp_eq_u32 {sW}, 0"); A(f"s_cbranch_scc0 {lab}")
        A("s_mov_b64 exec, 1")
        for l in lines: A(l)
        A("s_mov_b64 exec, -1")
        if wave0: A.label(lab)
    def spin(self, name, cmp_line, load_line, sleep):
        A = self.A
        A(f"s_mov_b32 {sSpin}, 0x40000")
        A.label(name)
        A(cmp_line)
        A(f"s_cbranch_vccz {name}_ok")
        A(f"s_sub_u32 {sSpin}, {sSpin}, 1"); A(f"s_cbranch_scc1 {name}_ok")
        if sleep: A(f"s_sleep {sleep}")
        A(load_line)
        A("s_waitcnt vmcnt(0)")
        A(f"s_branch {name}")
        A.label(name + "_ok")
    def rowmax(self, floor):
        A = self.A
        for qb, tm in ((0, vTm), (1, vMc)): A(f"v_mov_b32 {tm}, {vMx[qb]}")
        A("s_nop 0")
        for qb, tm in ((0, vTm), (1, vMc)): A(f"v_permlane32_swap_b32 {vMx[qb]}, {tm}")
        for qb, tm in ((0, vTm), (1, vMc)): A(f"v_max_f32 {vMx[qb]}, {vMx[qb]}, {tm}")
        for qb, tm in ((0, vTm), (1, vMc)): A(f"v_mov_b32 {tm}, {vMx[qb]}")
        A("s_nop 0")
        for qb, tm in ((0, vTm), (1, vMc)): A(f"v_permlane16_swap_b32 {vMx[qb]}, {tm}")
        for qb, tm in ((0, vTm), (1, vMc)): A(f"v_max3_f32 {vMx[qb]}, {vMx[qb]}, {tm}, {floor}")

    def kernel(self):
        A = self.A
        tg, tl15, tr, tc, ta, tb, td, te = [tmp(i) for i in range(8)]
        A("s_cmp_ge_u32 s2, 256"); A("s_cbranch_scc1 L_end")
        if self.stamps: A("s_memrealtime s[98:99]")
        A("s_load_dwordx16 s[64:79], s[0:1], 0")
        self.stamp(0); self.hstamp(0)
        A("v_lshrrev_b32 v1, 6, v0"); A("v_and_b32 v2, 63, v0")
        A(f"v_readfirstlane_b32 {sW}, v1")
        A(f"v_lshlrev_b32 {vL16}, 4, v2")
        A(f"s_getpc_b64 s[{SCODE}:{SCODE+1}]")
        A.label("L_pc")
        A(f"s_mov_b32 s{SCODE+2}, L_codeend-L_pc"); A(f"s_mov_b32 s{SCODE+3}, 0x20000")
        A(f"s_lshr_b32 {sT0}, s2, 3"); A(f"s_lshl_b32 {sT0}, {sT0}, 2"); A(f"s_add_u32 {sT0}, {sT0}, {sW}")
        A(f"s_and_b32 {sT0}, {sT0}, 63"); A(f"s_lshl_b32 {sT0}, {sT0}, 10")
        A(f"buffer_load_dwordx4 v[128:131], {vL16}, {srd(SCODE)}, {sT0} offen"); self.vm_issue(("CODE",), 1)
        A(f"s_lshl_b32 {sW4K}, {sW}, 12"); A(f"s_lshl_b32 {sW2K}, {sW}, 11")
        A(f"v_lshrrev_b32 {tg}, 4, v2"); A(f"v_and_b32 {tc}, 3, v2")
        A(f"v_lshrrev_b32 {ta}, 2, v2"); A(f"v_lshl_add_u32 {ta}, v1, 5, {ta}")
        A(f"v_sub_u32 {tb}, 0, {tg}"); A(f"v_and_b32 {tb}, 3, {tb}"); A(f"v_xor_b32 {tb}, {tb}, {tc}"); A(f"v_lshlrev_b32 {tb}, 4, {tb}")
        A(f"v_lshl_add_u32 {vXd[0]}, {ta}, 10, {tb}"); A(f"v_add_u32 {vXd[1]}, {16384 - 1024}, {vXd[0]}")
        A(f"v_lshrrev_b32 {ta}, 5, v2"); A(f"v_and_b32 {tb}, 1, v1"); A(f"v_lshl_add_u32 {tb}, {tb}, 2, {ta}"); A(f"v_lshlrev_b32 {tb}, 1, {tb}")
        A(f"v_and_b32 {td}, 31, v2"); A(f"v_xor_b32 {tb}, {tb}, {td}"); A(f"v_lshlrev_b32 {tb}, 4, {tb}")
        A(f"v_lshl_add_u32 {ta}, v1, 3, {ta}"); A(f"v_lshl_add_u32 {vWd[0]}, {ta}, 13, {tb}"); A(f"v_xor_b32 {tb}, 64, {vWd[0]}")
        A(f"v_add_u32 {vWd[1]}, 15360, {tb}"); A(f"v_add_u32 {vWd[2]}, {2*15360}, {vWd[0]}"); A(f"v_add_u32 {vWd[3]}, {3*15360}, {tb}")
        if self.local:
            A(f"s_and_b32 {sBat}, s2, 7"); A(f"s_lshl_b32 {sBat}, {sBat}, 1"); A(f"s_lshr_b32 {sT2}, s2, 7"); A(f"s_add_u32 {sBat}, {sBat}, {sT2}")
            A(f"s_bfe_u32 {sT1}, s2, 0x40003")
            if self.rot == 2: A(f"s_lshl_b32 {sTi}, {sT2}, 3"); A(f"s_add_u32 {sTi}, {sTi}, {sT1}"); A(f"s_and_b32 {sTi}, {sTi}, 15")
            elif self.rot == 1: A(f"s_lshl_b32 {sTi}, {sT2}, 3")
            else: A(f"s_mov_b32 {sTi}, 0")
            A(f"s_lshl_b32 {sT3}, {sT1}, 1")
            A(f"s_and_b32 {sT2}, {sT1}, 3"); A(f"s_lshr_b32 {sT1}, {sT1}, 2"); A(f"s_lshl_b32 {sT1}, {sT1}, 3"); A(f"s_add_u32 {sT1}, {sT1}, {sT2}")
        else:
            A(f"s_and_b32 {sBat}, s2, 1"); A(f"s_lshl_b32 {sBat}, {sBat}, 3")
            A(f"s_bfe_u32 {sT1}, s2, 0x30003"); A(f"s_add_u32 {sBat}, {sBat}, {sT1}")
            A(f"s_lshr_b32 {sT2}, s2, 6")
            if self.rot == 2:
                A(f"s_lshl_b32 {sTi}, {sT2}, 1"); A(f"s_add_u32 {sTi}, {sTi}, {sT1}"); A(f"s_lshl_b32 {sTi}, {sTi}, 1"); A(f"s_and_b32 {sTi}, {sTi}, 15")
            elif self.rot == 1:
                A(f"s_add_u32 {sTi}, {sT2}, {sT1}"); A(f"s_and_b32 {sTi}, {sTi}, 1"); A(f"s_lshl_b32 {sTi}, {sTi}, 3")
            elif self.rot == 3:
                A(f"s_add_u32 {sTi}, {sT2}, {sT1}"); A(f"s_and_b32 {sTi}, {sTi}, 3"); A(f"s_lshl_b32 {sTi}, {sTi}, 2")
            elif self.rot == 4:
                n = 16 - self.ncom
                A(f"s_lshl_b32 {sFloor}, {sT2}, 1"); A(f"s_add_u32 {sFloor}, {sFloor}, {sT1}"); A(f"s_lshl_b32 {sFloor}, {sFloor}, 1")
                for _ in range(2): A(f"s_sub_u32 {sTi}, {sFloor}, {n}"); A(f"s_cselect_b32 {sFloor}, {sFloor}, {sTi}")
                A(f"s_add_u32 {sFloor}, {sFloor}, {self.ncom}"); A(f"s_mov_b32 {sTi}, 0")
            else: A(f"s_mov_b32 {sTi}, 0")
            A(f"s_bfe_u32 {sT1}, s2, 0x20001"); A(f"s_lshl_b32 {sT1}, {sT1}, 3")
            A(f"s_lshl_b32 {sT3}, {sT2}, 1"); A(f"s_add_u32 {sT3}, {sT3}, {sT1}")
            A(f"s_add_u32 {sT1}, {sT1}, {sT2}")
        A(f"s_lshl_b32 {sXb}, {sBat}, 17"); A(f"s_lshl_b32 {sWb}, {sT3}, 8")
        A("s_waitcnt lgkmcnt(0)")
        self.make_srd(SX, 64, 2 << 20); self.make_srd(SWQ, 70, 4 << 20)
        XS = [9 * T, 9 * T + 8192, 2 * T, 2 * T + 8192]; WS_ = [6 * T, 7 * T, 8 * T, 5 * T]
        self.emit_groups(self.tile_XW(XS[0], WS_[0])); self.vm_issue(("P", 0), 6)
        self.stamp(1)
        A(f"s_lshl_b32 {sT2}, {sBat}, 5"); A(f"s_add_u32 {sT2}, {sT2}, {sT3}"); A(f"s_lshl_b32 {sT2}, {sT2}, 18")
        A(f"s_add_u32 s66, s66, {sT2}"); A("s_addc_u32 s67, s67, 0"); A(f"s_add_u32 s68, s68, {sT2}"); A("s_addc_u32 s69, s69, 0")
        A(f"s_mov_b32 {sKoff}, 0"); A(f"s_mov_b32 {sVoff}, 0")
        A(f"s_lshl_b32 {sT0}, {sBat}, 1"); A(f"s_lshr_b32 {sT2}, {sW}, 1"); A(f"s_add_u32 {sT0}, {sT0}, {sT2}")
        A(f"s_lshl_b32 {sFlagP}, {sT0}, 2"); A(f"s_lshr_b32 {sT2}, {sT1}, 3"); A(f"s_add_u32 {sFlagP}, {sFlagP}, {sT2}")
        A(f"s_lshl_b32 {sFlagP}, {sFlagP}, 7"); A(f"s_and_b32 {sT2}, {sT1}, 3"); A(f"s_lshl_b32 {sT2}, {sT2}, 3")
        A(f"s_add_u32 {sFlagP}, {sFlagP}, {sT2}"); A(f"s_and_b32 {sT2}, {sW}, 1"); A(f"s_lshl_b32 {sT1}, {sT2}, 2")
        A(f"s_add_u32 {sFlagP}, {sFlagP}, {sT1}"); A(f"s_add_u32 {sFlagP}, {sFlagP}, {WS_FLAG}")
        A(f"s_lshl_b32 {sT0}, {sT0}, 5"); A(f"s_add_u32 {sT0}, {sT0}, {sT3}"); A(f"s_lshl_b32 {sT0}, {sT0}, 14")
        A(f"s_lshl_b32 {sT2}, {sT2}, 11"); A(f"s_add_u32 {sOT}, {sT0}, {sT2}")
        self.emit_groups(self.tile_XW(XS[1], WS_[1])); self.vm_issue(("P", 1), 6)
        A(f"s_mov_b32 {sC}, 0x{f2u(CSC):08x}"); A(f"s_mov_b32 {sThr}, 0x{f2u(8.0):08x}")
        self.make_srd(SK, 66, 512 << 10); self.make_srd(SV, 68, 512 << 10)
        self.make_srd(SWO, 72, 4 << 20); self.make_srd(SWS, 78, WS_SIZE)
        self.make_srd(SOUT, 74, 2 << 20)
        if self.hdbg: self.make_srd(SDBG, 76, 256)
        A(f"v_and_b32 {tl15}, 15, v2"); A(f"v_lshl_add_u32 {ta}, v1, 4, {tg}")
        A(f"v_lshlrev_b32 {tb}, 1, {tg}"); A(f"v_xor_b32 {tb}, {tb}, {tl15}"); A(f"v_lshlrev_b32 {tb}, 4, {tb}")
        A(f"v_lshl_add_u32 {vVd[0]}, {ta}, 8, {tb}"); A(f"v_xor_b32 {vVd[1]}, 128, {vVd[0]}")
        A(f"v_mov_b32 {vVd[2]}, {vVd[0]}"); A(f"v_mov_b32 {vVd[3]}, {vVd[1]}")
        A(f"v_xor_b32 {tb}, {tl15}, {tg}"); A(f"v_lshlrev_b32 {tb}, 4, {tb}")
        A(f"v_lshl_add_u32 {vKd[0]}, {ta}, 8, {tb}")
        for i in range(1, 4): A(f"v_xor_b32 {vKd[i]}, {64*i}, {vKd[0]}")
        self.emit_groups(self.tile_XW(XS[2], WS_[2])); self.vm_issue(("P", 2), 6)
        A(f"v_lshl_add_u32 {vKa[0]}, {tl15}, 8, {tb}")
        for s in range(1, 4): A(f"v_xor_b32 {vKa[s]}, {64*s}, {vKa[0]}")
        A(f"v_bfe_u32 {tr}, v2, 2, 2")
        A(f"v_sub_u32 {ta}, 0, {tr}"); A(f"v_and_b32 {ta}, 3, {ta}"); A(f"v_xor_b32 {ta}, {ta}, {tg}"); A(f"v_lshlrev_b32 {ta}, 4, {ta}")
        A(f"v_lshl_add_u32 {tb}, v1, 5, {tl15}"); A(f"v_lshl_add_u32 {ta}, {tb}, 6, {ta}")
        A(f"v_add_u32 {vXa}, {XS[0]}, {ta}")
        A(f"v_and_b32 {ta}, 1, {tg}"); A(f"v_lshl_add_u32 {ta}, {ta}, 2, {tr}")
        A(f"v_lshlrev_b32 {ta}, 5, {ta}"); A(f"v_lshl_add_u32 {ta}, {tc}, 3, {ta}")
        A(f"v_lshl_add_u32 {td}, {tg}, 2, {tr}")
        A(f"v_lshl_add_u32 {tb}, {td}, 8, {ta}"); A(f"v_add_u32 {vVa[0]}, {LV}, {tb}")
        for b in range(1, 8): A(f"v_xor_b32 {vVa[b]}, {32*b}, {vVa[0]}")
        A(f"v_lshl_add_u32 {tb}, {tg}, 3, {tr}"); A(f"v_lshl_add_u32 {tb}, {tb}, 9, {ta}"); A(f"v_add_u32 {vWa[0]}, {5*T}, {tb}")
        for b in range(1, 8): A(f"v_xor_b32 {vWa[b]}, {32*b}, {vWa[0]}")
        A(f"v_lshrrev_b32 {ta}, 3, v2"); A(f"v_and_b32 {tb}, 7, v2"); A(f"v_lshlrev_b32 {te}, 1, {tg}"); A(f"v_xor_b32 {tb}, {tb}, {te}")
        A(f"v_lshlrev_b32 {tb}, 4, {tb}"); A(f"v_lshl_add_u32 {vWs[0]}, {ta}, 10, {tb}")
        for i in range(1, 4): A(f"v_add_u32 {vWs[i]}, {i * 7168}, {vWs[0]}")
        A(f"v_bfe_u32 {ta}, {td}, 1, 2"); A(f"v_lshlrev_b32 {ta}, 5, {ta}"); A(f"v_lshl_add_u32 {ta}, {tc}, 3, {ta}")
        A(f"v_lshl_add_u32 {ta}, {td}, 7, {ta}"); A(f"v_add_u32 {vWr}, {sW4K}, {ta}")
        A(f"v_cmp_eq_u32 vcc, 0, {tc}"); A(f"v_mov_b32 {ta}, 0x3f803f80"); A(f"v_mov_b32 {vZero}, 0")
        for k in range(4): A(f"v_cndmask_b32 v{ONES+k}, 0, {ta}, vcc")
        for k in range(16): A(f"v_mov_b32 v{LACC+k}, 0")
        A(f"s_and_b32 {sT0}, s2, 7"); A(f"s_lshl_b32 {sT0}, {sT0}, 2"); A(f"s_lshr_b32 {sT1}, s2, 6")
        A(f"s_add_u32 {sB2}, {sT0}, {sT1}")
        A(f"s_lshl_b32 {sT0}, {sB2}, 19"); A(f"s_lshl_b32 {sT1}, {sW}, 17"); A(f"s_add_u32 {sAreal}, {sT0}, {sT1}")
        A(f"s_bfe_u32 {sT0}, s2, 0x30003"); A(f"s_lshl_b32 {sT0}, {sT0}, 7")
        A(f"s_lshl_b32 {sT1}, {sW}, 20"); A(f"s_add_u32 {sWP}, {sT0}, {sT1}")
        if self.rotO:
            A(f"s_bfe_u32 {sT0}, s2, 0x30003"); A(f"s_lshr_b32 {sT1}, s2, 6"); A(f"s_lshl_b32 {sT1}, {sT1}, 1"); A(f"s_add_u32 {sT0}, {sT0}, {sT1}")
            if self.rotO == 1: A(f"s_lshl_b32 {sT0}, {sT0}, 2"); A(f"s_and_b32 {sQw}, {sT0}, 31")
            elif self.rotO == 3: A(f"s_bfe_u32 {sT0}, s2, 0x30003"); A(f"s_lshl_b32 {sQw}, {sT0}, 2")
            elif self.rotO == 5:
                A(f"s_bfe_u32 {sT0}, s2, 0x30003"); A(f"s_lshl_b32 {sRot}, {sT0}, 2"); A(f"s_lshr_b32 {sV9}, s2, 6")
                if self.rotW == 8:
                    A(f"s_lshl_b32 {sV9}, {sV9}, 1"); A(f"s_and_b32 {sT0}, {sT0}, 1"); A(f"s_add_u32 {sV9}, {sV9}, {sT0}"); A(f"s_and_b32 {sRot}, {sRot}, 24")
                A(f"s_or_b32 {sQw}, {sRot}, {sV9}")
            else:
                if self.rotW == 16: A(f"s_lshl_b32 {sT0}, {sT0}, 1")
                A(f"s_and_b32 {sQw}, {sT0}, {self.rotW - 1}"); A(f"s_mov_b32 {sRot}, {sQw}")
        else: A(f"s_mov_b32 {sQw}, 0")
        A(f"s_mov_b32 {sQa}, {sQw}")
        A(f"s_lshl_b32 {sFlagC}, {sB2}, 2"); A(f"s_add_u32 {sFlagC}, {sFlagC}, {sW}"); A(f"s_lshl_b32 {sFlagC}, {sFlagC}, 7")
        A(f"s_add_u32 {sFlagC}, {sFlagC}, {WS_FLAG}")
        A(f"v_and_b32 {vPoff}, 7, v2"); A(f"v_lshlrev_b32 {vPoff}, 2, {vPoff}")
        A(f"buffer_load_dword {vPoll}, {vPoff}, {srd(SWS)}, {sFlagC} offen sc1")
        A(f"buffer_load_dword {vOne}, {vZero}, {srd(SWS)}, {sFlagP} offen sc1"); self.vm_issue(("FZ",), 2)
        if self.warm == 1: self.warm_loads()
        NA = self.pna; BP = 16 - NA; NU = 256
        XF = lambda pi, qb: at(AKF + 8 * (pi % 2) + 4 * qb, 4)
        units = []
        for pi in range(16):
            for t in range(16):
                m = 16 * pi + t; fr = AVF + 4 * (m % 8)
                D = lambda qb: vt(O0 + 8*t + 4*qb, 4) if t < 8 else at(AACC + 8*(t-8) + 4*qb, 4)
                wo_ = WS_[pi % 4] - 5 * T + (t // 8) * 256
                units.append(([f"{MF} {D(qb)}, {at(fr,4)}, {XF(pi, qb)}, {'0' if pi == 0 else D(qb)}" for qb in range(2)],
                              [("w", m), ("x", pi)],
                              [(f"ds_read_b64_tr_b16 {at(fr,2)}, {vWa[t % 8]} offset:{wo_}", ("w", m)),
                               (f"ds_read_b64_tr_b16 {at(fr+2,2)}, {vWa[t % 8]} offset:{wo_ + 2048}", ("w", m))]))
        sched = []
        early = [("K", 0), ("K", 1), ("V", 0), ("V", 1)]
        for j in range(3, 16):
            first = 0 if j == 3 else 16 * (j - 3) + BP
            sched.append((first, ("P", j), self.tile_XW(XS[j % 4], WS_[j % 4])))
            for (kind, sl), at_ in zip(early, self.kvpos):
                if at_ == j - 3: sched.append((first, (kind, sl), self.tile_KV(kind == "K", sl)))
        gaps = [[] for _ in range(2 * NU)]; vmat = {}
        pos = 0
        for first, tag, groups in sched:
            for g in groups:
                pos = max(pos, first)
                g = [("s_nop 0" if l == "@M0" else l) for l in g]
                k = max(i for i, l in enumerate(g) if l.startswith("buffer_"))
                gaps[2 * pos] += g[:k]; gaps[2 * pos + 1] += g[k:]; vmat[pos] = tag
                pos += 1
        xrd = lambda pi, qb: (f"ds_read_b128 {XF(pi, qb)}, {vXa} offset:{qb * 1024}", ("x", pi))
        def mid(m):
            pi, k = m // 16, m % 16
            if m - 1 in vmat: self.vm_issue(vmat[m - 1], 1)
            if pi < 15:
                if k == 2: A(f"v_add_u32 {vXa}, {XS[(pi + 1) % 4] - XS[pi % 4]}, {vXa}")
                if k == BP:
                    A(f"s_waitcnt vmcnt({self.vm_need(('P', pi + 1))})"); A("s_barrier")
                    if pi % 2 == 1: self.stamp(3 + pi // 2)
                if BP < k <= BP + 2: A.lds(*xrd(pi + 1, k - BP - 1))
        A(f"s_waitcnt vmcnt({self.vm_need(('P', 0))})")
        A("s_barrier")
        self.stamp(2); self.hstamp(1)
        A.lds_reset()
        for qb in range(2): A.lds(*xrd(0, qb))
        for m in range(NA):
            for r in units[m][2]: A.lds(*r)
        self.stream(units, NU, NA, self.pg, gaps, mid)
        assert NU - 1 not in vmat
        A(f"v_mov_b32 {vF[0]}, {sC}"); A(f"v_mov_b32 {vF[1]}, {sC}")
        for k in range(8): A(f"v_mov_b32 v{NEG+k}, 0")
        A(f"s_waitcnt vmcnt({self.vm_need(('K', 0))})")
        A("s_barrier")
        NB = self.nahead
        units = self.qk_units(SA, 0) + self.qk_units(SB, 1, "kn")[:NB]
        for i in range(NB): A.lds(*units[i][2][0])
        g = self.tile_KV(True, 2); self.vm_issue(("K", 2), 4)
        qa = self.qfin_ops(False); n4 = len(qa) // 4
        for i in range(4):
            self.emit_groups(g[i:i+1])
            for l in qa[n4*i:n4*i+n4]: A(l)
        self.stamp(10); self.hstamp(2)
        gaps = [[] for _ in range(32)]; base = [4, 0] * 16
        if self.epark:
            grp = [x for k in range(4) for x in self.tile_Wo(6 + k)]
            self.parks += [("lds", 6 + k) for k in range(4)]
            for i, gq in enumerate(grp):
                gaps[2 * i] += gq[:-1]; gaps[2 * i + 1] += gq[-1:]; base[2 * i] += 4 * (len(gq) - 1); base[2 * i + 1] += 16
        self.spread([f"v_mov_b64 {vt(O0+2*k,2)}, 0" for k in range(32)], gaps, 0, 32, base)
        def mid0(i):
            if self.epark and i > 0: self.vm_issue(("EP",), 1)
            if i == 16 - NB: A(f"s_waitcnt vmcnt({self.vm_need(('K', 1))})"); A("s_barrier")
        self.stream(units, 16, NB, self.wgrp, gaps, mid0)
        if self.epark: self.vm_issue(("EP",), 1)
        A("s_barrier")
        g = self.tile_KV(True, 0); self.vm_issue(("K", 3), 4)
        self.emit_groups(g[:2])
        for l in self.max_ops(SA): A(l)
        self.emit_groups(g[2:])
        if self.warm == 2: self.warm_loads()
        A(f"s_mov_b32 {sT}, 0")
        A(f"s_call_b64 {sRet}, L_init")
        n1, n2, n3 = self.simulate_loop()
        self.n = (n1, n2, n3)
        xs = {14, 15, 28} | set(self.qbt)
        xs |= set(self.mid) | {t + 2 for t in self.mid}
        xmask = sum(1 << t for t in xs)
        A.label("L_loop")
        for c in range(6):
            self.body(c, n1, n2)
            self.istamp()
            A(f"s_bitcmp1_b32 0x{xmask:08x}, {sT}"); A(f"s_cbranch_scc1 L_x_{c}")
            A.label(f"L_c_{c}")
            A(f"v_cmp_lt_f32 vcc, {sThr}, {vMc}")
            A(f"s_cbranch_vccnz L_r_{c}")
            A.label(f"L_n_{c}")
            A(f"s_add_u32 {sT}, {sT}, 1")
        A("s_branch L_loop")
        for c in range(6):
            A.label(f"L_x_{c}"); A(f"s_call_b64 {sRet}, L_extras"); A(f"s_branch L_c_{c}")
            A.label(f"L_r_{c}"); A(f"s_call_b64 {sLink2}, L_rare"); A(f"s_branch L_n_{c}")
        A(".p2align 3")
        ssub = lambda S: [f"v_sub_f32 v{S+i}, v{S+i}, {vMx[(i//4)%2]}" for i in range(32)]
        A.label("L_init")
        A(f"s_mov_b32 {sFloor}, 0x{f2u(-1e30):08x}")
        self.rowmax(sFloor)
        for i in range(8): A(f"v_sub_f32 v{NEG+i}, 0, {vMx[i//4]}")
        for l in ssub(SA): A(l)
        A(f"v_mov_b32 {vMc}, 0")
        A(f"s_setpc_b64 {sRet}")
        A.label("L_rare")
        self.rowmax("0")
        for qb in range(2): A(f"v_exp_f32 {vF[qb]}, -{vMx[qb]}")
        for i in range(8): A(f"v_sub_f32 v{NEG+i}, v{NEG+i}, {vMx[i//4]}")
        for qb in range(2): A(f"v_mul_f32 v{LACC+4*qb}, {vF[qb]}, v{LACC+4*qb}")
        for i in range(64): A(f"v_mul_f32 v{O0+i}, {vF[(i//4)%2]}, v{O0+i}")
        A(f"s_bitcmp1_b32 {sT}, 0"); A("s_cbranch_scc1 L_rare_a")
        for l in ssub(SB): A(l)
        A(f"s_setpc_b64 {sLink2}")
        A.label("L_rare_a")
        for l in ssub(SA): A(l)
        A(f"s_setpc_b64 {sLink2}")
        def tree(ts):
            if len(ts) == 1:
                A(f"s_branch L_t{ts[0]}"); return
            if len(ts) == 2:
                A(f"s_cmp_eq_u32 {sT}, {ts[0]}"); A(f"s_cbranch_scc1 L_t{ts[0]}"); A(f"s_branch L_t{ts[1]}"); return
            h = len(ts) // 2; lab = A.newlabel("Ld")
            A(f"s_cmp_ge_u32 {sT}, {ts[h]}"); A(f"s_cbranch_scc1 {lab}")
            tree(ts[:h]); A.label(lab); tree(ts[h:])
        A.label("L_extras")
        tree(sorted(xs))
        for t in sorted(xs):
            if t == 28: continue
            A.label(f"L_t{t}")
            if t in self.qbt:
                A(f"v_mov_b32 {vF[0]}, {sC}"); A(f"v_mov_b32 {vF[1]}, {sC}")
                for l in self.qfin_ops(True, [self.qbt.index(t)], AQ2): A(l)
            if t == 14:
                A(f"v_cmp_lt_f32 vcc, {sThr}, {vMc}")
                A("s_cbranch_vccz L_x14b")
                A(f"s_call_b64 {sLink2}, L_rare")
                A.label("L_x14b")
                if self.qbt:
                    for k in range(32): A(f"v_accvgpr_mov_b32 a{AQ+k}, a{AQ2+k}")
                else:
                    A(f"v_mov_b32 {vF[0]}, {sC}"); A(f"v_mov_b32 {vF[1]}, {sC}")
                    for l in self.qfin_ops(True): A(l)
                for k in range(8): A(f"v_mov_b32 v{NEG+k}, 0")
                A(f"v_mov_b32 {vMc}, 0")
            if t == 15:
                self.epilogue(True)
                for i in range(32): A(f"v_mov_b64 {vt(O0+2*i,2)}, 0")
                A(f"v_mov_b32 v{LACC}, 0"); A(f"v_mov_b32 v{LACC+4}, 0")
                self.stamp(11)
                A("s_branch L_init")
                continue
            if t - 2 in self.mid:
                i = self.mid.index(t - 2)
                A("s_waitcnt vmcnt(16)")
                for nb in range(4):
                    A(f"v_xor_b32 {vTm}, {32*nb}, {vWr}"); A(f"v_add_u32 {vTm}, {(6 + i % 4) * T}, {vTm}")
                    for hf in range(2): A(f"ds_read_b64_tr_b16 {at(AFREE + 16*i + 4*nb + 2*hf, 2)}, {vTm} offset:{hf*2048}")
                A("s_waitcnt lgkmcnt(0)")
            if t in self.mid:
                self.emit_groups(self.tile_Wo(6 + self.mid.index(t) % 4)); self.parks.append(("reg", self.mid.index(t)))
            A(f"s_setpc_b64 {sRet}")
        A.label("L_t28")
        self.final_bodies()
        self.stamp(12)
        self.tail()
        self.hstamp(14)
        if self.hdbg: A("s_waitcnt vmcnt(0)")
        self.hstamp(15)
        self.dump_stamps()
        A.label("L_end")
        A("s_endpgm")
        A.label("L_codeend")

    def tail(self):
        A = self.A
        vm = []
        def need(tag): return min(63, len(vm) - 1 - max(i for i, q in enumerate(vm) if q == tag)) if tag in vm else 63
        vRd = [[f"v{16 + 4*k + nb}" for nb in range(4)] for k in range(3)]
        vFl, vLin, vPol2 = vPoff, "v29", "v30"
        NP0 = len(self.parks); nmid = len(self.mid)
        slot_of = {p: k for p, (kind, k) in enumerate(self.parks) if kind == "lds"}
        reg_of = {p: at_ for p, (kind, at_) in enumerate(self.parks) if kind == "reg"}
        free = [k for k in (6, 7, 8, 9, 4, 3, 5, 0, 1, 2) if k not in slot_of.values()]
        spare = [("a", AFREE + 16 * k) for k in range(nmid, 6)] + [("v", P0), ("v", HELD), ("v", HELD + 16), ("v", SB), ("v", SB + 16)]
        spare2 = [("v", 240), ("v", 48), ("v", O0 + 32), ("v", O0 + 48), ("v", SA), ("v", SA + 16)]
        wreg = {p: ("a", AFREE + 16 * k) for p, k in reg_of.items()}
        moves = sorted(slot_of)[:min(self.nreg, len(spare))]
        for p, r in zip(moves, spare): wreg[p] = r
        pollB = f"buffer_load_dword {vPol2}, {vFl}, {srd(SWS)}, {sFlagC} offen sc1"
        vm.append("poll")
        A(f"v_add_u32 {vOne}, 1, {vOne}")
        self.epilogue(False); vm += ["OB"] * 8
        self.stamp(13)
        for k in range(3):
            A(f"v_add_u32 {vRd[k][0]}, {k * 65536}, {vWr}")
            for nb in range(1, 4): A(f"v_xor_b32 {vRd[k][nb]}, {32*nb}, {vRd[k][0]}")
        A(f"v_add_u32 {vLin}, {sW4K}, {vL16}")
        A("s_barrier")
        NS = 5
        ASET = lambda p: (lambda j, n: at(AQ + 16 * (p % NS) + j, n) if p % NS < 2 else at(AKF + 16 * (p % NS - 2) + j, n))
        ring = {}
        def WSET(p):
            if p in wreg:
                k, bb = wreg[p]
                return (lambda j, n: at(bb + j, n)) if k == "a" else (lambda j, n: vt(bb + j, n))
            if p not in ring: ring[p] = len(ring) % (2 if self.wall else 3)
            return lambda j, n: vt(O0 + 16 * ring[p] + j, n)
        def wgroups(p):
            slot_of[p] = free.pop(0)
            return [(x, ("W", p)) for x in self.tile_Wo(slot_of[p])]
        def agroups(p):
            g = [self.aload(ASET(p), j, sAoff) for j in range(4)]
            g[0] = [f"s_lshl_b32 {sAoff}, {sQa}, 12", f"s_add_u32 {sAoff}, {sAoff}, {sAreal}"] + g[0]
            nq = self.nextq(sQa, p)
            if self.rotO == 5: g[1] = nq[0] + g[1]; g[2] = nq[1] + g[2]
            else:
                for i, l in enumerate(nq): g[1 + i] = [l] + g[1 + i]
            return [(x, ("A", p)) for x in g]
        def wreads(p):
            base = slot_of[p] * T
            return [f"ds_read_b64_tr_b16 {WSET(p)(4*nb + 2*hf, 2)}, {vRd[base // 65536][nb]} offset:{base % 65536 + hf*2048}"
                    for nb in range(4) for hf in range(2)]
        def emit(g):
            for l in g[0]: A(l)
            vm.append(g[1])
        wn = NP0; an = 0
        for _ in range(min(len(free), self.wfirst)):
            for g in wgroups(wn): emit(g)
            wn += 1
        A(f"s_waitcnt vmcnt({need('poll')})")
        A.lds_reset()
        for i, p in enumerate(moves):
            for l in wreads(p): A(l)
            if i % 2 == 1 or i == len(moves) - 1: A("s_waitcnt lgkmcnt(0)")
            free.append(slot_of[p])
        A(f"s_waitcnt vmcnt({need('OB')})")
        self.one_lane([f"buffer_store_dword {vOne}, {vZero}, {srd(SWS)}, {sFlagP} offen sc1"]); vm.append("fl")
        self.stamp(14); self.hstamp(11)
        if self.early_poll: A(pollB); vm.append("pb")
        while free and wn < 32:
            for g in wgroups(wn): emit(g)
            wn += 1
        if self.wall:
            cand = [p for p in sorted(slot_of) if p not in wreg]
            for p, r in zip(cand, spare[len(moves):] + spare2):
                if wn >= 32: break
                wreg[p] = r
                A(f"s_waitcnt vmcnt({need(('W', p))})")
                for l in wreads(p): A(l)
                A("s_waitcnt lgkmcnt(0)")
                free.append(slot_of[p])
                for g in wgroups(wn): emit(g)
                wn += 1
        if not self.early_poll: A(pollB); vm.append("pb")
        self.stamp(15)
        A(f"s_waitcnt vmcnt({need('pb')})")
        self.spin("L_c2", f"v_cmp_eq_u32 vcc, {vPoll}, {vPol2}", pollB, 0)
        self.stamp(18); self.hstamp(12)
        while an < self.aahead:
            for g in agroups(an): emit(g)
            an += 1
        if 0 not in wreg:
            A(f"s_waitcnt vmcnt({need(('W', 0))})")
            for l in wreads(0): A.lds(l, ("w", 0))
        for p in range(32):
            tags = [("A", p)] + ([("W", p + 1)] if p < 31 else [])
            A(f"s_waitcnt vmcnt({min(need(tg) for tg in tags)})")
            A.lds_wait(("w", p))
            if p not in wreg: free.append(slot_of[p])
            gs = []
            if an < 32: gs += agroups(an); an += 1
            if wn < 32 and free: gs = [x for pr in itertools.zip_longest(gs, wgroups(wn)) for x in pr if x]; wn += 1
            assert p + 1 in wreg or p + 1 in slot_of or p == 31
            rds = wreads(p + 1) if p + 1 < 32 and p + 1 not in wreg else []
            step = 2 if len(gs) > 4 else 4
            k = 0
            for nb in range(4):
                for q in range(4):
                    d = at(AACC + 16 * q + 4 * nb, 4)
                    A(f"{MF} {d}, {WSET(p)(4*nb, 4)}, {ASET(p)(4*q, 4)}, {d if p else 0}")
                    if k % 2 == 1 and k // 2 < len(rds): A.lds(rds[k // 2], ("w", p + 1))
                    if k % step == 0 and k // step < len(gs): emit(gs[k // step])
                    k += 1
        self.stamp(16); self.hstamp(13)
        A(f"v_lshl_add_u32 v3, v1, 14, {vL16}")
        A("v_and_b32 v5, 15, v2"); A("v_lshrrev_b32 v6, 4, v2"); A("v_lshlrev_b32 v5, 10, v5"); A("v_lshl_add_u32 v5, v6, 4, v5")
        A(f"s_lshl_b32 {sT0}, {sB2}, 16"); A(f"s_lshl_b32 {sT1}, {sW}, 14"); A(f"s_add_u32 {sT0}, {sT0}, {sT1}")
        A(f"s_bfe_u32 {sT1}, s2, 0x30003"); A(f"s_lshl_b32 {sT1}, {sT1}, 7"); A(f"s_add_u32 {sT0}, {sT0}, {sT1}")
        for blk in range(4):
            for q in range(4):
                A(f"ds_write_b128 {vLin}, {at(AACC+16*blk+4*q,4)} offset:{blk*16384+q*1024}")
                if (blk * 4 + q) % 8 == 7: A("s_waitcnt lgkmcnt(0)")
        A("s_barrier")
        for src in range(4):
            for q in range(4):
                A(f"ds_read_b128 {vt(64+16*src+4*q,4)}, v3 offset:{src*4096+q*1024}")
            if src == 2: A("s_waitcnt lgkmcnt(4)")
        A("s_waitcnt lgkmcnt(0)")
        for i in range(16): A(f"v_add_f32 v{64+i}, v{64+i}, v{80+i}")
        for i in range(16): A(f"v_add_f32 v{96+i}, v{96+i}, v{112+i}")
        for i in range(16): A(f"v_add_f32 v{64+i}, v{64+i}, v{96+i}")
        for j in range(8): A(f"v_cvt_pk_bf16_f32 v{80+j}, v{64+2*j}, v{64+2*j+1}")
        w0, w1 = self.widen(80, 82), self.widen(84, 86)
        A("s_nop 0")
        for l in w0[0] + w1[0] + w0[1] + w1[1]: A(l)
        A(f"buffer_store_dwordx4 {vt(80,4)}, v5, {srd(SOUT)}, {sT0} offen")
        A(f"buffer_store_dwordx4 {vt(84,4)}, v5, {srd(SOUT)}, {sT0} offen offset:64")

    def dump_stamps(self):
        if not self.stamps: return
        A = self.A
        A("s_waitcnt vmcnt(0)")
        self.stamp(17)
        A("s_memrealtime s[100:101]")
        A("s_getreg_b32 s3, hwreg(HW_REG_XCC_ID)")
        A("s_waitcnt lgkmcnt(0)")
        A(f"v_writelane_b32 v{VST}, s98, 61"); A(f"v_writelane_b32 v{VST}, s100, 62"); A(f"v_writelane_b32 v{VST}, s3, 63")
        A(f"s_lshl_b32 {sT1}, s2, 2"); A(f"s_add_u32 {sT1}, {sT1}, {sW}"); A(f"s_mul_i32 {sT1}, {sT1}, 768")
        A(f"s_add_u32 {sT1}, {sT1}, {WS_STAMP}")
        A(f"v_lshrrev_b32 v3, 2, {vL16}")
        for k in range(3): A(f"buffer_store_dword v{VST+k}, v3, {srd(SWS)}, {sT1} offen offset:{256*k}")

HDR = open("standalone__mha_block_cached__near_ridge.s.ref").read().split("; Override")[0]
def desc(name):
    return f""".amdhsa_kernel {name}
  .amdhsa_next_free_vgpr 512
  .amdhsa_next_free_sgpr 102
  .amdhsa_accum_offset 256
  .amdhsa_group_segment_fixed_size 0
  .amdhsa_kernarg_size 64
  .amdhsa_user_sgpr_count 2
  .amdhsa_user_sgpr_kernarg_segment_ptr 1
  .amdhsa_system_sgpr_workgroup_id_x 1
.end_amdhsa_kernel
"""
def build(path, verbose=False, cls=None, **kw):
    g = (cls or Gen)(**kw); g.kernel()
    la = align8(g.A.lines, g.nops)
    bad = check_hazards(la)
    print(path, "hazards:", bad, "lines", len(la))
    if verbose: print(g.n)
    s = HDR + "; @launch grid=(256,1,1) block=(256,1,1) lds=163840\n"
    s += '.amdgcn_target "amdgcn-amd-amdhsa--gfx950"\n.text\n'
    s += f".globl {KN}\n.p2align 8\n.type {KN},@function\n{KN}:\n" + "\n".join(la) + "\n"
    s += '.section .rodata,"a"\n.p2align 6\n' + desc(KN)
    open(path, "w").write(s)
if __name__ == "__main__":
    build("v26h1.s", hdbg=1)
    build("v26h2.s", hdbg=100)
```

```python
import sys, math, struct, itertools
sys.path.insert(0, "work")
from asmlib import Asm, check_hazards, align8

KN = "standalone__mha_block_cached__near_ridge_kernel"
def f2u(x): return struct.unpack("<I", struct.pack("<f", x))[0]
CSC = math.log2(math.e) / math.sqrt(128.0)
T = 16384
LK, LV = 0, 3 * T
WS_FLAG = 16 << 20
WS_STAMP = 21 << 20
WS_SIZE = 22 << 20
SK, SV, SX, SWQ, SWO, SWS, SOUT, SDBG = 4, 8, 12, 16, 20, 24, 28, 32
def srd(b): return f"s[{b}:{b+3}]"
sW, sW4K, sKoff, sVoff, sW2K, sWP, sThr, sT, sC, sQw, sFloor, sQa = [f"s{i}" for i in range(36, 48)]
sXoff, sWoff, sOT, sT0, sT1, sT2 = [f"s{i}" for i in range(48, 54)]
sLink = "s[54:55]"; sRet = "s[92:93]"; sLink2 = "s[94:95]"
sAoff, sWToff, sB2, sT3, sRot = [f"s{i}" for i in range(56, 61)]
sV9 = "s61"
sTi, sXb, sWb, sAreal, sFlagP, sFlagC, sBat, sSpin = [f"s{i}" for i in range(80, 88)]
SCODE = 88
vWs = ["v3", "v4", "v5", "v6"]; vWr = "v7"
vInv = 8
vPoll = "v12"; vPoff = "v13"; vZero = "v14"; vOne = "v15"
vKa = [f"v{i}" for i in range(16, 20)]
vVa = [f"v{i}" for i in range(20, 28)]
vKd = [f"v{i}" for i in range(28, 32)]
vMx = ["v34", "v35"]; vMc = "v36"; vTm = "v37"; vF = ["v38", "v39"]; vL16 = "v40"
vVd = ["v32", "v33", "v240", "v241"]
VST = 41
ONES, LACC, NEG = 44, 48, 56
O0, SA, SB, P0, HELD = 64, 128, 160, 192, 208
vWa = [f"v{i}" for i in range(160, 168)]; vXa = "v168"; vXd = ["v169", "v170"]; vWd = [f"v{i}" for i in range(171, 175)]
AQ2 = 224
LX = 6 * T
QT = [1, 3, 5, 7, 9, 11, 12, 13]
def XR(pi, s, qb):
    k = 16 * pi + 8 * s + 4 * qb
    return at(160 + k, 4) if k < 96 else vt(208 + k - 96, 4)
def tmp(i): return f"v{176 + i}"
AQ, AACC, AKF, AVF, AFREE = 0, 32, 96, 128, 160
def vt(b, n): return f"v[{b}:{b+n-1}]"
def at(b, n): return f"a[{b}:{b+n-1}]"
MF = "v_mfma_f32_16x16x32_bf16"
PUB_T = 2

class Gen:
    def __init__(self, stamps=False, nt=" nt", split=24, wgrp=4, nahead=7, latepos=(18, 22, 26, 31), stf=" sc1", ldf=" sc1",
                 kvpos=(10, 12, 12, 12), dbg=(), rotO=2, rot=4, aahead=4, wof="", oa_t=29, warm=0, epark=False, lpark=True, nreg=9, lim=12, hdbg=False, nmax=4, rotW=8, k01=1, qt=None, vpark=True, mid=(16, 18, 20, 22, 24, 25), fin=(), early_poll=True, fsp=2, npk=9, outf='', ntv=None, ntk=None, ncom=2, relax=2, pubs=8, local=False, wfirst=3, pg=4, wall=True, nops=False, pna=6, qbt=(4, 6, 8, 10), vsum=False):
        self.A = Asm(); self.vm = []
        self.__dict__.update({k: v for k, v in locals().items() if k != "self"})
        self.latepos = list(latepos); self.wcnt = 0; self.xcnt = 0; self.parks = []; self.mid = list(mid); self.fin = list(fin); self.QT = []; self.acnt = 0
    def vm_issue(self, tag, n): self.vm += [tag] * n
    def vm_need(self, *tags):
        idx = max(i for i, q in enumerate(self.vm) if q in tags)
        return min(63, len(self.vm) - 1 - idx)
    def stamp(self, k):
        if self.stamps:
            self.A("s_memtime s[96:97]"); self.A("s_waitcnt lgkmcnt(0)"); self.A(f"v_writelane_b32 v{VST}, s96, {k}")
    def hstamp(self, k):
        if not self.hdbg: return
        A = self.A
        A("s_memrealtime s[100:101]"); A("s_waitcnt lgkmcnt(0)"); A(f"v_writelane_b32 v{VST}, s100, {k}")
        if k == 15:
            lab = A.newlabel("Lh")
            A(f"s_cmp_eq_u32 s2, {self.hdbg - 1}"); A(f"s_cbranch_scc0 {lab}"); A(f"s_cmp_eq_u32 {sW}, 0"); A(f"s_cbranch_scc0 {lab}")
            A(f"v_readlane_b32 s100, v{VST}, 0"); A("s_nop 3"); A(f"v_subrev_u32 v{VST}, s100, v{VST}"); A(f"v_lshrrev_b32 v{VST+1}, 2, {vL16}")
            A("s_mov_b64 exec, 0xffff"); A(f"buffer_store_dword v{VST}, v{VST+1}, {srd(SDBG)}, 0 offen"); A("s_mov_b64 exec, -1")
            A.label(lab)
    def istamp(self):
        if self.hdbg:
            A = self.A; lab = A.newlabel("Lh")
            A(f"s_and_b32 s96, {sT}, 3"); A("s_cmp_eq_u32 s96, 3"); A(f"s_cbranch_scc0 {lab}")
            A("s_memrealtime s[100:101]"); A(f"s_lshr_b32 s96, {sT}, 2"); A("s_add_u32 m0, s96, 3"); A("s_waitcnt lgkmcnt(0)")
            A(f"v_writelane_b32 v{VST}, s100, m0")
            A.label(lab)
        if not self.stamps: return
        A = self.A
        A("s_memtime s[96:97]"); A("s_memrealtime s[100:101]"); A(f"s_add_u32 m0, {sT}, 32"); A("s_waitcnt lgkmcnt(0)")
        A(f"v_writelane_b32 v{VST+2}, s96, m0"); A(f"v_writelane_b32 v{VST+1}, s100, m0")
    def dma(self, voff, srdb, soff, imm, flags=""):
        return f"buffer_load_dwordx4 {voff}, {srd(srdb)}, {soff} offen offset:{imm}{flags} lds"
    def tile_KV(self, isK, slot):
        off, base, voffs, srdb = (sKoff, LK, vKd, SK) if isK else (sVoff, LV, vVd, SV)
        fl = (self.ntk if isK else self.ntv)
        if fl is None: fl = self.nt
        g = [[self.dma(voffs[i], srdb, off, i * 1024, fl)] for i in range(4)]
        g[0] = [f"s_add_u32 m0, {sW4K}, {base + slot*T}", "@M0"] + g[0]
        g[3] = g[3] + [f"s_add_u32 {off}, {off}, {T}"]
        return g
    def tile_XW(self, xbase, wbase):
        k = self.xcnt; self.xcnt += 1
        if self.rot != 4: adv = [[f"s_add_u32 {sTi}, {sTi}, 1"], [f"s_and_b32 {sTi}, {sTi}, 15"], []]
        elif k == self.ncom - 1: adv = [[f"s_mov_b32 {sTi}, {sFloor}"], [], []]
        else: adv = [[f"s_add_u32 {sTi}, {sTi}, 1"], [f"s_cmp_eq_u32 {sTi}, 16", f"s_cselect_b32 {sTi}, {self.ncom}, {sTi}"], []]
        return [[f"s_lshl_b32 {sXoff}, {sTi}, 6", f"s_add_u32 m0, {sW2K}, {xbase}", f"s_add_u32 {sXoff}, {sXoff}, {sXb}", self.dma(vXd[0], SX, sXoff, 0)],
                [f"s_lshl_b32 {sWoff}, {sTi}, 18", self.dma(vXd[1], SX, sXoff, 1024)],
                [f"s_add_u32 m0, {sW4K}, {wbase}", f"s_add_u32 {sWoff}, {sWoff}, {sWb}", self.dma(vWd[0], SWQ, sWoff, 0)],
                adv[0] + [self.dma(vWd[1], SWQ, sWoff, 1024)],
                adv[1] + [self.dma(vWd[2], SWQ, sWoff, 2048)],
                [self.dma(vWd[3], SWQ, sWoff, 3072)]]
    def tile_Wo(self, slot):
        g = [[self.dma(vWs[i], SWO, sWToff, i * 1024, self.wof)] for i in range(4)]
        g[0] = [f"s_lshl_b32 {sWToff}, {sQw}, 15", f"s_add_u32 m0, {sW4K}, {slot * T}", f"s_add_u32 {sWToff}, {sWToff}, {sWP}"] + g[0]
        nq = self.nextq(sQw, self.wcnt)
        if self.rotO == 5: g[1] = nq[0] + g[1]; g[2] = nq[1] + g[2]
        else:
            for i, l in enumerate(nq): g[1 + i] = [l] + g[1 + i]
        self.wcnt += 1
        return g
    def nextq(self, s, cnt):
        if self.rotO == 5:
            GW = self.rotW; n = cnt + 1; tmp_ = sT1 if s == sQw else sT2
            return [f"s_add_u32 {tmp_}, {sRot}, {n // GW * GW}", f"s_add_u32 {s}, {sV9}, {n % GW}", ], [f"s_and_b32 {tmp_}, {tmp_}, {32 - GW}", f"s_and_b32 {s}, {s}, {GW - 1}", f"s_or_b32 {s}, {s}, {tmp_}"]
        if self.rotO != 2: return [f"s_add_u32 {s}, {s}, 1", f"s_and_b32 {s}, {s}, 31"]
        W = self.rotW
        if (cnt + 1) % W == 0: return [f"s_add_u32 {s}, {sRot}, {cnt + 1}"]
        return [f"s_add_u32 {s}, {s}, 1", f"s_and_b32 {s}, {s}, {W - 1}", f"s_add_u32 {s}, {s}, {cnt // W * W}"]
    def emit_groups(self, groups):
        for g in groups:
            for l in g: self.A("s_nop 0" if l == "@M0" else l)
    @staticmethod
    def cost(l):
        if l.startswith("v_exp"): return 8
        if l.startswith("buffer_"): return 16
        return 4
    def spread(self, fill, gaps, lo, hi, base):
        tot = sum(self.cost(l) for l in fill) + sum(base[lo:hi])
        per = tot / (hi - lo); g = lo; acc = 0.0
        k = 0
        for g in range(lo, hi):
            acc += base[g]; tgt = per * (g - lo + 1)
            while k < len(fill) and (acc + self.cost(fill[k]) / 2 <= tgt or g == hi - 1):
                gaps[g].append(fill[k]); acc += self.cost(fill[k]); base[g] += self.cost(fill[k]); k += 1
    def exp_ops(self, S, lo, hi):
        ops = []
        ex = lambda i: f"v_exp_f32 v{S+i}, v{S+i}"
        def cvt(i):
            kb, qb, r = i // 8, (i // 4) % 2, i % 4
            return f"v_cvt_pk_bf16_f32 v{P0 + 8*(kb//2) + 4*qb + 2*(kb%2) + r//2}, v{S+i}, v{S+i+1}"
        prs = list(range(lo, hi, 2))
        for k, i in enumerate(prs):
            ops += [ex(i), ex(i + 1)]
            if k > 0: ops += [cvt(prs[k-1])]
        ops += ["s_nop 0", cvt(prs[-1])]
        return ops
    def max_ops(self, S):
        ops = []
        for qb in range(2):
            r = [S + 8 * kb + 4 * qb + j for kb in range(4) for j in range(4)]
            o = [f"v_max3_f32 {vMx[qb]}, v{r[0]}, v{r[1]}, v{r[2]}"]
            for i in range(3, 15, 2): o.append(f"v_max3_f32 {vMx[qb]}, {vMx[qb]}, v{r[i]}, v{r[i+1]}")
            o.append(f"v_max_f32 {vMx[qb]}, {vMx[qb]}, v{r[15]}")
            ops.append(o)
        out = [x for pr in zip(*ops) for x in pr]
        out.append(f"v_max_f32 {vMc}, {vMx[0]}, {vMx[1]}")
        return out
    def qk_units(self, Sn, slot, tag="k"):
        un = []
        for i in range(16):
            kb, s = i // 4, i % 4
            fr = AKF + 4 * (i % 8)
            ms = [f"{MF} {vt(Sn+8*kb+4*qb,4)}, {at(fr,4)}, {at(AQ+16*qb+4*s,4)}, {vt(NEG+4*qb,4) if s == 0 else vt(Sn+8*kb+4*qb,4)}" for qb in range(2)]
            un.append((ms, [(tag, i)], [(f"ds_read_b128 {at(fr,4)}, {vKa[s]} offset:{slot*T + kb*4096}", (tag, i))]))
        return un
    def pv_units(self, slot):
        un = []
        for i in range(16):
            u, db = i // 8, i % 8
            fr = AVF + 4 * (i % 8)
            ms = [f"{MF} {vt(O0+8*db+4*qb,4)}, {at(fr,4)}, {vt(P0+8*u+4*qb,4)}, {vt(O0+8*db+4*qb,4)}" for qb in range(2)]
            un.append((ms, [("v", i)], [(f"ds_read_b64_tr_b16 {at(fr,2)}, {vVa[db]} offset:{slot*T + u*8192}", ("v", i)),
                                          (f"ds_read_b64_tr_b16 {at(fr+2,2)}, {vVa[db]} offset:{slot*T + u*8192 + 4096}", ("v", i))]))
        return un
    def stream(self, units, nun, NA, G, gaps, mid, extra=None):
        A = self.A
        for i in range(nun):
            if i % G == 0: A.lds_wait(*sum((units[j][1] for j in range(i, min(nun, i + G))), []))
            rds = units[i + NA][2] if i + NA < len(units) else []
            A(units[i][0][0])
            mid(i)
            if rds: A.lds(*rds[0])
            for l in gaps[2 * i]: A(l)
            A(units[i][0][1])
            for r in rds[1:]: A.lds(*r)
            for l in gaps[2 * i + 1]: A(l)
            if extra and i in extra: A(extra[i])
    def place(self, gaps, base, groups, positions):
        for g, p in zip(groups, positions):
            if "@M0" in g:
                k = g.index("@M0"); gaps[p - 1] = gaps[p - 1] + g[:k]; base[p - 1] += 4 * k; g = g[k + 1:]
            gaps[p] = gaps[p] + g; base[p] += sum(self.cost(l) for l in g)
    def simulate_loop(self):
        n1, n2, n3 = {}, {}, {}
        for t in range(29):
            n1[t] = self.vm_need(("V", t))
            self.vm_issue(("V", t + 2), 4)
            n2[t] = self.vm_need(("K", t + 2)) if t < 30 else 63
            for i, tq in enumerate(self.QT):
                if tq == t: n2[t] = min(n2[t], self.vm_need(("E", i)))
            self.vm_issue(("K", t + 4), 4)
            for i, tq in enumerate(self.QT[:-2]):
                if tq == t: self.vm_issue(("E", i + 2), 4)
        return n1, n2, n3
    def aload(self, R, j, soff):
        return [f"buffer_load_dwordx4 {R(4*j,4)}, {vL16}, {srd(SWS)}, {soff} offen offset:{(j%4)*1024}{self.ldf}"]
    def body(self, c, n1, n2):
        A = self.A
        par = c % 2; NA = self.nahead; G = self.wgrp
        S, Sn = (SA, SB) if par == 0 else (SB, SA)
        sel = lambda d: min(self.nmax, min(v for t, v in d.items() if t % 6 == c))
        units = self.qk_units(Sn, (c + 1) % 3) + self.pv_units(c % 3) + self.qk_units(S, (c + 2) % 3, "kn")[:NA]
        bp = 16 - NA
        gaps = [[] for _ in range(64)]; base = [0] * 64
        for i in range(32):
            nr = len(units[i + NA][2])
            base[2 * i] += 4; base[2 * i + 1] += 4 * (nr - 1)
            if (i + 1) % G == 0: base[2 * i + 1] += 4
            if i % 16 == bp: base[2 * i] += 12
        self.place(gaps, base, self.tile_KV(False, (c + 2) % 3), [p + 1 for p in self.latepos[:3]] + [31])
        self.place(gaps, base, self.tile_KV(True, (c + 1) % 3), [32 + p + 1 for p in self.latepos[:3]] + [63])
        self.spread(self.exp_ops(S, 0, self.split), gaps, 0, 32, base)
        self.spread(self.exp_ops(S, self.split, 32), gaps, 32, 32 + self.lim, base)
        self.spread(self.max_ops(Sn), gaps, 32 + self.lim, 64, base)
        lm = lambda u, qb: f"{MF} {vt(LACC+4*qb,4)}, {vt(ONES,4)}, {vt(P0+8*u+4*qb,4)}, {vt(LACC+4*qb,4)}"
        extra = {16 + 3: lm(0, 0), 16 + 7: lm(0, 1), 16 + 11: lm(1, 0), 16 + 15: lm(1, 1)}
        def mid(i):
            if i % 16 == bp:
                d = n1 if i < 16 else n2
                ex = min(v for t, v in d.items() if t % 6 == c)
                if c < self.relax and ex > sel(d):
                    lab = A.newlabel("Lr")
                    A(f"s_waitcnt vmcnt({ex})"); A(f"s_cmp_lt_u32 {sT}, {self.relax}"); A(f"s_cbranch_scc1 {lab}")
                    A(f"s_waitcnt vmcnt({sel(d)})"); A.label(lab)
                else: A(f"s_waitcnt vmcnt({sel(d)})")
                A("s_barrier")
        A.lds_q = [("k", i) for i in range(NA)]
        self.stream(units, 32, NA, G, gaps, mid, extra)
    def final_bodies(self):
        A = self.A; NA = self.nahead; G = self.wgrp; bp = 16 - NA
        lm = lambda u, qb: f"{MF} {vt(LACC+4*qb,4)}, {vt(ONES,4)}, {vt(P0+8*u+4*qb,4)}, {vt(LACC+4*qb,4)}"
        bb29, ba30, bb30, ba31 = 32 + 2 * bp + 1, 64 + 2 * bp + 1, 96 + 2 * bp + 1, 128
        todo = []
        for v in range(4):
            for qb in range(2):
                todo.append((33, [self.ostore(HELD + 8*v + 4*qb, v, qb)] + ([f"s_add_u32 {sOT}, {sOT}, 4096"] if qb else []), "OA"))
        for slot, first in [(2, 33), (6, 33), (7, 33), (8, 33), (9, 33), (0, bb29), (5, ba30), (1, bb30), (3, ba31)][:self.npk]:
            todo.append((first, slot, None))
        plan = {}; pos = 33
        for first, what, tag in todo:
            groups = [what] if tag else self.tile_Wo(what)
            if not tag:
                if max(pos, first) + 3 * self.fsp >= 158: self.wcnt -= 1; break
                self.parks.append(("lds", what))
            for g in groups:
                pos = max(pos, first)
                plan[pos] = (g, tag or "PK"); pos += self.fsp
        def run(t, units, nun, off, exps, waits, extra):
            ng = 2 * nun
            gaps = [[] for _ in range(ng)]; base = [0] * ng; vmat = {}
            for i in range(nun):
                nr = len(units[i + NA][2]) if i + NA < len(units) else 0
                base[2 * i] += 4 * min(1, nr); base[2 * i + 1] += 4 * max(0, nr - 1)
            if t == 29:
                ps = [p + 1 for p in self.latepos[:3]] + [31]
                self.place(gaps, base, self.tile_KV(False, 1), ps)
                for p in ps: vmat[p] = ("V", 31)
            for p, (g, tag) in plan.items():
                if off <= p < off + ng:
                    gaps[p - off] += g; base[p - off] += sum(self.cost(l) for l in g); vmat[p - off] = tag
            for ops, lo, hi in exps: self.spread(ops, gaps, lo, hi, base)
            done = [0]
            def log(upto):
                for p in range(done[0], upto):
                    if p in vmat: self.vm_issue(vmat[p], 1)
                done[0] = upto
            def mid(i):
                log(2 * i)
                if i in waits:
                    if waits[i]: A(f"s_waitcnt vmcnt({self.vm_need(waits[i])})")
                    A("s_barrier")
            self.stream(units, nun, NA, G, gaps, mid, extra)
            log(ng)
        def check(k):
            A(f"v_cmp_lt_f32 vcc, {sThr}, {vMc}"); A(f"s_cbranch_vccz L_f{k}"); A(f"s_call_b64 {sLink2}, L_rare"); A.label(f"L_f{k}")
            A(f"s_add_u32 {sT}, {sT}, 1")
        ex2 = {16 + 3: lm(0, 0), 16 + 7: lm(0, 1), 16 + 11: lm(1, 0), 16 + 15: lm(1, 1)}
        check(28)
        for t in (29, 30):
            c = t % 6; S, Sn = (SA, SB) if c % 2 == 0 else (SB, SA)
            units = self.qk_units(Sn, (c + 1) % 3) + self.pv_units(c % 3) + (self.qk_units(S, (c + 2) % 3, "kn")[:NA] if t == 29 else [])
            A.lds_q = [("k", i) for i in range(NA)]
            run(t, units, 32, 64 * (t - 29),
                [(self.exp_ops(S, 0, self.split), 0, 32), (self.exp_ops(S, self.split, 32), 32, 32 + self.lim), (self.max_ops(Sn), 32 + self.lim, 64)],
                {bp: ("V", t), 16 + bp: ("K", 31) if t == 29 else None}, ex2)
            self.istamp()
            check(t)
        units = self.pv_units(1)
        e = self.exp_ops(SB, 0, 32)
        k0 = next(i for i, l in enumerate(e) if l.startswith(f"v_cvt_pk_bf16_f32 v{P0 + 7},")) + 1
        for l in e[:k0 - 6]: A(l)
        A(f"s_waitcnt vmcnt({self.vm_need(('V', 31))})"); A("s_barrier")
        A.lds_reset()
        for i in range(NA):
            for r in units[i][2]: A.lds(*r)
        for l in e[k0 - 6:k0]: A(l)
        A("s_nop 0")
        run(31, units, 16, 128, [(e[k0:], 0, 13)], {}, {3: lm(0, 0), 7: lm(0, 1), 11: lm(1, 0), 15: lm(1, 1)})
        self.istamp()
    def widen(self, a, b):
        return [[f"v_permlane32_swap_b32 v{a}, v{b}", f"v_permlane32_swap_b32 v{a+1}, v{b+1}"],
                [f"v_permlane16_swap_b32 v{a}, v{b}", f"v_permlane16_swap_b32 v{a+1}, v{b+1}"]]
    def qfin_ops(self, from_acc, steps=range(4), AQ=AQ):
        pair = vt(int(vF[0][1:]), 2); out = []
        for s in steps:
            t = P0 if from_acc else O0 + 16 * s
            if from_acc: out += [f"v_accvgpr_read_b32 v{t+j}, a{AACC+16*s+j}" for j in range(16)]
            out += [f"v_pk_mul_f32 {vt(t+2*j,2)}, {vt(t+2*j,2)}, {pair}" for j in range(8)]
            for q4 in range(4): out += [f"v_cvt_pk_bf16_f32 v{t+4*q4+j}, v{t+4*q4+2*j}, v{t+4*q4+2*j+1}" for j in range(2)]
            w0, w1 = self.widen(t, t + 8), self.widen(t + 4, t + 12)
            out += ["s_nop 0"] + w0[0] + w1[0] + w0[1] + w1[1]
            for qb in range(2):
                for j, r in enumerate((t + 4*qb, t + 4*qb + 1, t + 8 + 4*qb, t + 8 + 4*qb + 1)):
                    out.append(f"v_accvgpr_write_b32 a{AQ+16*qb+4*s+j}, v{r}")
        return out
    def zero_acc(self): return [f"v_accvgpr_write_b32 a{AACC+i}, 0" for i in range(64)]
    def epilogue(self, hold):
        A = self.A
        A("s_nop 4")
        for qb in range(2):
            A(f"v_rcp_f32 v{vInv+2*qb}, v{LACC+4*qb}"); A(f"v_rcp_f32 v{vInv+2*qb+1}, v{LACC+4*qb}")
        A("s_nop 0")
        for v in range(4):
            for qb in range(2):
                src = [O0 + 16*v + 4*qb, O0 + 16*v + 8 + 4*qb]
                dst = HELD + 8*v + 4*qb if hold else SA + 8*v + 4*qb
                for b in src:
                    for j in range(2): A(f"v_pk_mul_f32 {vt(b+2*j,2)}, {vt(b+2*j,2)}, {vt(vInv+2*qb,2)}")
                for k, b in enumerate(src):
                    for j in range(2): A(f"v_cvt_pk_bf16_f32 v{dst+2*k+j}, v{b+2*j}, v{b+2*j+1}")
                if not hold: A(self.ostore(dst, v, qb))
            if not hold: A(f"s_add_u32 {sOT}, {sOT}, 4096")
    def warm_loads(self):
        A = self.A
        A(f"s_lshl_b32 {sT0}, s2, 14"); A(f"s_add_u32 {sT0}, {sT0}, {sW4K}")
        for i in range(4): A(f"buffer_load_dwordx4 {vt(vInv, 4)}, {vL16}, {srd(SWO)}, {sT0} offen offset:{i*1024}")
        self.vm_issue(("WARM",), 4)
    def ostore(self, reg, v, qb):
        return f"buffer_store_dwordx4 {vt(reg,4)}, {vL16}, {srd(SWS)}, {sOT} offen offset:{qb*1024}{self.stf}"
    def store_held(self):
        for v in range(4):
            for qb in range(2): self.A(self.ostore(HELD + 8*v + 4*qb, v, qb))
            self.A(f"s_add_u32 {sOT}, {sOT}, 4096")
    def make_srd(self, b, p, size):
        A = self.A
        A(f"s_mov_b32 s{b}, s{p}"); A(f"s_mov_b32 s{b+1}, s{p+1}")
        A(f"s_mov_b32 s{b+2}, 0x{size:x}"); A(f"s_mov_b32 s{b+3}, 0x20000")
    def one_lane(self, lines, wave0=False):
        A = self.A
        lab = A.newlabel("Lo")
        if wave0: A(f"s_cmp_eq_u32 {sW}, 0"); A(f"s_cbranch_scc0 {lab}")
        A("s_mov_b64 exec, 1")
        for l in lines: A(l)
        A("s_mov_b64 exec, -1")
        if wave0: A.label(lab)
    def spin(self, name, cmp_line, load_line, sleep):
        A = self.A
        A(f"s_mov_b32 {sSpin}, 0x40000")
        A.label(name)
        A(cmp_line)
        A(f"s_cbranch_vccz {name}_ok")
        A(f"s_sub_u32 {sSpin}, {sSpin}, 1"); A(f"s_cbranch_scc1 {name}_ok")
        if sleep: A(f"s_sleep {sleep}")
        A(load_line)
        A("s_waitcnt vmcnt(0)")
        A(f"s_branch {name}")
        A.label(name + "_ok")
    def rowmax(self, floor):
        A = self.A
        for qb, tm in ((0, vTm), (1, vMc)): A(f"v_mov_b32 {tm}, {vMx[qb]}")
        A("s_nop 0")
        for qb, tm in ((0, vTm), (1, vMc)): A(f"v_permlane32_swap_b32 {vMx[qb]}, {tm}")
        for qb, tm in ((0, vTm), (1, vMc)): A(f"v_max_f32 {vMx[qb]}, {vMx[qb]}, {tm}")
        for qb, tm in ((0, vTm), (1, vMc)): A(f"v_mov_b32 {tm}, {vMx[qb]}")
        A("s_nop 0")
        for qb, tm in ((0, vTm), (1, vMc)): A(f"v_permlane16_swap_b32 {vMx[qb]}, {tm}")
        for qb, tm in ((0, vTm), (1, vMc)): A(f"v_max3_f32 {vMx[qb]}, {vMx[qb]}, {tm}, {floor}")

    def kernel(self):
        A = self.A
        tg, tl15, tr, tc, ta, tb, td, te = [tmp(i) for i in range(8)]
        A("s_cmp_ge_u32 s2, 256"); A("s_cbranch_scc1 L_end")
        if self.stamps: A("s_memrealtime s[98:99]")
        A("s_load_dwordx16 s[64:79], s[0:1], 0")
        self.stamp(0); self.hstamp(0)
        A("v_lshrrev_b32 v1, 6, v0"); A("v_and_b32 v2, 63, v0")
        A(f"v_readfirstlane_b32 {sW}, v1")
        A(f"v_lshlrev_b32 {vL16}, 4, v2")
        A(f"s_getpc_b64 s[{SCODE}:{SCODE+1}]")
        A.label("L_pc")
        A(f"s_mov_b32 s{SCODE+2}, L_codeend-L_pc"); A(f"s_mov_b32 s{SCODE+3}, 0x20000")
        A(f"s_lshr_b32 {sT0}, s2, 3"); A(f"s_lshl_b32 {sT0}, {sT0}, 2"); A(f"s_add_u32 {sT0}, {sT0}, {sW}")
        A(f"s_and_b32 {sT0}, {sT0}, 63"); A(f"s_lshl_b32 {sT0}, {sT0}, 10")
        A(f"buffer_load_dwordx4 v[128:131], {vL16}, {srd(SCODE)}, {sT0} offen"); self.vm_issue(("CODE",), 1)
        A(f"s_lshl_b32 {sW4K}, {sW}, 12"); A(f"s_lshl_b32 {sW2K}, {sW}, 11")
        A(f"v_lshrrev_b32 {tg}, 4, v2"); A(f"v_and_b32 {tc}, 3, v2")
        A(f"v_lshrrev_b32 {ta}, 2, v2"); A(f"v_lshl_add_u32 {ta}, v1, 5, {ta}")
        A(f"v_sub_u32 {tb}, 0, {tg}"); A(f"v_and_b32 {tb}, 3, {tb}"); A(f"v_xor_b32 {tb}, {tb}, {tc}"); A(f"v_lshlrev_b32 {tb}, 4, {tb}")
        A(f"v_lshl_add_u32 {vXd[0]}, {ta}, 10, {tb}"); A(f"v_add_u32 {vXd[1]}, {16384 - 1024}, {vXd[0]}")
        A(f"v_lshrrev_b32 {ta}, 5, v2"); A(f"v_and_b32 {tb}, 1, v1"); A(f"v_lshl_add_u32 {tb}, {tb}, 2, {ta}"); A(f"v_lshlrev_b32 {tb}, 1, {tb}")
        A(f"v_and_b32 {td}, 31, v2"); A(f"v_xor_b32 {tb}, {tb}, {td}"); A(f"v_lshlrev_b32 {tb}, 4, {tb}")
        A(f"v_lshl_add_u32 {ta}, v1, 3, {ta}"); A(f"v_lshl_add_u32 {vWd[0]}, {ta}, 13, {tb}"); A(f"v_xor_b32 {tb}, 64, {vWd[0]}")
        A(f"v_add_u32 {vWd[1]}, 15360, {tb}"); A(f"v_add_u32 {vWd[2]}, {2*15360}, {vWd[0]}"); A(f"v_add_u32 {vWd[3]}, {3*15360}, {tb}")
        if self.local:
            A(f"s_and_b32 {sBat}, s2, 7"); A(f"s_lshl_b32 {sBat}, {sBat}, 1"); A(f"s_lshr_b32 {sT2}, s2, 7"); A(f"s_add_u32 {sBat}, {sBat}, {sT2}")
            A(f"s_bfe_u32 {sT1}, s2, 0x40003")
            if self.rot == 2: A(f"s_lshl_b32 {sTi}, {sT2}, 3"); A(f"s_add_u32 {sTi}, {sTi}, {sT1}"); A(f"s_and_b32 {sTi}, {sTi}, 15")
            elif self.rot == 1: A(f"s_lshl_b32 {sTi}, {sT2}, 3")
            else: A(f"s_mov_b32 {sTi}, 0")
            A(f"s_lshl_b32 {sT3}, {sT1}, 1")
            A(f"s_and_b32 {sT2}, {sT1}, 3"); A(f"s_lshr_b32 {sT1}, {sT1}, 2"); A(f"s_lshl_b32 {sT1}, {sT1}, 3"); A(f"s_add_u32 {sT1}, {sT1}, {sT2}")
        else:
            A(f"s_and_b32 {sBat}, s2, 1"); A(f"s_lshl_b32 {sBat}, {sBat}, 3")
            A(f"s_bfe_u32 {sT1}, s2, 0x30003"); A(f"s_add_u32 {sBat}, {sBat}, {sT1}")
            A(f"s_lshr_b32 {sT2}, s2, 6")
            if self.rot == 2:
                A(f"s_lshl_b32 {sTi}, {sT2}, 1"); A(f"s_add_u32 {sTi}, {sTi}, {sT1}"); A(f"s_lshl_b32 {sTi}, {sTi}, 1"); A(f"s_and_b32 {sTi}, {sTi}, 15")
            elif self.rot == 1:
                A(f"s_add_u32 {sTi}, {sT2}, {sT1}"); A(f"s_and_b32 {sTi}, {sTi}, 1"); A(f"s_lshl_b32 {sTi}, {sTi}, 3")
            elif self.rot == 3:
                A(f"s_add_u32 {sTi}, {sT2}, {sT1}"); A(f"s_and_b32 {sTi}, {sTi}, 3"); A(f"s_lshl_b32 {sTi}, {sTi}, 2")
            elif self.rot == 4:
                n = 16 - self.ncom
                A(f"s_lshl_b32 {sFloor}, {sT2}, 1"); A(f"s_add_u32 {sFloor}, {sFloor}, {sT1}"); A(f"s_lshl_b32 {sFloor}, {sFloor}, 1")
                for _ in range(2): A(f"s_sub_u32 {sTi}, {sFloor}, {n}"); A(f"s_cselect_b32 {sFloor}, {sFloor}, {sTi}")
                A(f"s_add_u32 {sFloor}, {sFloor}, {self.ncom}"); A(f"s_mov_b32 {sTi}, 0")
            else: A(f"s_mov_b32 {sTi}, 0")
            A(f"s_bfe_u32 {sT1}, s2, 0x20001"); A(f"s_lshl_b32 {sT1}, {sT1}, 3")
            A(f"s_lshl_b32 {sT3}, {sT2}, 1"); A(f"s_add_u32 {sT3}, {sT3}, {sT1}")
            A(f"s_add_u32 {sT1}, {sT1}, {sT2}")
        A(f"s_lshl_b32 {sXb}, {sBat}, 17"); A(f"s_lshl_b32 {sWb}, {sT3}, 8")
        A("s_waitcnt lgkmcnt(0)")
        self.make_srd(SX, 64, 2 << 20); self.make_srd(SWQ, 70, 4 << 20)
        XS = [9 * T, 9 * T + 8192, 2 * T, 2 * T + 8192]; WS_ = [6 * T, 7 * T, 8 * T, 5 * T]
        self.emit_groups(self.tile_XW(XS[0], WS_[0])); self.vm_issue(("P", 0), 6)
        self.stamp(1)
        A(f"s_lshl_b32 {sT2}, {sBat}, 5"); A(f"s_add_u32 {sT2}, {sT2}, {sT3}"); A(f"s_lshl_b32 {sT2}, {sT2}, 18")
        A(f"s_add_u32 s66, s66, {sT2}"); A("s_addc_u32 s67, s67, 0"); A(f"s_add_u32 s68, s68, {sT2}"); A("s_addc_u32 s69, s69, 0")
        A(f"s_mov_b32 {sKoff}, 0"); A(f"s_mov_b32 {sVoff}, 0")
        A(f"s_lshl_b32 {sT0}, {sBat}, 1"); A(f"s_lshr_b32 {sT2}, {sW}, 1"); A(f"s_add_u32 {sT0}, {sT0}, {sT2}")
        A(f"s_lshl_b32 {sFlagP}, {sT0}, 2"); A(f"s_lshr_b32 {sT2}, {sT1}, 3"); A(f"s_add_u32 {sFlagP}, {sFlagP}, {sT2}")
        A(f"s_lshl_b32 {sFlagP}, {sFlagP}, 7"); A(f"s_and_b32 {sT2}, {sT1}, 3"); A(f"s_lshl_b32 {sT2}, {sT2}, 3")
        A(f"s_add_u32 {sFlagP}, {sFlagP}, {sT2}"); A(f"s_and_b32 {sT2}, {sW}, 1"); A(f"s_lshl_b32 {sT1}, {sT2}, 2")
        A(f"s_add_u32 {sFlagP}, {sFlagP}, {sT1}"); A(f"s_add_u32 {sFlagP}, {sFlagP}, {WS_FLAG}")
        A(f"s_lshl_b32 {sT0}, {sT0}, 5"); A(f"s_add_u32 {sT0}, {sT0}, {sT3}"); A(f"s_lshl_b32 {sT0}, {sT0}, 14")
        A(f"s_lshl_b32 {sT2}, {sT2}, 11"); A(f"s_add_u32 {sOT}, {sT0}, {sT2}")
        self.emit_groups(self.tile_XW(XS[1], WS_[1])); self.vm_issue(("P", 1), 6)
        A(f"s_mov_b32 {sC}, 0x{f2u(CSC):08x}"); A(f"s_mov_b32 {sThr}, 0x{f2u(8.0):08x}")
        self.make_srd(SK, 66, 512 << 10); self.make_srd(SV, 68, 512 << 10)
        self.make_srd(SWO, 72, 4 << 20); self.make_srd(SWS, 78, WS_SIZE)
        self.make_srd(SOUT, 74, 2 << 20)
        if self.hdbg: self.make_srd(SDBG, 76, 256)
        A(f"v_and_b32 {tl15}, 15, v2"); A(f"v_lshl_add_u32 {ta}, v1, 4, {tg}")
        A(f"v_lshlrev_b32 {tb}, 1, {tg}"); A(f"v_xor_b32 {tb}, {tb}, {tl15}"); A(f"v_lshlrev_b32 {tb}, 4, {tb}")
        A(f"v_lshl_add_u32 {vVd[0]}, {ta}, 8, {tb}"); A(f"v_xor_b32 {vVd[1]}, 128, {vVd[0]}")
        A(f"v_mov_b32 {vVd[2]}, {vVd[0]}"); A(f"v_mov_b32 {vVd[3]}, {vVd[1]}")
        A(f"v_xor_b32 {tb}, {tl15}, {tg}"); A(f"v_lshlrev_b32 {tb}, 4, {tb}")
        A(f"v_lshl_add_u32 {vKd[0]}, {ta}, 8, {tb}")
        for i in range(1, 4): A(f"v_xor_b32 {vKd[i]}, {64*i}, {vKd[0]}")
        self.emit_groups(self.tile_XW(XS[2], WS_[2])); self.vm_issue(("P", 2), 6)
        A(f"v_lshl_add_u32 {vKa[0]}, {tl15}, 8, {tb}")
        for s in range(1, 4): A(f"v_xor_b32 {vKa[s]}, {64*s}, {vKa[0]}")
        A(f"v_bfe_u32 {tr}, v2, 2, 2")
        A(f"v_sub_u32 {ta}, 0, {tr}"); A(f"v_and_b32 {ta}, 3, {ta}"); A(f"v_xor_b32 {ta}, {ta}, {tg}"); A(f"v_lshlrev_b32 {ta}, 4, {ta}")
        A(f"v_lshl_add_u32 {tb}, v1, 5, {tl15}"); A(f"v_lshl_add_u32 {ta}, {tb}, 6, {ta}")
        A(f"v_add_u32 {vXa}, {XS[0]}, {ta}")
        A(f"v_and_b32 {ta}, 1, {tg}"); A(f"v_lshl_add_u32 {ta}, {ta}, 2, {tr}")
        A(f"v_lshlrev_b32 {ta}, 5, {ta}"); A(f"v_lshl_add_u32 {ta}, {tc}, 3, {ta}")
        A(f"v_lshl_add_u32 {td}, {tg}, 2, {tr}")
        A(f"v_lshl_add_u32 {tb}, {td}, 8, {ta}"); A(f"v_add_u32 {vVa[0]}, {LV}, {tb}")
        for b in range(1, 8): A(f"v_xor_b32 {vVa[b]}, {32*b}, {vVa[0]}")
        A(f"v_lshl_add_u32 {tb}, {tg}, 3, {tr}"); A(f"v_lshl_add_u32 {tb}, {tb}, 9, {ta}"); A(f"v_add_u32 {vWa[0]}, {5*T}, {tb}")
        for b in range(1, 8): A(f"v_xor_b32 {vWa[b]}, {32*b}, {vWa[0]}")
        A(f"v_lshrrev_b32 {ta}, 3, v2"); A(f"v_and_b32 {tb}, 7, v2"); A(f"v_lshlrev_b32 {te}, 1, {tg}"); A(f"v_xor_b32 {tb}, {tb}, {te}")
        A(f"v_lshlrev_b32 {tb}, 4, {tb}"); A(f"v_lshl_add_u32 {vWs[0]}, {ta}, 10, {tb}")
        for i in range(1, 4): A(f"v_add_u32 {vWs[i]}, {i * 7168}, {vWs[0]}")
        A(f"v_bfe_u32 {ta}, {td}, 1, 2"); A(f"v_lshlrev_b32 {ta}, 5, {ta}"); A(f"v_lshl_add_u32 {ta}, {tc}, 3, {ta}")
        A(f"v_lshl_add_u32 {ta}, {td}, 7, {ta}"); A(f"v_add_u32 {vWr}, {sW4K}, {ta}")
        A(f"v_cmp_eq_u32 vcc, 0, {tc}"); A(f"v_mov_b32 {ta}, 0x3f803f80"); A(f"v_mov_b32 {vZero}, 0")
        for k in range(4): A(f"v_cndmask_b32 v{ONES+k}, 0, {ta}, vcc")
        for k in range(16): A(f"v_mov_b32 v{LACC+k}, 0")
        A(f"s_and_b32 {sT0}, s2, 7"); A(f"s_lshl_b32 {sT0}, {sT0}, 2"); A(f"s_lshr_b32 {sT1}, s2, 6")
        A(f"s_add_u32 {sB2}, {sT0}, {sT1}")
        A(f"s_lshl_b32 {sT0}, {sB2}, 19"); A(f"s_lshl_b32 {sT1}, {sW}, 17"); A(f"s_add_u32 {sAreal}, {sT0}, {sT1}")
        A(f"s_bfe_u32 {sT0}, s2, 0x30003"); A(f"s_lshl_b32 {sT0}, {sT0}, 7")
        A(f"s_lshl_b32 {sT1}, {sW}, 20"); A(f"s_add_u32 {sWP}, {sT0}, {sT1}")
        if self.rotO:
            A(f"s_bfe_u32 {sT0}, s2, 0x30003"); A(f"s_lshr_b32 {sT1}, s2, 6"); A(f"s_lshl_b32 {sT1}, {sT1}, 1"); A(f"s_add_u32 {sT0}, {sT0}, {sT1}")
            if self.rotO == 1: A(f"s_lshl_b32 {sT0}, {sT0}, 2"); A(f"s_and_b32 {sQw}, {sT0}, 31")
            elif self.rotO == 3: A(f"s_bfe_u32 {sT0}, s2, 0x30003"); A(f"s_lshl_b32 {sQw}, {sT0}, 2")
            elif self.rotO == 5:
                A(f"s_bfe_u32 {sT0}, s2, 0x30003"); A(f"s_lshl_b32 {sRot}, {sT0}, 2"); A(f"s_lshr_b32 {sV9}, s2, 6")
                if self.rotW == 8:
                    A(f"s_lshl_b32 {sV9}, {sV9}, 1"); A(f"s_and_b32 {sT0}, {sT0}, 1"); A(f"s_add_u32 {sV9}, {sV9}, {sT0}"); A(f"s_and_b32 {sRot}, {sRot}, 24")
                A(f"s_or_b32 {sQw}, {sRot}, {sV9}")
            else:
                if self.rotW == 16: A(f"s_lshl_b32 {sT0}, {sT0}, 1")
                A(f"s_and_b32 {sQw}, {sT0}, {self.rotW - 1}"); A(f"s_mov_b32 {sRot}, {sQw}")
        else: A(f"s_mov_b32 {sQw}, 0")
        A(f"s_mov_b32 {sQa}, {sQw}")
        A(f"s_lshl_b32 {sFlagC}, {sB2}, 2"); A(f"s_add_u32 {sFlagC}, {sFlagC}, {sW}"); A(f"s_lshl_b32 {sFlagC}, {sFlagC}, 7")
        A(f"s_add_u32 {sFlagC}, {sFlagC}, {WS_FLAG}")
        A(f"v_and_b32 {vPoff}, 7, v2"); A(f"v_lshlrev_b32 {vPoff}, 2, {vPoff}")
        A(f"buffer_load_dword {vPoll}, {vPoff}, {srd(SWS)}, {sFlagC} offen sc1")
        A(f"buffer_load_dword {vOne}, {vZero}, {srd(SWS)}, {sFlagP} offen sc1"); self.vm_issue(("FZ",), 2)
        if self.warm == 1: self.warm_loads()
        NA = self.pna; BP = 16 - NA; NU = 256
        XF = lambda pi, qb: at(AKF + 8 * (pi % 2) + 4 * qb, 4)
        units = []
        for pi in range(16):
            for t in range(16):
                m = 16 * pi + t; fr = AVF + 4 * (m % 8)
                D = lambda qb: vt(O0 + 8*t + 4*qb, 4) if t < 8 else at(AACC + 8*(t-8) + 4*qb, 4)
                wo_ = WS_[pi % 4] - 5 * T + (t // 8) * 256
                units.append(([f"{MF} {D(qb)}, {at(fr,4)}, {XF(pi, qb)}, {'0' if pi == 0 else D(qb)}" for qb in range(2)],
                              [("w", m), ("x", pi)],
                              [(f"ds_read_b64_tr_b16 {at(fr,2)}, {vWa[t % 8]} offset:{wo_}", ("w", m)),
                               (f"ds_read_b64_tr_b16 {at(fr+2,2)}, {vWa[t % 8]} offset:{wo_ + 2048}", ("w", m))]))
        sched = []
        early = [("K", 0), ("K", 1), ("V", 0), ("V", 1)]
        for j in range(3, 16):
            first = 0 if j == 3 else 16 * (j - 3) + BP
            sched.append((first, ("P", j), self.tile_XW(XS[j % 4], WS_[j % 4])))
            for (kind, sl), at_ in zip(early, self.kvpos):
                if at_ == j - 3: sched.append((first, (kind, sl), self.tile_KV(kind == "K", sl)))
        gaps = [[] for _ in range(2 * NU)]; vmat = {}
        pos = 0
        for first, tag, groups in sched:
            for g in groups:
                pos = max(pos, first)
                g = [("s_nop 0" if l == "@M0" else l) for l in g]
                k = max(i for i, l in enumerate(g) if l.startswith("buffer_"))
                gaps[2 * pos] += g[:k]; gaps[2 * pos + 1] += g[k:]; vmat[pos] = tag
                pos += 1
        xrd = lambda pi, qb: (f"ds_read_b128 {XF(pi, qb)}, {vXa} offset:{qb * 1024}", ("x", pi))
        def mid(m):
            pi, k = m // 16, m % 16
            if m - 1 in vmat: self.vm_issue(vmat[m - 1], 1)
            if pi < 15:
                if k == 2: A(f"v_add_u32 {vXa}, {XS[(pi + 1) % 4] - XS[pi % 4]}, {vXa}")
                if k == BP:
                    A(f"s_waitcnt vmcnt({self.vm_need(('P', pi + 1))})"); A("s_barrier")
                    if pi % 2 == 1: self.stamp(3 + pi // 2)
                if BP < k <= BP + 2: A.lds(*xrd(pi + 1, k - BP - 1))
        A(f"s_waitcnt vmcnt({self.vm_need(('P', 0))})")
        A("s_barrier")
        self.stamp(2); self.hstamp(1)
        A.lds_reset()
        for qb in range(2): A.lds(*xrd(0, qb))
        for m in range(NA):
            for r in units[m][2]: A.lds(*r)
        self.stream(units, NU, NA, self.pg, gaps, mid)
        assert NU - 1 not in vmat
        A(f"v_mov_b32 {vF[0]}, {sC}"); A(f"v_mov_b32 {vF[1]}, {sC}")
        for k in range(8): A(f"v_mov_b32 v{NEG+k}, 0")
        A(f"s_waitcnt vmcnt({self.vm_need(('K', 0))})")
        A("s_barrier")
        NB = self.nahead
        units = self.qk_units(SA, 0) + self.qk_units(SB, 1, "kn")[:NB]
        for i in range(NB): A.lds(*units[i][2][0])
        g = self.tile_KV(True, 2); self.vm_issue(("K", 2), 4)
        qa = self.qfin_ops(False); n4 = len(qa) // 4
        for i in range(4):
            self.emit_groups(g[i:i+1])
            for l in qa[n4*i:n4*i+n4]: A(l)
        self.stamp(10); self.hstamp(2)
        gaps = [[] for _ in range(32)]; base = [4, 0] * 16
        if self.epark:
            grp = [x for k in range(4) for x in self.tile_Wo(6 + k)]
            self.parks += [("lds", 6 + k) for k in range(4)]
            for i, gq in enumerate(grp):
                gaps[2 * i] += gq[:-1]; gaps[2 * i + 1] += gq[-1:]; base[2 * i] += 4 * (len(gq) - 1); base[2 * i + 1] += 16
        self.spread([f"v_mov_b64 {vt(O0+2*k,2)}, 0" for k in range(32)], gaps, 0, 32, base)
        def mid0(i):
            if self.epark and i > 0: self.vm_issue(("EP",), 1)
            if i == 16 - NB: A(f"s_waitcnt vmcnt({self.vm_need(('K', 1))})"); A("s_barrier")
        self.stream(units, 16, NB, self.wgrp, gaps, mid0)
        if self.epark: self.vm_issue(("EP",), 1)
        A("s_barrier")
        g = self.tile_KV(True, 0); self.vm_issue(("K", 3), 4)
        self.emit_groups(g[:2])
        for l in self.max_ops(SA): A(l)
        self.emit_groups(g[2:])
        if self.warm == 2: self.warm_loads()
        A(f"s_mov_b32 {sT}, 0")
        A(f"s_call_b64 {sRet}, L_init")
        n1, n2, n3 = self.simulate_loop()
        self.n = (n1, n2, n3)
        xs = {14, 15, 28} | set(self.qbt)
        xs |= set(self.mid) | {t + 2 for t in self.mid}
        xmask = sum(1 << t for t in xs)
        A.label("L_loop")
        for c in range(6):
            self.body(c, n1, n2)
            self.istamp()
            A(f"s_bitcmp1_b32 0x{xmask:08x}, {sT}"); A(f"s_cbranch_scc1 L_x_{c}")
            A.label(f"L_c_{c}")
            A(f"v_cmp_lt_f32 vcc, {sThr}, {vMc}")
            A(f"s_cbranch_vccnz L_r_{c}")
            A.label(f"L_n_{c}")
            A(f"s_add_u32 {sT}, {sT}, 1")
        A("s_branch L_loop")
        for c in range(6):
            A.label(f"L_x_{c}"); A(f"s_call_b64 {sRet}, L_extras"); A(f"s_branch L_c_{c}")
            A.label(f"L_r_{c}"); A(f"s_call_b64 {sLink2}, L_rare"); A(f"s_branch L_n_{c}")
        A(".p2align 3")
        ssub = lambda S: [f"v_sub_f32 v{S+i}, v{S+i}, {vMx[(i//4)%2]}" for i in range(32)]
        A.label("L_init")
        A(f"s_mov_b32 {sFloor}, 0x{f2u(-1e30):08x}")
        self.rowmax(sFloor)
        for i in range(8): A(f"v_sub_f32 v{NEG+i}, 0, {vMx[i//4]}")
        for l in ssub(SA): A(l)
        A(f"v_mov_b32 {vMc}, 0")
        A(f"s_setpc_b64 {sRet}")
        A.label("L_rare")
        self.rowmax("0")
        for qb in range(2): A(f"v_exp_f32 {vF[qb]}, -{vMx[qb]}")
        for i in range(8): A(f"v_sub_f32 v{NEG+i}, v{NEG+i}, {vMx[i//4]}")
        for qb in range(2): A(f"v_mul_f32 v{LACC+4*qb}, {vF[qb]}, v{LACC+4*qb}")
        for i in range(64): A(f"v_mul_f32 v{O0+i}, {vF[(i//4)%2]}, v{O0+i}")
        A(f"s_bitcmp1_b32 {sT}, 0"); A("s_cbranch_scc1 L_rare_a")
        for l in ssub(SB): A(l)
        A(f"s_setpc_b64 {sLink2}")
        A.label("L_rare_a")
        for l in ssub(SA): A(l)
        A(f"s_setpc_b64 {sLink2}")
        def tree(ts):
            if len(ts) == 1:
                A(f"s_branch L_t{ts[0]}"); return
            if len(ts) == 2:
                A(f"s_cmp_eq_u32 {sT}, {ts[0]}"); A(f"s_cbranch_scc1 L_t{ts[0]}"); A(f"s_branch L_t{ts[1]}"); return
            h = len(ts) // 2; lab = A.newlabel("Ld")
            A(f"s_cmp_ge_u32 {sT}, {ts[h]}"); A(f"s_cbranch_scc1 {lab}")
            tree(ts[:h]); A.label(lab); tree(ts[h:])
        A.label("L_extras")
        tree(sorted(xs))
        for t in sorted(xs):
            if t == 28: continue
            A.label(f"L_t{t}")
            if t in self.qbt:
                A(f"v_mov_b32 {vF[0]}, {sC}"); A(f"v_mov_b32 {vF[1]}, {sC}")
                for l in self.qfin_ops(True, [self.qbt.index(t)], AQ2): A(l)
            if t == 14:
                A(f"v_cmp_lt_f32 vcc, {sThr}, {vMc}")
                A("s_cbranch_vccz L_x14b")
                A(f"s_call_b64 {sLink2}, L_rare")
                A.label("L_x14b")
                if self.qbt:
                    for k in range(32): A(f"v_accvgpr_mov_b32 a{AQ+k}, a{AQ2+k}")
                else:
                    A(f"v_mov_b32 {vF[0]}, {sC}"); A(f"v_mov_b32 {vF[1]}, {sC}")
                    for l in self.qfin_ops(True): A(l)
                for k in range(8): A(f"v_mov_b32 v{NEG+k}, 0")
                A(f"v_mov_b32 {vMc}, 0")
            if t == 15:
                self.epilogue(True)
                for i in range(32): A(f"v_mov_b64 {vt(O0+2*i,2)}, 0")
                A(f"v_mov_b32 v{LACC}, 0"); A(f"v_mov_b32 v{LACC+4}, 0")
                self.stamp(11)
                A("s_branch L_init")
                continue
            if t - 2 in self.mid:
                i = self.mid.index(t - 2)
                A("s_waitcnt vmcnt(16)")
                for nb in range(4):
                    A(f"v_xor_b32 {vTm}, {32*nb}, {vWr}"); A(f"v_add_u32 {vTm}, {(6 + i % 4) * T}, {vTm}")
                    for hf in range(2): A(f"ds_read_b64_tr_b16 {at(AFREE + 16*i + 4*nb + 2*hf, 2)}, {vTm} offset:{hf*2048}")
                A("s_waitcnt lgkmcnt(0)")
            if t in self.mid:
                self.emit_groups(self.tile_Wo(6 + self.mid.index(t) % 4)); self.parks.append(("reg", self.mid.index(t)))
            A(f"s_setpc_b64 {sRet}")
        A.label("L_t28")
        self.final_bodies()
        self.stamp(12)
        self.tail()
        self.hstamp(14)
        if self.hdbg: A("s_waitcnt vmcnt(0)")
        self.hstamp(15)
        self.dump_stamps()
        A.label("L_end")
        A("s_endpgm")
        A.label("L_codeend")

    def tail(self):
        A = self.A
        vm = []
        def need(tag): return min(63, len(vm) - 1 - max(i for i, q in enumerate(vm) if q == tag)) if tag in vm else 63
        vRd = [[f"v{16 + 4*k + nb}" for nb in range(4)] for k in range(3)]
        vFl, vLin, vPol2 = vPoff, "v29", "v30"
        NP0 = len(self.parks); nmid = len(self.mid)
        slot_of = {p: k for p, (kind, k) in enumerate(self.parks) if kind == "lds"}
        reg_of = {p: at_ for p, (kind, at_) in enumerate(self.parks) if kind == "reg"}
        free = [k for k in (6, 7, 8, 9, 4, 3, 5, 0, 1, 2) if k not in slot_of.values()]
        spare = [("a", AFREE + 16 * k) for k in range(nmid, 6)] + [("v", P0), ("v", HELD), ("v", HELD + 16), ("v", SB), ("v", SB + 16)]
        spare2 = [("v", 240), ("v", 48), ("v", O0 + 32), ("v", O0 + 48), ("v", SA), ("v", SA + 16)]
        wreg = {p: ("a", AFREE + 16 * k) for p, k in reg_of.items()}
        moves = sorted(slot_of)[:min(self.nreg, len(spare))]
        for p, r in zip(moves, spare): wreg[p] = r
        pollB = f"buffer_load_dword {vPol2}, {vFl}, {srd(SWS)}, {sFlagC} offen sc1"
        vm.append("poll")
        A(f"v_add_u32 {vOne}, 1, {vOne}")
        self.epilogue(False); vm += ["OB"] * 8
        self.stamp(13)
        for k in range(3):
            A(f"v_add_u32 {vRd[k][0]}, {k * 65536}, {vWr}")
            for nb in range(1, 4): A(f"v_xor_b32 {vRd[k][nb]}, {32*nb}, {vRd[k][0]}")
        A(f"v_add_u32 {vLin}, {sW4K}, {vL16}")
        A("s_barrier")
        NS = 5
        ASET = lambda p: (lambda j, n: at(AQ + 16 * (p % NS) + j, n) if p % NS < 2 else at(AKF + 16 * (p % NS - 2) + j, n))
        ring = {}
        def WSET(p):
            if p in wreg:
                k, bb = wreg[p]
                return (lambda j, n: at(bb + j, n)) if k == "a" else (lambda j, n: vt(bb + j, n))
            if p not in ring: ring[p] = len(ring) % (2 if self.wall else 3)
            return lambda j, n: vt(O0 + 16 * ring[p] + j, n)
        def wgroups(p):
            slot_of[p] = free.pop(0)
            return [(x, ("W", p)) for x in self.tile_Wo(slot_of[p])]
        def agroups(p):
            g = [self.aload(ASET(p), j, sAoff) for j in range(4)]
            g[0] = [f"s_lshl_b32 {sAoff}, {sQa}, 12", f"s_add_u32 {sAoff}, {sAoff}, {sAreal}"] + g[0]
            nq = self.nextq(sQa, p)
            if self.rotO == 5: g[1] = nq[0] + g[1]; g[2] = nq[1] + g[2]
            else:
                for i, l in enumerate(nq): g[1 + i] = [l] + g[1 + i]
            return [(x, ("A", p)) for x in g]
        def wreads(p):
            base = slot_of[p] * T
            return [f"ds_read_b64_tr_b16 {WSET(p)(4*nb + 2*hf, 2)}, {vRd[base // 65536][nb]} offset:{base % 65536 + hf*2048}"
                    for nb in range(4) for hf in range(2)]
        def emit(g):
            for l in g[0]: A(l)
            vm.append(g[1])
        wn = NP0; an = 0
        for _ in range(min(len(free), self.wfirst)):
            for g in wgroups(wn): emit(g)
            wn += 1
        A(f"s_waitcnt vmcnt({need('poll')})")
        A.lds_reset()
        for i, p in enumerate(moves):
            for l in wreads(p): A(l)
            if i % 2 == 1 or i == len(moves) - 1: A("s_waitcnt lgkmcnt(0)")
            free.append(slot_of[p])
        A(f"s_waitcnt vmcnt({need('OB')})")
        self.one_lane([f"buffer_store_dword {vOne}, {vZero}, {srd(SWS)}, {sFlagP} offen sc1"]); vm.append("fl")
        self.stamp(14); self.hstamp(11)
        if self.early_poll: A(pollB); vm.append("pb")
        while free and wn < 32:
            for g in wgroups(wn): emit(g)
            wn += 1
        if self.wall:
            cand = [p for p in sorted(slot_of) if p not in wreg]
            for p, r in zip(cand, spare[len(moves):] + spare2):
                if wn >= 32: break
                wreg[p] = r
                A(f"s_waitcnt vmcnt({need(('W', p))})")
                for l in wreads(p): A(l)
                A("s_waitcnt lgkmcnt(0)")
                free.append(slot_of[p])
                for g in wgroups(wn): emit(g)
                wn += 1
        if not self.early_poll: A(pollB); vm.append("pb")
        self.stamp(15)
        A(f"s_waitcnt vmcnt({need('pb')})")
        self.spin("L_c2", f"v_cmp_eq_u32 vcc, {vPoll}, {vPol2}", pollB, 0)
        self.stamp(18); self.hstamp(12)
        while an < self.aahead:
            for g in agroups(an): emit(g)
            an += 1
        if 0 not in wreg:
            A(f"s_waitcnt vmcnt({need(('W', 0))})")
            for l in wreads(0): A.lds(l, ("w", 0))
        for p in range(32):
            tags = [("A", p)] + ([("W", p + 1)] if p < 31 else [])
            A(f"s_waitcnt vmcnt({min(need(tg) for tg in tags)})")
            A.lds_wait(("w", p))
            if p not in wreg: free.append(slot_of[p])
            gs = []
            if an < 32: gs += agroups(an); an += 1
            if wn < 32 and free: gs = [x for pr in itertools.zip_longest(gs, wgroups(wn)) for x in pr if x]; wn += 1
            assert p + 1 in wreg or p + 1 in slot_of or p == 31
            rds = wreads(p + 1) if p + 1 < 32 and p + 1 not in wreg else []
            step = 2 if len(gs) > 4 else 4
            k = 0
            for nb in range(4):
                for q in range(4):
                    d = at(AACC + 16 * q + 4 * nb, 4)
                    A(f"{MF} {d}, {WSET(p)(4*nb, 4)}, {ASET(p)(4*q, 4)}, {d if p else 0}")
                    if k % 2 == 1 and k // 2 < len(rds): A.lds(rds[k // 2], ("w", p + 1))
                    if k % step == 0 and k // step < len(gs): emit(gs[k // step])
                    k += 1
        self.stamp(16); self.hstamp(13)
        A(f"v_lshl_add_u32 v3, v1, 14, {vL16}")
        A("v_and_b32 v5, 15, v2"); A("v_lshrrev_b32 v6, 4, v2"); A("v_lshlrev_b32 v5, 10, v5"); A("v_lshl_add_u32 v5, v6, 4, v5")
        A(f"s_lshl_b32 {sT0}, {sB2}, 16"); A(f"s_lshl_b32 {sT1}, {sW}, 14"); A(f"s_add_u32 {sT0}, {sT0}, {sT1}")
        A(f"s_bfe_u32 {sT1}, s2, 0x30003"); A(f"s_lshl_b32 {sT1}, {sT1}, 7"); A(f"s_add_u32 {sT0}, {sT0}, {sT1}")
        for blk in range(4):
            for q in range(4):
                A(f"ds_write_b128 {vLin}, {at(AACC+16*blk+4*q,4)} offset:{blk*16384+q*1024}")
                if (blk * 4 + q) % 8 == 7: A("s_waitcnt lgkmcnt(0)")
        A("s_barrier")
        for src in range(4):
            for q in range(4):
                A(f"ds_read_b128 {vt(64+16*src+4*q,4)}, v3 offset:{src*4096+q*1024}")
            if src == 2: A("s_waitcnt lgkmcnt(4)")
        A("s_waitcnt lgkmcnt(0)")
        for i in range(16): A(f"v_add_f32 v{64+i}, v{64+i}, v{80+i}")
        for i in range(16): A(f"v_add_f32 v{96+i}, v{96+i}, v{112+i}")
        for i in range(16): A(f"v_add_f32 v{64+i}, v{64+i}, v{96+i}")
        for j in range(8): A(f"v_cvt_pk_bf16_f32 v{80+j}, v{64+2*j}, v{64+2*j+1}")
        w0, w1 = self.widen(80, 82), self.widen(84, 86)
        A("s_nop 0")
        for l in w0[0] + w1[0] + w0[1] + w1[1]: A(l)
        A(f"buffer_store_dwordx4 {vt(80,4)}, v5, {srd(SOUT)}, {sT0} offen{self.outf}")
        A(f"buffer_store_dwordx4 {vt(84,4)}, v5, {srd(SOUT)}, {sT0} offen offset:64{self.outf}")

    def dump_stamps(self):
        if not self.stamps: return
        A = self.A
        A("s_waitcnt vmcnt(0)")
        self.stamp(17)
        A("s_memrealtime s[100:101]")
        A("s_getreg_b32 s3, hwreg(HW_REG_XCC_ID)")
        A("s_waitcnt lgkmcnt(0)")
        A(f"v_writelane_b32 v{VST}, s98, 61"); A(f"v_writelane_b32 v{VST}, s100, 62"); A(f"v_writelane_b32 v{VST}, s3, 63")
        A(f"s_lshl_b32 {sT1}, s2, 2"); A(f"s_add_u32 {sT1}, {sT1}, {sW}"); A(f"s_mul_i32 {sT1}, {sT1}, 768")
        A(f"s_add_u32 {sT1}, {sT1}, {WS_STAMP}")
        A(f"v_lshrrev_b32 v3, 2, {vL16}")
        for k in range(3): A(f"buffer_store_dword v{VST+k}, v3, {srd(SWS)}, {sT1} offen offset:{256*k}")

HDR = open("standalone__mha_block_cached__near_ridge.s.ref").read().split("; Override")[0]
def desc(name):
    return f""".amdhsa_kernel {name}
  .amdhsa_next_free_vgpr 512
  .amdhsa_next_free_sgpr 102
  .amdhsa_accum_offset 256
  .amdhsa_group_segment_fixed_size 0
  .amdhsa_kernarg_size 64
  .amdhsa_user_sgpr_count 2
  .amdhsa_user_sgpr_kernarg_segment_ptr 1
  .amdhsa_system_sgpr_workgroup_id_x 1
.end_amdhsa_kernel
"""
def build(path, verbose=False, cls=None, **kw):
    g = (cls or Gen)(**kw); g.kernel()
    la = align8(g.A.lines, g.nops)
    bad = check_hazards(la)
    print(path, "hazards:", bad, "lines", len(la))
    if verbose: print(g.n)
    s = HDR + "; @launch grid=(256,1,1) block=(256,1,1) lds=163840\n"
    s += '.amdgcn_target "amdgcn-amd-amdhsa--gfx950"\n.text\n'
    s += f".globl {KN}\n.p2align 8\n.type {KN},@function\n{KN}:\n" + "\n".join(la) + "\n"
    s += '.section .rodata,"a"\n.p2align 6\n' + desc(KN)
    open(path, "w").write(s)
if __name__ == "__main__":
    build("v26V.s", ntv="", nmax=5)
    build("v26K.s", ntk="", nmax=5)
    build("v26KV.s", ntk="", ntv="", nmax=5)
```

```python
import sys, math, struct, itertools
sys.path.insert(0, "work")
from asmlib import Asm, check_hazards, align8

KN = "standalone__mha_block_cached__near_ridge_kernel"
def f2u(x): return struct.unpack("<I", struct.pack("<f", x))[0]
CSC = math.log2(math.e) / math.sqrt(128.0)
T = 16384
R = 4; NC = 4; TF = 27
KP = [0, 1, 2, 3]; VP = [4, 5, 6, 7]
LV = 4 * T
WS_FLAG = 16 << 20
WS_STAMP = 21 << 20
WS_XF = (16 << 20) + (64 << 10)
WS_PX = 24 << 20
WS_SIZE = 32 << 20
SK, SV, SX, SWQ, SWO, SWS, SOUT, SDBG = 4, 8, 12, 16, 20, 24, 28, 32
def srd(b): return f"s[{b}:{b+3}]"
sW, sW4K, sKoff, sVoff, sW2K, sWP, sThr, sT, sC, sQw, sFloor, sQa = [f"s{i}" for i in range(36, 48)]
sXoff, sWoff, sOT, sT0, sT1, sT2 = [f"s{i}" for i in range(48, 54)]
sLink = "s[54:55]"; sRet = "s[92:93]"; sLink2 = "s[94:95]"
sAoff, sWToff, sB2, sT3, sRot = [f"s{i}" for i in range(56, 61)]
sKs, sPXs, sPXr, sXFs, sXFr, sOutO = "s61", "s62", "s63", "s3", "s45", "s47"
vXo, vXn = "v252", "v253"
sWk = [f"s{64 + i}" for i in range(4)]; sAk = [f"s{68 + i}" for i in range(4)]
vB2 = [f"v{240 + i}" for i in range(8)]
sTi, sXb, sWb, sAreal, sFlagP, sFlagC, sBat, sSpin = [f"s{i}" for i in range(80, 88)]
SCODE = 88
vWs = ["v3", "v4", "v5", "v6"]; vWr = "v7"
vInv = 8
vPoll = "v12"; vPoff = "v13"; vZero = "v14"; vOne = "v15"
vKa = [f"v{i}" for i in range(16, 20)]
vVa = [f"v{i}" for i in range(20, 28)]
vKd = [f"v{i}" for i in range(28, 32)]
vMx = ["v34", "v35"]; vMc = "v36"; vTm = "v37"; vF = ["v38", "v39"]; vL16 = "v40"
vVd = ["v32", "v33", "v32", "v33"]
vKb = [f"v{i}" for i in range(240, 244)]; vVb = [f"v{i}" for i in range(244, 252)]
VST = 41
ONES, LACC, NEG = 44, 48, 56
O0, SA, SB, P0, HELD = 64, 128, 160, 192, 208
vWa = [f"v{i}" for i in range(160, 168)]; vXa = "v168"; vXd = ["v169", "v170"]; vWd = [f"v{i}" for i in range(171, 175)]
AQ2 = 224
LX = 6 * T
QT = [1, 3, 5, 7, 9, 11, 12, 13]
def XR(pi, s, qb):
    k = 16 * pi + 8 * s + 4 * qb
    return at(160 + k, 4) if k < 96 else vt(208 + k - 96, 4)
def tmp(i): return f"v{176 + i}"
AQ, AACC, AKF, AVF, AFREE = 0, 32, 96, 128, 160
def vt(b, n): return f"v[{b}:{b+n-1}]"
def at(b, n): return f"a[{b}:{b+n-1}]"
MF = "v_mfma_f32_16x16x32_bf16"
PUB_T = 2

class Gen:
    def __init__(self, stamps=False, nt=" nt", split=24, wgrp=4, nahead=7, latepos=(18, 22, 26, 31), stf=" sc1", ldf=" sc1",
                 kvpos=(5, 7, 9, 11), dbg=(), rotO=2, rot=4, aahead=4, wof="", oa_t=29, warm=0, epark=False, lpark=True, nreg=9, lim=12, hdbg=False, nmax=5, rotW=8, k01=1, qt=None, vpark=True, mid=(17, 21), fin=(), early_poll=True, fsp=2, npk=9, outf='', pipe=True, wpre=0, fmv=0, two=True, cmap=1, odl=2, ins=0, nb2=None, ca=17, cp=17, pbm=88, dot=True, ostf=None, vah=4, ia=3, fof=33, fst=1, fdl=56, lmearly=True, ncom=2, relax=0, pubs=8, local=False, wfirst=3, pg=4, wall=True, nops=False, pna=6, qbt=(4, 6, 8, 10), vsum=False):
        self.A = Asm(); self.vm = []
        self.__dict__.update({k: v for k, v in locals().items() if k != "self"})
        self.latepos = list(latepos); self.wcnt = 0; self.xcnt = 0; self.parks = []; self.mid = list(mid); self.fin = list(fin); self.QT = []; self.acnt = 0
    def vm_issue(self, tag, n): self.vm += [tag] * n
    def vm_need(self, *tags):
        idx = max(i for i, q in enumerate(self.vm) if q in tags)
        return min(63, len(self.vm) - 1 - idx)
    def stamp(self, k):
        if self.stamps:
            self.A("s_memtime s[96:97]"); self.A("s_waitcnt lgkmcnt(0)"); self.A(f"v_writelane_b32 v{VST}, s96, {k}")
    def hstamp(self, k):
        if not self.hdbg: return
        A = self.A
        A("s_memrealtime s[100:101]"); A("s_waitcnt lgkmcnt(0)"); A(f"v_writelane_b32 v{VST}, s100, {k}")
        if k == 15:
            lab = A.newlabel("Lh")
            A(f"s_cmp_eq_u32 s2, {self.hdbg - 1}"); A(f"s_cbranch_scc0 {lab}"); A(f"s_cmp_eq_u32 {sW}, 0"); A(f"s_cbranch_scc0 {lab}")
            A(f"v_readlane_b32 s100, v{VST}, 0"); A("s_nop 3"); A(f"v_subrev_u32 v{VST}, s100, v{VST}"); A(f"v_lshrrev_b32 v{VST+1}, 2, {vL16}")
            A("s_mov_b64 exec, 0xffff"); A(f"buffer_store_dword v{VST}, v{VST+1}, {srd(SDBG)}, 0 offen"); A("s_mov_b64 exec, -1")
            A.label(lab)
    def istamp(self):
        if self.hdbg:
            A = self.A; lab = A.newlabel("Lh")
            A(f"s_and_b32 s96, {sT}, 3"); A("s_cmp_eq_u32 s96, 3"); A(f"s_cbranch_scc0 {lab}")
            A("s_memrealtime s[100:101]"); A(f"s_lshr_b32 s96, {sT}, 2"); A("s_add_u32 m0, s96, 3"); A("s_waitcnt lgkmcnt(0)")
            A(f"v_writelane_b32 v{VST}, s100, m0")
            A.label(lab)
        if not self.stamps: return
        A = self.A
        A("s_memtime s[96:97]"); A("s_memrealtime s[100:101]"); A(f"s_add_u32 m0, {sT}, 32"); A("s_waitcnt lgkmcnt(0)")
        A(f"v_writelane_b32 v{VST+2}, s96, m0"); A(f"v_writelane_b32 v{VST+1}, s100, m0")
    def dma(self, voff, srdb, soff, imm, flags=""):
        return f"buffer_load_dwordx4 {voff}, {srd(srdb)}, {soff} offen offset:{imm}{flags} lds"
    def tile_KV(self, isK, slot):
        off, voffs, srdb = (sKoff, vKd, SK) if isK else (sVoff, vVd, SV)
        base = (KP if isK else VP)[slot % R] * T; slot = 0
        g = [[self.dma(voffs[i], srdb, off, i * 1024, self.nt)] for i in range(4)]
        g[0] = [f"s_add_u32 m0, {sW4K}, {base + slot*T}", "@M0"] + g[0]
        g[3] = g[3] + [f"s_add_u32 {off}, {off}, {T}"]
        return g
    def tile_XW(self, xbase, wbase):
        k = self.xcnt; self.xcnt += 1
        if self.rot != 4: adv = [[f"s_add_u32 {sTi}, {sTi}, 1"], [f"s_and_b32 {sTi}, {sTi}, 15"], []]
        elif k == self.ncom - 1: adv = [[f"s_mov_b32 {sTi}, {sFloor}"], [], []]
        else: adv = [[f"s_add_u32 {sTi}, {sTi}, 1"], [f"s_cmp_eq_u32 {sTi}, 16", f"s_cselect_b32 {sTi}, {self.ncom}, {sTi}"], []]
        return [[f"s_lshl_b32 {sXoff}, {sTi}, 6", f"s_add_u32 m0, {sW2K}, {xbase}", f"s_add_u32 {sXoff}, {sXoff}, {sXb}", self.dma(vXd[0], SX, sXoff, 0)],
                [f"s_lshl_b32 {sWoff}, {sTi}, 18", self.dma(vXd[1], SX, sXoff, 1024)],
                [f"s_add_u32 m0, {sW4K}, {wbase}", f"s_add_u32 {sWoff}, {sWoff}, {sWb}", self.dma(vWd[0], SWQ, sWoff, 0)],
                adv[0] + [self.dma(vWd[1], SWQ, sWoff, 1024)],
                adv[1] + [self.dma(vWd[2], SWQ, sWoff, 2048)],
                [self.dma(vWd[3], SWQ, sWoff, 3072)]]
    def tile_Wo(self, slot):
        g = [[self.dma(vWs[i], SWO, sWToff, i * 1024, self.wof)] for i in range(4)]
        g[0] = [f"s_add_u32 m0, {sW4K}, {slot * T}", f"s_add_u32 {sWToff}, {sWk[self.tpos(self.wcnt)[0]]}, {self.tpos(self.wcnt)[1] * 65536}"] + g[0]
        self.wcnt += 1
        return g
    def tpos(self, p):
        if p < 4: return 0, p
        return 1 + ((p - 4) % 6) // 2, 2 * ((p - 4) // 6) + p % 2
    def o_units(self, p, slot, AF, vB, m0):
        un = []
        for i in range(16):
            u, db = i // 8, i % 8; m = m0 + i; fr = AVF + 4 * (m % 8)
            D = lambda qb: at(AACC + 8 * db + 4 * qb, 4) if self.ins else vt(O0 + 8 * db + 4 * qb, 4)
            off = (slot % 4) * T + u * 8192
            un.append(([f"{MF} {D(qb)}, {at(fr,4)}, {AF(p, u, qb)}, {'0' if p == 0 and u == 0 else D(qb)}" for qb in range(2)], [("w", m)],
                       [(f"ds_read_b64_tr_b16 {at(fr,2)}, {vB[db]} offset:{off}", ("w", m)),
                        (f"ds_read_b64_tr_b16 {at(fr+2,2)}, {vB[db]} offset:{off + 4096}", ("w", m))]))
        return un
    @staticmethod
    def AF(p, u, qb):
        if p < 4: return vt((HELD if p < 2 else SA) + 8 * (2 * (p % 2) + u) + 4 * qb, 4)
        return at(AFREE + 16 * (p % 4) + 8 * u + 4 * qb, 4)
    def emit_groups(self, groups):
        for g in groups:
            for l in g: self.A("s_nop 0" if l == "@M0" else l)
    @staticmethod
    def cost(l):
        if l.startswith("v_exp"): return 8
        if l.startswith("buffer_"): return 16
        return 4
    def spread(self, fill, gaps, lo, hi, base):
        tot = sum(self.cost(l) for l in fill) + sum(base[lo:hi])
        per = tot / (hi - lo); g = lo; acc = 0.0
        k = 0
        for g in range(lo, hi):
            acc += base[g]; tgt = per * (g - lo + 1)
            while k < len(fill) and (acc + self.cost(fill[k]) / 2 <= tgt or g == hi - 1):
                gaps[g].append(fill[k]); acc += self.cost(fill[k]); base[g] += self.cost(fill[k]); k += 1
    def exp_ops(self, S, lo, hi):
        ops = []
        ex = lambda i: f"v_exp_f32 v{S+i}, v{S+i}"
        def cvt(i):
            kb, qb, r = i // 8, (i // 4) % 2, i % 4
            return f"v_cvt_pk_bf16_f32 v{P0 + 8*(kb//2) + 4*qb + 2*(kb%2) + r//2}, v{S+i}, v{S+i+1}"
        prs = list(range(lo, hi, 2))
        for k, i in enumerate(prs):
            ops += [ex(i), ex(i + 1)]
            if k > 0: ops += [cvt(prs[k-1])]
        ops += ["s_nop 0", cvt(prs[-1])]
        return ops
    def max_ops(self, S):
        ops = []
        for qb in range(2):
            r = [S + 8 * kb + 4 * qb + j for kb in range(4) for j in range(4)]
            o = [f"v_max3_f32 {vMx[qb]}, v{r[0]}, v{r[1]}, v{r[2]}"]
            for i in range(3, 15, 2): o.append(f"v_max3_f32 {vMx[qb]}, {vMx[qb]}, v{r[i]}, v{r[i+1]}")
            o.append(f"v_max_f32 {vMx[qb]}, {vMx[qb]}, v{r[15]}")
            ops.append(o)
        out = [x for pr in zip(*ops) for x in pr]
        out.append(f"v_max_f32 {vMc}, {vMx[0]}, {vMx[1]}")
        return out
    def qk_units(self, Sn, slot, tag="k"):
        un = []; ph = KP[slot % R]
        for i in range(16):
            kb, s = i // 4, i % 4
            fr = AKF + 4 * (i % 8)
            ms = [f"{MF} {vt(Sn+8*kb+4*qb,4)}, {at(fr,4)}, {at(AQ+16*qb+4*s,4)}, {vt(NEG+4*qb,4) if s == 0 else vt(Sn+8*kb+4*qb,4)}" for qb in range(2)]
            un.append((ms, [(tag, i)], [(f"ds_read_b128 {at(fr,4)}, {(vKa if ph < 4 else vKb)[s]} offset:{(ph % 4)*T + kb*4096}", (tag, i))]))
        return un
    def pv_units(self, slot):
        un = []; ph = VP[slot % R]; vA = vVa; slot = ph - 4
        for i in range(16):
            u, db = i // 8, i % 8
            fr = AVF + 4 * (i % 8)
            ms = [f"{MF} {vt(O0+8*db+4*qb,4)}, {at(fr,4)}, {vt(P0+8*u+4*qb,4)}, {vt(O0+8*db+4*qb,4)}" for qb in range(2)]
            un.append((ms, [("v", i)], [(f"ds_read_b64_tr_b16 {at(fr,2)}, {vA[db]} offset:{slot*T + u*8192}", ("v", i)),
                                          (f"ds_read_b64_tr_b16 {at(fr+2,2)}, {vA[db]} offset:{slot*T + u*8192 + 4096}", ("v", i))]))
        return un
    def stream(self, units, nun, NA, G, gaps, mid, extra=None):
        A = self.A
        for i in range(nun):
            if i % G == 0: A.lds_wait(*sum((units[j][1] for j in range(i, min(nun, i + G))), []))
            rds = units[i + NA][2] if i + NA < len(units) else []
            A(units[i][0][0])
            mid(i)
            if rds: A.lds(*rds[0])
            for l in gaps[2 * i]: A(l)
            A(units[i][0][1])
            for r in rds[1:]: A.lds(*r)
            for l in gaps[2 * i + 1]: A(l)
            if extra and i in extra: A(extra[i])
    def place(self, gaps, base, groups, positions):
        for g, p in zip(groups, positions):
            if "@M0" in g:
                k = g.index("@M0"); gaps[p - 1] = gaps[p - 1] + g[:k]; base[p - 1] += 4 * k; g = g[k + 1:]
            gaps[p] = gaps[p] + g; base[p] += sum(self.cost(l) for l in g)
    def simulate_loop(self):
        n1, n2, n3 = {}, {}, {}
        for t in range(TF):
            n1[t] = self.vm_need(("V", t))
            self.vm_issue(("V", t + R - 1), 4)
            n2[t] = self.vm_need(("K", t + 2)) if t < 30 else 63
            for i, tq in enumerate(self.QT):
                if tq == t: n2[t] = min(n2[t], self.vm_need(("E", i)))
            self.vm_issue(("K", t + R + 1), 4)
            for i, tq in enumerate(self.QT[:-2]):
                if tq == t: self.vm_issue(("E", i + 2), 4)
        return n1, n2, n3
    def aload(self, R, j, soff):
        return [f"buffer_load_dwordx4 {R(4*j,4)}, {vL16}, {srd(SWS)}, {soff} offen offset:{(j%4)*1024}{self.ldf}"]
    def body(self, c, n1, n2):
        A = self.A
        par = c % 2; NA = self.nahead; G = self.wgrp
        S, Sn = (SA, SB) if par == 0 else (SB, SA)
        sel = lambda d: min(self.nmax if (d is n1 or self.nb2 is None) else self.nb2, min(v for t, v in d.items() if t % NC == c))
        units = self.qk_units(Sn, c + 1) + self.pv_units(c) + self.qk_units(S, c + 2, "kn")[:NA]
        bp = 16 - NA
        gaps = [[] for _ in range(64)]; base = [0] * 64
        for i in range(32):
            nr = len(units[i + NA][2])
            base[2 * i] += 4; base[2 * i + 1] += 4 * (nr - 1)
            if (i + 1) % G == 0: base[2 * i + 1] += 4
            if i % 16 == bp: base[2 * i] += 12
        self.place(gaps, base, self.tile_KV(False, c + R - 1), [p + 1 for p in self.latepos[:3]] + [31])
        self.place(gaps, base, self.tile_KV(True, c + 1), [32 + p + 1 for p in self.latepos[:3]] + [63])
        self.spread(self.exp_ops(S, 0, self.split), gaps, 0, 32, base)
        self.spread(self.exp_ops(S, self.split, 32), gaps, 32, 32 + self.lim, base)
        self.spread(self.max_ops(Sn), gaps, 32 + self.lim, 64, base)
        lm = lambda u, qb: f"{MF} {vt(LACC+4*qb,4)}, {vt(ONES,4)}, {vt(P0+8*u+4*qb,4)}, {vt(LACC+4*qb,4)}"
        extra = {16 + 3: lm(0, 0), 16 + 7: lm(0, 1), 16 + 11: lm(1, 0), 16 + 15: lm(1, 1)}
        def mid(i):
            if i % 16 == bp:
                d = n1 if i < 16 else n2
                ex = min(v for t, v in d.items() if t % NC == c)
                if c < self.relax and ex > sel(d):
                    lab = A.newlabel("Lr")
                    A(f"s_waitcnt vmcnt({ex})"); A(f"s_cmp_lt_u32 {sT}, {self.relax}"); A(f"s_cbranch_scc1 {lab}")
                    A(f"s_waitcnt vmcnt({sel(d)})"); A.label(lab)
                else: A(f"s_waitcnt vmcnt({sel(d)})")
                A("s_barrier")
        A.lds_q = [("k", i) for i in range(NA)]
        self.stream(units, 32, NA, G, gaps, mid, extra)
    def final_bodies(self):
        A = self.A; NA = self.nahead; G = self.wgrp; bp = 16 - NA
        lm = lambda u, qb: f"{MF} {vt(LACC+4*qb,4)}, {vt(ONES,4)}, {vt(P0+8*u+4*qb,4)}, {vt(LACC+4*qb,4)}"
        G0 = lambda t: 64 * (t - TF)
        ba = lambda t: G0(t) + 2 * bp + 1 if t < 31 else G0(31)
        bb = lambda t: G0(t) + 32 + 2 * bp + 1
        END = G0(31) + 30
        busy = set()
        for t in range(TF, 33 - R): busy |= set(range(G0(t) + 2 * bp, G0(t) + 32))
        first = G0(TF + self.fst) + self.fof
        todo = []
        for v in range(4):
            for qb in range(2):
                todo.append((first, [self.ostore(HELD + 8*v + 4*qb, v, qb)] + ([f"s_add_u32 {sOT}, {sOT}, 8192"] if qb else []), "OA"))
        slots = sorted([(G0(TF) + 33, k) for k in range(8 if self.ins else 8 + len(self.mid), 10)] + [(bb(t), KP[(t + 1) % R]) for t in range(TF, 31)] + [(ba(t), VP[(t - 1) % R]) for t in range(33 - R, 32)])
        plan = {}; moves = {}; pos = 0; avail = list(slots); npk = 0; nreg = len(self.mid)
        stores = list(todo)
        while avail or stores:
            avail.sort()
            if stores and (not avail or stores[0][0] <= max(pos, avail[0][0])):
                fr_, what, tag = stores.pop(0); p0 = max(pos, fr_)
                while p0 in busy: p0 += 1
                plan[p0] = (what, tag); pos = p0 + self.fsp
                continue
            fr_, slot = avail.pop(0); p0 = max(pos, fr_)
            while any(q in busy for q in range(p0, p0 + 3 * self.fsp + 1)): p0 += 1
            if p0 + 3 * self.fsp >= END:
                if not stores: break
                continue
            tag = ("PK", npk); npk += 1
            for g in self.tile_Wo(slot):
                plan[p0] = (g, tag); p0 += self.fsp
            pos = p0
            mv = (p0 + self.fdl) // 2 * 2
            while mv in moves: mv += 2
            if nreg < self.fmv and mv + 24 + 4 * self.fsp < END:
                moves[mv] = (tag, slot, nreg); self.parks.append(("reg", nreg)); nreg += 1
                avail.append((mv + 24, slot))
            else: self.parks.append(("lds", slot))
        self.nfm = nreg
        def run(t, units, nun, off, exps, waits, extra):
            ng = 2 * nun
            gaps = [[] for _ in range(ng)]; base = [0] * ng; vmat = {}
            for i in range(nun):
                nr = len(units[i + NA][2]) if i + NA < len(units) else 0
                base[2 * i] += 4 * min(1, nr); base[2 * i + 1] += 4 * max(0, nr - 1)
            if t + R - 1 <= 31:
                ps = [p + 1 for p in self.latepos[:3]] + [31]
                self.place(gaps, base, self.tile_KV(False, t + R - 1), ps)
                for p in ps: vmat[p] = ("V", t + R - 1)
            for p, (g, tag) in plan.items():
                if off <= p < off + ng:
                    gaps[p - off] += g; base[p - off] += sum(self.cost(l) for l in g); vmat[p - off] = tag
            for ops, lo, hi in exps: self.spread(ops, gaps, lo, hi, base)
            done = [0]
            def log(upto):
                for p in range(done[0], upto):
                    if p in vmat: self.vm_issue(vmat[p], 1)
                done[0] = upto
            def mid(i):
                log(2 * i)
                if off + 2 * i in moves:
                    tag, slot, k = moves[off + 2 * i]
                    A(f"s_waitcnt vmcnt({self.vm_need(tag)})")
                    for nb in range(4):
                        A(f"v_xor_b32 {vTm}, {32*nb}, {vWr}"); A(f"v_add_u32 {vTm}, {slot * T}, {vTm}")
                        for hf in range(2): A(f"ds_read_b64_tr_b16 {at(AFREE + 16*k + 4*nb + 2*hf, 2)}, {vTm} offset:{hf*2048}")
                if i in waits:
                    if waits[i]: A(f"s_waitcnt vmcnt({self.vm_need(*waits[i])})")
                    A("s_barrier")
            self.stream(units, nun, NA, G, gaps, mid, extra)
            log(ng)
        def check(k):
            A(f"v_cmp_lt_f32 vcc, {sThr}, {vMc}"); A(f"s_cbranch_vccz L_f{k}"); A(f"s_call_b64 {sLink2}, L_rare"); A.label(f"L_f{k}")
            A(f"s_add_u32 {sT}, {sT}, 1")
        ex2 = {16 + 3: lm(0, 0), 16 + 7: lm(0, 1), 16 + 11: lm(1, 0), 16 + 15: lm(1, 1)}
        check(TF - 1)
        for t in range(TF, 31):
            S, Sn = (SA, SB) if t % 2 == 0 else (SB, SA)
            units = self.qk_units(Sn, t + 1) + self.pv_units(t) + (self.qk_units(S, t + 2, "kn")[:NA] if t < 30 else [])
            A.lds_q = [("k", i) for i in range(NA)]
            wa = [("V", t)] + ([("V", t + R - 2)] if t + R - 1 <= 31 else [])
            wb = ([("K", t + 2)] if t < 30 else []) + ([("K", 31)] if t == TF else [])
            run(t, units, 32, G0(t),
                [(self.exp_ops(S, 0, self.split), 0, 32), (self.exp_ops(S, self.split, 32), 32, 32 + self.lim), (self.max_ops(Sn), 32 + self.lim, 64)],
                {bp: wa, 16 + bp: wb}, ex2)
            self.istamp()
            check(t)
        units = self.pv_units(31)
        e = self.exp_ops(SB, 0, 32)
        k0 = next(i for i, l in enumerate(e) if l.startswith(f"v_cvt_pk_bf16_f32 v{P0 + 7},")) + 1
        for l in e[:k0 - 6]: A(l)
        if self.two:
            A(f"v_add_u32 {vOne}, 1, {vOne}")
            A(f"s_waitcnt vmcnt({self.vm_need('OA')})")
            self.one_lane([f"buffer_store_dword {vOne}, {vZero}, {srd(SWS)}, {sFlagP} offen sc1"]); self.vm_issue("F1", 1)
        A(f"s_waitcnt vmcnt({self.vm_need(('V', 31))})"); A("s_barrier")
        A.lds_reset()
        for i in range(NA):
            for r in units[i][2]: A.lds(*r)
        for l in e[k0 - 6:k0]: A(l)
        A("s_nop 0")
        run(31, units, 16, G0(31), [(e[k0:], 0, 13)], {}, ({3: lm(0, 0), 7: lm(0, 1), 9: lm(1, 0), 11: lm(1, 1)} if self.lmearly else {3: lm(0, 0), 7: lm(0, 1), 11: lm(1, 0), 15: lm(1, 1)}))
        self.istamp()
    def widen(self, a, b):
        return [[f"v_permlane32_swap_b32 v{a}, v{b}", f"v_permlane32_swap_b32 v{a+1}, v{b+1}"],
                [f"v_permlane16_swap_b32 v{a}, v{b}", f"v_permlane16_swap_b32 v{a+1}, v{b+1}"]]
    def qfin_ops(self, from_acc, steps=range(4), AQ=AQ):
        pair = vt(int(vF[0][1:]), 2); out = []
        for s in steps:
            t = P0 if from_acc else O0 + 16 * s
            if from_acc: out += [f"v_accvgpr_read_b32 v{t+j}, a{AACC+16*s+j}" for j in range(16)]
            out += [f"v_pk_mul_f32 {vt(t+2*j,2)}, {vt(t+2*j,2)}, {pair}" for j in range(8)]
            for q4 in range(4): out += [f"v_cvt_pk_bf16_f32 v{t+4*q4+j}, v{t+4*q4+2*j}, v{t+4*q4+2*j+1}" for j in range(2)]
            w0, w1 = self.widen(t, t + 8), self.widen(t + 4, t + 12)
            out += ["s_nop 0"] + w0[0] + w1[0] + w0[1] + w1[1]
            for qb in range(2):
                for j, r in enumerate((t + 4*qb, t + 4*qb + 1, t + 8 + 4*qb, t + 8 + 4*qb + 1)):
                    out.append(f"v_accvgpr_write_b32 a{AQ+16*qb+4*s+j}, v{r}")
        return out
    def zero_acc(self): return [f"v_accvgpr_write_b32 a{AACC+i}, 0" for i in range(64)]
    def epilogue(self, hold):
        A = self.A
        A("s_nop 4")
        for qb in range(2):
            A(f"v_rcp_f32 v{vInv+2*qb}, v{LACC+4*qb}"); A(f"v_rcp_f32 v{vInv+2*qb+1}, v{LACC+4*qb}")
        A("s_nop 0")
        for v in range(4):
            for qb in range(2):
                src = [O0 + 16*v + 4*qb, O0 + 16*v + 8 + 4*qb]
                dst = HELD + 8*v + 4*qb if hold else SA + 8*v + 4*qb
                for b in src:
                    for j in range(2): A(f"v_pk_mul_f32 {vt(b+2*j,2)}, {vt(b+2*j,2)}, {vt(vInv+2*qb,2)}")
                for k, b in enumerate(src):
                    for j in range(2): A(f"v_cvt_pk_bf16_f32 v{dst+2*k+j}, v{b+2*j}, v{b+2*j+1}")
                if not hold: A(self.ostore(dst, v, qb))
            if not hold: A(f"s_add_u32 {sOT}, {sOT}, 8192")
    def warm_loads(self):
        A = self.A
        A(f"s_lshl_b32 {sT0}, s2, 14"); A(f"s_add_u32 {sT0}, {sT0}, {sW4K}")
        for i in range(4): A(f"buffer_load_dwordx4 {vt(vInv, 4)}, {vL16}, {srd(SWO)}, {sT0} offen offset:{i*1024}")
        self.vm_issue(("WARM",), 4)
    def ostore(self, reg, v, qb):
        return f"buffer_store_dwordx4 {vt(reg,4)}, {vL16}, {srd(SWS)}, {sOT} offen offset:{qb*1024}{self.stf if self.ostf is None else self.ostf}"
    def store_held(self):
        for v in range(4):
            for qb in range(2): self.A(self.ostore(HELD + 8*v + 4*qb, v, qb))
            self.A(f"s_add_u32 {sOT}, {sOT}, 4096")
    def make_srd(self, b, p, size):
        A = self.A
        A(f"s_mov_b32 s{b}, s{p}"); A(f"s_mov_b32 s{b+1}, s{p+1}")
        A(f"s_mov_b32 s{b+2}, 0x{size:x}"); A(f"s_mov_b32 s{b+3}, 0x20000")
    def one_lane(self, lines, wave0=False):
        A = self.A
        lab = A.newlabel("Lo")
        if wave0: A(f"s_cmp_eq_u32 {sW}, 0"); A(f"s_cbranch_scc0 {lab}")
        A("s_mov_b64 exec, 1")
        for l in lines: A(l)
        A("s_mov_b64 exec, -1")
        if wave0: A.label(lab)
    def spin(self, name, cmp_line, load_line, sleep):
        A = self.A
        A(f"s_mov_b32 {sSpin}, 0x40000")
        A.label(name)
        A(cmp_line)
        A(f"s_cbranch_vccz {name}_ok")
        A(f"s_sub_u32 {sSpin}, {sSpin}, 1"); A(f"s_cbranch_scc1 {name}_ok")
        if sleep: A(f"s_sleep {sleep}")
        A(load_line)
        A("s_waitcnt vmcnt(0)")
        A(f"s_branch {name}")
        A.label(name + "_ok")
    def rowmax(self, floor):
        A = self.A
        for qb, tm in ((0, vTm), (1, vMc)): A(f"v_mov_b32 {tm}, {vMx[qb]}")
        A("s_nop 0")
        for qb, tm in ((0, vTm), (1, vMc)): A(f"v_permlane32_swap_b32 {vMx[qb]}, {tm}")
        for qb, tm in ((0, vTm), (1, vMc)): A(f"v_max_f32 {vMx[qb]}, {vMx[qb]}, {tm}")
        for qb, tm in ((0, vTm), (1, vMc)): A(f"v_mov_b32 {tm}, {vMx[qb]}")
        A("s_nop 0")
        for qb, tm in ((0, vTm), (1, vMc)): A(f"v_permlane16_swap_b32 {vMx[qb]}, {tm}")
        for qb, tm in ((0, vTm), (1, vMc)): A(f"v_max3_f32 {vMx[qb]}, {vMx[qb]}, {tm}, {floor}")

    def kernel(self):
        A = self.A
        tg, tl15, tr, tc, ta, tb, td, te = [tmp(i) for i in range(8)]
        A("s_cmp_ge_u32 s2, 256"); A("s_cbranch_scc1 L_end")
        if self.stamps: A("s_memrealtime s[98:99]")
        A("s_load_dwordx16 s[64:79], s[0:1], 0")
        self.stamp(0); self.hstamp(0)
        A("v_lshrrev_b32 v1, 6, v0"); A("v_and_b32 v2, 63, v0")
        A(f"v_readfirstlane_b32 {sW}, v1")
        A(f"v_lshlrev_b32 {vL16}, 4, v2")
        A(f"s_getpc_b64 s[{SCODE}:{SCODE+1}]")
        A.label("L_pc")
        A(f"s_mov_b32 s{SCODE+2}, L_codeend-L_pc"); A(f"s_mov_b32 s{SCODE+3}, 0x20000")
        A(f"s_lshr_b32 {sT0}, s2, 3"); A(f"s_lshl_b32 {sT0}, {sT0}, 2"); A(f"s_add_u32 {sT0}, {sT0}, {sW}")
        A(f"s_and_b32 {sT0}, {sT0}, 63"); A(f"s_lshl_b32 {sT0}, {sT0}, 10")
        A(f"buffer_load_dwordx4 v[128:131], {vL16}, {srd(SCODE)}, {sT0} offen"); self.vm_issue(("CODE",), 1)
        A(f"s_lshl_b32 {sW4K}, {sW}, 12"); A(f"s_lshl_b32 {sW2K}, {sW}, 11")
        A(f"v_lshrrev_b32 {tg}, 4, v2"); A(f"v_and_b32 {tc}, 3, v2")
        A(f"v_lshrrev_b32 {ta}, 2, v2"); A(f"v_lshl_add_u32 {ta}, v1, 5, {ta}")
        A(f"v_sub_u32 {tb}, 0, {tg}"); A(f"v_and_b32 {tb}, 3, {tb}"); A(f"v_xor_b32 {tb}, {tb}, {tc}"); A(f"v_lshlrev_b32 {tb}, 4, {tb}")
        A(f"v_lshl_add_u32 {vXd[0]}, {ta}, 10, {tb}"); A(f"v_add_u32 {vXd[1]}, {16384 - 1024}, {vXd[0]}")
        A(f"v_lshrrev_b32 {ta}, 5, v2"); A(f"v_and_b32 {tb}, 1, v1"); A(f"v_lshl_add_u32 {tb}, {tb}, 2, {ta}"); A(f"v_lshlrev_b32 {tb}, 1, {tb}")
        A(f"v_and_b32 {td}, 31, v2"); A(f"v_xor_b32 {tb}, {tb}, {td}"); A(f"v_lshlrev_b32 {tb}, 4, {tb}")
        A(f"v_lshl_add_u32 {ta}, v1, 3, {ta}"); A(f"v_lshl_add_u32 {vWd[0]}, {ta}, 13, {tb}"); A(f"v_xor_b32 {tb}, 64, {vWd[0]}")
        A(f"v_add_u32 {vWd[1]}, 15360, {tb}"); A(f"v_add_u32 {vWd[2]}, {2*15360}, {vWd[0]}"); A(f"v_add_u32 {vWd[3]}, {3*15360}, {tb}")
        if self.local:
            A(f"s_and_b32 {sBat}, s2, 7"); A(f"s_lshl_b32 {sBat}, {sBat}, 1"); A(f"s_lshr_b32 {sT2}, s2, 7"); A(f"s_add_u32 {sBat}, {sBat}, {sT2}")
            A(f"s_bfe_u32 {sT1}, s2, 0x40003")
            if self.rot == 2: A(f"s_lshl_b32 {sTi}, {sT2}, 3"); A(f"s_add_u32 {sTi}, {sTi}, {sT1}"); A(f"s_and_b32 {sTi}, {sTi}, 15")
            elif self.rot == 1: A(f"s_lshl_b32 {sTi}, {sT2}, 3")
            else: A(f"s_mov_b32 {sTi}, 0")
            A(f"s_lshl_b32 {sT3}, {sT1}, 1")
            A(f"s_and_b32 {sT2}, {sT1}, 3"); A(f"s_lshr_b32 {sT1}, {sT1}, 2"); A(f"s_lshl_b32 {sT1}, {sT1}, 3"); A(f"s_add_u32 {sT1}, {sT1}, {sT2}")
        else:
            A(f"s_and_b32 {sBat}, s2, 1"); A(f"s_lshl_b32 {sBat}, {sBat}, 3")
            A(f"s_bfe_u32 {sT1}, s2, 0x30003"); A(f"s_add_u32 {sBat}, {sBat}, {sT1}")
            A(f"s_lshr_b32 {sT2}, s2, 6")
            if self.rot == 2:
                A(f"s_lshl_b32 {sTi}, {sT2}, 1"); A(f"s_add_u32 {sTi}, {sTi}, {sT1}"); A(f"s_lshl_b32 {sTi}, {sTi}, 1"); A(f"s_and_b32 {sTi}, {sTi}, 15")
            elif self.rot == 1:
                A(f"s_add_u32 {sTi}, {sT2}, {sT1}"); A(f"s_and_b32 {sTi}, {sTi}, 1"); A(f"s_lshl_b32 {sTi}, {sTi}, 3")
            elif self.rot == 3:
                A(f"s_add_u32 {sTi}, {sT2}, {sT1}"); A(f"s_and_b32 {sTi}, {sTi}, 3"); A(f"s_lshl_b32 {sTi}, {sTi}, 2")
            elif self.rot == 4:
                n = 16 - self.ncom
                A(f"s_lshl_b32 {sFloor}, {sT2}, 1"); A(f"s_add_u32 {sFloor}, {sFloor}, {sT1}"); A(f"s_lshl_b32 {sFloor}, {sFloor}, 1")
                for _ in range(2): A(f"s_sub_u32 {sTi}, {sFloor}, {n}"); A(f"s_cselect_b32 {sFloor}, {sFloor}, {sTi}")
                A(f"s_add_u32 {sFloor}, {sFloor}, {self.ncom}"); A(f"s_mov_b32 {sTi}, 0")
            else: A(f"s_mov_b32 {sTi}, 0")
            A(f"s_bfe_u32 {sT1}, s2, 0x20001"); A(f"s_lshl_b32 {sT1}, {sT1}, 3")
            A(f"s_lshl_b32 {sT3}, {sT2}, 1"); A(f"s_add_u32 {sT3}, {sT3}, {sT1}")
            A(f"s_add_u32 {sT1}, {sT1}, {sT2}")
        A(f"s_lshl_b32 {sXb}, {sBat}, 17"); A(f"s_lshl_b32 {sWb}, {sT3}, 8")
        A("s_waitcnt lgkmcnt(0)")
        self.make_srd(SX, 64, 2 << 20); self.make_srd(SWQ, 70, 4 << 20)
        XS = [2 * T, 2 * T + 8192, 3 * T, 3 * T + 8192]; WS_ = [6 * T, 7 * T, 8 * T, 9 * T]
        self.emit_groups(self.tile_XW(XS[0], WS_[0])); self.vm_issue(("P", 0), 6)
        self.stamp(1)
        A(f"s_lshl_b32 {sT2}, {sBat}, 5"); A(f"s_add_u32 {sT2}, {sT2}, {sT3}"); A(f"s_lshl_b32 {sT2}, {sT2}, 18")
        A(f"s_add_u32 s66, s66, {sT2}"); A("s_addc_u32 s67, s67, 0"); A(f"s_add_u32 s68, s68, {sT2}"); A("s_addc_u32 s69, s69, 0")
        A(f"s_mov_b32 {sKoff}, 0"); A(f"s_mov_b32 {sVoff}, 0")
        A(f"s_lshl_b32 {sFlagP}, {sBat}, 2"); A(f"s_lshr_b32 {sT2}, {sT1}, 3"); A(f"s_add_u32 {sFlagP}, {sFlagP}, {sT2}")
        A(f"s_lshl_b32 {sFlagP}, {sFlagP}, 2"); A(f"s_add_u32 {sFlagP}, {sFlagP}, {sW}"); A(f"s_lshl_b32 {sFlagP}, {sFlagP}, 7")
        A(f"s_and_b32 {sT2}, {sT1}, 3"); A(f"s_lshl_b32 {sT2}, {sT2}, 2"); A(f"s_add_u32 {sFlagP}, {sFlagP}, {sT2}")
        A(f"s_add_u32 {sFlagP}, {sFlagP}, {WS_FLAG}")
        A(f"s_lshl_b32 {sT0}, {sBat}, 5"); A(f"s_add_u32 {sT0}, {sT0}, {sT3}"); A(f"s_lshl_b32 {sT0}, {sT0}, 15")
        A(f"s_add_u32 {sOT}, {sT0}, {sW2K}")
        self.emit_groups(self.tile_XW(XS[1], WS_[1])); self.vm_issue(("P", 1), 6)
        A(f"s_mov_b32 {sC}, 0x{f2u(CSC):08x}"); A(f"s_mov_b32 {sThr}, 0x{f2u(8.0):08x}")
        self.make_srd(SK, 66, 512 << 10); self.make_srd(SV, 68, 512 << 10)
        self.make_srd(SWO, 72, 4 << 20); self.make_srd(SWS, 78, WS_SIZE)
        self.make_srd(SOUT, 74, 2 << 20)
        if self.hdbg: self.make_srd(SDBG, 76, 256)
        A(f"v_and_b32 {tl15}, 15, v2"); A(f"v_lshl_add_u32 {ta}, v1, 4, {tg}")
        A(f"v_lshlrev_b32 {tb}, 1, {tg}"); A(f"v_xor_b32 {tb}, {tb}, {tl15}"); A(f"v_lshlrev_b32 {tb}, 4, {tb}")
        A(f"v_lshl_add_u32 {vVd[0]}, {ta}, 8, {tb}"); A(f"v_xor_b32 {vVd[1]}, 128, {vVd[0]}")
        A(f"v_xor_b32 {tb}, {tl15}, {tg}"); A(f"v_lshlrev_b32 {tb}, 4, {tb}")
        A(f"v_lshl_add_u32 {vKd[0]}, {ta}, 8, {tb}")
        for i in range(1, 4): A(f"v_xor_b32 {vKd[i]}, {64*i}, {vKd[0]}")
        self.emit_groups(self.tile_XW(XS[2], WS_[2])); self.vm_issue(("P", 2), 6)
        A(f"v_lshl_add_u32 {vKa[0]}, {tl15}, 8, {tb}")
        for s in range(1, 4): A(f"v_xor_b32 {vKa[s]}, {64*s}, {vKa[0]}")
        A(f"v_bfe_u32 {tr}, v2, 2, 2")
        A(f"v_sub_u32 {ta}, 0, {tr}"); A(f"v_and_b32 {ta}, 3, {ta}"); A(f"v_xor_b32 {ta}, {ta}, {tg}"); A(f"v_lshlrev_b32 {ta}, 4, {ta}")
        A(f"v_lshl_add_u32 {tb}, v1, 5, {tl15}"); A(f"v_lshl_add_u32 {ta}, {tb}, 6, {ta}")
        A(f"v_add_u32 {vXa}, {XS[0]}, {ta}")
        A(f"v_and_b32 {ta}, 1, {tg}"); A(f"v_lshl_add_u32 {ta}, {ta}, 2, {tr}")
        A(f"v_lshlrev_b32 {ta}, 5, {ta}"); A(f"v_lshl_add_u32 {ta}, {tc}, 3, {ta}")
        A(f"v_lshl_add_u32 {td}, {tg}, 2, {tr}")
        A(f"v_lshl_add_u32 {tb}, {td}, 8, {ta}"); A(f"v_add_u32 {vVa[0]}, {LV}, {tb}")
        for b in range(1, 8): A(f"v_xor_b32 {vVa[b]}, {32*b}, {vVa[0]}")
        A(f"v_lshl_add_u32 {tb}, {tg}, 3, {tr}"); A(f"v_lshl_add_u32 {tb}, {tb}, 9, {ta}"); A(f"v_add_u32 {vWa[0]}, {6*T}, {tb}")
        for b in range(1, 8): A(f"v_xor_b32 {vWa[b]}, {32*b}, {vWa[0]}")
        A(f"v_and_b32 {ta}, 0xff, {vVd[0]}"); A(f"v_lshrrev_b32 {tb}, 8, {vVd[0]}"); A(f"v_lshl_add_u32 {vWs[0]}, {tb}, 10, {ta}")
        A(f"v_xor_b32 {ta}, 128, {vWs[0]}")
        A(f"v_add_u32 {vWs[1]}, 3072, {ta}"); A(f"v_add_u32 {vWs[2]}, 6144, {vWs[0]}"); A(f"v_add_u32 {vWs[3]}, 9216, {ta}")
        A(f"v_cmp_eq_u32 vcc, 0, {tc}"); A(f"v_mov_b32 {ta}, 0x3f803f80"); A(f"v_mov_b32 {vZero}, 0")
        for k in range(4): A(f"v_cndmask_b32 v{ONES+k}, 0, {ta}, vcc")
        for k in range(16): A(f"v_mov_b32 v{LACC+k}, 0")
        if self.cmap == 0:
            A(f"s_and_b32 {sT0}, s2, 7"); A(f"s_lshl_b32 {sT0}, {sT0}, 1"); A(f"s_lshr_b32 {sT1}, s2, 7"); A(f"s_add_u32 {sB2}, {sT0}, {sT1}")
            A(f"s_bfe_u32 {sKs}, s2, 0x20005"); A(f"s_bfe_u32 {sT3}, s2, 0x20003")
        else:
            A(f"s_mov_b32 {sB2}, {sBat}"); A(f"s_bfe_u32 {sKs}, s2, 0x20001"); A(f"s_lshr_b32 {sT3}, s2, 6")
        A(f"s_lshl_b32 {sT0}, {sB2}, 2"); A(f"s_add_u32 {sT0}, {sT0}, {sKs}")
        A(f"s_lshl_b32 {sAreal}, {sT0}, 18"); A(f"s_add_u32 {sAreal}, {sAreal}, {sW2K}")
        A(f"s_lshl_b32 {sFlagC}, {sT0}, 2"); A(f"s_add_u32 {sFlagC}, {sFlagC}, {sW}"); A(f"s_lshl_b32 {sFlagC}, {sFlagC}, 7")
        A(f"s_add_u32 {sFlagC}, {sFlagC}, {WS_FLAG}")
        A(f"s_lshl_b32 {sWP}, {sKs}, 20"); A(f"s_lshl_b32 {sT1}, {sT3}, 8"); A(f"s_add_u32 {sWP}, {sWP}, {sT1}")
        A(f"s_lshl_b32 {sOutO}, {sT0}, 15"); A(f"s_add_u32 {sOutO}, {sOutO}, {sT1}"); A(f"s_lshl_b32 {sT1}, {sW}, 6"); A(f"s_add_u32 {sOutO}, {sOutO}, {sT1}")
        A(f"s_lshl_b32 {sT0}, {sB2}, 2"); A(f"s_add_u32 {sT0}, {sT0}, {sT3}"); A(f"s_lshl_b32 {sT0}, {sT0}, 2")
        A(f"s_add_u32 {sT1}, {sT0}, {sW}"); A(f"s_add_u32 {sT2}, {sT0}, {sKs}")
        A(f"s_lshl_b32 {sPXs}, {sT1}, 2"); A(f"s_add_u32 {sPXs}, {sPXs}, {sKs}"); A(f"s_lshl_b32 {sPXs}, {sPXs}, 13"); A(f"s_add_u32 {sPXs}, {sPXs}, {WS_PX}")
        A(f"s_lshl_b32 {sPXr}, {sT2}, 15"); A(f"s_add_u32 {sPXr}, {sPXr}, {sW2K}"); A(f"s_add_u32 {sPXr}, {sPXr}, {WS_PX}")
        A(f"s_lshl_b32 {sXFs}, {sT1}, 7"); A(f"s_lshl_b32 {sT1}, {sKs}, 2"); A(f"s_add_u32 {sXFs}, {sXFs}, {sT1}"); A(f"s_add_u32 {sXFs}, {sXFs}, {WS_XF}")
        A(f"s_lshl_b32 {sXFr}, {sT2}, 7"); A(f"s_add_u32 {sXFr}, {sXFr}, {WS_XF}")
        for k in range(4):
            A(f"s_add_u32 {sT0}, {sT3}, {k}"); A(f"s_and_b32 {sT0}, {sT0}, 3")
            A(f"s_lshl_b32 {sT1}, {sT0}, 18"); A(f"s_add_u32 {sWk[k]}, {sWP}, {sT1}")
            A(f"s_lshl_b32 {sT1}, {sT0}, 16"); A(f"s_add_u32 {sAk[k]}, {sAreal}, {sT1}")
        for db in range(8): A(f"v_add_u32 {vB2[db]}, {8 * T - LV}, {vVa[db]}")
        A(f"v_and_b32 {vPoff}, 3, v2"); A(f"v_lshlrev_b32 {vPoff}, 2, {vPoff}")
        A(f"buffer_load_dword {vPoll}, {vPoff}, {srd(SWS)}, {sFlagC} offen sc1")
        A(f"buffer_load_dword {vOne}, {vZero}, {srd(SWS)}, {sFlagP} offen sc1")
        A(f"buffer_load_dword {vXo}, {vPoff}, {srd(SWS)}, {sXFr} offen sc1")
        A(f"buffer_load_dword {vXn}, {vZero}, {srd(SWS)}, {sXFs} offen sc1"); self.vm_issue(("FZ",), 4)
        if self.warm == 1: self.warm_loads()
        NA = self.pna; BP = 16 - NA; NU = 256
        XF = lambda pi, qb: at(AKF + 8 * (pi % 2) + 4 * qb, 4)
        units = []
        for pi in range(16):
            for t in range(16):
                m = 16 * pi + t; fr = AVF + 4 * (m % 8)
                D = lambda qb: vt(O0 + 8*t + 4*qb, 4) if t < 8 else at(AACC + 8*(t-8) + 4*qb, 4)
                wo_ = WS_[pi % 4] - 6 * T + (t // 8) * 256
                units.append(([f"{MF} {D(qb)}, {at(fr,4)}, {XF(pi, qb)}, {'0' if pi == 0 else D(qb)}" for qb in range(2)],
                              [("w", m), ("x", pi)],
                              [(f"ds_read_b64_tr_b16 {at(fr,2)}, {vWa[t % 8]} offset:{wo_}", ("w", m)),
                               (f"ds_read_b64_tr_b16 {at(fr+2,2)}, {vWa[t % 8]} offset:{wo_ + 2048}", ("w", m))]))
        sched = []
        early = [("K", 0), ("K", 1), ("V", 0), ("V", 1)]
        for j in range(3, 16):
            first = 0 if j == 3 else 16 * (j - 3) + BP
            sched.append((first, ("P", j), self.tile_XW(XS[j % 4], WS_[j % 4])))
            for (kind, sl), at_ in zip(early, self.kvpos):
                if at_ == j - 3: sched.append((first, (kind, sl), self.tile_KV(kind == "K", sl)))
        for kind, u, st in (("K", 2, 13), ("V", 2, 13), ("K", 3, 15)):
            sched.append((16 * st + BP, (kind, u), self.tile_KV(kind == "K", u)))
        gaps = [[] for _ in range(2 * NU)]; vmat = {}
        pos = 0
        for first, tag, groups in sched:
            for g in groups:
                pos = max(pos, first)
                g = [("s_nop 0" if l == "@M0" else l) for l in g]
                k = max(i for i, l in enumerate(g) if l.startswith("buffer_"))
                gaps[2 * pos] += g[:k]; gaps[2 * pos + 1] += g[k:]; vmat[pos] = tag
                pos += 1
        xrd = lambda pi, qb: (f"ds_read_b128 {XF(pi, qb)}, {vXa} offset:{qb * 1024}", ("x", pi))
        def mid(m):
            pi, k = m // 16, m % 16
            if m - 1 in vmat: self.vm_issue(vmat[m - 1], 1)
            if pi == 15 and k == BP: A("s_barrier")
            if pi < 15:
                if k == 2: A(f"v_add_u32 {vXa}, {XS[(pi + 1) % 4] - XS[pi % 4]}, {vXa}")
                if k == BP:
                    A(f"s_waitcnt vmcnt({self.vm_need(('P', pi + 1))})"); A("s_barrier")
                    if pi % 2 == 1: self.stamp(3 + pi // 2)
                if BP < k <= BP + 2: A.lds(*xrd(pi + 1, k - BP - 1))
        A(f"s_waitcnt vmcnt({self.vm_need(('P', 0))})")
        A("s_barrier")
        self.stamp(2); self.hstamp(1)
        A.lds_reset()
        for qb in range(2): A.lds(*xrd(0, qb))
        for m in range(NA):
            for r in units[m][2]: A.lds(*r)
        self.stream(units, NU, NA, self.pg, gaps, mid)
        assert NU - 1 not in vmat
        A(f"v_mov_b32 {vF[0]}, {sC}"); A(f"v_mov_b32 {vF[1]}, {sC}")
        for k in range(8): A(f"v_mov_b32 v{NEG+k}, 0")
        A(f"s_waitcnt vmcnt({self.vm_need(('K', 0))})")
        A("s_barrier")
        NB = self.nahead
        units = self.qk_units(SA, 0) + self.qk_units(SB, 1, "kn")[:NB]
        for i in range(NB): A.lds(*units[i][2][0])
        for l in self.qfin_ops(False): A(l)
        self.stamp(10); self.hstamp(2)
        gaps = [[] for _ in range(32)]; base = [4, 0] * 16
        if self.epark:
            grp = [x for k in range(4) for x in self.tile_Wo(6 + k)]
            self.parks += [("lds", 6 + k) for k in range(4)]
            for i, gq in enumerate(grp):
                gaps[2 * i] += gq[:-1]; gaps[2 * i + 1] += gq[-1:]; base[2 * i] += 4 * (len(gq) - 1); base[2 * i + 1] += 16
        self.spread([f"v_mov_b64 {vt(O0+2*k,2)}, 0" for k in range(32)], gaps, 0, 32, base)
        def mid0(i):
            if self.epark and i > 0: self.vm_issue(("EP",), 1)
            if i == 16 - NB: A(f"s_waitcnt vmcnt({self.vm_need(('K', 1))})"); A("s_barrier")
        self.stream(units, 16, NB, self.wgrp, gaps, mid0)
        if self.epark: self.vm_issue(("EP",), 1)
        A("s_barrier")
        g = self.tile_KV(True, 4); self.vm_issue(("K", 4), 4)
        self.emit_groups(g[:2])
        for l in self.max_ops(SA): A(l)
        self.emit_groups(g[2:])
        if self.warm == 2: self.warm_loads()
        A(f"s_mov_b32 {sT}, 0")
        A(f"s_call_b64 {sRet}, L_init")
        n1, n2, n3 = self.simulate_loop()
        self.n = (n1, n2, n3)
        xs = {14, 15, TF - 1} | set(self.qbt)
        xs |= set(self.mid) | ({t + self.odl for t in self.mid} if self.ins else set())
        xmask = sum(1 << t for t in xs)
        A.label("L_loop")
        for c in range(NC):
            self.body(c, n1, n2)
            self.istamp()
            A(f"s_bitcmp1_b32 0x{xmask:08x}, {sT}"); A(f"s_cbranch_scc1 L_x_{c}")
            A.label(f"L_c_{c}")
            A(f"v_cmp_lt_f32 vcc, {sThr}, {vMc}")
            A(f"s_cbranch_vccnz L_r_{c}")
            A.label(f"L_n_{c}")
            A(f"s_add_u32 {sT}, {sT}, 1")
        A("s_branch L_loop")
        for c in range(NC):
            A.label(f"L_x_{c}"); A(f"s_call_b64 {sRet}, L_extras"); A(f"s_branch L_c_{c}")
            A.label(f"L_r_{c}"); A(f"s_call_b64 {sLink2}, L_rare"); A(f"s_branch L_n_{c}")
        A(".p2align 3")
        ssub = lambda S: [f"v_sub_f32 v{S+i}, v{S+i}, {vMx[(i//4)%2]}" for i in range(32)]
        A.label("L_init")
        A(f"s_mov_b32 {sFloor}, 0x{f2u(-1e30):08x}")
        self.rowmax(sFloor)
        for i in range(8): A(f"v_sub_f32 v{NEG+i}, 0, {vMx[i//4]}")
        for l in ssub(SA): A(l)
        A(f"v_mov_b32 {vMc}, 0")
        A(f"s_setpc_b64 {sRet}")
        A.label("L_rare")
        self.rowmax("0")
        for qb in range(2): A(f"v_exp_f32 {vF[qb]}, -{vMx[qb]}")
        for i in range(8): A(f"v_sub_f32 v{NEG+i}, v{NEG+i}, {vMx[i//4]}")
        for qb in range(2): A(f"v_mul_f32 v{LACC+4*qb}, {vF[qb]}, v{LACC+4*qb}")
        for i in range(64): A(f"v_mul_f32 v{O0+i}, {vF[(i//4)%2]}, v{O0+i}")
        A(f"s_bitcmp1_b32 {sT}, 0"); A("s_cbranch_scc1 L_rare_a")
        for l in ssub(SB): A(l)
        A(f"s_setpc_b64 {sLink2}")
        A.label("L_rare_a")
        for l in ssub(SA): A(l)
        A(f"s_setpc_b64 {sLink2}")
        def tree(ts):
            if len(ts) == 1:
                A(f"s_branch L_t{ts[0]}"); return
            if len(ts) == 2:
                A(f"s_cmp_eq_u32 {sT}, {ts[0]}"); A(f"s_cbranch_scc1 L_t{ts[0]}"); A(f"s_branch L_t{ts[1]}"); return
            h = len(ts) // 2; lab = A.newlabel("Ld")
            A(f"s_cmp_ge_u32 {sT}, {ts[h]}"); A(f"s_cbranch_scc1 {lab}")
            tree(ts[:h]); A.label(lab); tree(ts[h:])
        A.label("L_extras")
        tree(sorted(xs))
        for t in sorted(xs):
            if t == TF - 1: continue
            A.label(f"L_t{t}")
            if t in self.qbt:
                A(f"v_mov_b32 {vF[0]}, {sC}"); A(f"v_mov_b32 {vF[1]}, {sC}")
                for l in self.qfin_ops(True, [self.qbt.index(t)], AQ2): A(l)
            if t == 14:
                A(f"v_cmp_lt_f32 vcc, {sThr}, {vMc}")
                A("s_cbranch_vccz L_x14b")
                A(f"s_call_b64 {sLink2}, L_rare")
                A.label("L_x14b")
                if self.qbt:
                    for k in range(32): A(f"v_accvgpr_mov_b32 a{AQ+k}, a{AQ2+k}")
                else:
                    A(f"v_mov_b32 {vF[0]}, {sC}"); A(f"v_mov_b32 {vF[1]}, {sC}")
                    for l in self.qfin_ops(True): A(l)
                for k in range(8): A(f"v_mov_b32 v{NEG+k}, 0")
                A(f"v_mov_b32 {vMc}, 0")
            if t == 15:
                self.epilogue(True)
                for i in range(32): A(f"v_mov_b64 {vt(O0+2*i,2)}, 0")
                A(f"v_mov_b32 v{LACC}, 0"); A(f"v_mov_b32 v{LACC+4}, 0")
                self.stamp(11)
                A("s_branch L_init")
                continue
            if self.ins and t - self.odl in self.mid:
                i = self.mid.index(t - self.odl)
                un = self.o_units(i, 8 + i, self.AF, vB2, 0)
                A("s_waitcnt lgkmcnt(0)"); A.lds_reset()
                for m in range(7):
                    for r in un[m][2]: A.lds(*r)
                self.stream(un, 16, 7, 4, [[] for _ in range(32)], lambda m: None)
            if t in self.mid:
                self.emit_groups(self.tile_Wo(8 + self.mid.index(t)))
                if not self.ins: self.parks.append(("lds", 8 + self.mid.index(t)))
            A(f"s_setpc_b64 {sRet}")
        A.label(f"L_t{TF - 1}")
        self.final_bodies()
        self.stamp(12)
        self.tail()
        self.hstamp(14)
        if self.hdbg: A("s_waitcnt vmcnt(0)")
        self.hstamp(15)
        self.dump_stamps()
        A.label("L_end")
        A("s_endpgm")
        A.label("L_codeend")

    def tail(self):
        A = self.A; NA = self.nahead; G = self.wgrp
        P0_ = 2 if self.ins else 0
        vm = []
        def need(tag): return min(63, len(vm) - 1 - max(i for i, q in enumerate(vm) if q == tag)) if tag in vm else 63
        vFl, vPol2, vL8 = vPoff, "v29", "v30"
        vB = [[f"v{P0 + i}" for i in range(8)], vVa, vB2]
        slot_of = {p + P0_: k for p, (kind, k) in enumerate(self.parks)}
        free = [k for k in range(10) if k not in slot_of.values()]
        pollB = f"buffer_load_dword {vPol2}, {vFl}, {srd(SWS)}, {sFlagC} offen sc1"
        vm.append("poll")
        A(f"v_add_u32 {vOne}, 1, {vOne}"); A(f"v_add_u32 {vXn}, 1, {vXn}")
        A(pollB); vm.append("pa")
        for db in range(8): A(f"v_add_u32 {vB[0][db]}, {-LV}, {vVa[db]}")
        A(f"v_add_u32 {vL8}, 8192, {vL16}")
        self.epilogue(False); vm += ["OB"] * 8
        self.stamp(13)
        A(f"s_waitcnt vmcnt({need('pa')})")
        A("s_barrier")
        def wgroups(p):
            slot_of[p] = free.pop(0)
            return [(x, ("W", p)) for x in self.tile_Wo(slot_of[p])]
        def agroups(p):
            g = [[f"buffer_load_dwordx4 {self.AF(p, u, qb)}, {vL8 if u else vL16}, {srd(SWS)}, {sAoff} offen offset:{qb*1024}{self.ldf}"] for u in range(2) for qb in range(2)]
            g[0] = [f"s_add_u32 {sAoff}, {sAk[self.tpos(p)[0]]}, {self.tpos(p)[1] * 16384}"] + g[0]
            return [(x, ("A", p)) for x in g]
        def emit(g):
            for l in g[0]: A(l)
            vm.append(g[1])
        wn = P0_ + len(self.parks)
        seen = set(slot_of)
        pend = []
        while free: pend.extend(wgroups(wn)); wn += 1
        plan_slots = dict(slot_of)
        for p in range(wn, 16): plan_slots[p] = plan_slots[p - 10]
        units = []
        for p in range(P0_, 16): units += self.o_units(p, plan_slots[p], self.AF, vB[plan_slots[p] // 4], 16 * (p - P0_))
        bp = 16 - NA
        gaps = [[] for _ in range(2 * len(units))]
        self.moved = 8
        for db in range(7 if self.ins else 0):
            g = 2 * (16 * 13 + 8 + db + 3)
            if g + 1 < len(gaps):
                gaps[g] += [f"v_accvgpr_read_b32 v{O0 + 8*db + j}, a{AACC + 8*db + j}" for j in range(4)]
                gaps[g + 1] += [f"v_accvgpr_read_b32 v{O0 + 8*db + 4 + j}, a{AACC + 8*db + 4 + j}" for j in range(4)]
                self.moved = db + 1
        def mid(m):
            nonlocal wn
            p, i = P0_ + m // 16, m % 16
            if i == 0: self.stamp(24 + p)
            if m == self.ca:
                if self.ca > 1:
                    A(f"s_waitcnt vmcnt({need('pa2')})")
                self.spin("L_c1", f"v_cmp_eq_u32 vcc, {vPoll}, {vPol2}", pollB, 0)
                A(f"v_add_u32 {vPoll}, 2, {vPoll}")
                k = len([g for g in pend if g[1] == pend[0][1]]) if pend else 0
                k = k if k < 4 else 0
                pend[k:k] = agroups(4) + (agroups(5) if self.ins else [])
            if self.ca > 1 and m == 1: A(pollB); vm.append("pa2")
            if m == self.cp:
                A(f"s_waitcnt vmcnt({need('OB')})")
                self.one_lane([f"buffer_store_dword {vOne}, {vZero}, {srd(SWS)}, {sFlagP} offen sc1"]); vm.append("fl")
            if m == self.pbm: A(pollB); vm.append("pb")
            if p == 7 and i == 1:
                A(f"s_waitcnt vmcnt({need('pb')})")
                self.spin("L_c2", f"v_cmp_ne_u32 vcc, {vPoll}, {vPol2}", pollB, 0)
            if i == 1 and (6 if self.ins else 5) <= p + 3 < 16:
                k = len([g for g in pend if g[1] == pend[0][1]]) if pend else 0
                k = k if k < 4 else 0
                pend[k:k] = agroups(p + 3)
            if i == bp:
                nis = [q for q in range(wn, 16) if q - 10 <= p - 1]
                issue = len(nis) >= self.ia or (nis and nis[-1] == 15)
                vis = p + 1 < 16 and p + 1 not in seen
                if vis:
                    tgt = max(q for q in range(p + 1, min(16, p + 1 + self.vah)) if vm.count(("W", q)) == 4)
                    A(f"s_waitcnt vmcnt({need(('W', tgt))})")
                    for q in range(16):
                        if vm.count(("W", q)) == 4 and need(("W", q)) >= need(("W", tgt)): seen.add(q)
                if issue or vis: A("s_barrier")
                if (issue or vis) and nis:
                    for q in nis:
                        free.append(slot_of[wn - 10]); pend.extend(wgroups(wn)); wn += 1
            if i == 15 and 4 <= p + 1 < 16:
                assert vm.count(("A", p + 1)) == 4
                A(f"s_waitcnt vmcnt({need(('A', p + 1))})")
            if pend and i % 2 == 1: emit(pend.pop(0))
        A.lds_reset()
        for m in range(NA):
            for r in units[m][2]: A.lds(*r)
        self.stamp(14); self.stamp(15); self.stamp(18)
        self.stream(units, len(units), NA, G, gaps, mid)
        assert slot_of == plan_slots and not pend
        A("s_nop 3")
        for j in range(8 * self.moved, 64): A(f"v_accvgpr_read_b32 v{O0 + j}, a{AACC + j}")
        self.stamp(16)
        A(f"v_add_u32 v4, {sW4K}, {vL16}")
        A("v_and_b32 v5, 15, v2"); A("v_lshrrev_b32 v6, 4, v2"); A("v_lshlrev_b32 v5, 10, v5"); A("v_lshl_add_u32 v5, v6, 4, v5")
        A(f"v_lshrrev_b32 v7, 2, {vFl}"); A("s_nop 1")
        A(f"s_cmp_eq_u32 {sW}, {sKs}"); A("s_cbranch_scc1 L_own")
        for v in range(4):
            for qb in range(2):
                d = SA + 8 * v + 4 * qb
                for k in range(2):
                    for j in range(2): A(f"v_cvt_pk_bf16_f32 v{d + 2*k + j}, v{O0 + 16*v + 8*k + 4*qb + 2*j}, v{O0 + 16*v + 8*k + 4*qb + 2*j + 1}")
                A(f"buffer_store_dwordx4 {vt(d, 4)}, {vL16}, {srd(SWS)}, {sPXs} offen offset:{((2*v + qb) % 4) * 1024}{self.stf}")
            if v == 1: A(f"s_add_u32 {sPXs}, {sPXs}, 4096")
        self.stamp(20)
        A("s_barrier")
        A("s_waitcnt vmcnt(0)")
        self.stamp(21)
        self.one_lane([f"buffer_store_dword {vXn}, {vZero}, {srd(SWS)}, {sXFs} offen sc1"])
        A("s_branch L_join")
        A.label("L_own")
        A("s_barrier")
        for f in range(16):
            A(f"ds_write_b128 {vL16}, {vt(O0 + 4*f, 4)} offset:{f * 1024}")
            if f % 8 == 7: A("s_waitcnt lgkmcnt(0)")
        A.label("L_join")
        A("s_barrier")
        self.stamp(22)
        for f in range(4): A(f"ds_read_b128 {vt(64 + 4*f, 4)}, v4 offset:{f * 1024}")
        pollX = f"buffer_load_dword {vPol2}, {vFl}, {srd(SWS)}, {sXFr} offen sc1"
        A(f"v_cmp_ne_u32 s[96:97], {sKs}, v7")
        A(pollX); A("s_waitcnt vmcnt(0)")
        A(f"s_mov_b32 {sSpin}, 0x40000")
        A.label("L_c3")
        A(f"v_cmp_eq_u32 vcc, {vXo}, {vPol2}")
        A("s_and_b64 vcc, vcc, s[96:97]")
        A("s_cbranch_vccz L_c3_ok")
        A(f"s_sub_u32 {sSpin}, {sSpin}, 1"); A("s_cbranch_scc1 L_c3_ok")
        A(pollX); A("s_waitcnt vmcnt(0)")
        A("s_branch L_c3")
        A.label("L_c3_ok")
        self.stamp(19)
        for k in range(1, 4):
            A(f"s_add_u32 {sT0}, {sKs}, {k}"); A(f"s_and_b32 {sT0}, {sT0}, 3"); A(f"s_lshl_b32 {sT0}, {sT0}, 13"); A(f"s_add_u32 {sT0}, {sT0}, {sPXr}")
            for qb in range(2): A(f"buffer_load_dwordx4 {vt(72 + 8*k + 4*qb, 4)}, {vL16}, {srd(SWS)}, {sT0} offen offset:{qb * 1024}{self.ldf}")
        A("v_mov_b32 v112, 0x3f80"); A("v_mov_b32 v113, 0x3f800000")
        A("s_waitcnt lgkmcnt(0)")
        for k in range(1, 4):
            A(f"s_waitcnt vmcnt({2 * (3 - k)})")
            for qb in range(2):
                for dd in range(2):
                    for j in range(2):
                        src = 72 + 8*k + 4*qb + 2*dd + j; acc = 64 + 8*dd + 4*qb + 2*j
                        if self.dot:
                            A(f"v_dot2_f32_bf16 v{acc}, v{src}, v112, v{acc}"); A(f"v_dot2_f32_bf16 v{acc+1}, v{src}, v113, v{acc+1}")
                        else:
                            A(f"v_lshlrev_b32 v112, 16, v{src}"); A(f"v_and_b32 v113, 0xffff0000, v{src}")
                            A(f"v_add_f32 v{acc}, v{acc}, v112"); A(f"v_add_f32 v{acc+1}, v{acc+1}, v113")
        if self.dot: A("s_nop 2")
        for qb in range(2):
            for d in range(2):
                for j in range(2): A(f"v_cvt_pk_bf16_f32 v{104 + 4*qb + 2*d + j}, v{64 + 8*d + 4*qb + 2*j}, v{64 + 8*d + 4*qb + 2*j + 1}")
        self.stamp(23)
        w0, w1 = self.widen(104, 106), self.widen(108, 110)
        A("s_nop 0")
        for l in w0[0] + w1[0] + w0[1] + w1[1]: A(l)
        A(f"s_add_u32 {sT0}, {sOutO}, 16384")
        A(f"buffer_store_dwordx4 {vt(104,4)}, v5, {srd(SOUT)}, {sOutO} offen")
        A(f"buffer_store_dwordx4 {vt(108,4)}, v5, {srd(SOUT)}, {sT0} offen")

    def dump_stamps(self):
        if not self.stamps: return
        A = self.A
        A("s_waitcnt vmcnt(0)")
        self.stamp(17)
        A("s_memrealtime s[100:101]")
        A("s_getreg_b32 s3, hwreg(HW_REG_XCC_ID)")
        A("s_waitcnt lgkmcnt(0)")
        A(f"v_writelane_b32 v{VST}, s98, 61"); A(f"v_writelane_b32 v{VST}, s100, 62"); A(f"v_writelane_b32 v{VST}, s3, 63")
        A(f"s_lshl_b32 {sT1}, s2, 2"); A(f"s_add_u32 {sT1}, {sT1}, {sW}"); A(f"s_mul_i32 {sT1}, {sT1}, 768")
        A(f"s_add_u32 {sT1}, {sT1}, {WS_STAMP}")
        A(f"v_lshrrev_b32 v3, 2, {vL16}")
        for k in range(3): A(f"buffer_store_dword v{VST+k}, v3, {srd(SWS)}, {sT1} offen offset:{256*k}")

HDR = open("standalone__mha_block_cached__near_ridge.s.ref").read().split("; Override")[0]
def desc(name):
    return f""".amdhsa_kernel {name}
  .amdhsa_next_free_vgpr 512
  .amdhsa_next_free_sgpr 102
  .amdhsa_accum_offset 256
  .amdhsa_group_segment_fixed_size 0
  .amdhsa_kernarg_size 64
  .amdhsa_user_sgpr_count 2
  .amdhsa_user_sgpr_kernarg_segment_ptr 1
  .amdhsa_system_sgpr_workgroup_id_x 1
.end_amdhsa_kernel
"""
def build(path, verbose=False, cls=None, **kw):
    g = (cls or Gen)(**kw); g.kernel()
    la = align8(g.A.lines, g.nops)
    bad = check_hazards(la)
    print(path, "hazards:", bad, "lines", len(la), "parks", g.parks)
    if verbose: print(g.n)
    s = HDR + "; @launch grid=(256,1,1) block=(256,1,1) lds=163840\n"
    s += '.amdgcn_target "amdgcn-amd-amdhsa--gfx950"\n.text\n'
    s += f".globl {KN}\n.p2align 8\n.type {KN},@function\n{KN}:\n" + "\n".join(la) + "\n"
    s += '.section .rodata,"a"\n.p2align 6\n' + desc(KN)
    open(path, "w").write(s)
if __name__ == "__main__":
    build("v41n4.s", nmax=4)
    build("v41n43.s", nmax=4, nb2=3)
    build("v41w2.s", nmax=4, wgrp=2, nahead=6, latepos=(20, 24, 28, 31), nops=True)
```
